```python
import torch

def _softmax(x, axis=-1):
    return torch.softmax(x, dim=axis)

def _gelu(x):
    return torch.nn.functional.gelu(x, approximate='tanh')

def _silu(x):
    return torch.nn.functional.silu(x)

def _sigmoid(x):
    return torch.sigmoid(x)

def _layernorm(x, axis=-1, eps=1e-05):
    m = x.mean(dim=axis, keepdim=True)
    v = x.var(dim=axis, keepdim=True, unbiased=False)
    return (x - m) / torch.sqrt(v + eps)

def _scatter_add(tgt, idx, src, axis=0):
    return tgt.clone().index_add_(axis, idx, src)

def _segment_sum(src, seg, n):
    out = torch.zeros((n,) + src.shape[1:], dtype=src.dtype)
    return out.index_add_(0, seg, src)

def _pad(x, pw):
    flat = tuple((v for pair in reversed(pw) for v in pair))
    return torch.nn.functional.pad(x, flat)
kernel_name = 'adaLN_cond__gqa_block_cached__swiglu_ffn__decode'

def setup_inputs():

    _w = lambda a: (lambda t: t.to(torch.bfloat16) if t.is_floating_point() else t)(torch.as_tensor(a))

    def _A_setup():
        B, Sq, D = (2, 1, 640)
        Hq, Hkv, Sk, Dh = (32, 32, 8192, 192)
        assert Hq % Hkv == 0, (Hq, Hkv)
        return {'x': _w((lambda *s: torch.randn(*s, dtype=torch.bfloat16) * 0.05)(B, Sq, D)), 'k_cache': _w((lambda *s: torch.randn(*s, dtype=torch.bfloat16) * 0.8)(B, Hkv, Sk, Dh)), 'v_cache': _w((lambda *s: torch.randn(*s, dtype=torch.bfloat16) * 1.6)(B, Hkv, Sk, Dh)), 'wq': _w((lambda *s: torch.randn(*s, dtype=torch.bfloat16) * 0.8)(D, Hq * Dh) * D ** (-0.5)), 'wo': _w((lambda *s: torch.randn(*s, dtype=torch.bfloat16) * 1.6)(Hq * Dh, D) * (Hq * Dh) ** (-0.5))}
    _A_in = _A_setup()

    def _B_setup():
        B, S, D, F = (2, 1, 640, 1536)
        return {'x': _w((lambda *s: torch.randn(*s, dtype=torch.bfloat16) * 0.05)(B, S, D)), 'w_gate': _w((lambda *s: torch.randn(*s, dtype=torch.bfloat16) * 0.1)(D, F)), 'w_up': _w((lambda *s: torch.randn(*s, dtype=torch.bfloat16) * 0.1)(D, F)), 'w_down': _w((lambda *s: torch.randn(*s, dtype=torch.bfloat16) * 0.1)(F, D))}
    _B_in = _B_setup()
    return {'A_x': _A_in['x'], 'A_k_cache': _A_in['k_cache'], 'A_v_cache': _A_in['v_cache'], 'A_wq': _A_in['wq'], 'A_wo': _A_in['wo'], 'B_x': _B_in['x'], 'B_w_gate': _B_in['w_gate'], 'B_w_up': _B_in['w_up'], 'B_w_down': _B_in['w_down'], 'c': _w((lambda *s: torch.randn(*s, dtype=torch.bfloat16) * 0.4)(2, 640) * 8.0), 'w_mod': _w((lambda *s: torch.randn(*s, dtype=torch.bfloat16) * 0.4)(640, 6 * 640) * 640 ** (-0.5) * 8.0)}

def reference(A_x, A_k_cache, A_v_cache, A_wq, A_wo, B_x, B_w_gate, B_w_up, B_w_down, c, w_mod):

    def _A_ref(x, k_cache, v_cache, wq, wo):
        B, Sq, D = x.shape
        Hq, Dh = (32, 192)
        Hkv = k_cache.shape[1]
        rep = Hq // Hkv
        q = (lambda x, *d: x.permute(*d))((x @ wq).reshape(B, Sq, Hq, Dh), 0, 2, 1, 3)
        k = (lambda x, n, axis: torch.repeat_interleave(x, n, dim=axis))(k_cache, rep, axis=1)
        v = (lambda x, n, axis: torch.repeat_interleave(x, n, dim=axis))(v_cache, rep, axis=1)
        scores = torch.einsum('bhqd,bhkd->bhqk', q, k) * Dh ** (-0.5)
        p = _softmax(scores, axis=-1)
        o = torch.einsum('bhqk,bhkd->bhqd', p, v)
        return (lambda x, *d: x.permute(*d))(o, 0, 2, 1, 3).reshape(B, Sq, Hq * Dh) @ wo

    def _B_ref(x, w_gate, w_up, w_down):
        g = _silu(x @ w_gate)
        u = x @ w_up
        return g * u @ w_down
    x = A_x
    mod = (_silu(c) @ w_mod).reshape(c.shape[0], 6, 1, -1)
    sa, ca, ga, sb, cb, gb = (mod[:, 0].clone(), mod[:, 1].clone(), mod[:, 2].clone(), mod[:, 3].clone(), mod[:, 4].clone(), mod[:, 5].clone())
    h = _layernorm(x, axis=-1) * (1 + ca) + sa
    x = x + ga * _A_ref(h, A_k_cache, A_v_cache, A_wq, A_wo)
    h = _layernorm(x, axis=-1) * (1 + cb) + sb
    x = x + gb * _B_ref(h, B_w_gate, B_w_up, B_w_down)
    return x
```

```python
import re

TRANS = ('v_exp_f32', 'v_log_f32', 'v_rcp_f32', 'v_rsq_f32', 'v_sqrt_f32', 'v_sin_f32', 'v_cos_f32')

def regs(tok):
    tok = tok.strip()
    tok = re.sub(r'^-|^abs\(|\)$|^\||\|$', '', tok)
    m = re.fullmatch(r'([vsa])(\d+)', tok)
    if m: return {(m.group(1), int(m.group(2)))}
    m = re.fullmatch(r'([vsa])\[(\d+):(\d+)\]', tok)
    if m: return {(m.group(1), i) for i in range(int(m.group(2)), int(m.group(3)) + 1)}
    if tok in ('vcc', 'vcc_lo', 'vcc_hi'): return {('vcc', 0)}
    if tok in ('exec', 'exec_lo', 'exec_hi'): return {('exec', 0)}
    if tok == 'm0': return {('m0', 0)}
    return set()

class Ins:
    def __init__(self, text):
        self.text = text
        t = text.split(';')[0].strip()
        self.label = None; self.op = None
        self.w = set(); self.r = set(); self.kind = 'other'; self.states = 1
        self.srcC = set(); self.srcAB = set(); self.target = None; self.data = set()
        if t.endswith(':'):
            self.label = t[:-1]; self.states = 0; return
        if not t or t.startswith('.'):
            self.states = 0; return
        parts = t.split(None, 1)
        op = self.op = parts[0]
        rest = parts[1] if len(parts) > 1 else ''
        ops = []; depth = 0; cur = ''
        for ch in rest:
            if ch == '[': depth += 1
            if ch == ']': depth -= 1
            if ch == ',' and depth == 0: ops.append(cur); cur = ''
            else: cur += ch
        if cur.strip(): ops.append(cur)
        mods = ''
        if ops:
            last = ops[-1].strip().split(None, 1)
            ops[-1] = last[0]
            mods = last[1] if len(last) > 1 else ''
        ops = [o.strip() for o in ops]
        self.mods = mods
        R = [regs(o) for o in ops]
        U = lambda l: set().union(*l) if l else set()
        if op == 's_nop':
            self.states = int(ops[0], 0) + 1; self.kind = 'nop'
        elif op.startswith('s_cbranch') or op == 's_branch':
            self.kind = 'branch'; self.target = ops[0]
        elif op == 's_endpgm':
            self.kind = 'end'
        elif op.startswith('v_mfma'):
            self.kind = 'mfma'; self.w = R[0]; self.srcAB = R[1] | R[2]; self.srcC = R[3]; self.r = self.srcAB | self.srcC
            self.passes = 8 if '32x32' in op else 4
        elif op.startswith('v_'):
            self.kind = 'valu'
            self.dpp = '_dpp' in op
            self.trans = any(op.startswith(x) for x in TRANS)
            if op.startswith('v_permlane') :
                self.w = R[0] | R[1]; self.r = R[0] | R[1]; self.perm = True
            elif re.match(r'v_(add|sub|subrev)_co_u32', op) or op.startswith('v_addc_co') or op.startswith('v_subb'):
                self.w = R[0] | R[1]; self.r = U(R[2:])
            else:
                self.w = R[0]; self.r = U(R[1:])
                if op.startswith('v_fmac') or op.startswith('v_dot2c') or self.dpp or op.startswith('v_writelane') or 'sdwa' in op:
                    self.r |= R[0]
                if op.startswith('v_cndmask') and len(ops) == 3: self.r |= {('vcc', 0)}
                if op.startswith('v_cmpx'): self.w |= {('exec', 0)}
            self.rdlane = op.startswith('v_readlane') or op.startswith('v_readfirstlane')
            self.lanesel = R[2] if (op.startswith('v_readlane') or op.startswith('v_writelane')) else set()
        elif op.startswith('ds_'):
            self.kind = 'ds'
            if op.startswith('ds_read') or 'permute' in op or '_rtn' in op or op.startswith('ds_swizzle'):
                self.w = R[0]; self.r = U(R[1:])
            else:
                self.r = U(R)
        elif op.startswith('buffer_') or op.startswith('global_'):
            self.kind = 'vmem'
            self.lds = (' lds' in ' ' + mods) or '_lds_' in op
            if self.lds: self.r = U(R) | {('m0', 0)}
            elif '_load_' in op: self.w = R[0]; self.r = U(R[1:])
            else:
                self.r = U(R)
                if op.endswith('x3') or op.endswith('x4'):
                    self.data = R[0] if op.startswith('buffer_') else R[1]
        elif op.startswith('s_'):
            self.kind = 'salu'
            if op.startswith('s_cmp') or op.startswith('s_bitcmp') or op in ('s_waitcnt', 's_barrier', 's_sleep', 's_setprio'):
                self.r = U(R)
            else:
                self.w = R[0] if R else set(); self.r = U(R[1:])
                if 'saveexec' in op: self.w |= {('exec', 0)}

def V(s): return {x for x in s if x[0] in ('v', 'a')}
def S(s): return {x for x in s if x[0] in ('s', 'vcc')}

def need(p, c):
    n = 0
    if p.kind == 'valu':
        pv = V(p.w); ps = S(p.w)
        if c.kind == 'valu':
            if c.dpp and pv & c.r: n = max(n, 2)
            if getattr(c, 'perm', False) and pv & c.r: n = max(n, 2)
            if c.rdlane and pv & c.r: n = max(n, 1)
            if p.trans and not c.trans and pv & c.r: n = max(n, 1)
            if p.trans and c.trans and pv & c.r: n = max(n, 1)
            if ps & c.r: n = max(n, 2)
            if ps & c.lanesel: n = max(n, 4)
            if 'sdwa' in p.op and pv & (c.r | c.w): n = max(n, 1)
            if p.op.startswith('v_dot') and pv & (c.r | c.w) and p.op != c.op: n = max(n, 3)
            if ('exec', 0) in p.w: n = max(n, 5)
        if c.kind == 'mfma':
            if pv & c.r: n = max(n, 2)
            if ('exec', 0) in p.w: n = max(n, 4)
        if c.kind == 'vmem' and ps & c.r: n = max(n, 5)
        if c.kind in ('salu', 'branch') and ps & (c.r | {('vcc', 0)} if c.kind == 'branch' and 'vcc' in c.op else c.r): n = max(n, 1)
        if c.kind in ('vmem', 'ds') and p.trans and pv & c.r: n = max(n, 1)
    elif p.kind == 'mfma':
        t = {4: (0, 6, 8, 8, 3), 8: (0, 10, 12, 12, 7)}[p.passes]
        if c.kind == 'mfma':
            if p.w & c.srcAB: n = max(n, t[2])
            if p.w & c.srcC:
                if not (p.w == c.srcC and p.op == c.op): n = max(n, t[2])
            elif p.w & c.w: n = max(n, t[1])
        elif c.kind in ('valu', 'ds', 'vmem'):
            if p.w & (c.r | c.w): n = max(n, t[3])
            if c.kind == 'valu' and p.srcC & c.w: n = max(n, t[4])
    elif p.kind == 'salu':
        if ('m0', 0) in p.w and c.kind == 'vmem' and getattr(c, 'lds', False): n = max(n, 1)
    elif p.kind == 'vmem':
        if p.data & c.w: n = max(n, 2 if c.kind in ('valu', 'mfma') else 1)
    return n

def pad(lines):
    ins = [Ins(l) for l in lines]
    MAXD = 13
    changed = True
    total = 0
    while changed:
        changed = False
        labels = {x.label: i for i, x in enumerate(ins) if x.label}
        srcs = {}
        for i, x in enumerate(ins):
            if x.kind == 'branch': srcs.setdefault(labels[x.target], []).append(i)
        i = 0
        while i < len(ins):
            c = ins[i]
            if c.op and c.kind not in ('nop', 'end'):
                req = 0
                stack = [(i - 1, 0, True)]; seen = set()
                while stack:
                    k, d, fall = stack.pop()
                    while k >= 0 and d < MAXD:
                        if (k, d) in seen: break
                        seen.add((k, d))
                        p = ins[k]
                        if fall and (p.kind == 'end' or p.op == 's_branch'): break
                        fall = True
                        if p.label:
                            for s_ in srcs.get(k, []): stack.append((s_, d, False))
                        elif p.op:
                            req = max(req, need(p, c) - d)
                            d += p.states
                        k -= 1
                if req > 0:
                    ins.insert(i, Ins(f's_nop {req - 1}'))
                    total += 1
                    changed = True
                    break_labels = True
                    labels = {x.label: ii for ii, x in enumerate(ins) if x.label}
                    srcs = {}
                    for ii, x in enumerate(ins):
                        if x.kind == 'branch': srcs.setdefault(labels[x.target], []).append(ii)
                    i += 1
            i += 1
    return [x.text for x in ins], total
```

```python
import sys, struct
from asmlib import pad
KN = 'adaLN_cond__gqa_block_cached__swiglu_ffn__decode_kernel'

def f2u(x): return struct.unpack('<I', struct.pack('<f', x))[0]
def hx(x): return hex(f2u(x))
LOG2E = 1.4426950408889634
W_PG = 0x800; W_GL = 0x138000
W_E, W_MOD, W_XC, W_QP, W_ML, W_ATT, W_Y, W_X1, W_ACT, W_MP, W_END = 0, 0x1000, 0x9000, 0x10000, 0x90000, 0xA0000, 0xE0000, 0x130000, 0x132000, 0x140000, 0x180000
W_STAMP = 512 << 20
LPRG, LMODE = 456, 464
LQ, LFLAG, LXS, LHS, LO, LH2, LACT, LDP, LPO, LBIG = 0, 448, 512, 3072, 3584, 4608, 7168, 13312, 16384, 28672
LM, LWQ, LEND = LBIG, LBIG + 20480, LBIG + 98304
P_X, P_K, P_V, P_WQ, P_WO, P_BX, P_G, P_U, P_D, P_C, P_WM, P_OUT, P_DBG, P_WS = range(16, 44, 2)
TAG, S_H, S_J, S_R, S_X, S_IDX, LOC, S_CS = 44, 45, 46, 47, 48, 49, 50, 51
WS = 52; RA = 56; RB = 60
S_ROLE = 15
S_DT = 14
SPIN = 13
SV = 12
ST0 = 80
WSR = f's[{WS}:{WS+3}]'; RAR = f's[{RA}:{RA+3}]'; RBR = f's[{RB}:{RB+3}]'
P = lambda r: f'v[{r}:{r+1}]'
Q4 = lambda r: f'v[{r}:{r+3}]'

class G:
    def __init__(s, **o):
        s.o = dict(F=3, NPF=12, RC=3, endF=6, endN=12, rot=31, stamps=0, wflag='nt', sflag='nt', spin=1 << 18,
                   slp=0, pslp=8, mlslp=64, qF=63, mF=63, bF=1, cF=1, dF=1, cE=1, dE=2, oflag='', warm=1, loc=1,
                   noserv=0, remap=0, diag=0, prio=0, stk='', CH=1, il=0, rsh=0, bal=5, cstep=8, c0=6, gx=0, gstr=12, bno='', aoff=0, cadj=4, cslp=24, cidx=31, nrep=8, tau=285, toff=250, bslp=12, bdel=21, bref='mean', Flo=2, bend=174, fpat='', f0=0, f1=192, yst='sc1', yld='sc1', xst='sc1', xld='sc1', ast='sc1', ald='sc1', gld='sc1')
        s.o.update(o); s.L = []; s.uid = 0; s.cur = '?'
    def __call__(s, t):
        for l in t.split('\n'):
            l = l.strip()
            if l: s.L.append(l)
    def lab(s, n): s.uid += 1; return f'L_{n}_{s.uid}'
    def srd(s, d, ptr, size):
        s(f's_mov_b32 s{d}, s{ptr}\ns_mov_b32 s{d+1}, s{ptr+1}\ns_mov_b32 s{d+2}, {size}\ns_mov_b32 s{d+3}, 0x20000')
    def stamp(s, k, lite=False):
        if s.o['stamps'] == 1 or (s.o['stamps'] and (lite or str(k) + s.cur in s.o['stk'])): s(f's_memrealtime s[{ST0+2*k}:{ST0+2*k+1}]')
    def bf16r(s, d, src=None):
        src = d if src is None else src
        s(f'v_cvt_pk_bf16_f32 v{d}, v{src}, v{src}\nv_and_b32 v{d}, 0xffff0000, v{d}')
    def dppop(s, op, v, ctl): s(f'{op}_dpp v{v}, v{v}, v{v} {ctl} row_mask:0xf bank_mask:0xf')
    def red16(s, op, vs, skip1=False, fill=None):
        for ctl in (['quad_perm:[1,0,3,2]'] if not skip1 else []) + ['quad_perm:[2,3,0,1]', 'row_half_mirror', 'row_mirror']:
            if fill:
                for _ in range(2):
                    if fill: s(fill.pop(0))
            for v in vs: s.dppop(op, v, ctl)
    def swapred(s, op, v, t, w, fill=None):
        s(f'v_mov_b32 v{t}, v{v}')
        if fill:
            for _ in range(2):
                if fill: s(fill.pop(0))
        s(f'v_permlane{w}_swap_b32 v{v}, v{t}\n{op} v{v}, v{v}, v{t}')
    def live(s, text):
        if not s.o['warm']: s(text); return
        l = s.lab('lv'); s(f's_cbranch_execz {l}'); s(text); s(f'{l}:')
    def warm(s, entry, ret):
        if not s.o['warm']: return
        for r in range(1, 8): s(f'v_mov_b32 v{r}, 0')
        s(f's_mov_b64 exec, 0\ns_branch {entry}\n{ret}:\ns_mov_b64 exec, -1')
    def warmret(s, ret):
        if s.o['warm']: s(f's_cbranch_execz {ret}')
    def ck_tag(s, groups, t):
        out = []; first = True
        for g in groups:
            l = []
            for r in g:
                l.append(f'v_xor_b32 v{t}, s{TAG}, v{r}' if first else f'v_bitop3_b32 v{t}, v{r}, s{TAG}, v{t} bitop3:0xbe'); first = False
            out.append('\n'.join(l))
        return out, t
    def ck_xor(s, bases, n, t, t2):
        out = []
        for i, b in enumerate(bases):
            l = [f'v_bitop3_b32 v{t2}, v{b}, v{b+1}, v{b+2} bitop3:0x96']
            if n == 3: l.append(f'v_xor_b32 v{t2}, v{t2}, v{b+3}')
            l.append(f'v_xor_b32 v{t}, s{TAG}, v{t2}' if i == 0 else f'v_bitop3_b32 v{t}, v{t2}, s{TAG}, v{t} bitop3:0xbe')
            out.append('\n'.join(l))
        return out, t
    def poll(s, loads, ck, slp=0, warmable=False):
        checks, t = ck
        a = s.lab('poll'); b = s.lab('ok')
        s(f's_mov_b32 s{SPIN}, {s.o["spin"]}\n{a}:')
        (s.live if warmable else s)('\n'.join(loads))
        for i, c in enumerate(checks): s(f's_waitcnt vmcnt({len(loads) - 1 - i})'); s(c)
        s(f'v_cmp_ne_u32 vcc, 0, v{t}\ns_cbranch_vccz {b}')
        if slp: s(f's_sleep {slp}')
        s(f's_sub_u32 s{SPIN}, s{SPIN}, 1\ns_cbranch_scc0 {a}\n{b}:')
    def gather(s, loads, cks, sm, slp=0):
        n = len(loads); a = s.lab('gat'); b = s.lab('ok')
        s(f's_mov_b32 s{SPIN}, {s.o["spin"]}\ns_mov_b32 s{sm}, {(1 << n) - 1}\n{a}:')
        for k in range(n):
            l = s.lab('sk'); s(f's_bitcmp1_b32 s{sm}, {k}\ns_cbranch_scc0 {l}\n{loads[k]}\n{l}:')
        s(f's_mov_b32 s{sm}, 0\ns_waitcnt vmcnt(0)')
        for k in reversed(range(n)):
            s(cks[k][0][0]); s(f'v_cmp_ne_u32 vcc, 0, v{cks[k][1]}\ns_cmp_lg_u64 vcc, 0\ns_addc_u32 s{sm}, s{sm}, s{sm}')
        s(f's_cmp_eq_u32 s{sm}, 0\ns_cbranch_scc1 {b}')
        if slp: s(f's_sleep {slp}')
        s(f's_sub_u32 s{SPIN}, s{SPIN}, 1\ns_cbranch_scc0 {a}\n{b}:')
    def gstore(s, stores):
        a = s.lab('pl'); b = s.lab('st')
        s(f's_cmp_eq_u32 s{LOC}, 1\ns_cbranch_scc1 {a}')
        for t in stores: s(t + ' sc1')
        s(f's_branch {b}\n{a}:')
        for t in stores: s(t)
        s(f'{b}:')
    def getloc(s, t, spin=True):
        a = s.lab('loc'); b = s.lab('locok')
        if spin: s(f's_mov_b32 s{SPIN}, {s.o["spin"] * 8}\n{a}:')
        s(f'v_mov_b32 v{t}, {LFLAG}\nds_read_b32 v{t}, v{t}\ns_waitcnt lgkmcnt(0)\nv_readfirstlane_b32 s{LOC}, v{t}\ns_sub_u32 s{LOC}, s{LOC}, s{TAG}')
        if spin: s(f's_cmp_le_u32 s{LOC}, 1\ns_cbranch_scc1 {b}\ns_sleep 1\ns_sub_u32 s{SPIN}, s{SPIN}, 1\ns_cbranch_scc0 {a}\n{b}:')
    def dma(s, n, voff, srd, soff, sstep, lds, F):
        out = []
        for t in range(n):
            st = sstep(t) if callable(sstep) else sstep
            out.append(lds(t) if callable(lds) else f's_mov_b32 m0, {lds + 1024 * t}')
            if F < 60: out.append(f's_waitcnt vmcnt({F - 1})')
            out.append(f'buffer_load_dwordx4 v{voff}, s[{srd}:{srd+3}], s{soff} offen {s.o["wflag"]} lds')
            if t < n - 1: out.append(f's_add_u32 s{soff}, s{soff}, {st}')
        return '\n'.join(out)
    def rows(s, d, t, sh, stride):
        s(f'v_lshrrev_b32 v{d}, {sh}, v0\nv_mul_u32_u24 v{d}, {stride}, v{d}\nv_and_b32 v{t}, {(1 << sh) - 1}, v0\nv_lshl_add_u32 v{d}, v{t}, 4, v{d}')
    def tr_lane(s, d, t, gs, rs):
        s(f'v_lshrrev_b32 v{d}, 4, v0\nv_mul_u32_u24 v{d}, {gs}, v{d}')
        s(f'v_bfe_u32 v{t}, v0, 2, 2\nv_mul_u32_u24 v{t}, {rs}, v{t}\nv_add_u32 v{d}, v{d}, v{t}')
        s(f'v_and_b32 v{t}, 3, v0\nv_lshl_add_u32 v{d}, v{t}, 3, v{d}')
    def a_lane(s, d, t, bs, gs, base):
        s(f'v_and_b32 v{d}, 1, v0\nv_mul_u32_u24 v{d}, {bs}, v{d}\nv_lshrrev_b32 v{t}, 4, v0\nv_mul_u32_u24 v{t}, {gs}, v{t}')
        s(f'v_add_u32 v{d}, v{d}, v{t}')
        if base: s(f'v_add_u32 v{d}, {base}, v{d}')
    def mfma(s, d, a, b, first, k=32):
        n = 4 if k == 32 else 2
        s(f'v_mfma_f32_16x16x{k}_bf16 v[{d}:{d+3}], v[{a}:{a+n-1}], v[{b}:{b+n-1}], ' + ('0' if first else f'v[{d}:{d+3}]'))
    def role(s, bit, label, ifset=True): s(f's_bitcmp1_b32 s{S_ROLE}, {bit}\ns_cbranch_scc{1 if ifset else 0} {label}')
    def end(s): s('s_branch L_exit' if s.o['stamps'] else 's_endpgm')
    def tagwait(s): s(f's_waitcnt lgkmcnt(0)\ns_add_u32 s{TAG}, s{TAG}, 0x9e3779b1')

    def entry(s):
        o = s.o
        s(f's_cmp_ge_u32 s2, 256\ns_cbranch_scc1 L_end')
        for k in range(8): s.stamp(k, True)
        if o['diag']: s('s_memrealtime s[76:77]')
        if o['stamps'] == 3: s(f's_waitcnt lgkmcnt(0)\ns_memtime s[{ST0+10}:{ST0+11}]')
        s('s_load_dwordx16 s[16:31], s[0:1], 0\ns_load_dwordx8 s[32:39], s[0:1], 64\ns_load_dwordx4 s[40:43], s[0:1], 96')
        s('v_lshrrev_b32 v1, 6, v0\nv_and_b32 v0, 63, v0\nv_readfirstlane_b32 s3, v1')
        if o['remap']: s('s_lshr_b32 s4, s2, 3\ns_and_b32 s4, s4, 7\ns_xor_b32 s2, s2, s4')
        s(f's_and_b32 s{S_X}, s2, 7\ns_lshr_b32 s{S_IDX}, s2, 3\ns_lshr_b32 s4, s{S_IDX}, 3\ns_and_b32 s{S_J}, s{S_IDX}, 7')
        s(f's_lshl_b32 s{S_H}, s{S_X}, 2\ns_add_u32 s{S_H}, s{S_H}, s4')
        s(f's_lshr_b32 s5, s{S_J}, 2\ns_lshl_b32 s5, s5, 5\ns_add_u32 s{S_R}, s5, s{S_H}')
        lb = s.lab('nonB'); lr = s.lab('roles')
        s(f's_mov_b32 s{S_DT}, 0\ns_mov_b32 s{SV}, s3')
        s(f's_cmp_lt_u32 s{S_J}, 5\ns_cbranch_scc0 {lb}')
        s(f's_mul_i32 s{S_CS}, s{S_X}, 5\ns_add_u32 s{S_CS}, s{S_CS}, s{S_J}')
        s(f's_cmp_eq_u32 s4, 0\ns_cselect_b32 s{S_ROLE}, 5, 1\ns_branch {lr}')
        s(f'{lb}:')
        s(f's_mul_i32 s8, s4, 3\ns_add_u32 s8, s8, s{S_J}\ns_sub_u32 s8, s8, 5')
        s(f's_mul_i32 s{S_CS}, s{S_X}, 6\ns_add_u32 s{S_CS}, s{S_CS}, s8')
        s(f's_add_u32 s5, s8, 10\ns_and_b32 s5, s5, 14\ns_lshl_b32 s6, s5, 2\ns_add_u32 s6, s6, s{S_X}')
        s(f's_lshl_b32 s{S_DT}, s6, 1\ns_and_b32 s7, s8, 1\ns_add_u32 s{S_DT}, s{S_DT}, s7')
        s(f's_cmp_lt_u32 s6, 10\ns_cselect_b32 s{S_ROLE}, 8, 0')
        s(f's_cmp_lt_u32 s8, 6\ns_cselect_b32 s{S_ROLE}, 2, s{S_ROLE}')
        s(f'{lr}:')
        s('s_waitcnt lgkmcnt(0)')
        s(f's_load_dword s{TAG}, s[{P_WS}:{P_WS+1}], 0')
        s.srd(WS, P_WS, 805306368 if o['stamps'] else W_END)
        s('s_cmp_ge_u32 s3, 8\ns_cbranch_scc1 L_service')

    def stream(s):
        s.cur = 'w'
        o = s.o; F = o['F']; NPF = o['NPF']
        VK, QA, ACC, TS, MX = 1, 4, 16, 2, 3
        RING = 24
        SC = RING
        T1, T2, LS, PPT = RING + 8, RING + 9, RING + 10, RING + 11
        MK = RING + 12
        VV, BP, PP2, T3 = RING + 16, RING + 17, RING + 18, RING + 19
        ML = RING + 20
        RET = 7 if o['bal'] else 6
        BM, BA, BZ = RING + 24, RING + 25, RING + 26
        s.srd(RA, P_K, 201326592); s.srd(RB, P_V, 201326592)
        s(f'v_bfe_u32 v{VK}, v0, 1, 3\nv_mul_u32_u24 v{VK}, 384, v{VK}\nv_lshrrev_b32 v2, 4, v0\nv_lshl_add_u32 v{VK}, v2, 5, v{VK}')
        s(f'v_and_b32 v2, 1, v0\nv_lshl_add_u32 v{VK}, v2, 4, v{VK}')
        CH = o['CH']
        s(f's_and_b32 s7, s{S_J}, 3\ns_lshl_b32 s7, s7, 3\ns_add_u32 s7, s7, s3')
        if o['il'] == 0: s(f's_mul_i32 s4, s7, {3072 * CH}')
        else: s(f's_and_b32 s4, s{S_J}, 3\ns_lshl_b32 s5, s3, 2\ns_add_u32 s4, s4, s5\ns_mul_i32 s4, s4, {3072 * CH}')
        s(f's_mul_i32 s5, s{S_R}, 3145728\ns_add_u32 s4, s4, s5\ns_add_u32 s6, s4, 3145728')
        s(f's_lshr_b32 s5, s{S_R}, {o["rsh"]}\ns_mul_i32 s5, s5, {o["rot"]}\ns_and_b32 s5, s5, {32 // CH - 1}\ns_mul_i32 s5, s5, {98304 * CH}\ns_add_u32 s5, s5, s4')
        NL = 192
        quad = {}; free = list(range(3 * NPF)); vm = []
        done = [0]
        def wait(n):
            if len(vm) - done[0] > n:
                s(f's_waitcnt vmcnt({n})'); done[0] = len(vm) - n
        def issue(u):
            f = F
            if o['fpat'] and o['f0'] <= u < o['f1']: f = int(str(o['fpat'])[u % len(str(o['fpat']))])
            wait((o['endF'] if u >= NL - o['endN'] else f) - 1)
            if o['bal'] and 3 * NPF + 9 <= u < NL - o['endN']:
                l = s.lab('th'); s(f's_cbranch_vccz {l}\ns_waitcnt vmcnt({o["Flo"] - 1})\n{l}:')
            q = free.pop(0); quad[u] = q; r = RING + 4 * q
            srd, vo = (RAR, VK) if u < 96 else (RBR, VV)
            s(f'buffer_load_dwordx4 {Q4(r)}, v{vo}, {srd}, s5 offen offset:{128 * (u % 3)} {o["sflag"]}')
            vm.append(u)
            if u % 3 == 2 and u < NL - 1:
                if (u // 3) % CH < CH - 1: s('s_add_u32 s5, s5, 3072')
                else: s(f's_add_u32 s5, s5, {98304 * CH - 3072 * (CH - 1)}\ns_cmp_ge_u32 s5, s6\ns_cselect_b32 s5, s4, s5')
            if o['bal'] and u >= 3 * NPF + 3 and u % 3 == 2:
                if u >= 3 * NPF + 6: s(f's_waitcnt lgkmcnt(0)\nv_cmp_gt_u32 vcc, {u + 1}, v{BM}')
                s(f'v_mov_b32 v{BM}, {u + 1}\nds_write_b32 v{BA}, v{BM} offset:{LPRG}\nds_read_b32 v{BM}, v{BZ} offset:{LMODE}')
        def ready(u): return u in vm and vm.index(u) < done[0]
        def kpost(g):
            a = ACC + 4 * (g & 1); sc = SC + (g >> 2)
            s(f'v_cndmask_b32_e64 v{TS}, v{a}, v{a+1}, s[8:9]')
            s(f'v_add_f32_dpp v{sc}, v{TS}, v{TS} quad_perm:[1,0,3,2] row_mask:{1 << (g & 3)} bank_mask:0xf')
            if g & 3 == 3:
                s.bf16r(sc); s(f'v_mul_f32 v{sc}, {hx(192 ** -0.5)}, v{sc}'); s.bf16r(sc)
                s(f'v_mov_b32 v{MX}, v{sc}' if g == 3 else f'v_max_f32 v{MX}, v{MX}, v{sc}')
        def bperm(g):
            s(f'ds_bpermute_b32 v{PPT if g & 1 == 0 else PP2}, v{BP}, v{SC + (g >> 2)} offset:{64 * (g & 3)}')
        def switch():
            s.stamp(3)
            s.red16('v_max_f32', [MX], skip1=True); s.swapred('v_max_f32', MX, T1, 16); s.swapred('v_max_f32', MX, T1, 32)
            s(f's_mov_b32 s10, {hx(LOG2E)}\nv_mul_f32 v{T2}, s10, v{MX}')
            for k in range(8): s(f'v_fma_f32 v{SC+k}, v{SC+k}, s10, -v{T2}')
            for k in range(8): s(f'v_exp_f32 v{SC+k}, v{SC+k}')
            s(f'v_add_f32 v{LS}, v{SC}, v{SC+1}')
            for k in range(2, 8): s(f'v_add_f32 v{LS}, v{LS}, v{SC+k}')
            for k in range(8): s(f'v_cvt_pk_bf16_f32 v{SC+k}, v{SC+k}, v{SC+k}')
            bperm(0)
            s.red16('v_add_f32', [LS], skip1=True); s.swapred('v_add_f32', LS, T1, 16); s.swapred('v_add_f32', LS, T1, 32)
            s(f'v_mov_b32 v{ML}, v{MX}\nv_mov_b32 v{ML+1}, v{LS}\nv_bitop3_b32 v{ML+2}, v{MX}, v{LS}, s{TAG} bitop3:0x96\nv_mov_b32 v{ML+3}, 0')
            s(f's_lshl_b32 s10, s{S_R}, 5\ns_add_u32 s10, s10, s7\ns_lshl_b32 s10, s10, 4\ns_add_u32 s10, s10, {W_ML}')
            s('s_mov_b64 exec, 1')
            s.gstore([f'buffer_store_dwordx4 {Q4(ML)}, v{ML+3}, {WSR}, s10 offen'])
            s('s_mov_b64 exec, -1')
            vm.append(None)
            s(f'v_lshrrev_b32 v{T1}, 5, v0\nv_mul_u32_u24 v{T1}, 768, v{T1}\nv_and_b32 v{T2}, 7, v0\nv_lshl_add_u32 v{T1}, v{T2}, 5, v{T1}')
            s(f'v_and_b32 v{T2}, 16, v0\nv_add_u32 v{T1}, v{T1}, v{T2}\ns_mul_i32 s10, s3, 1536\ns_add_u32 s10, s10, {LPO}\nv_add_u32 v{T1}, s10, v{T1}')
        def proc(u):
            g, jj = divmod(u, 3)
            if g >= 32 and jj == 0:
                a = ACC + 4 * (g & 1)
                s('s_waitcnt lgkmcnt(0)')
                for k in range(4): s(f'v_and_b32 v{a+k}, v{PPT if g & 1 == 0 else PP2}, v{MK+k}')
                if g < 63: bperm(g - 31)
            wait(len(vm) - 1 - vm.index(u))
            r = RING + 4 * quad[u]
            if g < 32:
                s.mfma(ACC + 4 * (g & 1), QA + 4 * jj, r, jj == 0)
                if jj == 2 and g > 0: kpost(g - 1)
                if u == 5:
                    s(f'v_lshrrev_b32 v{BP}, 3, v0\nv_mul_u32_u24 v{VV}, 384, v{BP}\nv_lshlrev_b32 v{BP}, 3, v{BP}')
                    s(f'v_and_b32 v{T3}, 7, v0\nv_lshl_add_u32 v{VV}, v{T3}, 4, v{VV}')
                    s(f'v_and_b32 v{PP2}, 1, v0\nv_lshlrev_b32 v{PP2}, 4, v{PP2}\nv_mov_b32 v{MK}, 0xffff\nv_lshlrev_b32 v{PP2}, v{PP2}, v{MK}')
                    s(f'v_lshrrev_b32 v{T3}, 1, v{T3}')
                    for k in range(4):
                        s(f'v_cmp_eq_u32 vcc, {k}, v{T3}\nv_cndmask_b32 v{MK+k}, 0, v{PP2}, vcc')
                if u == 6 and o['bal']:
                    s(f's_cmp_eq_u32 s3, 3\ns_cselect_b32 s10, 0, 4\nv_mov_b32 v{BA}, s10\nv_mov_b32 v{BZ}, 0')
                if u == 95: kpost(31); switch()
            else:
                s.mfma(QA + 4 * jj, ACC + 4 * (g & 1), r, g == 32)
            if quad[u] >= RET: free.append(quad[u])
        li = 0
        while li < 3 * NPF:
            issue(li); li += 1
            if li == F: s('s_mov_b32 s8, 0xaaaaaaaa\ns_mov_b32 s9, 0xaaaaaaaa'); s.a_lane(TS, MX, 16, 32, LQ); s.tagwait()
        s.stamp(1, True)
        s('s_barrier')
        s.stamp(2, True)
        for jj in range(3): s(f'ds_read_b128 {Q4(QA+4*jj)}, v{TS} offset:{128*jj}')
        s.getloc(MX, spin=False)
        pi = 0
        while pi < NL:
            if li < NL:
                while not free: proc(pi); pi += 1
                issue(li); li += 1
                n = 0
                while n < o['RC'] and pi < NL and ready(pi): proc(pi); pi += 1; n += 1
            else:
                proc(pi); pi += 1
        s('s_mov_b32 exec_lo, 0x00ff00ff\ns_mov_b32 exec_hi, 0xff00ff00')
        for jj in range(3): s(f'ds_write_b128 v{T1}, {Q4(QA+4*jj)} offset:{256*jj}')
        s('s_mov_b64 exec, -1\ns_waitcnt lgkmcnt(0)')
        s.stamp(4, True)
        s('s_barrier')
        if o['noserv']: s.end()
        s.role(3, 'L_D'); s.role(1, 'L_C'); s.role(0, 'L_exit', False)
        s('L_B:')
        BW, AW, D = 40, 64, 88
        s.tr_lane(2, 3, 2048, 256)
        s(f's_lshl_b32 s10, s{SV}, 5\ns_add_u32 s10, s10, {LBIG}\nv_add_u32 v2, s10, v2')
        for T in range(6):
            for hi in range(2): s(f'ds_read_b64_tr_b16 {P(BW+4*T+2*hi)}, v2 offset:{8192*T + 1024*hi}')
        s.a_lane(3, 4, 384, 16, LO)
        s(f'v_lshlrev_b32 v4, 4, v0')
        s(f's_mul_i32 s10, s{S_H}, 640\ns_lshl_b32 s11, s{S_J}, 7\ns_add_u32 s10, s10, s11\ns_lshl_b32 s11, s{SV}, 4\ns_add_u32 s10, s10, s11')
        s(f's_lshl_b32 s10, s10, 4\ns_add_u32 s10, s10, {W_Y}')
        s('s_waitcnt lgkmcnt(0)'); s.live('s_barrier')
        s.stamp(5)
        for T in range(6): s(f'ds_read_b128 {Q4(AW+4*T)}, v3 offset:{64*T}')
        for T in range(6):
            s(f's_waitcnt lgkmcnt({5-T})'); s.mfma(D + 4 * (T & 1), AW + 4 * T, BW + 4 * T, T < 2)
        s.warmret('L_wB')
        s(f's_mov_b64 exec, 0xffff\nv_pk_add_f32 {P(D)}, {P(D)}, {P(D+4)}\nv_bitop3_b32 v{D+2}, v{D}, v{D+1}, s{TAG} bitop3:0x96')
        s(f'buffer_store_dwordx4 {Q4(D)}, v4, {WSR}, s10 offen {o["yst"]}')
        s.stamp(6)
        s.end()

    def s0(s):
        s.cur = 'a'
        o = s.o
        lsk = s.lab('noM'); lj = s.lab('Mj'); ln = s.lab('Mn')
        s(f's_lshr_b32 s4, s{S_IDX}, 2\ns_lshl_b32 s4, s4, 3\ns_add_u32 s4, s4, s{S_X}')
        s(f's_cmp_lt_u32 s4, 60\ns_cbranch_scc0 {lsk}')
        s(f's_and_b32 s7, s{S_IDX}, 3')
        s.srd(RA, P_C, 2560); s.srd(RB, P_WM, 640 * 7680)
        s('v_min_u32 v1, 39, v0\nv_cmp_lt_u32 vcc, 19, v1\nv_lshlrev_b32 v1, 4, v1\nv_mov_b32 v3, 960\nv_cndmask_b32 v3, 0, v3, vcc\nv_add_u32 v3, v3, v1')
        s(f's_mul_i32 s5, s7, 320\nbuffer_load_dwordx4 v[8:11], v3, {RAR}, s5 offen')
        s.rows(2, 3, 3, 7680)
        s(f's_mul_i32 s5, s7, {160 * 7680}\ns_lshl_b32 s6, s4, 7\ns_add_u32 s5, s5, s6')
        s(s.dma(20, 2, RB, 5, 8 * 7680, LM, o['mF']))
        s('s_waitcnt vmcnt(20)')
        s(f's_mov_b32 s6, {hx(-LOG2E)}')
        for k in range(4): s(f'v_lshlrev_b32 v{20+2*k}, 16, v{8+k}\nv_and_b32 v{21+2*k}, 0xffff0000, v{8+k}')
        for k in range(8): s(f'v_mul_f32 v{40+k}, s6, v{20+k}')
        for k in range(8): s(f'v_exp_f32 v{40+k}, v{40+k}')
        for k in range(8): s(f'v_add_f32 v{40+k}, 1.0, v{40+k}')
        for k in range(8): s(f'v_rcp_f32 v{48+k}, v{40+k}')
        for k in range(8): s(f'v_mul_f32 v{20+k}, v{20+k}, v{48+k}')
        for k in range(4): s(f'v_cvt_pk_bf16_f32 v{8+k}, v{20+2*k}, v{21+2*k}')
        s(f'ds_write_b128 v1, v[8:11] offset:{LXS}')
        s.a_lane(4, 5, 320, 16, LXS)
        s.tr_lane(5, 6, 1024, 128)
        A, B, D = 12, 48, 32
        s.tagwait()
        for T in range(5): s(f'ds_read_b128 {Q4(A+4*T)}, v4 offset:{64*T}')
        s(f'v_lshlrev_b32 v1, 4, v0\ns_mul_i32 s5, s7, {3840 * 16}\ns_lshl_b32 s6, s4, 10\ns_add_u32 s5, s5, s6\ns_add_u32 s5, s5, {W_MP}')
        s.rows(2, 3, 4, 3840 * 16)
        s(f's_lshl_b32 s4, s4, 2\ns_add_u32 s4, s4, s7\ns_lshl_b32 s6, s4, 8\ns_add_u32 s6, s6, {W_MP}')
        s('s_waitcnt vmcnt(0)')
        s.stamp(1)
        for T in range(5):
            for ct in range(4):
                for hi in range(2): s(f'ds_read_b64_tr_b16 {P(B + 16*T + 4*ct + 2*hi)}, v5 offset:{LM + 4096*T + 512*hi + 32*ct}')
            if T:
                s('s_waitcnt lgkmcnt(8)')
                for ct in range(4): s.mfma(D + 4 * ct, A + 4 * (T - 1), B + 16 * (T - 1) + 4 * ct, T == 1)
        s('s_waitcnt lgkmcnt(0)')
        for ct in range(4): s.mfma(D + 4 * ct, A + 16, B + 64 + 4 * ct, False)
        for ct in range(1, 4):
            for b in range(2): s(f'v_mov_b32_dpp v{D+b}, v{D+4*ct+b} quad_perm:[0,1,2,3] row_mask:{1 << ct} bank_mask:0xf')
        s(f'v_bitop3_b32 v{D+2}, v{D}, v{D+1}, s{TAG} bitop3:0x96')
        l2 = s.lab('M2')
        s(f's_cmp_lt_u32 s4, 80\ns_cbranch_scc0 {l2}')
        s(f'buffer_store_dwordx4 {Q4(D)}, v1, {WSR}, s5 offen sc1')
        s.stamp(2)
        s(f's_branch {ln}\n{l2}:')
        s.getloc(6)
        s.gstore([f'buffer_store_dwordx4 {Q4(D)}, v1, {WSR}, s5 offen'])
        s.stamp(2)
        s('s_barrier')
        s.poll([f'buffer_load_dwordx3 v[4:6], v2, {WSR}, s6 offen sc1'], s.ck_xor([4], 2, 8, 9), slp=o['mlslp'])
        for w in (32, 16):
            s.swapred('v_add_f32', 4, 8, w); s.swapred('v_add_f32', 5, 9, w)
        s(f'v_cvt_pk_bf16_f32 v4, v4, v5\nv_mov_b32 v5, s{TAG}\nv_lshlrev_b32 v3, 3, v0\ns_lshl_b32 s5, s4, 7\ns_add_u32 s5, s5, {W_MOD}')
        s(f's_mov_b64 exec, 0xffff\nbuffer_store_dwordx2 v[4:5], v3, {WSR}, s5 offen sc1\ns_mov_b64 exec, -1')
        s(f's_branch {lj}\n{lsk}:'); s.tagwait(); s(f'{ln}:\ns_barrier'); s.getloc(6, spin=False); s(f'{lj}:')
        s.warm('L_T0', 'L_wT0')
        s('v_and_b32 v1, 31, v0\nv_lshlrev_b32 v1, 4, v1')
        s(f's_lshl_b32 s4, s{S_R}, 9\ns_add_u32 s4, s4, {W_ML}')
        s.poll([f'buffer_load_dwordx3 v[4:6], v1, {WSR}, s4 offen sc1'], s.ck_xor([4], 2, 8, 9), slp=o['mlslp'])
        s('v_mov_b32 v8, v4')
        s.red16('v_max_f32', [8]); s.swapred('v_max_f32', 8, 9, 16)
        s(f'v_sub_f32 v4, v4, v8\nv_mul_f32 v4, {hx(LOG2E)}, v4\nv_exp_f32 v4, v4\nv_mul_f32 v5, v5, v4')
        s.red16('v_add_f32', [5]); s.swapred('v_add_f32', 5, 9, 16)
        s('v_rcp_f32 v5, v5\nv_mul_f32 v4, v4, v5')
        s(f's_and_b32 s4, s{S_J}, 3\ns_lshl_b32 s4, s4, 3')
        for w in range(8):
            s(f'v_readlane_b32 s{64+w}, v4, s4')
            if w < 7: s('s_add_u32 s4, s4, 1')
        s(f'v_lshlrev_b32 v1, 2, v0\nv_add_u32 v1, {LPO}, v1\nv_lshlrev_b32 v2, 4, v0')
        s(f's_lshl_b32 s4, s{S_R}, 2\ns_and_b32 s5, s{S_J}, 3\ns_add_u32 s4, s4, s5\ns_lshl_b32 s4, s4, 10\ns_add_u32 s4, s4, {W_ATT}')
        s.bgsetup(0)
        s.stamp(3)
        s('s_barrier')
        s('L_T0:')
        s.stamp(4)
        T = 16
        for k in range(24): s(f'ds_read2st64_b32 {P(T+2*k)}, v1 offset0:{2*k} offset1:{2*k+1}')
        for w in range(8):
            if w >= 3: s(f's_waitcnt lgkmcnt({3 * (7 - w)})')
            elif w == 0: s('s_waitcnt lgkmcnt(15)')
            for hf in range(2):
                for c in range(3):
                    r = T + 6 * w + 3 * hf + c
                    s(f'v_mul_f32 v{8+c}, s{64+w}, v{r}' if w == 0 and hf == 0 else f'v_fmac_f32 v{8+c}, s{64+w}, v{r}')
        s(f'v_bitop3_b32 v11, v8, v9, v10 bitop3:0x96\nv_xor_b32 v11, s{TAG}, v11')
        s.warmret('L_wT0')
        s.gstore([f'buffer_store_dwordx4 v[8:11], v2, {WSR}, s4 offen'])
        s.stamp(5)
        s.role(0, 'L_Bg'); s.role(3, 'L_D'); s.role(1, 'L_exit', False)
        s('s_barrier')
        s.end()

    def bgsetup(s, b):
        s(f's_lshl_b32 s6, s{S_H}, 12\ns_add_u32 s6, s6, {W_ATT + b * 32 * 4096}')
        s(f'v_lshlrev_b32 v2, 4, v0\nv_lshlrev_b32 v3, 1, v0\nv_add_u32 v3, {LO + 384 * b}, v3')
    def bgather(s):
        s.cur = 'g'
        s('L_Bg:')
        s.poll([f'buffer_load_dwordx4 {Q4(16+4*k)}, v2, {WSR}, s6 offen offset:{1024*k} {s.o["gld"]}' for k in range(4)],
               s.ck_xor([16, 20, 24, 28], 3, 12, 13), slp=s.o['slp'], warmable=True)
        s('v_pk_add_f32 v[16:17], v[16:17], v[20:21]\nv_pk_add_f32 v[24:25], v[24:25], v[28:29]\nv_add_f32 v18, v18, v22\nv_add_f32 v26, v26, v30')
        s('v_pk_add_f32 v[16:17], v[16:17], v[24:25]\nv_add_f32 v18, v18, v26')
        s('v_cvt_pk_bf16_f32 v16, v16, v17\nv_cvt_pk_bf16_f32 v18, v18, v18')
        s('ds_write_b16 v3, v16\nds_write_b16_d16_hi v3, v16 offset:128\nds_write_b16 v3, v18 offset:256')
        s.warmret('L_wBg')
        s('s_waitcnt lgkmcnt(0)')
        s.stamp(6)
        s('s_barrier')
        s.end()

    def s1(s):
        s.cur = 'b'
        o = s.o
        s.srd(RA, P_X, 2560); s.srd(RB, P_WQ, 640 * 12288)
        s('v_and_b32 v1, 31, v0\nv_lshlrev_b32 v1, 3, v1\nv_lshrrev_b32 v2, 5, v0\nv_mul_u32_u24 v2, 1280, v2\nv_add_u32 v1, v1, v2')
        for u in range(5): s(f'buffer_load_dwordx2 {P(10+2*u)}, v1, {RAR}, 0 offen offset:{256*u}')
        s(f'v_and_b32 v7, 15, v0\nv_lshl_add_u32 v2, v7, 1, v2\ns_mul_i32 s4, s{S_J}, 160')
        for u in range(5): s(f'buffer_load_ushort v{160+u}, v2, {RAR}, s4 offen offset:{32*u}')
        s.rows(3, 4, 3, 12288)
        s(f's_mul_i32 s5, s{S_J}, {80*12288}\ns_mul_i32 s6, s{S_H}, 384\ns_add_u32 s5, s5, s6')
        s(s.dma(30, 3, RB, 5, lambda t: 128 if t % 3 < 2 else 8 * 12288 - 256, LWQ, o['qF']))
        s('s_waitcnt vmcnt(30)')
        X = 20
        for k in range(10): s(f'v_lshlrev_b32 v{X+2*k}, 16, v{10+k}\nv_and_b32 v{X+2*k+1}, 0xffff0000, v{10+k}')
        s(f'v_add_f32 v4, v{X}, v{X+1}')
        for k in range(2, 20): s(f'v_add_f32 v4, v4, v{X+k}')
        s.red16('v_add_f32', [4]); s.swapred('v_add_f32', 4, 5, 16)
        s(f'v_mul_f32 v4, {hx(1/640)}, v4')
        for k in range(20): s(f'v_sub_f32 v{X+k}, v{X+k}, v4')
        s(f'v_mul_f32 v5, v{X}, v{X}')
        for k in range(1, 20): s(f'v_fmac_f32 v5, v{X+k}, v{X+k}')
        s.red16('v_add_f32', [5]); s.swapred('v_add_f32', 5, 6, 16)
        s(f'v_mul_f32 v5, {hx(1/640)}, v5')
        s.bf16r(4); s.bf16r(5)
        s(f'v_add_f32 v5, {hx(1e-5)}, v5'); s.bf16r(5)
        s('v_sqrt_f32 v5, v5'); s.bf16r(5); s('v_rcp_f32 v5, v5')
        for u in range(5):
            r = 160 + u
            s(f'v_lshlrev_b32 v{r}, 16, v{r}\nv_sub_f32 v{r}, v{r}, v4'); s.bf16r(r)
            s(f'v_mul_f32 v{r}, v{r}, v5'); s.bf16r(r)
        s.tr_lane(4, 5, 3072, 128)
        s(f'v_add_u32 v4, {LWQ}, v4')
        s.tr_lane(5, 6, 512, 128)
        s(f'v_lshrrev_b32 v6, 5, v0\nv_mul_u32_u24 v6, 2048, v6\nv_add_u32 v5, v5, v6\nv_add_u32 v5, {LWQ + 8*3072}, v5')
        BW, AC, A = 100, 40, 88
        def rd(ct):
            b = BW + 10 * (ct % 6); off = 1024 * (ct >> 2) + 32 * (ct & 3)
            for T in range(2):
                for hi in range(2): s(f'ds_read_b64_tr_b16 {P(b+4*T+2*hi)}, v4 offset:{off + 12288*T + 512*hi}')
            s(f'ds_read_b64_tr_b16 {P(b+8)}, v5 offset:{off}')
        s.tagwait()
        s.rows(2, 6, 4, 3840 * 16)
        s(f's_mul_i32 s4, s{S_J}, 1280\ns_add_u32 s4, s4, {W_MP}\ns_add_u32 s5, s4, 10240')
        s('s_waitcnt vmcnt(0)')
        s.stamp(1)
        for ct in range(6): rd(ct)
        M = 40
        s.gather([f'buffer_load_dwordx3 v[{M+4*u}:{M+4*u+2}], v2, {WSR}, s{4 + u // 5} offen offset:{256 * (u % 5)} sc1' for u in range(10)],
                 [s.ck_xor([M + 4 * u], 2, 12, 13) for u in range(10)], 8, slp=o['pslp'])
        s.stamp(2)
        for u in range(10): s(f'v_permlane32_swap_b32 v{M+4*u}, v{M+4*u+1}')
        for u in range(10): s(f'v_add_f32 v{M+4*u}, v{M+4*u}, v{M+4*u+1}')
        for u in range(10): s(f'v_mov_b32 v{M+4*u+1}, v{M+4*u}')
        for u in range(10): s(f'v_permlane16_swap_b32 v{M+4*u}, v{M+4*u+1}')
        for u in range(10): s(f'v_add_f32 v{M+4*u}, v{M+4*u}, v{M+4*u+1}')
        for u in range(10): s.bf16r(M + 4 * u)
        s(f'v_lshrrev_b32 v2, 5, v0\nv_mul_u32_u24 v2, 192, v2\nv_lshl_add_u32 v2, v7, 1, v2')
        for u in range(5):
            c = M + 20 + 4 * u; r = 160 + u
            s(f'v_add_f32 v{c}, 1.0, v{c}'); s.bf16r(c)
            s(f'v_mul_f32 v{r}, v{r}, v{c}'); s.bf16r(r)
            s(f'v_add_f32 v{r}, v{r}, v{M+4*u}\nv_cvt_pk_bf16_f32 v{r}, v{r}, v{r}\nds_write_b16 v2, v{r} offset:{LHS + 32*u}')
        s.getloc(6)
        s.a_lane(2, 3, 192, 16, LHS); s.a_lane(3, 6, 192, 8, LHS + 128)
        s('s_waitcnt lgkmcnt(0)')
        s(f'ds_read_b128 {Q4(A)}, v2\nds_read_b128 {Q4(A+4)}, v2 offset:64\nds_read_b64 {P(A+8)}, v3')
        for half in range(2):
            s('s_waitcnt lgkmcnt(0)')
            for ct in range(6 * half, 6 * half + 6): s.mfma(AC + 4 * ct, A + 8, BW + 10 * (ct % 6) + 8, True, k=16)
            for T in range(2):
                for ct in range(6 * half, 6 * half + 6):
                    s.mfma(AC + 4 * ct, A + 4 * T, BW + 10 * (ct % 6) + 4 * T, False)
                    if half == 0 and T == 1: rd(ct + 6)
        s(f'v_lshlrev_b32 v2, 4, v0\ns_lshl_b32 s4, s{S_H}, 3\ns_add_u32 s5, s4, s{S_J}\ns_lshl_b32 s5, s5, 11\ns_add_u32 s5, s5, {W_QP}')
        for b in range(2):
            for u in range(4):
                for c in range(3):
                    s(f'v_mov_b32_dpp v{16+4*b+c}, v{AC + 4*(3*u+c) + b} quad_perm:[0,1,2,3] row_mask:{1 << u} bank_mask:0xf')
        for b in range(2):
            t = 16 + 4 * b
            s(f'v_bitop3_b32 v{t+3}, v{t}, v{t+1}, v{t+2} bitop3:0x96\nv_xor_b32 v{t+3}, s{TAG}, v{t+3}')
        s.gstore([f'buffer_store_dwordx4 {Q4(16+4*b)}, v2, {WSR}, s5 offen offset:{1024*b}' for b in range(2)])
        s.stamp(3)
        s(f's_lshl_b32 s4, s4, 11\ns_lshr_b32 s5, s{S_J}, 2\ns_lshl_b32 s5, s5, 10\ns_add_u32 s4, s4, s5\ns_add_u32 s4, s4, {W_QP}')
        for k in range(1, 4): s(f's_add_u32 s{4+k}, s4, {4096*k}')
        Q = 40
        s.gather([f'buffer_load_dwordx4 {Q4(Q+4*k)}, v2, {WSR}, s{4 + (k >> 1)} offen offset:{2048*(k & 1)} sc1' for k in range(8)],
                 [s.ck_xor([Q + 4 * k], 3, 12, 13) for k in range(8)], 8, slp=o['pslp'])
        for k in range(1, 8):
            for c in range(3): s(f'v_add_f32 v{Q+c}, v{Q+c}, v{Q+4*k+c}')
        s(f'v_cvt_pk_bf16_f32 v{Q}, v{Q}, v{Q+1}\nv_cvt_pk_bf16_f32 v{Q+2}, v{Q+2}, v{Q+2}')
        s('v_lshrrev_b32 v3, 4, v0\nv_mul_u32_u24 v3, 96, v3\nv_and_b32 v4, 15, v0\nv_lshl_add_u32 v3, v4, 1, v3')
        s(f'ds_write_b16 v3, v{Q} offset:{LQ}\nds_write_b16_d16_hi v3, v{Q} offset:{LQ+32}\nds_write_b16 v3, v{Q+2} offset:{LQ+64}')
        s('s_waitcnt lgkmcnt(0)')
        s.stamp(4)
        s('s_barrier')
        lc = s.lab('s1C'); ld = s.lab('s1D')
        if o['bal'] == 1: s.balance()
        if o['bal'] == 2: s.oracle()
        if o['bal'] == 3: s.balance3()
        if o['bal'] == 4: s.balance4()
        if o['bal'] == 5: s.balance5()
        s.role(1, lc); s.role(3, ld); s.role(0, 'L_exit', False)
        s.warm('L_B', 'L_wB'); s.warm('L_Bg', 'L_wBg')
        s.bgsetup(1)
        s('s_barrier\ns_branch L_Bg')
        s(f'{lc}:'); s.warm('L_C', 'L_wC'); s(f's_mov_b32 s{SV}, 8\ns_barrier\ns_branch L_C')
        s(f'{ld}:\ns_mov_b32 s{SV}, 0'); s.warm('L_D', 'L_wD'); s(f's_mov_b32 s{SV}, 9\ns_barrier\ns_branch L_D')

    def balance(s):
        o = s.o
        a = s.lab('bal'); nr = s.lab('nrep'); e = s.lab('balE')
        s(f'v_and_b32 v1, 31, v0\nv_lshlrev_b32 v1, 2, v1\nv_mov_b32 v2, 0')
        s(f's_lshl_b32 s4, s{S_H}, 2\ns_add_u32 s4, s4, {W_PG}\ns_mov_b32 s5, {W_PG}\ns_lshl_b32 s6, s{S_X}, 2\ns_mov_b32 s{SPIN}, 4096')
        s(f'{a}:\ns_sleep {o["bslp"]}\nds_read_b32 v3, v2 offset:{LPRG}')
        s(f'buffer_load_dword v4, v1, {WSR}, s5 offen sc1\ns_waitcnt lgkmcnt(0)\nv_readfirstlane_b32 s7, v3')
        s(f's_cmp_ge_u32 s7, {o["bend"]}\ns_cselect_b32 s7, 192, s7')
        s(f's_cmp_eq_u32 s{S_J}, 3\ns_cbranch_scc0 {nr}')
        s(f's_add_u32 s8, s7, s{TAG}\nv_mov_b32 v3, s8\ns_mov_b64 exec, 1\nbuffer_store_dword v3, v2, {WSR}, s4 offen sc1\ns_mov_b64 exec, -1')
        s(f'{nr}:\ns_waitcnt vmcnt(0)\nv_subrev_u32 v4, s{TAG}, v4\nv_cmp_lt_u32 vcc, 192, v4')
        s.dppop('v_add_u32', 4, 'quad_perm:[1,0,3,2]'); s.dppop('v_add_u32', 4, 'quad_perm:[2,3,0,1]')
        s('v_readlane_b32 s8, v4, s6')
        op = 'v_add_u32' if o['bref'] == 'mean' else 'v_min_u32'
        s.dppop(op, 4, 'row_half_mirror'); s.dppop(op, 4, 'row_mirror'); s.swapred(op, 4, 5, 16)
        s('v_readfirstlane_b32 s9, v4')
        if o['bref'] == 'mean': s('s_lshr_b32 s9, s9, 3')
        s(f's_add_u32 s9, s9, {o["bdel"]}\ns_cmp_gt_u32 s8, s9\ns_cselect_b32 s8, 1, 0\ns_cmp_eq_u64 vcc, 0\ns_cselect_b32 s8, s8, 0')
        s(f's_cmp_eq_u32 s7, 192\ns_cbranch_scc1 {e}')
        s(f'v_mov_b32 v3, s8\nds_write_b32 v2, v3 offset:{LMODE}')
        s(f's_sub_u32 s{SPIN}, s{SPIN}, 1\ns_cbranch_scc0 {a}\n{e}:')

    def oracle(s):
        o = s.o
        a = s.lab('bal'); e = s.lab('balE')
        s(f'v_mov_b32 v2, 0\ns_mov_b32 s{SPIN}, 40960')
        s(f'{a}:\ns_sleep {o["bslp"]}\nds_read_b32 v3, v2 offset:{LPRG}\ns_memrealtime s[8:9]\ns_waitcnt lgkmcnt(0)\nv_readfirstlane_b32 s7, v3')
        s(f's_cmp_ge_u32 s7, {o["bend"]}\ns_cbranch_scc1 {e}')
        s(f's_sub_u32 s8, s8, s{ST0}\ns_sub_u32 s8, s8, {o["toff"]}\ns_mul_i32 s8, s8, {655360 // o["tau"]}\ns_lshr_b32 s8, s8, 16')
        s(f'v_mov_b32 v3, s8\nds_write_b32 v2, v3 offset:{LMODE}')
        s(f's_sub_u32 s{SPIN}, s{SPIN}, 1\ns_cbranch_scc0 {a}\n{e}:\nv_mov_b32 v3, 999\nds_write_b32 v2, v3 offset:{LMODE}')

    def balance3(s):
        o = s.o; p0 = 3 * o['NPF']; nrep = o['nrep']
        a = s.lab('bal'); e = s.lab('balE'); nr = s.lab('nrep')
        s(f'v_mov_b32 v2, 0\ns_mov_b32 s{SPIN}, 4096\ns_mov_b32 s6, {p0}\ns_and_b32 s4, s{S_IDX}, {256 // nrep - 1}')
        s(f'{a}:\ns_sleep {o["bslp"]}\nds_read_b32 v3, v2 offset:{LPRG}\ns_load_dword s8, s[{P_DBG}:{P_DBG+1}], 0x0 glc\ns_waitcnt lgkmcnt(0)')
        s(f's_lshr_b32 s8, s8, {nrep.bit_length() - 1}\ns_add_u32 s8, s8, {p0 + o["bdel"]}\nv_mov_b32 v4, s8\nds_write_b32 v2, v4 offset:{LMODE}')
        s(f'ds_read_b32 v3, v2 offset:{LPRG}\ns_waitcnt lgkmcnt(0)\nv_readfirstlane_b32 s7, v3')
        s(f's_max_u32 s7, s7, {p0}\ns_cmp_ge_u32 s7, {o["bend"]}\ns_cselect_b32 s7, 192, s7')
        s(f's_cmp_eq_u32 s4, 3\ns_cbranch_scc0 {nr}')
        s(f's_sub_u32 s9, s7, s6\ns_mov_b32 s6, s7\ns_atomic_add s9, s[{P_DBG}:{P_DBG+1}], 0x0')
        s(f'{nr}:\ns_cmp_eq_u32 s7, 192\ns_cbranch_scc1 {e}')
        s(f's_sub_u32 s{SPIN}, s{SPIN}, 1\ns_cbranch_scc0 {a}\n{e}:\nv_mov_b32 v3, 999\nds_write_b32 v2, v3 offset:{LMODE}\ns_waitcnt lgkmcnt(0)')

    def balance4(s):
        o = s.o; p0 = 3 * o['NPF']
        a = s.lab('bal'); e = s.lab('balE'); c = s.lab('ctl')
        s(f'v_mov_b32 v2, 0\ns_mov_b32 s{SPIN}, 4096\ns_lshl_b32 s4, s{S_X}, 7\ns_add_u32 s4, s4, {W_PG}\ns_mov_b32 s6, {p0}')
        s(f'v_and_b32 v1, 31, v0\nv_lshlrev_b32 v1, 2, v1')
        s(f's_lshl_b32 s5, s{S_X}, {o["gstr"]}\ns_add_u32 s5, s5, {W_GL}\ns_mov_b32 s10, {W_GL}\nv_and_b32 v6, 7, v0\nv_lshlrev_b32 v6, {o["gstr"]}, v6\nv_mov_b32 v7, {p0}')
        s(f's_cmp_eq_u32 s{S_IDX}, {o["cidx"]}\ns_cbranch_scc1 {c}')
        s(f's_mov_b64 exec, 1\n{a}:')
        s(f'buffer_load_dword v4, v2, {WSR}, s4 offen sc1' if 'R' not in o['bno'] else 'v_mov_b32 v4, 0')
        s(f'ds_read_b32 v3, v2 offset:{LPRG}\ns_waitcnt vmcnt(0) lgkmcnt(0)')
        s(f'v_subrev_u32 v4, s{TAG}, v4\nds_write_b32 v2, v4 offset:{LMODE}\nv_readfirstlane_b32 s7, v3')
        s(f's_cmp_ge_u32 s7, {o["bend"]}\ns_cbranch_scc1 {e}\ns_sleep {o["bslp"]}')
        s(f's_sub_u32 s{SPIN}, s{SPIN}, 1\ns_cbranch_scc0 {a}\ns_branch {e}')
        s(f'{c}:\nds_read_b32 v3, v2 offset:{LPRG}\ns_waitcnt lgkmcnt(0)\nv_readfirstlane_b32 s7, v3')
        s(f's_max_u32 s7, s7, {p0}\ns_cmp_ge_u32 s7, {o["bend"]}\ns_cselect_b32 s7, 192, s7')
        s(f's_sub_u32 s9, s7, s6\ns_mov_b32 s8, s9\ns_mov_b32 s6, s7')
        if o['gx']:
            s(f's_add_u32 s9, s7, s{TAG}\nv_mov_b32 v4, s9\nbuffer_store_dword v4, v1, {WSR}, s5 offen sc1\nbuffer_load_dword v5, v6, {WSR}, s10 offen sc1\ns_waitcnt vmcnt(0)')
            s(f'v_subrev_u32 v5, s{TAG}, v5\nv_cmp_lt_u32 vcc, 192, v5\nv_cndmask_b32 v5, v5, v7, vcc')
            op = 'v_add_u32' if o['bref'] == 'mean' else 'v_min_u32'
            for ctl in ('quad_perm:[1,0,3,2]', 'quad_perm:[2,3,0,1]', 'row_half_mirror'): s.dppop(op, 5, ctl)
            s('v_readfirstlane_b32 s8, v5')
            if o['bref'] == 'mean': s('s_lshr_b32 s8, s8, 3')
            s(f's_add_u32 s8, s8, {o["bdel"]}')
        else:
            if 'A' not in o['bno']: s(f's_atomic_add s9, s[{P_DBG}:{P_DBG+1}], {o["aoff"]} glc\ns_waitcnt lgkmcnt(0)')
            else: s('s_sleep 32')
            s(f's_add_u32 s8, s8, s9\ns_lshr_b32 s8, s8, 3\ns_add_u32 s8, s8, {p0 + o["bdel"]}')
        s(f's_cmp_eq_u32 s7, 192\ns_cselect_b32 s8, 999, s8\ns_add_u32 s9, s8, s{TAG}\nv_mov_b32 v4, s9')
        if 'S' not in o['bno']: s(f'buffer_store_dword v4, v1, {WSR}, s4 offen')
        s(f's_sub_u32 s8, s8, {o["cadj"]}\nv_mov_b32 v3, s8\nds_write_b32 v2, v3 offset:{LMODE}')
        s(f's_cmp_eq_u32 s7, 192\ns_cbranch_scc1 {e}\ns_sleep {o["cslp"]}')
        s(f's_sub_u32 s{SPIN}, s{SPIN}, 1\ns_cbranch_scc0 {c}')
        s(f'{e}:\ns_mov_b64 exec, -1\nv_mov_b32 v3, 999\nds_write_b32 v2, v3 offset:{LMODE}\ns_waitcnt lgkmcnt(0)')

    def balance5(s):
        o = s.o; p0 = 3 * o['NPF']
        a = s.lab('bal'); e = s.lab('balE'); c = s.lab('nox')
        s(f'v_mov_b32 v2, 0\ns_mov_b32 s{SPIN}, 4096\ns_lshl_b32 s4, s{S_X}, 7\ns_add_u32 s4, s4, {W_PG}')
        s(f's_mul_i32 s6, s{S_IDX}, {o["cstep"]}\ns_add_u32 s6, s6, {p0 + o["c0"]}')
        s(f'v_and_b32 v1, 31, v0\nv_lshlrev_b32 v1, 2, v1')
        s(f's_lshl_b32 s5, s{S_X}, 12\ns_add_u32 s5, s5, {W_GL}\ns_mov_b32 s10, {W_GL}\nv_and_b32 v6, 7, v0\nv_cmp_eq_u32 s[8:9], s{S_X}, v6\nv_lshlrev_b32 v6, 12, v6\nv_mov_b32 v7, {p0}')
        s(f'{a}:\nbuffer_load_dword v4, v2, {WSR}, s4 offen sc1\ns_waitcnt vmcnt(0)\nds_read_b32 v3, v2 offset:{LPRG}')
        s(f'v_subrev_u32 v4, s{TAG}, v4\nds_write_b32 v2, v4 offset:{LMODE}\ns_waitcnt lgkmcnt(0)\nv_readfirstlane_b32 s7, v3')
        s(f's_cmp_ge_u32 s7, {o["bend"]}\ns_cbranch_scc1 {e}')
        s(f's_cmp_ge_u32 s7, s6\ns_cbranch_scc0 {c}')
        s(f's_mov_b32 s6, 999\nv_add_u32 v4, s{TAG}, v3\nbuffer_load_dword v5, v6, {WSR}, s10 offen sc1\nbuffer_store_dword v4, v1, {WSR}, s5 offen sc1\ns_waitcnt vmcnt(1)')
        s(f'v_subrev_u32 v5, s{TAG}, v5\nv_cmp_lt_u32 vcc, 192, v5\nv_cndmask_b32 v5, v5, v7, vcc')
        op = 'v_add_u32' if o['bref'] == 'mean' else 'v_min_u32'
        for ctl in ('quad_perm:[1,0,3,2]', 'quad_perm:[2,3,0,1]', 'row_half_mirror'): s.dppop(op, 5, ctl)
        if o['bref'] == 'mean': s('v_lshrrev_b32 v5, 3, v5')
        s(f'v_add_u32 v5, {o["bdel"]}, v5\nv_add_u32 v5, s{TAG}, v5\nbuffer_store_dword v5, v1, {WSR}, s4 offen')
        s(f'{c}:\ns_sleep {o["bslp"]}\ns_sub_u32 s{SPIN}, s{SPIN}, 1\ns_cbranch_scc0 {a}')
        s(f'{e}:\nv_mov_b32 v3, 999\nds_write_b32 v2, v3 offset:{LMODE}\ns_waitcnt lgkmcnt(0)')

    def stage(s, half):
        o = s.o
        ld = s.lab('stD'); lc = s.lab('stC'); le = s.lab('stE'); l = s.lab('dma')
        s.role(0, ld, False)
        s.srd(RA, P_WO, 6144 * 1280)
        s.rows(1, 2, 4, 1280)
        s(f's_mul_i32 s4, s{S_H}, {192*1280}\ns_lshl_b32 s5, s{S_J}, 8\ns_add_u32 s4, s4, s5\ns_add_u32 s4, s4, {half*96*1280}')
        lds = LBIG + half * 24576
        s(f's_mov_b32 s5, {lds}\n{l}:\ns_mov_b32 m0, s5\ns_waitcnt vmcnt({o["bF"] - 1})')
        s(f'buffer_load_dwordx4 v1, {RAR}, s4 offen {o["wflag"]} lds')
        s(f's_add_u32 s4, s4, {4 * 1280}\ns_add_u32 s5, s5, 1024\ns_cmp_lt_u32 s5, {lds + 24576}\ns_cbranch_scc1 {l}')
        s(f's_branch {le}\n{ld}:')
        s.role(3, lc, False)
        E = o['dE']
        if E:
            s.srd(RA, P_D, 1536 * 1280); s.rows(1, 2, 2, 1280)
            s(f's_lshl_b32 s4, s{S_DT}, 6\ns_add_u32 s4, s4, {half*768*1280}')
            s(s.dma(6 * E, 1, RA, 4, lambda t: 16 * 1280 * (1 if t % E < E - 1 else 9 - E), lambda t: f's_mov_b32 m0, {LBIG + half * 49152 + 8192 * (t // E) + 1024 * (t % E)}', o['dF']))
        s(f's_branch {le}\n{lc}:')
        s.role(1, le, False)
        E = o['cE']
        if E:
            s.srd(RA, P_U if half else P_G, 640 * 3072); s.rows(1, 2, 2, 3072)
            s(f's_lshl_b32 s4, s{S_CS}, 6')
            s(s.dma(10 * E, 1, RA, 4, lambda t: 16 * 3072 * (1 if t % E < E - 1 else 5 - E), lambda t: f's_mov_b32 m0, {LBIG + half * 40960 + 4096 * (t // E) + 1024 * (t % E)}', o['cF']))
        s(f'{le}:\ns_waitcnt vmcnt(0)')

    def s2(s):
        s.cur = 'r'
        o = s.o
        s('s_getreg_b32 s4, hwreg(HW_REG_XCC_ID)')
        s(f'v_and_b32 v1, 7, v0\nv_lshlrev_b32 v1, 3, v1\ns_lshl_b32 s5, s{S_H}, 7\ns_add_u32 s5, s5, {W_XC}\ns_lshl_b32 s6, s{S_J}, 3\ns_add_u32 s6, s6, s5')
        s.tagwait()
        s(f'v_mov_b32 v2, s4\nv_mov_b32 v3, s{TAG}\ns_mov_b64 exec, 1\nbuffer_store_dwordx2 v[2:3], v1, {WSR}, s6 offen sc1\ns_mov_b64 exec, -1')
        s.poll([f'buffer_load_dwordx2 v[4:5], v1, {WSR}, s5 offen sc1'], s.ck_tag([[5]], 6), slp=o['pslp'])
        s(f'v_xor_b32 v4, s4, v4\nv_or_b32 v4, v4, v6\nv_cmp_ne_u32 vcc, 0, v4\ns_cmp_eq_u64 vcc, 0\ns_addc_u32 s4, s{TAG}, 0')
        if not o['loc']: s(f's_mov_b32 s4, s{TAG}')
        s(f'v_mov_b32 v4, s4\nv_mov_b32 v5, {LFLAG}\nds_write_b32 v5, v4\nv_mov_b32 v4, 0\nds_write_b32 v4, v4 offset:{LPRG}\nv_mov_b32 v5, 999\nds_write_b32 v4, v5 offset:{LMODE}\ns_waitcnt lgkmcnt(0)')
        s.stamp(2)
        s('s_barrier')
        s.stage(0)
        s.stamp(1)
        ln = s.lab('noR')
        s.role(2, ln, False)
        s.warm('L_R', 'L_wR')
        s.srd(RA, P_X, 2560)
        s(f'v_and_b32 v1, 15, v0\nv_lshlrev_b32 v2, 1, v1\ns_lshl_b32 s5, s{S_CS}, 5')
        s(f'buffer_load_ushort v4, v2, {RAR}, s5 offen\nbuffer_load_ushort v5, v2, {RAR}, s5 offen offset:1280')
        s(f'v_lshlrev_b32 v2, 3, v1\ns_lshl_b32 s5, s{S_CS}, 7\ns_add_u32 s6, s5, {W_MOD + 1280*8}')
        s.poll([f'buffer_load_dwordx2 v[6:7], v2, {WSR}, s6 offen sc1'], s.ck_tag([[7]], 8), slp=o['mlslp'])
        s('v_lshlrev_b32 v4, 16, v4\nv_lshlrev_b32 v5, 16, v5\nv_and_b32 v7, 0xffff0000, v6\nv_lshlrev_b32 v6, 16, v6')
        s(f's_add_u32 s5, s5, {W_X1}\nv_mov_b32 v9, s{TAG}')
        s.rows(3, 8, 4, 10240)
        s(f's_lshl_b32 s64, s{S_CS}, 8\ns_add_u32 s64, s64, {W_Y}')
        for k in range(1, 8): s(f's_add_u32 s{64+k}, s64, {40960*k}')
        s('s_barrier\ns_barrier')
        s('L_R:')
        s.stamp(4)
        Y = 16
        ck, t = s.ck_xor([Y + 4 * k for k in range(8)], 2, 12, 13)
        for k in range(1, 8): ck[k] += f'\nv_pk_add_f32 v[10:11], {P(Y) if k == 1 else "v[10:11]"}, {P(Y+4*k)}'
        s.poll([f'buffer_load_dwordx3 v[{Y+4*k}:{Y+4*k+2}], v3, {WSR}, s{64+k} offen {o["yld"]}' for k in range(8)], (ck, t), slp=o['slp'], warmable=True)
        s.stamp(5)
        for w in (16, 32):
            s(f'v_mov_b32 v18, v10\nv_mov_b32 v19, v11\nv_permlane{w}_swap_b32 v10, v18\nv_permlane{w}_swap_b32 v11, v19\nv_pk_add_f32 v[10:11], v[10:11], v[18:19]')
        s(f'v_pk_fma_f32 v[10:11], v[10:11], v[6:7], v[4:5]\nv_cvt_pk_bf16_f32 v8, v10, v11')
        s.warmret('L_wR')
        s(f's_mov_b64 exec, 0xffff\nbuffer_store_dwordx2 v[8:9], v2, {WSR}, s5 offen {o["xst"]}')
        s.stamp(6)
        s.end()
        s(f'{ln}:\ns_barrier')
        s.role(3, 'L_D')
        s(f's_mov_b32 s{SV}, 9'); s.role(1, 'L_C')
        s.end()

    def s3(s):
        s.cur = 'l'
        o = s.o
        s.tagwait()
        if o['bal'] >= 4:
            l = s.lab('ini')
            s(f's_cmp_eq_u32 s{S_IDX}, {o["cidx"]}\ns_cbranch_scc0 {l}\ns_lshl_b32 s4, s{S_X}, 7\ns_add_u32 s4, s4, {W_PG}\ns_add_u32 s5, s{TAG}, 999')
            s(f'v_and_b32 v1, 31, v0\nv_lshlrev_b32 v1, 2, v1\nv_mov_b32 v2, s5\nbuffer_store_dword v2, v1, {WSR}, s4 offen\n{l}:')
        s('s_barrier')
        s.stage(1)
        s.stamp(1)
        ln = s.lab('noC')
        s.role(1, ln, False)
        s.warm('L_LN', 'L_wLN')
        C1, SB, X, Z = 8, 28, 48, 72
        s('v_lshlrev_b32 v1, 4, v0')
        s(f's_mov_b32 s4, {W_MOD + 3*5120}\ns_mov_b32 s5, {W_MOD + 3*5120 + 4096}\ns_mov_b32 s6, {W_MOD + 4*5120}\ns_mov_b32 s7, {W_MOD + 4*5120 + 4096}')
        def ld5(base, sa, fl='sc1'): return [f'buffer_load_dwordx4 {Q4(base+4*u)}, v1, {WSR}, s{sa + (u >> 2)} offen offset:{1024*(u & 3)} {fl}' for u in range(5)]
        s.poll(ld5(C1, 6) + ld5(SB, 4), s.ck_tag([[C1 + 1 + 4 * k, C1 + 3 + 4 * k] for k in range(10)], 4), slp=o['mlslp'])
        for k in range(20): s(f'v_and_b32 v{C1+2*k+1}, 0xffff0000, v{C1+2*k}\nv_lshlrev_b32 v{C1+2*k}, 16, v{C1+2*k}')
        for k in range(20): s(f'v_add_f32 v{C1+k}, 1.0, v{C1+k}'); s.bf16r(C1 + k)
        s(f's_mov_b32 s4, {W_X1}\ns_mov_b32 s5, {W_X1 + 4096}')
        s(f'v_lshlrev_b32 v69, 2, v0\nv_add_u32 v2, {LH2}, v69\nv_mul_u32_u24 v3, 48, v0\nv_add_u32 v3, {LACT}, v3')
        s(f's_lshl_b32 s6, s{S_CS}, 8\ns_add_u32 s6, s6, {W_ACT}\ns_mov_b32 s7, {hx(-LOG2E)}\nv_mov_b32 v71, s{TAG}')
        s(f's_mov_b32 s10, {hx(1/640)}\nv_mov_b32 v68, {hx(1e-5)}')
        s('s_barrier\ns_barrier')
        s('L_LN:')
        s.stamp(4)
        ck, t = s.ck_tag([[X + 1 + 4 * u, X + 3 + 4 * u] for u in range(5)], 70)
        for u in range(5):
            for e in range(2):
                r = X + 4 * u + 2 * e
                ck[u] += f'\nv_and_b32 v{r+1}, 0xffff0000, v{r}\nv_lshlrev_b32 v{r}, 16, v{r}'
            ck[u] += f'\nv_pk_add_f32 v[6:7], {P(X+4*u)}, {P(X+4*u+2)}'
            ck[u] += f'\nv_pk_add_f32 v[4:5], v[4:5], v[6:7]' if u else '\nv_mov_b32 v4, v6\nv_mov_b32 v5, v7'
        s.poll(ld5(X, 4, o['xld']), (ck, t), slp=o['slp'], warmable=True)
        s.stamp(5)
        def red2(fill=None):
            s('v_permlane32_swap_b32 v4, v5\nv_add_f32 v4, v4, v5')
            s.red16('v_add_f32', [4], fill=fill); s.swapred('v_add_f32', 4, 5, 16, fill=fill)
        red2()
        s(f'v_mul_f32 v4, s10, v4\nv_readlane_b32 s8, v4, 0\nv_readlane_b32 s9, v4, 32')
        for k in range(10):
            s(f'v_pk_add_f32 {P(X+2*k)}, {P(X+2*k)}, s[8:9] neg_lo:[0,1] neg_hi:[0,1]')
        s(f'v_pk_mul_f32 v[4:5], {P(X)}, {P(X)}\nv_pk_mul_f32 v[6:7], {P(X+2)}, {P(X+2)}')
        for k in range(2, 10): s(f'v_pk_fma_f32 {P(4 + 2*(k&1))}, {P(X+2*k)}, {P(X+2*k)}, {P(4 + 2*(k&1))}')
        s('v_pk_add_f32 v[4:5], v[4:5], v[6:7]')
        fill = [f'v_pk_mul_f32 {P(X+2*k)}, {P(X+2*k)}, {P(C1+2*k)}' for k in range(10)]
        red2(fill)
        for f in fill: s(f)
        s('v_fma_f32 v4, v4, s10, v68\nv_rsq_f32 v4, v4')
        s('v_readlane_b32 s8, v4, 0\nv_readlane_b32 s9, v4, 32')
        for u in range(5):
            r = X + 4 * u
            for e in range(2): s(f'v_pk_fma_f32 {P(r+2*e)}, {P(r+2*e)}, s[8:9], {P(SB+4*u+2*e)}')
            s(f'v_cvt_pk_bf16_f32 v{r}, v{r}, v{r+2}\nv_cvt_pk_bf16_f32 v{r+1}, v{r+1}, v{r+3}')
            s(f'ds_write2st64_b32 v2, v{r}, v{r+1} offset0:{u} offset1:{u+5}')
        s('s_waitcnt lgkmcnt(0)')
        s.stamp(3)
        s.live('s_barrier\ns_barrier')
        s.stamp(2)
        for m in range(2):
            r = Z + 12 * m
            s(f'ds_read_b128 {Q4(r)}, v3 offset:{3072*m}\nds_read_b128 {Q4(r+4)}, v3 offset:{3072*m + 16}\nds_read_b64 {P(r+8)}, v3 offset:{3072*m + 32}')
        for m in range(2):
            r = Z + 12 * m
            s(f's_waitcnt lgkmcnt({3 - 3*m})')
            s(f'v_pk_add_f32 {P(r)}, {P(r)}, {P(r+2)}\nv_pk_add_f32 {P(r+4)}, {P(r+4)}, {P(r+6)}\nv_pk_add_f32 {P(r)}, {P(r)}, {P(r+8)}')
            s(f'v_pk_add_f32 {P(r)}, {P(r)}, {P(r+4)}\nv_add_f32 v{r}, v{r}, v{r+1}')
            if m == 0: s(f'v_mul_f32 v4, s7, v{Z}\nv_exp_f32 v4, v4\nv_add_f32 v4, 1.0, v4\nv_rcp_f32 v4, v4')
        s(f'v_mul_f32 v{Z}, v{Z}, v{Z+12}\nv_mul_f32 v4, v4, v{Z}')
        s('v_mov_b32_dpp v5, v4 quad_perm:[1,1,3,3] row_mask:0xf bank_mask:0xf\nv_cvt_pk_bf16_f32 v70, v4, v5')
        s.warmret('L_wLN')
        s(f's_mov_b32 exec_lo, 0x55555555\ns_mov_b32 exec_hi, 0x55555555\nbuffer_store_dwordx2 v[70:71], v69, {WSR}, s6 offen {o["ast"]}')
        s.stamp(6)
        s.end()
        s(f'{ln}:\ns_barrier')
        s.role(3, 'L_D')
        s.end()

    def crole(s):
        s.cur = 'c'
        o = s.o; E = o['cE']
        s('L_C:')
        BW, A, D = 40, 72, 80
        s(f's_lshl_b32 s4, s{SV}, 12\ns_add_u32 s4, s4, {LBIG}')
        s.srd(RA, P_G, 640 * 3072); s.srd(RB, P_U, 640 * 3072); s.rows(1, 2, 2, 3072)
        s(f's_mul_i32 s5, s{SV}, {64 * 3072}\ns_lshl_b32 s6, s{S_CS}, 6\ns_add_u32 s5, s5, s6\ns_add_u32 s5, s5, {16 * 3072 * E}\ns_mov_b32 s6, s5')
        s.live('s_barrier\n' + s.dma(4 - E, 1, RA, 5, 16 * 3072, lambda t: f's_add_u32 m0, s4, {1024 * (E + t)}', 63) + '\n' +
               s.dma(4 - E, 1, RB, 6, 16 * 3072, lambda t: f's_add_u32 m0, s4, {40960 + 1024 * (E + t)}', 63))
        s.tr_lane(2, 3, 512, 64)
        s('v_add_u32 v2, s4, v2')
        s.a_lane(3, 4, 1280, 16, LH2)
        s(f's_lshl_b32 s4, s{SV}, 7\nv_add_u32 v3, s4, v3')
        s(f'v_mul_u32_u24 v4, 96, v0\ns_lshl_b32 s4, s{SV}, 2\ns_add_u32 s4, s4, {LACT}\nv_add_u32 v4, s4, v4')
        s('s_waitcnt vmcnt(0)')
        s.stamp(3)
        for tt in range(4):
            for T in range(2):
                for hi in range(2):
                    s(f'ds_read_b64_tr_b16 {P(BW + 8*tt + 4*T + 2*hi)}, v2 offset:{2048*T + 256*hi + 32*(tt & 1) + 40960*(tt >> 1)}')
        s('s_waitcnt lgkmcnt(0)'); s.live('s_barrier')
        s.stamp(5)
        for T in range(2): s(f'ds_read_b128 {Q4(A+4*T)}, v3 offset:{64*T}')
        for T in range(2):
            s(f's_waitcnt lgkmcnt({1-T})')
            for tt in range(4): s.mfma(D + 4 * tt, A + 4 * T, BW + 8 * tt + 4 * T, T == 0)
        for tt in range(1, 4):
            for b in range(2): s(f'v_mov_b32_dpp v{D+b}, v{D+4*tt+b} quad_perm:[0,1,2,3] row_mask:{1 << tt} bank_mask:0xf')
        s(f'ds_write2_b32 v4, v{D}, v{D+1} offset0:0 offset1:12')
        s.warmret('L_wC')
        s('s_waitcnt lgkmcnt(0)')
        s.stamp(6)
        s('s_barrier')
        s.end()

    def drole(s):
        s.cur = 'd'
        o = s.o; E = o['dE']
        s('L_D:')
        BW, A, D = 40, 72, 88
        s(f's_lshl_b32 s4, s{SV}, 13\ns_add_u32 s4, s4, {LBIG}')
        s.srd(RA, P_D, 1536 * 1280); s.srd(RB, P_OUT, 2560); s.rows(1, 2, 2, 1280)
        s(f's_mul_i32 s5, s{SV}, {128 * 1280}\ns_lshl_b32 s6, s{S_DT}, 6\ns_add_u32 s5, s5, s6\ns_add_u32 s5, s5, {16 * 1280 * E}')
        s.live('s_barrier\n' + s.dma(8 - E, 1, RA, 5, 16 * 1280, lambda t: f's_add_u32 m0, s4, {1024 * (E + t)}', 63))
        s.tr_lane(2, 3, 512, 64)
        s('v_add_u32 v2, s4, v2\ns_waitcnt vmcnt(0)')
        s.stamp(3)
        for tt in range(2):
            for T in range(4):
                for hi in range(2): s(f'ds_read_b64_tr_b16 {P(BW + 16*tt + 4*T + 2*hi)}, v2 offset:{2048*T + 256*hi + 32*tt}')
        s(f's_lshl_b32 s4, s{SV}, 9\ns_add_u32 s4, s4, {LACT}\nv_lshl_add_u32 v2, v0, 2, s4')
        s.a_lane(3, 4, 256, 16, 0); s('v_add_u32 v3, s4, v3')
        s(f'v_and_b32 v4, 31, v0\nv_mul_u32_u24 v4, 96, v4\ns_lshl_b32 s4, s{SV}, 2\ns_add_u32 s4, s4, {LDP}\nv_add_u32 v4, s4, v4')
        s(f'v_lshlrev_b32 v1, 4, v0\ns_lshl_b32 s5, s{SV}, 10\ns_add_u32 s5, s5, {W_ACT}')
        s('s_mov_b32 s6, 0x05040100\ns_mov_b32 s7, 0x07060302')
        s(f'v_and_b32 v5, 31, v0\nv_lshlrev_b32 v6, 3, v5\nv_lshrrev_b32 v7, 5, v0')
        lf = s.lab('nofin')
        s(f's_cmp_eq_u32 s{SV}, 0\ns_cbranch_scc0 {lf}')
        s(f's_lshl_b32 s8, s{S_DT}, 8\ns_add_u32 s9, s8, {W_MOD + 5*5120}\ns_add_u32 s8, s8, {W_X1}')
        s.poll([f'buffer_load_dwordx2 v[10:11], v6, {WSR}, s9 offen sc1', f'buffer_load_dwordx2 v[8:9], v6, {WSR}, s8 offen sc1'], s.ck_tag([[11], [9]], 12), slp=o['pslp'], warmable=True)
        s('v_lshlrev_b32 v9, 4, v7\nv_lshrrev_b32 v8, v9, v8\nv_lshlrev_b32 v8, 16, v8\nv_lshrrev_b32 v10, v9, v10\nv_lshlrev_b32 v10, 16, v10')
        s(f'{lf}:')
        s(f'v_lshl_add_u32 v6, v5, 1, v7\nv_mul_u32_u24 v6, 48, v6\nv_add_u32 v6, {LDP}, v6')
        s(f'v_mul_u32_u24 v7, 1280, v7\nv_lshl_add_u32 v5, v5, 1, v7\ns_lshl_b32 s8, s{S_DT}, 6')
        s.live('s_barrier')
        s.poll([f'buffer_load_dwordx4 v[16:19], v1, {WSR}, s5 offen {o["ald"]}'], s.ck_tag([[17, 19]], 12), slp=o['slp'], warmable=True)
        s.stamp(5)
        s('v_perm_b32 v17, v18, v16, s7\nv_perm_b32 v16, v18, v16, s6\nds_write2st64_b32 v2, v16, v17 offset0:0 offset1:1\ns_waitcnt lgkmcnt(0)')
        for T in range(4): s(f'ds_read_b128 {Q4(A+4*T)}, v3 offset:{64*T}')
        for T in range(4):
            s(f's_waitcnt lgkmcnt({3-T})')
            for tt in range(2): s.mfma(D + 4 * tt, A + 4 * T, BW + 16 * tt + 4 * T, T == 0)
        for b in range(2): s(f'v_mov_b32_dpp v{D+b}, v{D+4+b} quad_perm:[0,1,2,3] row_mask:0xa bank_mask:0xf')
        s(f'ds_write2_b32 v4, v{D}, v{D+1} offset0:0 offset1:12\ns_waitcnt lgkmcnt(0)'); s.stamp(1); s.live('s_barrier'); s.stamp(2)
        s(f's_cmp_eq_u32 s{SV}, 0\ns_cbranch_scc0 L_exit')
        for k in range(3): s(f'ds_read_b128 {Q4(16+4*k)}, v6 offset:{16*k}')
        s('s_waitcnt lgkmcnt(1)\nv_pk_add_f32 v[16:17], v[16:17], v[18:19]\nv_pk_add_f32 v[20:21], v[20:21], v[22:23]\nv_pk_add_f32 v[16:17], v[16:17], v[20:21]')
        s('s_waitcnt lgkmcnt(0)\nv_pk_add_f32 v[24:25], v[24:25], v[26:27]\nv_pk_add_f32 v[16:17], v[16:17], v[24:25]\nv_add_f32 v16, v16, v17')
        s('v_fma_f32 v16, v16, v10, v8\nv_mov_b32_dpp v17, v16 quad_perm:[1,1,3,3] row_mask:0xf bank_mask:0xf\nv_cvt_pk_bf16_f32 v16, v16, v17')
        s.warmret('L_wD')
        s(f's_mov_b32 exec_lo, 0x55555555\ns_mov_b32 exec_hi, 0x55555555\nbuffer_store_dword v16, v5, {RBR}, s8 offen {o["oflag"]}')
        s.stamp(6)
        s(f's_cmp_eq_u32 s{S_DT}, 0\ns_cbranch_scc0 L_exit')
        s(f's_mov_b64 exec, 1\nv_mov_b32 v17, s{TAG}\nv_mov_b32 v18, 0\nbuffer_store_dword v17, v18, {WSR}, 0 offen {o["oflag"]}')
        if o['diag']:
            s(f'L_diag:\ns_memrealtime s[78:79]\ns_waitcnt lgkmcnt(0)\ns_sub_u32 s78, s78, s76\ns_cmp_lt_u32 s78, {o["diag"]}\ns_cbranch_scc1 L_diag')

    def exit(s):
        s('L_exit:')
        if s.o['stamps']:
            s('s_waitcnt vmcnt(0)')
            s.stamp(7, True)
            if s.o['stamps'] == 3: s(f's_memtime s[{ST0+12}:{ST0+13}]')
            s('s_mov_b64 exec, 1\ns_waitcnt lgkmcnt(0)')
            s(f's_mul_i32 s4, s2, 12\ns_add_u32 s4, s4, s3\ns_lshl_b32 s4, s4, 6\ns_add_u32 s4, s4, {W_STAMP}\nv_mov_b32 v1, 0')
            for k in range(4):
                for e in range(4): s(f'v_mov_b32 v{4+4*k+e}, s{ST0+4*k+e}')
                s(f'buffer_store_dwordx4 {Q4(4+4*k)}, v1, {WSR}, s4 offen offset:{16*k}')
        s('L_end:\ns_endpgm')

    def build(s):
        s.entry(); s.stream()
        s('L_service:')
        if s.o['noserv']: s.end()
        if s.o['prio']: s(f's_setprio {s.o["prio"]}')
        s('s_cmp_eq_u32 s3, 9\ns_cbranch_scc1 L_s1\ns_cmp_eq_u32 s3, 10\ns_cbranch_scc1 L_s2\ns_cmp_eq_u32 s3, 11\ns_cbranch_scc1 L_s3')
        s.s0(); s.bgather(); s('L_s1:'); s.s1(); s('L_s2:'); s.s2(); s('L_s3:'); s.s3(); s.crole(); s.drole(); s.exit()
        body, n = pad(s.L)
        out = [f'; @launch grid=(256,1,1) block=(768,1,1) lds={LEND}', '.amdgcn_target "amdgcn-amd-amdhsa--gfx950"', '.text',
               f'.globl {KN}', '.p2align 8', f'.type {KN},@function', f'{KN}:']
        out += [l if l.endswith(':') else '    ' + l for l in body]
        out += ['.section .rodata,"a"', '.p2align 6', f'.amdhsa_kernel {KN}', '  .amdhsa_next_free_vgpr 168', '  .amdhsa_next_free_sgpr 96',
                '  .amdhsa_accum_offset 168', '  .amdhsa_group_segment_fixed_size 0', '  .amdhsa_kernarg_size 112', '  .amdhsa_user_sgpr_count 2',
                '  .amdhsa_user_sgpr_kernarg_segment_ptr 1', '  .amdhsa_system_sgpr_workgroup_id_x 1', '  .amdhsa_float_denorm_mode_32 3', '.end_amdhsa_kernel']
        return '\n'.join(out) + '\n', n

if __name__ == '__main__':
    names = []
    for spec in sys.argv[1:]:
        kw = {}
        name, _, rest = spec.partition(':')
        for kv in filter(None, rest.split(',')):
            k, v = kv.split('=')
            kw[k] = int(v) if v.isdigit() else v.replace('+', ' ').replace('_', '')
        t, n = G(**kw).build()
        open(name, 'w').write(t)
        names.append(name)
    print(' '.join(names))
```

```python
import sys, struct
from asmlib import pad
KN = 'adaLN_cond__gqa_block_cached__swiglu_ffn__decode_kernel'

def f2u(x): return struct.unpack('<I', struct.pack('<f', x))[0]
def hx(x): return hex(f2u(x))
LOG2E = 1.4426950408889634
W_E, W_PG, W_MOD, W_XC, W_ACT, W_QP, W_ML, W_ATT, W_Y, W_X1, W_GL, W_MP, W_END = (
    0, 0x800, 0x1000, 0x9000, 0xA000, 0x10000, 0x90000, 0xA0000, 0x120000, 0x170000, 0x180000, 0x188000, 0x1C8000)
W_YF = 0xC00; W_YP = 0x1C8000; W_END = 0x1F8000; W_YL = W_QP; W_AL = 0xD000; W_YPL = 0x1E0000
W_STAMP = 512 << 20
LQ, LFLAG, LPRG, LMODE, LXS, LHS, LO, LH2, LACT, LDP, LPO, LBIG = 0, 768, 776, 784, 1024, 3072, 3584, 4608, 7168, 13312, 16384, 40960
LFLAG2 = 792
LM, LWQ, LEND = LBIG, LBIG + 20480, LBIG + 98304
P_X, P_K, P_V, P_WQ, P_WO, P_BX, P_G, P_U, P_D, P_C, P_WM, P_OUT, P_DBG, P_WS = range(16, 44, 2)
TAG, S_H, S_J, S_R, S_X, S_IDX, LOC, S_CS = 44, 45, 46, 47, 48, 49, 50, 51
WS = 52; RA = 56; RB = 60
S_ROLE = 15
S_DT = 14
SPIN = 13
SV = 12
ST0 = 80
WSR = f's[{WS}:{WS+3}]'; RAR = f's[{RA}:{RA+3}]'; RBR = f's[{RB}:{RB+3}]'
P = lambda r: f'v[{r}:{r+1}]'
Q4 = lambda r: f'v[{r}:{r+3}]'

class G:
    def __init__(s, **o):
        s.o = dict(F=3, NPF=12, RC=3, endF=5, endN=9, rot=15, stamps=0, wflag='nt', sflag='nt', spin=1 << 18,
                   slp=0, pslp=8, mlslp=32, qF=63, mF=63, bF=1, cF=1, dF=1, cE=6, dE=3, oflag='', warm=1, loc=1,
                   noserv=0, remap=0, diag=0, prio=0, stk='', nox='', fpat='', f0=0, f1=192, rrep=1, pf='', rdel=0, yl=1, al=0, two=0, gate=3, rslp=0, gslp=0, xslp=0, aslp=0, adel=0,
                   bal=5, stat1=120, bonus=0, keep=1, cstep=8, stag=1, fine=1, c0=6, cidx=31, bslp=8, bdel=20, bref='mean', Flo=2, bend=180, tau=282, toff=150)
        s.o.update(o); s.L = []; s.uid = 0; s.cur = '?'
    def __call__(s, t):
        for l in t.split('\n'):
            l = l.strip()
            if l: s.L.append(l)
    def lab(s, n): s.uid += 1; return f'L_{n}_{s.uid}'
    def srd(s, d, ptr, size):
        s(f's_mov_b32 s{d}, s{ptr}\ns_mov_b32 s{d+1}, s{ptr+1}\ns_mov_b32 s{d+2}, {size}\ns_mov_b32 s{d+3}, 0x20000')
    def stamp(s, k, lite=False):
        if s.o['stamps'] == 1 or (s.o['stamps'] and (lite or str(k) + s.cur in s.o['stk'])): s(f's_memrealtime s[{ST0+2*k}:{ST0+2*k+1}]')
    def bf16r(s, d, src=None):
        src = d if src is None else src
        s(f'v_cvt_pk_bf16_f32 v{d}, v{src}, v{src}\nv_and_b32 v{d}, 0xffff0000, v{d}')
    def dppop(s, op, v, ctl): s(f'{op}_dpp v{v}, v{v}, v{v} {ctl} row_mask:0xf bank_mask:0xf')
    def red16(s, op, vs, skip1=False, fill=None):
        for ctl in (['quad_perm:[1,0,3,2]'] if not skip1 else []) + ['quad_perm:[2,3,0,1]', 'row_half_mirror', 'row_mirror']:
            if fill:
                for _ in range(2):
                    if fill: s(fill.pop(0))
            for v in vs: s.dppop(op, v, ctl)
    def swapred(s, op, v, t, w, fill=None):
        s(f'v_mov_b32 v{t}, v{v}')
        if fill:
            for _ in range(2):
                if fill: s(fill.pop(0))
        s(f'v_permlane{w}_swap_b32 v{v}, v{t}\n{op} v{v}, v{v}, v{t}')
    def live(s, text):
        if not s.o['warm']: s(text); return
        l = s.lab('lv'); s(f's_cbranch_execz {l}'); s(text); s(f'{l}:')
    def warm(s, entry, ret):
        if not s.o['warm']: return
        for r in range(1, 8): s(f'v_mov_b32 v{r}, 0')
        s(f's_mov_b64 exec, 0\ns_branch {entry}\n{ret}:\ns_mov_b64 exec, -1')
    def warmret(s, ret):
        if s.o['warm']: s(f's_cbranch_execz {ret}')
    def ck_tag(s, groups, t):
        out = []; first = True
        for g in groups:
            l = []
            for r in g:
                l.append(f'v_xor_b32 v{t}, s{TAG}, v{r}' if first else f'v_bitop3_b32 v{t}, v{r}, s{TAG}, v{t} bitop3:0xbe'); first = False
            out.append('\n'.join(l))
        return out, t
    def ck_xor(s, bases, n, t, t2):
        out = []
        for i, b in enumerate(bases):
            l = [f'v_bitop3_b32 v{t2}, v{b}, v{b+1}, v{b+2} bitop3:0x96']
            if n == 3: l.append(f'v_xor_b32 v{t2}, v{t2}, v{b+3}')
            l.append(f'v_xor_b32 v{t}, s{TAG}, v{t2}' if i == 0 else f'v_bitop3_b32 v{t}, v{t2}, s{TAG}, v{t} bitop3:0xbe')
            out.append('\n'.join(l))
        return out, t
    def poll(s, loads, ck, slp=0, warmable=False, nm='?'):
        if nm in s.o['nox']: return
        checks, t = ck
        a = s.lab('poll'); b = s.lab('ok')
        s(f's_mov_b32 s{SPIN}, {s.o["spin"]}\n{a}:')
        (s.live if warmable else s)('\n'.join(loads))
        for i, c in enumerate(checks): s(f's_waitcnt vmcnt({len(loads) - 1 - i})'); s(c)
        s(f'v_cmp_ne_u32 vcc, 0, v{t}\ns_cbranch_vccz {b}')
        if slp: s(f's_sleep {slp}')
        s(f's_sub_u32 s{SPIN}, s{SPIN}, 1\ns_cbranch_scc0 {a}\n{b}:')
    def gather(s, loads, cks, sm, slp=0, nm='?'):
        if nm in s.o['nox']: return
        n = len(loads); a = s.lab('gat'); b = s.lab('ok')
        s(f's_mov_b32 s{SPIN}, {s.o["spin"]}\ns_mov_b32 s{sm}, {(1 << n) - 1}\n{a}:')
        for k in range(n):
            l = s.lab('sk'); s(f's_bitcmp1_b32 s{sm}, {k}\ns_cbranch_scc0 {l}\n{loads[k]}\n{l}:')
        s(f's_mov_b32 s{sm}, 0\ns_waitcnt vmcnt(0)')
        for k in reversed(range(n)):
            s(cks[k][0][0]); s(f'v_cmp_ne_u32 vcc, 0, v{cks[k][1]}\ns_cmp_lg_u64 vcc, 0\ns_addc_u32 s{sm}, s{sm}, s{sm}')
        s(f's_cmp_eq_u32 s{sm}, 0\ns_cbranch_scc1 {b}')
        if slp: s(f's_sleep {slp}')
        s(f's_sub_u32 s{SPIN}, s{SPIN}, 1\ns_cbranch_scc0 {a}\n{b}:')
    def gstore(s, stores, nm='?'):
        if nm in s.o['nox']: return
        a = s.lab('pl'); b = s.lab('st')
        s(f's_cmp_eq_u32 s{LOC}, 1\ns_cbranch_scc1 {a}')
        for t in stores: s(t + ' sc1')
        s(f's_branch {b}\n{a}:')
        for t in stores: s(t)
        s(f'{b}:')
    def getloc(s, t, spin=True):
        a = s.lab('loc'); b = s.lab('locok')
        if spin: s(f's_mov_b32 s{SPIN}, {s.o["spin"] * 8}\n{a}:')
        s(f'v_mov_b32 v{t}, {LFLAG}\nds_read_b32 v{t}, v{t}\ns_waitcnt lgkmcnt(0)\nv_readfirstlane_b32 s{LOC}, v{t}\ns_sub_u32 s{LOC}, s{LOC}, s{TAG}')
        if spin: s(f's_cmp_le_u32 s{LOC}, 1\ns_cbranch_scc1 {b}\ns_sleep 1\ns_sub_u32 s{SPIN}, s{SPIN}, 1\ns_cbranch_scc0 {a}\n{b}:')
    def dma(s, n, voff, srd, soff, sstep, lds, F):
        out = []
        for t in range(n):
            st = sstep(t) if callable(sstep) else sstep
            out.append(lds(t) if callable(lds) else f's_mov_b32 m0, {lds + 1024 * t}')
            if F < 60: out.append(f's_waitcnt vmcnt({F - 1})')
            out.append(f'buffer_load_dwordx4 v{voff}, s[{srd}:{srd+3}], s{soff} offen {s.o["wflag"]} lds')
            if t < n - 1: out.append(f's_add_u32 s{soff}, s{soff}, {st}')
        return '\n'.join(out)
    def rows(s, d, t, sh, stride):
        s(f'v_lshrrev_b32 v{d}, {sh}, v0\nv_mul_u32_u24 v{d}, {stride}, v{d}\nv_and_b32 v{t}, {(1 << sh) - 1}, v0\nv_lshl_add_u32 v{d}, v{t}, 4, v{d}')
    def tr_lane(s, d, t, gs, rs):
        s(f'v_lshrrev_b32 v{d}, 4, v0\nv_mul_u32_u24 v{d}, {gs}, v{d}')
        s(f'v_bfe_u32 v{t}, v0, 2, 2\nv_mul_u32_u24 v{t}, {rs}, v{t}\nv_add_u32 v{d}, v{d}, v{t}')
        s(f'v_and_b32 v{t}, 3, v0\nv_lshl_add_u32 v{d}, v{t}, 3, v{d}')
    def a_lane(s, d, t, bs, gs, base):
        s(f'v_and_b32 v{d}, 1, v0\nv_mul_u32_u24 v{d}, {bs}, v{d}\nv_lshrrev_b32 v{t}, 4, v0\nv_mul_u32_u24 v{t}, {gs}, v{t}')
        s(f'v_add_u32 v{d}, v{d}, v{t}')
        if base: s(f'v_add_u32 v{d}, {base}, v{d}')
    def mfma(s, d, a, b, first, k=32):
        n = 4 if k == 32 else 2
        s(f'v_mfma_f32_16x16x{k}_bf16 v[{d}:{d+3}], v[{a}:{a+n-1}], v[{b}:{b+n-1}], ' + ('0' if first else f'v[{d}:{d+3}]'))
    def role(s, bit, label, ifset=True): s(f's_bitcmp1_b32 s{S_ROLE}, {bit}\ns_cbranch_scc{1 if ifset else 0} {label}')
    def end(s): s('s_branch L_exit' if s.o['stamps'] else 's_endpgm')
    def tagwait(s): s(f's_waitcnt lgkmcnt(0)\ns_add_u32 s{TAG}, s{TAG}, 0x9e3779b1')

    def entry(s):
        o = s.o
        s(f's_cmp_ge_u32 s2, 256\ns_cbranch_scc1 L_end')
        for k in range(8): s.stamp(k, True)
        if o['diag']: s('s_memrealtime s[76:77]')
        if o['stamps'] == 3: s(f's_waitcnt lgkmcnt(0)\ns_memtime s[{ST0+10}:{ST0+11}]')
        s('s_load_dwordx16 s[16:31], s[0:1], 0\ns_load_dwordx8 s[32:39], s[0:1], 64\ns_load_dwordx4 s[40:43], s[0:1], 96')
        s('v_lshrrev_b32 v1, 6, v0\nv_and_b32 v0, 63, v0\nv_readfirstlane_b32 s3, v1')
        if o['remap']: s('s_lshr_b32 s4, s2, 3\ns_and_b32 s4, s4, 7\ns_xor_b32 s2, s2, s4')
        s(f's_and_b32 s{S_X}, s2, 7\ns_lshr_b32 s{S_IDX}, s2, 3\ns_lshr_b32 s4, s{S_IDX}, 3\ns_and_b32 s{S_J}, s{S_IDX}, 7')
        s(f's_lshl_b32 s{S_H}, s{S_X}, 2\ns_add_u32 s{S_H}, s{S_H}, s4')
        s(f's_lshr_b32 s5, s{S_J}, 2\ns_lshl_b32 s5, s5, 5\ns_add_u32 s{S_R}, s5, s{S_H}')
        lb = s.lab('nonB'); lr = s.lab('roles')
        s(f's_mov_b32 s{S_DT}, 0\ns_mov_b32 s{SV}, s3')
        s(f's_cmp_lt_u32 s{S_J}, 5\ns_cbranch_scc0 {lb}')
        if o['rrep']:
            s(f's_mul_i32 s{S_CS}, s4, 5\ns_add_u32 s{S_CS}, s{S_CS}, s{S_J}\ns_lshl_b32 s{S_CS}, s{S_CS}, 1\ns_and_b32 s5, s3, 1\ns_add_u32 s{S_CS}, s{S_CS}, s5')
            s(f's_mov_b32 s{S_ROLE}, 5\ns_branch {lr}')
        else:
            s(f's_mul_i32 s{S_CS}, s{S_X}, 5\ns_add_u32 s{S_CS}, s{S_CS}, s{S_J}')
            s(f's_cmp_eq_u32 s4, 0\ns_cselect_b32 s{S_ROLE}, 5, 1\ns_branch {lr}')
        s(f'{lb}:')
        s(f's_mul_i32 s8, s4, 3\ns_add_u32 s8, s8, s{S_J}\ns_sub_u32 s8, s8, 5')
        s(f's_mul_i32 s{S_CS}, s{S_X}, 6\ns_add_u32 s{S_CS}, s{S_CS}, s8')
        s(f's_add_u32 s5, s8, 10\ns_and_b32 s5, s5, 14\ns_lshl_b32 s6, s5, 2\ns_add_u32 s6, s6, s{S_X}')
        s(f's_lshl_b32 s{S_DT}, s6, 1\ns_and_b32 s7, s8, 1\ns_add_u32 s{S_DT}, s{S_DT}, s7')
        s(f's_cmp_lt_u32 s6, 10\ns_cselect_b32 s{S_ROLE}, 8, 0')
        s(f's_cmp_lt_u32 s8, 6\ns_cselect_b32 s{S_ROLE}, 2, s{S_ROLE}')
        s(f'{lr}:')
        s('s_waitcnt lgkmcnt(0)')
        s(f's_load_dword s{TAG}, s[{P_WS}:{P_WS+1}], 0')
        s.srd(WS, P_WS, 805306368 if o['stamps'] else W_END)
        s('s_cmp_ge_u32 s3, 8\ns_cbranch_scc1 L_service')

    def stream(s):
        s.cur = 'w'
        o = s.o; F = o['F']; NPF = o['NPF']
        VK, QA, ACC, TS, MX = 1, 4, 16, 2, 3
        RING = 24
        SC = RING
        T1, T2, LS, PPT = RING + 8, RING + 9, RING + 10, RING + 11
        MK = RING + 12
        VV, BP, PP2, T3 = RING + 16, RING + 17, RING + 18, RING + 19
        ML = RING + 20
        RET = 7
        BM, BA, BZ, MX1 = RING + 24, RING + 25, RING + 26, RING + 27
        A2 = []
        s.srd(RA, P_K, 201326592); s.srd(RB, P_V, 201326592)
        s(f'v_bfe_u32 v{VK}, v0, 1, 3\nv_mul_u32_u24 v{VK}, 384, v{VK}\nv_lshrrev_b32 v2, 4, v0\nv_lshl_add_u32 v{VK}, v2, 5, v{VK}')
        s(f'v_and_b32 v2, 1, v0\nv_lshl_add_u32 v{VK}, v2, 4, v{VK}')
        BD = 32 * 3145728
        s(f's_lshl_b32 s7, s{S_J}, 3\ns_add_u32 s7, s7, s3\ns_mul_i32 s4, s7, 3072')
        s(f's_mul_i32 s5, s{S_H}, 3145728\ns_add_u32 s4, s4, s5\ns_add_u32 s6, s4, 3145728')
        s(f's_mul_i32 s5, s{S_H}, {o["rot"]}\ns_and_b32 s5, s5, 15\ns_mul_i32 s5, s5, 196608\ns_add_u32 s5, s5, s4')
        NL = 192
        quad = {}; free = list(range(3 * NPF)); vm = []
        done = [0]
        def wait(n):
            if len(vm) - done[0] > n:
                s(f's_waitcnt vmcnt({n})'); done[0] = len(vm) - n
        def issue(u):
            f = F
            if o['fpat'] and o['f0'] <= u < o['f1']: f = int(str(o['fpat'])[u % len(str(o['fpat']))])
            wait((o['endF'] if u >= NL - o['endN'] else f) - 1)
            if o['bal'] and 3 * NPF + 9 <= u < NL - o['endN']:
                l = s.lab('th'); s(f's_cbranch_vccz {l}\ns_waitcnt vmcnt({o["Flo"] - 1})\n{l}:')
            q = free.pop(0); quad[u] = q; r = RING + 4 * q
            srd, vo = (RAR, VK) if u < 96 else (RBR, VV)
            s(f'buffer_load_dwordx4 {Q4(r)}, v{vo}, {srd}, s5 offen offset:{128 * (u % 3)} {o["sflag"]}')
            vm.append(u)
            if u % 3 == 2 and u < NL - 1:
                s('s_add_u32 s5, s5, 196608\ns_cmp_ge_u32 s5, s6\ns_cselect_b32 s5, s4, s5')
                if u % 48 == 47:
                    op = 's_sub_u32' if u == 95 else 's_add_u32'
                    for r in (4, 5, 6): s(f'{op} s{r}, s{r}, {BD}')
            if u >= 3 * NPF + 3 and (u % 3 == 2 or o['fine']):
                if u >= 3 * NPF + 6: s(f's_waitcnt lgkmcnt(0)\nv_cmp_gt_u32 vcc, {u + 1}, v{BM}')
                s(f'v_mov_b32 v{BM}, {u + 1}\nds_write_b32 v{BA}, v{BM} offset:{LPRG}\nds_read_b32 v{BM}, v{BZ} offset:{LMODE}')
        def ready(u): return u in vm and vm.index(u) < done[0]
        def kpost(g):
            a = ACC + 4 * (g & 1); sc = SC + (g >> 2)
            s(f'v_cndmask_b32_e64 v{TS}, v{a}, v{a+1}, s[8:9]')
            s(f'v_add_f32_dpp v{sc}, v{TS}, v{TS} quad_perm:[1,0,3,2] row_mask:{1 << (g & 3)} bank_mask:0xf')
            if g & 3 == 3:
                s.bf16r(sc); s(f'v_mul_f32 v{sc}, {hx(192 ** -0.5)}, v{sc}'); s.bf16r(sc)
                mx = MX if g < 16 else MX1
                s(f'v_mov_b32 v{mx}, v{sc}' if g & 15 == 3 else f'v_max_f32 v{mx}, v{mx}, v{sc}')
        def bperm(g):
            s(f'ds_bpermute_b32 v{PPT if g & 1 == 0 else PP2}, v{BP}, v{SC + (g >> 2)} offset:{64 * (g & 3)}')
        def switch():
            s.stamp(3)
            mx = (MX, MX1); ls = (LS, T3); tt = (T1, T2)
            s.red16('v_max_f32', mx, skip1=True)
            for w in (16, 32):
                for b in range(2): s.swapred('v_max_f32', mx[b], tt[b], w)
            s(f's_mov_b32 s10, {hx(LOG2E)}')
            for b in range(2): s(f'v_mul_f32 v{tt[b]}, s10, v{mx[b]}')
            for k in range(8): s(f'v_fma_f32 v{SC+k}, v{SC+k}, s10, -v{tt[k >> 2]}')
            for k in range(8): s(f'v_exp_f32 v{SC+k}, v{SC+k}')
            for b in range(2):
                s(f'v_add_f32 v{ls[b]}, v{SC+4*b}, v{SC+4*b+1}\nv_add_f32 v{tt[b]}, v{SC+4*b+2}, v{SC+4*b+3}\nv_add_f32 v{ls[b]}, v{ls[b]}, v{tt[b]}')
            for k in range(8): s(f'v_cvt_pk_bf16_f32 v{SC+k}, v{SC+k}, v{SC+k}')
            bperm(0)
            s.red16('v_add_f32', ls, skip1=True)
            for w in (16, 32):
                for b in range(2): s.swapred('v_add_f32', ls[b], tt[b], w)
            s(f'v_cndmask_b32_e64 v{ML}, v{MX}, v{MX1}, s[8:9]\nv_cndmask_b32_e64 v{ML+1}, v{LS}, v{T3}, s[8:9]')
            s(f'v_bitop3_b32 v{ML+2}, v{ML}, v{ML+1}, s{TAG} bitop3:0x96\nv_lshlrev_b32 v{ML+3}, 10, v0')
            s(f's_lshl_b32 s10, s{S_H}, 7\ns_add_u32 s10, s10, s7\ns_lshl_b32 s10, s10, 4\ns_add_u32 s10, s10, {W_ML}')
            s('s_mov_b64 exec, 3')
            s.gstore([f'buffer_store_dwordx4 {Q4(ML)}, v{ML+3}, {WSR}, s10 offen'])
            s('s_mov_b64 exec, -1')
            vm.append(None)
            s(f'v_lshrrev_b32 v{T1}, 5, v0\nv_mul_u32_u24 v{T1}, 768, v{T1}\nv_and_b32 v{T2}, 7, v0\nv_lshl_add_u32 v{T1}, v{T2}, 5, v{T1}')
            s(f'v_and_b32 v{T2}, 16, v0\nv_add_u32 v{T1}, v{T1}, v{T2}\ns_mul_i32 s10, s3, 1536\ns_add_u32 s10, s10, {LPO}\nv_add_u32 v{T1}, s10, v{T1}')
        def outp(acc, b):
            s('s_mov_b32 exec_lo, 0x00ff00ff\ns_mov_b32 exec_hi, 0xff00ff00')
            for jj in range(3): s(f'ds_write_b128 v{T1}, {Q4(acc[jj])} offset:{256*jj + 12288*b}')
            s('s_mov_b64 exec, -1')
        def proc(u):
            g, jj = divmod(u, 3)
            if g >= 32 and jj == 0:
                a = ACC + 4 * (g & 1)
                s('s_waitcnt lgkmcnt(0)')
                for k in range(4): s(f'v_and_b32 v{a+k}, v{PPT if g & 1 == 0 else PP2}, v{MK+k}')
                if g < 63: bperm(g - 31)
            wait(len(vm) - 1 - vm.index(u))
            r = RING + 4 * quad[u]
            if g < 32:
                s.mfma(ACC + 4 * (g & 1), QA + 4 * jj, r, jj == 0)
                if jj == 2 and g > 0: kpost(g - 1)
                if u == 5:
                    s(f'v_lshrrev_b32 v{BP}, 3, v0\nv_mul_u32_u24 v{VV}, 384, v{BP}\nv_lshlrev_b32 v{BP}, 3, v{BP}')
                    s(f'v_and_b32 v{T3}, 7, v0\nv_lshl_add_u32 v{VV}, v{T3}, 4, v{VV}')
                    s(f'v_and_b32 v{PP2}, 1, v0\nv_lshlrev_b32 v{PP2}, 4, v{PP2}\nv_mov_b32 v{MK}, 0xffff\nv_lshlrev_b32 v{PP2}, v{PP2}, v{MK}')
                    s(f'v_lshrrev_b32 v{T3}, 1, v{T3}')
                    for k in range(4):
                        s(f'v_cmp_eq_u32 vcc, {k}, v{T3}\nv_cndmask_b32 v{MK+k}, 0, v{PP2}, vcc')
                    s.a_lane(T3, PP2, 16, 32, LQ + 384)
                if u == 47:
                    for k in range(3): s(f'ds_read_b128 {Q4(QA+4*k)}, v{T3} offset:{128*k}')
                    s('s_waitcnt lgkmcnt(0)')
                if u == 6:
                    s(f's_cmp_eq_u32 s3, 3\ns_cselect_b32 s10, 0, 4\nv_mov_b32 v{BA}, s10\nv_mov_b32 v{BZ}, 0')
                if u == 95: kpost(31); switch()
            else:
                if u == 144: A2.extend(RING + 4 * free.pop() for _ in range(3))
                s.mfma(QA + 4 * jj if g < 48 else A2[jj], ACC + 4 * (g & 1), r, g in (32, 48))
                if u == 149: outp([QA, QA + 4, QA + 8], 0)
            if quad[u] >= RET: free.append(quad[u])
        li = 0
        while li < 3 * NPF:
            issue(li); li += 1
            if li == F: s('s_mov_b32 s8, 0xaaaaaaaa\ns_mov_b32 s9, 0xaaaaaaaa'); s.a_lane(TS, MX, 16, 32, LQ); s.tagwait()
        s.stamp(1, True)
        s('s_barrier')
        s.stamp(2, True)
        for jj in range(3): s(f'ds_read_b128 {Q4(QA+4*jj)}, v{TS} offset:{128*jj}')
        s.getloc(MX, spin=False)
        pi = 0
        while pi < NL:
            if li < NL:
                while not free: proc(pi); pi += 1
                issue(li); li += 1
                n = 0
                while n < o['RC'] and pi < NL and ready(pi): proc(pi); pi += 1; n += 1
            else:
                proc(pi); pi += 1
        outp(A2, 1)
        s('s_waitcnt lgkmcnt(0)')
        s.stamp(4, True)
        s('s_barrier')
        if o['noserv']: s.end()
        s.role(3, 'L_D'); s.role(1, 'L_C'); s.role(0, 'L_exit', False)
        s('L_B:')
        BW, AW, D = 40, 64, 88
        s.tr_lane(2, 3, 2048, 256)
        s(f'v_bfe_u32 v3, v0, 2, 3\nv_xor_b32 v3, s{SV}, v3\nv_lshl_add_u32 v2, v3, 5, v2\nv_add_u32 v2, {LBIG}, v2')
        for T in range(6):
            for hi in range(2): s(f'ds_read_b64_tr_b16 {P(BW+4*T+2*hi)}, v2 offset:{8192*T + 1024*hi}')
        s.a_lane(3, 4, 384, 16, LO)
        s(f'v_lshlrev_b32 v4, 4, v0')
        s(f's_mul_i32 s10, s{S_H}, 640\ns_lshl_b32 s11, s{S_J}, 7\ns_add_u32 s10, s10, s11\ns_lshl_b32 s11, s{SV}, 4\ns_add_u32 s10, s10, s11')
        s(f's_lshl_b32 s10, s10, 4\ns_add_u32 s10, s10, {W_Y}')
        if o['two']: s(f'v_mov_b32 v5, {LFLAG2}\nds_read_b32 v5, v5\ns_waitcnt lgkmcnt(0)'); s.live(f'v_readfirstlane_b32 s{LOC}, v5')
        if o['gate'] == 2:
            s(f's_lshl_b32 s11, s{S_X}, 7\ns_and_b32 s9, s{S_CS}, 62\ns_lshl_b32 s9, s9, 1\ns_add_u32 s11, s11, s9\ns_add_u32 s11, s11, {W_YF}\nv_mov_b32 v6, s{TAG}')
        s('s_waitcnt lgkmcnt(0)'); s.live('s_barrier')
        s.stamp(5)
        for T in range(6): s(f'ds_read_b128 {Q4(AW+4*T)}, v3 offset:{64*T}')
        for T in range(6):
            s(f's_waitcnt lgkmcnt({5-T})'); s.mfma(D + 4 * (T & 1), AW + 4 * T, BW + 4 * T, T < 2)
        s.warmret('L_wB')
        s(f's_mov_b64 exec, 0xffff\nv_pk_add_f32 {P(D)}, {P(D)}, {P(D+4)}\nv_bitop3_b32 v{D+2}, v{D}, v{D+1}, s{TAG} bitop3:0x96')
        if o['two']: s.gstore([f'buffer_store_dwordx4 {Q4(D)}, v4, {WSR}, s10 offen'])
        else:
            s(f'buffer_store_dwordx4 {Q4(D)}, v4, {WSR}, s10 offen sc1')
            if o['yl']: s(f's_sub_u32 s10, s10, {W_Y - W_YL}\nbuffer_store_dwordx4 {Q4(D)}, v4, {WSR}, s10 offen')
        s.stamp(6)
        if o['gate'] == 1: s('s_waitcnt vmcnt(0)')
        if o['gate'] == 3: s('s_barrier')
        if o['gate'] == 2:
            s(f's_cmp_eq_u32 s{SV}, 7\ns_cbranch_scc0 L_exit\ns_mov_b64 exec, 1\nbuffer_store_dword v6, v4, {WSR}, s11 offen')
        s.end()

    def s0(s):
        s.cur = 'a'
        o = s.o
        lsk = s.lab('noM'); lj = s.lab('Mj'); ln = s.lab('Mn')
        s(f's_lshr_b32 s4, s{S_IDX}, 2\ns_lshl_b32 s4, s4, 3\ns_add_u32 s4, s4, s{S_X}')
        s(f's_cmp_lt_u32 s4, 60\ns_cbranch_scc0 {lsk}')
        s(f's_and_b32 s7, s{S_IDX}, 3')
        s.srd(RA, P_C, 2560); s.srd(RB, P_WM, 640 * 7680)
        s('v_min_u32 v1, 39, v0\nv_cmp_lt_u32 vcc, 19, v1\nv_lshlrev_b32 v1, 4, v1\nv_mov_b32 v3, 960\nv_cndmask_b32 v3, 0, v3, vcc\nv_add_u32 v3, v3, v1')
        s(f's_mul_i32 s5, s7, 320\nbuffer_load_dwordx4 v[8:11], v3, {RAR}, s5 offen')
        s.rows(2, 3, 3, 7680)
        s(f's_mul_i32 s5, s7, {160 * 7680}\ns_lshl_b32 s6, s4, 7\ns_add_u32 s5, s5, s6')
        s(s.dma(20, 2, RB, 5, 8 * 7680, LM, o['mF']))
        s('s_waitcnt vmcnt(20)')
        s(f's_mov_b32 s6, {hx(-LOG2E)}')
        for k in range(4): s(f'v_lshlrev_b32 v{20+2*k}, 16, v{8+k}\nv_and_b32 v{21+2*k}, 0xffff0000, v{8+k}')
        for k in range(8): s(f'v_mul_f32 v{40+k}, s6, v{20+k}')
        for k in range(8): s(f'v_exp_f32 v{40+k}, v{40+k}')
        for k in range(8): s(f'v_add_f32 v{40+k}, 1.0, v{40+k}')
        for k in range(8): s(f'v_min_f32 v{40+k}, 0x7f000000, v{40+k}')
        for k in range(8): s(f'v_rcp_f32 v{48+k}, v{40+k}')
        for k in range(8): s(f'v_mul_f32 v{56+k}, v{20+k}, v{48+k}')
        for k in range(8): s(f'v_fma_f32 v{20+k}, -v{56+k}, v{40+k}, v{20+k}')
        for k in range(8): s(f'v_fma_f32 v{20+k}, v{20+k}, v{48+k}, v{56+k}')
        for k in range(4): s(f'v_cvt_pk_bf16_f32 v{8+k}, v{20+2*k}, v{21+2*k}')
        s(f'ds_write_b128 v1, v[8:11] offset:{LXS}')
        s.a_lane(4, 5, 320, 16, LXS)
        s.tr_lane(5, 6, 1024, 128)
        A, B, D = 12, 48, 32
        s.tagwait()
        for T in range(5): s(f'ds_read_b128 {Q4(A+4*T)}, v4 offset:{64*T}')
        l = s.lab('ini')
        s(f's_cmp_eq_u32 s{S_IDX}, 0\ns_cbranch_scc0 {l}\ns_lshl_b32 s5, s{S_X}, 7\ns_add_u32 s5, s5, {W_PG}\ns_add_u32 s6, s{TAG}, 999')
        s(f'v_and_b32 v1, 31, v0\nv_lshlrev_b32 v1, 2, v1\nv_mov_b32 v6, s6\nbuffer_store_dword v6, v1, {WSR}, s5 offen\nbuffer_store_dword v6, v1, {WSR}, s5 offen offset:{W_YF - W_PG}\n{l}:')
        s(f'v_lshlrev_b32 v1, 4, v0\ns_mul_i32 s5, s7, {3840 * 16}\ns_lshl_b32 s6, s4, 10\ns_add_u32 s5, s5, s6\ns_add_u32 s5, s5, {W_MP}')
        s.rows(2, 3, 4, 3840 * 16)
        s(f's_lshl_b32 s4, s4, 2\ns_add_u32 s4, s4, s7\ns_lshl_b32 s6, s4, 8\ns_add_u32 s6, s6, {W_MP}')
        s('s_waitcnt vmcnt(0)')
        s.stamp(1)
        for T in range(5):
            for ct in range(4):
                for hi in range(2): s(f'ds_read_b64_tr_b16 {P(B + 16*T + 4*ct + 2*hi)}, v5 offset:{LM + 4096*T + 512*hi + 32*ct}')
            if T:
                s('s_waitcnt lgkmcnt(8)')
                for ct in range(4): s.mfma(D + 4 * ct, A + 4 * (T - 1), B + 16 * (T - 1) + 4 * ct, T == 1)
        s('s_waitcnt lgkmcnt(0)')
        for ct in range(4): s.mfma(D + 4 * ct, A + 16, B + 64 + 4 * ct, False)
        for ct in range(1, 4):
            for b in range(2): s(f'v_mov_b32_dpp v{D+b}, v{D+4*ct+b} quad_perm:[0,1,2,3] row_mask:{1 << ct} bank_mask:0xf')
        s(f'v_bitop3_b32 v{D+2}, v{D}, v{D+1}, s{TAG} bitop3:0x96')
        l2 = s.lab('M2')
        s(f's_cmp_lt_u32 s4, 80\ns_cbranch_scc0 {l2}')
        if 'P' not in o['nox']: s(f'buffer_store_dwordx4 {Q4(D)}, v1, {WSR}, s5 offen sc1')
        s.stamp(2)
        s(f's_branch {ln}\n{l2}:')
        s.getloc(6)
        s.gstore([f'buffer_store_dwordx4 {Q4(D)}, v1, {WSR}, s5 offen'], nm='m')
        s.stamp(2)
        s('s_barrier')
        s.poll([f'buffer_load_dwordx3 v[4:6], v2, {WSR}, s6 offen sc1'], s.ck_xor([4], 2, 8, 9), slp=o['mlslp'], nm='m')
        for w in (32, 16):
            s.swapred('v_add_f32', 4, 8, w); s.swapred('v_add_f32', 5, 9, w)
        s(f'v_cvt_pk_bf16_f32 v4, v4, v5\nv_mov_b32 v5, s{TAG}\nv_lshlrev_b32 v3, 3, v0\ns_lshl_b32 s5, s4, 7\ns_add_u32 s5, s5, {W_MOD}')
        s(f's_mov_b64 exec, 0xffff\nbuffer_store_dwordx2 v[4:5], v3, {WSR}, s5 offen sc1\ns_mov_b64 exec, -1')
        s(f's_branch {lj}\n{lsk}:'); s.tagwait(); s(f'{ln}:\ns_barrier'); s.getloc(6, spin=False); s(f'{lj}:')
        s.warm('L_T0', 'L_wT0')
        if o['bal'] == 6: s.oracle(4)
        l = s.lab('half')
        s(f'v_mov_b32 v1, 0\ns_mov_b32 s{SPIN}, {o["spin"]}\n{l}:\ns_sleep {o["mlslp"]}\nds_read_b32 v2, v1 offset:{LPRG}\ns_sub_u32 s{SPIN}, s{SPIN}, 1\ns_waitcnt lgkmcnt(0)')
        s(f'v_readfirstlane_b32 s4, v2\ns_cselect_b32 s4, 999, s4\ns_cmp_lt_u32 s4, 108\ns_cbranch_scc1 {l}')
        s.stats(0)
        s.stamp(3)
        s('s_barrier')
        s('L_T0:')
        s.stamp(4)
        T = 16
        for k in range(24): s(f'ds_read2st64_b32 {P(T+2*k)}, v1 offset0:{2*k} offset1:{2*k+1}')
        for w in range(8):
            if w >= 3: s(f's_waitcnt lgkmcnt({3 * (7 - w)})')
            elif w == 0: s('s_waitcnt lgkmcnt(15)')
            for hf in range(2):
                for c in range(3):
                    r = T + 6 * w + 3 * hf + c
                    s(f'v_mul_f32 v{8+c}, s{64+w}, v{r}' if w == 0 and hf == 0 else f'v_fmac_f32 v{8+c}, s{64+w}, v{r}')
        s(f'v_bitop3_b32 v11, v8, v9, v10 bitop3:0x96\nv_xor_b32 v11, s{TAG}, v11')
        s.warmret('L_wT0')
        s.gstore([f'buffer_store_dwordx4 v[8:11], v2, {WSR}, s4 offen'])
        s.stamp(5)
        s.role(0, 'L_Bg'); s.role(3, 'L_D'); s.role(1, 'L_exit', False)
        s('s_barrier')
        s.end()

    def stats(s, b):
        s(f'v_lshlrev_b32 v2, 4, v0\ns_lshl_b32 s4, s{S_H}, 11\ns_add_u32 s4, s4, {W_ML + 1024 * b}')
        s.poll([f'buffer_load_dwordx3 v[4:6], v2, {WSR}, s4 offen sc1'], s.ck_xor([4], 2, 8, 9), slp=s.o['mlslp'])
        s('v_mov_b32 v8, v4')
        s.red16('v_max_f32', [8]); s.swapred('v_max_f32', 8, 9, 16); s.swapred('v_max_f32', 8, 9, 32)
        s(f'v_sub_f32 v4, v4, v8\nv_mul_f32 v4, {hx(LOG2E)}, v4\nv_exp_f32 v4, v4\nv_mul_f32 v5, v5, v4')
        s.red16('v_add_f32', [5]); s.swapred('v_add_f32', 5, 9, 16); s.swapred('v_add_f32', 5, 9, 32)
        s('v_rcp_f32 v5, v5\nv_mul_f32 v4, v4, v5')
        s(f's_lshl_b32 s4, s{S_J}, 3')
        for w in range(8):
            s(f'v_readlane_b32 s{64+w}, v4, s4')
            if w < 7: s('s_add_u32 s4, s4, 1')
        s(f'v_lshlrev_b32 v1, 2, v0\nv_add_u32 v1, {LPO + 12288 * b}, v1\nv_lshlrev_b32 v3, 1, v0\nv_add_u32 v3, {LO + 384 * b}, v3')
        s(f's_lshl_b32 s6, s{S_H}, 14\ns_add_u32 s6, s6, {W_ATT + 8192 * b}\ns_add_u32 s7, s6, 4096\ns_lshl_b32 s4, s{S_J}, 10\ns_add_u32 s4, s4, s6')

    def bgather(s):
        s.cur = 'g'
        s('L_Bg:')
        G = 20
        ck, t = s.ck_xor([G + 4 * k for k in range(8)], 3, 12, 13)
        for k in range(1, 8):
            ck[k] += f'\nv_pk_add_f32 v[16:17], {P(G) if k == 1 else "v[16:17]"}, {P(G+4*k)}\nv_add_f32 v18, v{G+2 if k == 1 else 18}, v{G+4*k+2}'
        s.poll([f'buffer_load_dwordx4 {Q4(G+4*k)}, v2, {WSR}, s{6 + (k >> 2)} offen offset:{1024*(k & 3)} sc1' for k in range(8)], (ck, t), slp=s.o['gslp'], warmable=True)
        s('v_cvt_pk_bf16_f32 v16, v16, v17\nv_cvt_pk_bf16_f32 v18, v18, v18')
        s('ds_write_b16 v3, v16\nds_write_b16_d16_hi v3, v16 offset:128\nds_write_b16 v3, v18 offset:256')
        s.warmret('L_wBg')
        s('s_waitcnt lgkmcnt(0)')
        s.stamp(6)
        s('s_barrier')
        s.end()

    def s1(s):
        s.cur = 'b'
        o = s.o
        s.srd(RA, P_X, 2560); s.srd(RB, P_WQ, 640 * 12288)
        s('v_and_b32 v1, 31, v0\nv_lshlrev_b32 v1, 3, v1\nv_lshrrev_b32 v2, 5, v0\nv_mul_u32_u24 v2, 1280, v2\nv_add_u32 v1, v1, v2')
        for u in range(5): s(f'buffer_load_dwordx2 {P(10+2*u)}, v1, {RAR}, 0 offen offset:{256*u}')
        s(f'v_and_b32 v7, 15, v0\nv_lshl_add_u32 v2, v7, 1, v2\ns_mul_i32 s4, s{S_J}, 160')
        for u in range(5): s(f'buffer_load_ushort v{160+u}, v2, {RAR}, s4 offen offset:{32*u}')
        s.rows(3, 4, 3, 12288)
        s(f's_mul_i32 s5, s{S_J}, {80*12288}\ns_mul_i32 s6, s{S_H}, 384\ns_add_u32 s5, s5, s6')
        s(s.dma(30, 3, RB, 5, lambda t: 128 if t % 3 < 2 else 8 * 12288 - 256, LWQ, o['qF']))
        s('s_waitcnt vmcnt(30)')
        X = 20
        for k in range(10): s(f'v_lshlrev_b32 v{X+2*k}, 16, v{10+k}\nv_and_b32 v{X+2*k+1}, 0xffff0000, v{10+k}')
        s(f'v_add_f32 v4, v{X}, v{X+1}')
        for k in range(2, 20): s(f'v_add_f32 v4, v4, v{X+k}')
        s.red16('v_add_f32', [4]); s.swapred('v_add_f32', 4, 5, 16)
        s(f'v_mul_f32 v4, {hx(1/640)}, v4')
        for k in range(20): s(f'v_sub_f32 v{X+k}, v{X+k}, v4')
        s(f'v_mul_f32 v5, v{X}, v{X}')
        for k in range(1, 20): s(f'v_fmac_f32 v5, v{X+k}, v{X+k}')
        s.red16('v_add_f32', [5]); s.swapred('v_add_f32', 5, 6, 16)
        s(f'v_mul_f32 v5, {hx(1/640)}, v5')
        s.bf16r(4); s.bf16r(5)
        s(f'v_add_f32 v5, {hx(1e-5)}, v5'); s.bf16r(5)
        s('v_sqrt_f32 v5, v5'); s.bf16r(5); s('v_rcp_f32 v5, v5')
        for u in range(5):
            r = 160 + u
            s(f'v_lshlrev_b32 v{r}, 16, v{r}\nv_sub_f32 v{r}, v{r}, v4'); s.bf16r(r)
            s(f'v_mul_f32 v{r}, v{r}, v5'); s.bf16r(r)
        s.tr_lane(4, 5, 3072, 128)
        s(f'v_add_u32 v4, {LWQ}, v4')
        s.tr_lane(5, 6, 512, 128)
        s(f'v_lshrrev_b32 v6, 5, v0\nv_mul_u32_u24 v6, 2048, v6\nv_add_u32 v5, v5, v6\nv_add_u32 v5, {LWQ + 8*3072}, v5')
        BW, AC, A = 100, 40, 88
        def rd(ct):
            b = BW + 10 * (ct % 6); off = 1024 * (ct >> 2) + 32 * (ct & 3)
            for T in range(2):
                for hi in range(2): s(f'ds_read_b64_tr_b16 {P(b+4*T+2*hi)}, v4 offset:{off + 12288*T + 512*hi}')
            s(f'ds_read_b64_tr_b16 {P(b+8)}, v5 offset:{off}')
        s.tagwait()
        s.rows(2, 6, 4, 3840 * 16)
        s(f's_mul_i32 s4, s{S_J}, 1280\ns_add_u32 s4, s4, {W_MP}\ns_add_u32 s5, s4, 10240')
        s('s_waitcnt vmcnt(0)')
        s.stamp(1)
        for ct in range(6): rd(ct)
        M = 40
        s.gather([f'buffer_load_dwordx3 v[{M+4*u}:{M+4*u+2}], v2, {WSR}, s{4 + u // 5} offen offset:{256 * (u % 5)} sc1' for u in range(10)],
                 [s.ck_xor([M + 4 * u], 2, 12, 13) for u in range(10)], 8, slp=o['pslp'], nm='P')
        s.stamp(2)
        for u in range(10): s(f'v_permlane32_swap_b32 v{M+4*u}, v{M+4*u+1}')
        for u in range(10): s(f'v_add_f32 v{M+4*u}, v{M+4*u}, v{M+4*u+1}')
        for u in range(10): s(f'v_mov_b32 v{M+4*u+1}, v{M+4*u}')
        for u in range(10): s(f'v_permlane16_swap_b32 v{M+4*u}, v{M+4*u+1}')
        for u in range(10): s(f'v_add_f32 v{M+4*u}, v{M+4*u}, v{M+4*u+1}')
        for u in range(10): s.bf16r(M + 4 * u)
        s(f'v_lshrrev_b32 v2, 5, v0\nv_mul_u32_u24 v2, 192, v2\nv_lshl_add_u32 v2, v7, 1, v2')
        for u in range(5):
            c = M + 20 + 4 * u; r = 160 + u
            s(f'v_add_f32 v{c}, 1.0, v{c}'); s.bf16r(c)
            s(f'v_mul_f32 v{r}, v{r}, v{c}'); s.bf16r(r)
            s(f'v_add_f32 v{r}, v{r}, v{M+4*u}\nv_cvt_pk_bf16_f32 v{r}, v{r}, v{r}\nds_write_b16 v2, v{r} offset:{LHS + 32*u}')
        s.getloc(6)
        s.a_lane(2, 3, 192, 16, LHS); s.a_lane(3, 6, 192, 8, LHS + 128)
        s('s_waitcnt lgkmcnt(0)')
        s(f'ds_read_b128 {Q4(A)}, v2\nds_read_b128 {Q4(A+4)}, v2 offset:64\nds_read_b64 {P(A+8)}, v3')
        for half in range(2):
            s('s_waitcnt lgkmcnt(0)')
            for ct in range(6 * half, 6 * half + 6): s.mfma(AC + 4 * ct, A + 8, BW + 10 * (ct % 6) + 8, True, k=16)
            for T in range(2):
                for ct in range(6 * half, 6 * half + 6):
                    s.mfma(AC + 4 * ct, A + 4 * T, BW + 10 * (ct % 6) + 4 * T, False)
                    if half == 0 and T == 1: rd(ct + 6)
        s(f'v_lshlrev_b32 v2, 4, v0\ns_lshl_b32 s4, s{S_H}, 3\ns_add_u32 s5, s4, s{S_J}\ns_lshl_b32 s5, s5, 11\ns_add_u32 s5, s5, {W_QP}')
        for b in range(2):
            for u in range(4):
                for c in range(3):
                    s(f'v_mov_b32_dpp v{16+4*b+c}, v{AC + 4*(3*u+c) + b} quad_perm:[0,1,2,3] row_mask:{1 << u} bank_mask:0xf')
        for b in range(2):
            t = 16 + 4 * b
            s(f'v_bitop3_b32 v{t+3}, v{t}, v{t+1}, v{t+2} bitop3:0x96\nv_xor_b32 v{t+3}, s{TAG}, v{t+3}')
        s.gstore([f'buffer_store_dwordx4 {Q4(16+4*b)}, v2, {WSR}, s5 offen offset:{1024*b}' for b in range(2)], nm='Q')
        s.stamp(3)
        s(f's_lshl_b32 s4, s4, 11\ns_add_u32 s4, s4, {W_QP}')
        for k in range(1, 4): s(f's_add_u32 s{4+k}, s4, {4096*k}')
        Q = 40
        def ck2(k):
            c, t = s.ck_xor([Q + 8 * k, Q + 8 * k + 4], 3, 12, 13); return ['\n'.join(c)], t
        s.gather(['\n'.join(f'buffer_load_dwordx4 {Q4(Q+8*k+4*b)}, v2, {WSR}, s{4 + (k >> 1)} offen offset:{2048*(k & 1) + 1024*b} sc1' for b in range(2)) for k in range(8)],
                 [ck2(k) for k in range(8)], 8, slp=o['pslp'], nm='Q')
        s('v_lshrrev_b32 v3, 4, v0\nv_mul_u32_u24 v3, 96, v3\nv_and_b32 v4, 15, v0\nv_lshl_add_u32 v3, v4, 1, v3')
        for k in range(1, 8):
            for b in range(2):
                r = Q + 4 * b
                s(f'v_pk_add_f32 {P(r)}, {P(r)}, {P(r+8*k)}\nv_add_f32 v{r+2}, v{r+2}, v{r+8*k+2}')
        for b in range(2):
            r = Q + 4 * b; lq = LQ + 384 * b
            s(f'v_cvt_pk_bf16_f32 v{r}, v{r}, v{r+1}\nv_cvt_pk_bf16_f32 v{r+2}, v{r+2}, v{r+2}')
            s(f'ds_write_b16 v3, v{r} offset:{lq}\nds_write_b16_d16_hi v3, v{r} offset:{lq+32}\nds_write_b16 v3, v{r+2} offset:{lq+64}')
        s('s_waitcnt lgkmcnt(0)')
        s.stamp(4)
        s('s_barrier')
        lc = s.lab('s1C'); ld = s.lab('s1D'); lw = s.lab('s1W')
        if o['warm']:
            s.role(1, lc); s.role(3, ld); s.role(0, lw, False)
            s.warm('L_B', 'L_wB'); s.warm('L_Bg', 'L_wBg'); s(f's_branch {lw}')
            s(f'{lc}:\ns_mov_b32 s{SV}, 0'); s.warm('L_C', 'L_wC'); s(f's_branch {lw}')
            s(f'{ld}:\ns_mov_b32 s{SV}, 0'); s.warm('L_D', 'L_wD')
            s(f'{lw}:\ns_mov_b32 s{SV}, 9')
        if o['bal'] == 2: s.oracle()
        if o['bal'] >= 5: s.balance5()
        else: s.stats(1)
        if 'A' in o['pf']: s(f's_sub_u32 s5, s4, 8192\nbuffer_load_dword v12, v2, {WSR}, s4 offen\nbuffer_load_dword v13, v2, {WSR}, s5 offen\ns_waitcnt vmcnt(0)')
        if 'W' in o['pf']:
            s(f's_sub_u32 s5, s4, 8192\nv_mov_b32 v8, 0\nv_mov_b32 v9, 0\nv_mov_b32 v10, 0\nv_mov_b32 v11, 0')
            s(f'buffer_store_dwordx4 v[8:11], v2, {WSR}, s4 offen\nbuffer_store_dwordx4 v[8:11], v2, {WSR}, s5 offen\ns_waitcnt vmcnt(0)')
        s('s_barrier\ns_branch L_T0')

    def oracle(s, slp=None):
        o = s.o
        a = s.lab('bal'); e = s.lab('balE')
        s(f'v_mov_b32 v2, 0\ns_mov_b32 s{SPIN}, 40960')
        s(f'{a}:\ns_sleep {slp or o["bslp"]}\nds_read_b32 v3, v2 offset:{LPRG}\ns_memrealtime s[8:9]\ns_waitcnt lgkmcnt(0)\nv_readfirstlane_b32 s7, v3')
        s(f's_cmp_ge_u32 s7, {o["bend"]}\ns_cbranch_scc1 {e}')
        s(f's_sub_u32 s8, s8, s{ST0}\ns_sub_u32 s8, s8, {o["toff"]}\ns_mul_i32 s8, s8, {655360 // o["tau"]}\ns_lshr_b32 s8, s8, 16')
        s(f'v_mov_b32 v3, s8\nds_write_b32 v2, v3 offset:{LMODE}')
        s(f's_sub_u32 s{SPIN}, s{SPIN}, 1\ns_cbranch_scc0 {a}\n{e}:\nv_mov_b32 v3, 999\nds_write_b32 v2, v3 offset:{LMODE}')

    def balance5(s):
        o = s.o; p0 = 3 * o['NPF']
        a = s.lab('bal'); e = s.lab('balE'); c = s.lab('nox'); d = s.lab('nost')
        V = 100
        s(f'v_mov_b32 v{V+1}, 0\ns_mov_b32 s11, 4096\ns_lshl_b32 s72, s{S_X}, 7\ns_add_u32 s72, s72, {W_PG}\ns_mov_b32 s75, {o["stat1"]}')
        s(f's_mul_i32 s74, s{S_IDX}, {o["cstep"]}\ns_add_u32 s74, s74, {p0 + o["c0"]}')
        if o['stag']: s(f's_mul_i32 s5, s{S_X}, {o["cstep"]}\ns_lshr_b32 s5, s5, 3\ns_add_u32 s74, s74, s5')
        s(f'v_and_b32 v{V}, 31, v0\nv_lshlrev_b32 v{V}, 2, v{V}')
        s(f's_lshl_b32 s73, s{S_X}, 12\ns_add_u32 s73, s73, {W_GL}\ns_mov_b32 s10, {W_GL}\nv_and_b32 v{V+5}, 7, v0\nv_lshlrev_b32 v{V+5}, 12, v{V+5}\nv_mov_b32 v{V+6}, {p0}')
        s(f's_and_b32 s8, s{S_ROLE}, 10\ns_cselect_b32 s8, {o["bonus"]}, 0\ns_sub_u32 s8, s{TAG}, s8')
        s(f'{a}:\nbuffer_load_dword v{V+3}, v{V+1}, {WSR}, s72 offen sc1\ns_waitcnt vmcnt(0)\nds_read_b32 v{V+2}, v{V+1} offset:{LPRG}')
        s(f'v_subrev_u32 v{V+3}, s8, v{V+3}\nds_write_b32 v{V+1}, v{V+3} offset:{LMODE}\ns_waitcnt lgkmcnt(0)\nv_readfirstlane_b32 s9, v{V+2}')
        s(f's_cmp_ge_u32 s9, s75\ns_cbranch_scc0 {d}\ns_mov_b32 s75, 999')
        s.stats(1)
        s(f's_branch {a}\n{d}:')
        s(f's_cmp_ge_u32 s9, {o["bend"]}\ns_cbranch_scc1 {e}')
        s(f's_cmp_ge_u32 s9, s74\ns_cbranch_scc0 {c}')
        s(f's_mov_b32 s74, 999\nv_add_u32 v{V+3}, s8, v{V+2}\nbuffer_load_dword v{V+4}, v{V+5}, {WSR}, s10 offen sc1\nbuffer_store_dword v{V+3}, v{V}, {WSR}, s73 offen sc1\ns_waitcnt vmcnt(1)')
        s(f'v_subrev_u32 v{V+4}, s{TAG}, v{V+4}\nv_cmp_lt_u32 vcc, 192, v{V+4}\nv_cndmask_b32 v{V+4}, v{V+4}, v{V+6}, vcc')
        for ctl in ('quad_perm:[1,0,3,2]', 'quad_perm:[2,3,0,1]', 'row_half_mirror'): s.dppop('v_add_u32', V + 4, ctl)
        s(f'v_lshrrev_b32 v{V+4}, 3, v{V+4}\nv_add_u32 v{V+4}, {o["bdel"]}, v{V+4}\nv_add_u32 v{V+4}, s{TAG}, v{V+4}\nbuffer_store_dword v{V+4}, v{V}, {WSR}, s72 offen')
        s(f'{c}:\ns_sleep {o["bslp"]}\ns_sub_u32 s11, s11, 1\ns_cbranch_scc0 {a}')
        s.stats(1)
        s(f'{e}:')
        if not o['keep']: s(f'v_mov_b32 v{V+2}, 999\nds_write_b32 v{V+1}, v{V+2} offset:{LMODE}\ns_waitcnt lgkmcnt(0)')

    def stage(s, half):
        o = s.o
        ld = s.lab('stD'); lc = s.lab('stC'); le = s.lab('stE'); l = s.lab('dma')
        s.role(0, ld, False)
        s.srd(RA, P_WO, 6144 * 1280)
        s('v_lshrrev_b32 v2, 4, v0\nv_mul_u32_u24 v1, 1280, v2\nv_lshlrev_b32 v2, 1, v2\nv_and_b32 v3, 15, v0\nv_xor_b32 v2, v2, v3\nv_xor_b32 v3, 8, v2')
        s('v_lshl_add_u32 v3, v3, 4, v1\nv_lshl_add_u32 v1, v2, 4, v1')
        s(f's_mul_i32 s4, s{S_H}, {192*1280}\ns_lshl_b32 s5, s{S_J}, 8\ns_add_u32 s4, s4, s5\ns_add_u32 s4, s4, {half*96*1280}')
        lds = LBIG + half * 24576
        s(f's_mov_b32 s5, {lds}\n{l}:')
        for t in range(4):
            s(f's_mov_b32 m0, s5\ns_waitcnt vmcnt({o["bF"] - 1})\nbuffer_load_dwordx4 v{3 if t & 2 else 1}, {RAR}, s4 offen {o["wflag"]} lds')
            s(f's_add_u32 s4, s4, {4 * 1280}\ns_add_u32 s5, s5, 1024')
        s(f's_cmp_lt_u32 s5, {lds + 24576}\ns_cbranch_scc1 {l}')
        s(f's_branch {le}\n{ld}:')
        s.role(3, lc, False)
        E = o['dE']
        if E:
            s.srd(RA, P_D, 1536 * 1280); s.rows(1, 2, 2, 1280)
            s(f's_lshl_b32 s4, s{S_DT}, 6\ns_add_u32 s4, s4, {half*768*1280}')
            s(s.dma(6 * E, 1, RA, 4, lambda t: 16 * 1280 * (1 if t % E < E - 1 else 9 - E), lambda t: f's_mov_b32 m0, {LBIG + half * 49152 + 8192 * (t // E) + 1024 * (t % E)}', o['dF']))
        s(f's_branch {le}\n{lc}:')
        s.role(1, le, False)
        E = o['cE']
        if E:
            s.srd(RA, P_U if half else P_G, 640 * 3072); s.rows(1, 2, 2, 3072)
            s(f's_lshl_b32 s4, s{S_CS}, 6')
            s(s.dma(4 * E, 1, RA, 4, lambda t: 16 * 3072 * (1 if t % E < E - 1 else 11 - E), lambda t: f's_mov_b32 m0, {LBIG + half * 40960 + 10240 * (t // E) + 1024 * (t % E)}', o['cF']))
        s(f'{le}:\ns_waitcnt vmcnt(0)')

    def s2(s):
        s.cur = 'r'
        o = s.o
        s('s_getreg_b32 s4, hwreg(HW_REG_XCC_ID)')
        s(f'v_and_b32 v1, 7, v0\nv_lshlrev_b32 v1, 3, v1\ns_lshl_b32 s5, s{S_H}, 7\ns_add_u32 s5, s5, {W_XC}\ns_lshl_b32 s6, s{S_J}, 3\ns_add_u32 s6, s6, s5')
        s.tagwait()
        if 'X' not in o['nox']: s(f'v_mov_b32 v2, s4\nv_mov_b32 v3, s{TAG}\ns_mov_b64 exec, 1\nbuffer_store_dwordx2 v[2:3], v1, {WSR}, s6 offen sc1\ns_mov_b64 exec, -1')
        s.poll([f'buffer_load_dwordx2 v[4:5], v1, {WSR}, s5 offen sc1'], s.ck_tag([[5]], 6), slp=o['pslp'], nm='X')
        s(f'v_xor_b32 v4, s4, v4\nv_or_b32 v4, v4, v6\nv_cmp_ne_u32 vcc, 0, v4\ns_cmp_eq_u64 vcc, 0\ns_addc_u32 s4, s{TAG}, 0')
        if not o['loc']: s(f's_mov_b32 s4, s{TAG}')
        if 'X' in o['nox']: s(f's_add_u32 s4, s{TAG}, 1')
        s(f'v_mov_b32 v4, s4\nv_mov_b32 v5, {LFLAG}\nds_write_b32 v5, v4\nv_mov_b32 v4, 0\nds_write_b32 v4, v4 offset:{LPRG}\nv_mov_b32 v5, 999\nds_write_b32 v4, v5 offset:{LMODE}\ns_waitcnt lgkmcnt(0)')
        s.stamp(2)
        s('s_barrier')
        s.stage(0)
        s.stamp(1)
        ln = s.lab('noR')
        s.role(2, ln, False)
        s.warm('L_R', 'L_wR')
        s('L_R0:')
        if o['rrep']:
            s(f's_getreg_b32 s4, hwreg(HW_REG_XCC_ID)\nv_bfe_u32 v1, v0, 3, 2\nv_lshlrev_b32 v1, 4, v1\nv_and_b32 v2, 7, v0\nv_add_lshl_u32 v1, v1, v2, 3')
            s(f's_lshl_b32 s5, s{S_X}, 9\ns_add_u32 s5, s5, {W_XC}')
            s.poll([f'buffer_load_dwordx2 v[4:5], v1, {WSR}, s5 offen sc1'], s.ck_tag([[5]], 6), slp=o['mlslp'])
            s(f'v_xor_b32 v4, s4, v4\nv_or_b32 v4, v4, v6\nv_cmp_ne_u32 vcc, 0, v4\ns_cmp_eq_u64 vcc, 0\ns_cselect_b32 s{LOC}, {o["loc"]}, 0')
            s(f'v_mov_b32 v4, s{LOC}\nv_mov_b32 v5, {LFLAG2}\nds_write_b32 v5, v4\ns_waitcnt lgkmcnt(0)')
        s.srd(RA, P_X, 2560)
        s(f'v_and_b32 v1, 15, v0\nv_lshlrev_b32 v2, 1, v1\ns_lshl_b32 s5, s{S_CS}, 5')
        s(f'buffer_load_ushort v4, v2, {RAR}, s5 offen\nbuffer_load_ushort v5, v2, {RAR}, s5 offen offset:1280')
        s(f'v_lshlrev_b32 v2, 3, v1\ns_lshl_b32 s5, s{S_CS}, 7\ns_add_u32 s6, s5, {W_MOD + 1280*8}')
        s.poll([f'buffer_load_dwordx2 v[6:7], v2, {WSR}, s6 offen sc1'], s.ck_tag([[7]], 8), slp=o['mlslp'], nm='G')
        s('v_lshlrev_b32 v4, 16, v4\nv_lshlrev_b32 v5, 16, v5\nv_and_b32 v7, 0xffff0000, v6\nv_lshlrev_b32 v6, 16, v6')
        s(f's_add_u32 s5, s5, {W_X1}\nv_mov_b32 v9, s{TAG}')
        if o['rrep']: s(f's_lshl_b32 s6, s{S_X}, 13\ns_add_u32 s5, s5, s6')
        s.rows(3, 8, 4, 10240)
        s(f's_lshl_b32 s64, s{S_CS}, 8\ns_add_u32 s64, s64, {W_Y}')
        if o['two']:
            s(f's_add_u32 s65, s64, {W_YP - W_Y}\ns_add_u32 s66, s65, 40960\ns_mul_i32 s67, s{S_X}, 10240\ns_add_u32 s67, s67, s65')
            s(f's_mul_i32 s6, s{S_X}, 40960\ns_add_u32 s64, s64, s6\ns_add_u32 s68, s67, {W_YPL - W_YP}')
            s(f'v_lshrrev_b32 v12, 4, v0\nv_mov_b32 v13, {(W_YPL - W_YP) if o["yl"] else 0}')
            for k in range(2): s(f'v_add_u32 v14, {4*k}, v12\nv_cmp_eq_u32 vcc, s{S_X}, v14\nv_cndmask_b32 v14, 0, v13, vcc\nv_add_u32 v{28+k}, v14, v3')
        else:
            for k in range(1, 8): s(f's_add_u32 s{64+k}, s64, {40960*k}')
            if o['yl']:
                s(f's_mul_i32 s6, s{LOC}, {W_Y - W_YL}')
                for k in range(8): s(f's_cmp_eq_u32 s{S_X}, {k}\ns_cselect_b32 s4, s6, 0\ns_sub_u32 s{64+k}, s{64+k}, s4')
        def touch():
            for k in range(8): s(f'buffer_load_dword v{16+k}, v3, {WSR}, s{64+k} offen')
            if 'X' in o['pf']: s(f'buffer_load_dword v24, v2, {WSR}, s5 offen')
        if set('YPpZz') & set(o['pf']):
            l = s.lab('late')
            s(f'v_mov_b32 v12, 0\ns_mov_b32 s{SPIN}, {o["spin"]}\n{l}:\ns_sleep {o["mlslp"]}\nds_read_b32 v13, v12 offset:{LPRG}\ns_sub_u32 s{SPIN}, s{SPIN}, 1\ns_waitcnt lgkmcnt(0)')
            s(f'v_readfirstlane_b32 s4, v13\ns_cselect_b32 s4, 999, s4\ns_cmp_lt_u32 s4, 168\ns_cbranch_scc1 {l}')
            if 'Y' in o['pf']: touch()
            s(f's_mul_i32 s4, s{S_H}, 10240\ns_lshl_b32 s6, s{S_J}, 11\ns_add_u32 s4, s4, s6\ns_and_b32 s6, s3, 1\ns_lshl_b32 s6, s6, 10\ns_add_u32 s4, s4, s6\ns_add_u32 s4, s4, {W_Y}')
            s('v_lshlrev_b32 v12, 4, v0\nv_mov_b32 v16, 0\nv_mov_b32 v17, 0\nv_mov_b32 v18, 0\nv_mov_b32 v19, 0\nv_and_b32 v13, 0xff, v12')
            if 'P' in o['pf']: s(f'buffer_store_dwordx4 v[16:19], v12, {WSR}, s4 offen')
            if 'p' in o['pf']: s(f'buffer_load_dword v20, v12, {WSR}, s4 offen')
            if 'Z' in o['pf']: s(f'buffer_load_dword v21, v13, {WSR}, s67 offen')
            if 'z' in o['pf']: s(f'buffer_load_dword v21, v3, {WSR}, s65 offen\nbuffer_load_dword v22, v3, {WSR}, s66 offen')
            s('s_waitcnt vmcnt(0)')
        if o['gate'] == 2: s(f'v_min_u32 v1, 19, v0\nv_lshlrev_b32 v1, 2, v1\ns_lshl_b32 s4, s{S_X}, 7\ns_add_u32 s4, s4, {W_YF}')
        s('s_barrier')
        if 'y' in o['pf']: touch()
        s('s_barrier')
        if o['gate'] in (1, 3): s('s_barrier')
        if o['gate'] == 2:
            l = s.lab('nog')
            s(f's_cmp_eq_u32 s{LOC}, 1\ns_cbranch_scc0 {l}')
            s.poll([f'buffer_load_dword v13, v1, {WSR}, s4 offen sc1'], s.ck_tag([[13]], 12), slp=o['rslp'])
            s(f'{l}:')
        if o['rdel']: s(f's_sleep {o["rdel"]}')
        s('L_R:')
        s.stamp(4)
        Y = 16
        def rowsum(r):
            for w in (16, 32):
                s(f'v_mov_b32 v14, v{r}\nv_mov_b32 v15, v{r+1}\nv_permlane{w}_swap_b32 v{r}, v14\nv_permlane{w}_swap_b32 v{r+1}, v15\nv_pk_add_f32 {P(r)}, {P(r)}, v[14:15]')
        if o['two']:
            s.poll([f'buffer_load_dwordx3 v[24:26], v3, {WSR}, s64 offen sc1'], s.ck_xor([24], 2, 12, 13), slp=o['rslp'], warmable=True)
            s.stamp(3)
            rowsum(24)
            s(f'v_bitop3_b32 v26, v24, v25, s{TAG} bitop3:0x96')
            s.live(f's_mov_b64 exec, 0xffff\nbuffer_store_dwordx4 v[24:27], v3, {WSR}, s67 offen sc1\n' + (f'buffer_store_dwordx4 v[24:27], v3, {WSR}, s68 offen\n' if o['yl'] else '') + 's_mov_b64 exec, -1')
            if o['adel']: s(f's_sleep {o["adel"]}')
            NY, S0 = 2, 65
        else: NY, S0 = 8, 64
        ck, t = s.ck_xor([Y + 4 * k for k in range(NY)], 2, 12, 13)
        for k in range(1, NY): ck[k] += f'\nv_pk_add_f32 v[10:11], {P(Y) if k == 1 else "v[10:11]"}, {P(Y+4*k)}'
        s.poll([f'buffer_load_dwordx3 v[{Y+4*k}:{Y+4*k+2}], v{28+k if o["two"] else 3}, {WSR}, s{S0+k} offen sc1' for k in range(NY)], (ck, t), slp=o['rslp'], warmable=True)
        s.stamp(5)
        rowsum(10)
        s(f'v_pk_fma_f32 v[10:11], v[10:11], v[6:7], v[4:5]\nv_cvt_pk_bf16_f32 v8, v10, v11')
        s.warmret('L_wR')
        s('s_mov_b64 exec, 0xffff')
        if o['rrep']: s.gstore([f'buffer_store_dwordx2 v[8:9], v2, {WSR}, s5 offen'])
        else: s(f'buffer_store_dwordx2 v[8:9], v2, {WSR}, s5 offen sc1')
        s.stamp(6)
        s.end()
        s(f'{ln}:\ns_barrier')
        s.role(3, 'L_D')
        s.end()

    def s3(s):
        s.cur = 'l'
        o = s.o
        s.tagwait()
        s('s_barrier')
        s.stage(1)
        s.stamp(1)
        ln = s.lab('noC')
        if o['rrep']: s.role(2, 'L_R0')
        s.role(1, ln, False)
        s.warm('L_LN', 'L_wLN')
        C1, SB, X, Z = 8, 28, 48, 72
        s('v_lshlrev_b32 v1, 4, v0')
        s(f's_mov_b32 s4, {W_MOD + 3*5120}\ns_mov_b32 s5, {W_MOD + 3*5120 + 4096}\ns_mov_b32 s6, {W_MOD + 4*5120}\ns_mov_b32 s7, {W_MOD + 4*5120 + 4096}')
        def ld5(base, sa, fl='sc1'): return [f'buffer_load_dwordx4 {Q4(base+4*u)}, v1, {WSR}, s{sa + (u >> 2)} offen offset:{1024*(u & 3)} {fl}' for u in range(5)]
        s.poll(ld5(C1, 6) + ld5(SB, 4), s.ck_tag([[C1 + 1 + 4 * k, C1 + 3 + 4 * k] for k in range(10)], 4), slp=o['mlslp'], nm='G')
        for k in range(20): s(f'v_and_b32 v{C1+2*k+1}, 0xffff0000, v{C1+2*k}\nv_lshlrev_b32 v{C1+2*k}, 16, v{C1+2*k}')
        for k in range(20): s(f'v_add_f32 v{C1+k}, 1.0, v{C1+k}'); s.bf16r(C1 + k)
        s(f's_lshl_b32 s4, s{S_X}, 13' if o['rrep'] else 's_mov_b32 s4, 0')
        s(f's_add_u32 s4, s4, {W_X1}\ns_add_u32 s5, s4, 4096')
        s(f'v_lshlrev_b32 v69, 2, v0\nv_add_u32 v2, {LH2}, v69\nv_add_u32 v3, {LACT}, v1')
        s(f's_lshl_b32 s6, s{S_CS}, 8\ns_add_u32 s6, s6, {W_ACT}\ns_mov_b32 s7, {hx(-LOG2E)}\nv_mov_b32 v71, s{TAG}')
        s(f's_mov_b32 s10, {hx(1/640)}\nv_mov_b32 v68, {hx(1e-5)}')
        if 'a' in o['pf']: s(f'buffer_load_dword v70, v69, {WSR}, s6 offen\ns_waitcnt vmcnt(0)')
        s('s_barrier\ns_barrier')
        s('L_LN:')
        s.stamp(4)
        ck, t = s.ck_tag([[X + 1 + 4 * u, X + 3 + 4 * u] for u in range(5)], 70)
        for u in range(5):
            for e in range(2):
                r = X + 4 * u + 2 * e
                ck[u] += f'\nv_and_b32 v{r+1}, 0xffff0000, v{r}\nv_lshlrev_b32 v{r}, 16, v{r}'
            ck[u] += f'\nv_pk_add_f32 v[6:7], {P(X+4*u)}, {P(X+4*u+2)}'
            ck[u] += f'\nv_pk_add_f32 v[4:5], v[4:5], v[6:7]' if u else '\nv_mov_b32 v4, v6\nv_mov_b32 v5, v7'
        s.poll(ld5(X, 4), (ck, t), slp=o['xslp'], warmable=True)
        s.stamp(5)
        def red2(fill=None):
            s('v_permlane32_swap_b32 v4, v5\nv_add_f32 v4, v4, v5')
            s.red16('v_add_f32', [4], fill=fill); s.swapred('v_add_f32', 4, 5, 16, fill=fill)
        red2()
        s(f'v_mul_f32 v4, s10, v4\nv_readlane_b32 s8, v4, 0\nv_readlane_b32 s9, v4, 32')
        for k in range(10):
            s(f'v_pk_add_f32 {P(X+2*k)}, {P(X+2*k)}, s[8:9] neg_lo:[0,1] neg_hi:[0,1]')
        s(f'v_pk_mul_f32 v[4:5], {P(X)}, {P(X)}\nv_pk_mul_f32 v[6:7], {P(X+2)}, {P(X+2)}')
        for k in range(2, 10): s(f'v_pk_fma_f32 {P(4 + 2*(k&1))}, {P(X+2*k)}, {P(X+2*k)}, {P(4 + 2*(k&1))}')
        s('v_pk_add_f32 v[4:5], v[4:5], v[6:7]')
        fill = [f'v_pk_mul_f32 {P(X+2*k)}, {P(X+2*k)}, {P(C1+2*k)}' for k in range(10)]
        red2(fill)
        for f in fill: s(f)
        s('v_fma_f32 v4, v4, s10, v68\nv_rsq_f32 v4, v4')
        s('v_readlane_b32 s8, v4, 0\nv_readlane_b32 s9, v4, 32')
        for u in range(5):
            r = X + 4 * u
            for e in range(2): s(f'v_pk_fma_f32 {P(r+2*e)}, {P(r+2*e)}, s[8:9], {P(SB+4*u+2*e)}')
            s(f'v_cvt_pk_bf16_f32 v{r}, v{r}, v{r+2}\nv_cvt_pk_bf16_f32 v{r+1}, v{r+1}, v{r+3}')
            s(f'ds_write2st64_b32 v2, v{r}, v{r+1} offset0:{u} offset1:{u+5}')
        s('s_waitcnt lgkmcnt(0)')
        s.stamp(3)
        s.live('s_barrier\ns_barrier')
        s.stamp(2)
        s(f'ds_read_b128 {Q4(Z)}, v3\nds_read_b128 {Q4(Z+4)}, v3 offset:1024\ns_waitcnt lgkmcnt(1)')
        s(f'v_pk_add_f32 {P(Z)}, {P(Z)}, {P(Z+2)}\nv_add_f32 v{Z}, v{Z}, v{Z+1}\nv_mul_f32 v4, s7, v{Z}\nv_exp_f32 v4, v4\ns_waitcnt lgkmcnt(0)')
        s(f'v_pk_add_f32 {P(Z+4)}, {P(Z+4)}, {P(Z+6)}\nv_add_f32 v4, 1.0, v4\nv_rcp_f32 v4, v4\nv_add_f32 v{Z+4}, v{Z+4}, v{Z+5}')
        s(f'v_mul_f32 v{Z}, v{Z}, v{Z+4}\nv_mul_f32 v4, v4, v{Z}')
        s('v_mov_b32_dpp v5, v4 quad_perm:[1,1,3,3] row_mask:0xf bank_mask:0xf\nv_cvt_pk_bf16_f32 v70, v4, v5')
        s.warmret('L_wLN')
        s(f's_mov_b32 exec_lo, 0x55555555\ns_mov_b32 exec_hi, 0x55555555\nbuffer_store_dwordx2 v[70:71], v69, {WSR}, s6 offen sc1')
        if o['al']: s(f's_add_u32 s6, s6, {W_AL - W_ACT}\nbuffer_store_dwordx2 v[70:71], v69, {WSR}, s6 offen')
        s.stamp(6)
        s.end()
        s(f'{ln}:\ns_barrier')
        s.role(3, 'L_D')
        s.end()

    def crole(s):
        s.cur = 'c'
        o = s.o; E = o['cE']
        s(f'L_C:\ns_cmp_lt_u32 s{SV}, 4\ns_cbranch_scc0 L_exit')
        BW, A, D = 88, 48, 68
        s(f's_mul_i32 s4, s{SV}, 10240\ns_add_u32 s4, s4, {LBIG}')
        s.srd(RA, P_G, 640 * 3072); s.srd(RB, P_U, 640 * 3072); s.rows(1, 2, 2, 3072)
        s(f's_mul_i32 s5, s{SV}, {160 * 3072}\ns_lshl_b32 s6, s{S_CS}, 6\ns_add_u32 s5, s5, s6\ns_add_u32 s5, s5, {16 * 3072 * E}\ns_mov_b32 s6, s5')
        s.live('s_barrier\n' + s.dma(10 - E, 1, RA, 5, 16 * 3072, lambda t: f's_add_u32 m0, s4, {1024 * (E + t)}', 63) + '\n' +
               s.dma(10 - E, 1, RB, 6, 16 * 3072, lambda t: f's_add_u32 m0, s4, {40960 + 1024 * (E + t)}', 63))
        s.tr_lane(2, 3, 512, 64)
        s('v_add_u32 v2, s4, v2')
        s.a_lane(3, 4, 1280, 16, LH2)
        s(f's_mul_i32 s4, s{SV}, 320\nv_add_u32 v3, s4, v3')
        s(f's_lshl_b32 s4, s{SV}, 2\ns_add_u32 s4, s4, {LACT}\nv_lshl_add_u32 v4, v0, 5, s4')
        s('s_waitcnt vmcnt(0)')
        s.stamp(3)
        for T in range(5):
            for tt in range(4):
                for hi in range(2):
                    s(f'ds_read_b64_tr_b16 {P(BW + 16*T + 4*tt + 2*hi)}, v2 offset:{2048*T + 256*hi + 32*(tt & 1) + 40960*(tt >> 1)}')
        s('s_waitcnt lgkmcnt(0)'); s.live('s_barrier')
        s.stamp(5)
        for T in range(5): s(f'ds_read_b128 {Q4(A+4*T)}, v3 offset:{64*T}')
        for T in range(5):
            s(f's_waitcnt lgkmcnt({4-T})')
            for tt in ((1, 2, 3, 0) if T == 4 else range(4)): s.mfma(D + 4 * tt, A + 4 * T, BW + 16 * T + 4 * tt, T == 0)
        for tt in (2, 3, 0):
            for b in range(2): s(f'v_mov_b32_dpp v{D+4+b}, v{D+4*tt+b} quad_perm:[0,1,2,3] row_mask:{1 << tt} bank_mask:0xf')
        s(f'ds_write2_b32 v4, v{D+4}, v{D+5} offset0:0 offset1:4')
        s.warmret('L_wC')
        s('s_waitcnt lgkmcnt(0)')
        s.stamp(6)
        s('s_barrier')
        s.end()

    def drole(s):
        s.cur = 'd'
        o = s.o; E = o['dE']
        s('L_D:')
        BW, A, D = 40, 72, 88
        s(f's_lshl_b32 s4, s{SV}, 13\ns_add_u32 s4, s4, {LBIG}')
        s.srd(RA, P_D, 1536 * 1280); s.srd(RB, P_OUT, 2560); s.rows(1, 2, 2, 1280)
        s(f's_mul_i32 s5, s{SV}, {128 * 1280}\ns_lshl_b32 s6, s{S_DT}, 6\ns_add_u32 s5, s5, s6\ns_add_u32 s5, s5, {16 * 1280 * E}')
        s.live('s_barrier\n' + s.dma(8 - E, 1, RA, 5, 16 * 1280, lambda t: f's_add_u32 m0, s4, {1024 * (E + t)}', 63))
        s.tr_lane(2, 3, 512, 64)
        s('v_add_u32 v2, s4, v2\ns_waitcnt vmcnt(0)')
        s.stamp(3)
        for tt in range(2):
            for T in range(4):
                for hi in range(2): s(f'ds_read_b64_tr_b16 {P(BW + 16*tt + 4*T + 2*hi)}, v2 offset:{2048*T + 256*hi + 32*tt}')
        s(f's_lshl_b32 s4, s{SV}, 9\ns_add_u32 s4, s4, {LACT}\nv_lshl_add_u32 v2, v0, 2, s4')
        s.a_lane(3, 4, 256, 16, 0); s('v_add_u32 v3, s4, v3')
        s(f'v_and_b32 v4, 31, v0\nv_mul_u32_u24 v4, 96, v4\ns_lshl_b32 s4, s{SV}, 2\ns_add_u32 s4, s4, {LDP}\nv_add_u32 v4, s4, v4')
        s(f'v_lshlrev_b32 v1, 4, v0\ns_lshl_b32 s5, s{SV}, 10\ns_add_u32 s5, s5, {W_ACT}')
        if o['al']:
            s(f's_lshl_b32 s6, s{SV}, 2\ns_mul_i32 s7, s{S_X}, 6\ns_sub_u32 s6, s6, s7\nv_lshrrev_b32 v5, 4, v0\nv_add_u32 v5, s6, v5\nv_cmp_gt_u32 vcc, 6, v5')
            s(f'v_mov_b32 v5, {W_AL - W_ACT}\nv_cndmask_b32 v5, 0, v5, vcc\nv_add_u32 v1, v1, v5')
        s('s_mov_b32 s6, 0x05040100\ns_mov_b32 s7, 0x07060302')
        s(f'v_and_b32 v5, 31, v0\nv_lshlrev_b32 v6, 3, v5\nv_lshrrev_b32 v7, 5, v0')
        lf = s.lab('nofin')
        s(f's_cmp_eq_u32 s{SV}, 0\ns_cbranch_scc0 {lf}')
        s(f's_lshl_b32 s8, s{S_DT}, 8\ns_add_u32 s9, s8, {W_MOD + 5*5120}\ns_add_u32 s8, s8, {W_X1}')
        if o['rrep']: s(f's_lshl_b32 s10, s{S_X}, 13\ns_add_u32 s8, s8, s10')
        s.poll([f'buffer_load_dwordx2 v[10:11], v6, {WSR}, s9 offen sc1', f'buffer_load_dwordx2 v[8:9], v6, {WSR}, s8 offen sc1'], s.ck_tag([[11], [9]], 12), slp=o['pslp'], warmable=True)
        s('v_lshlrev_b32 v9, 4, v7\nv_lshrrev_b32 v8, v9, v8\nv_lshlrev_b32 v8, 16, v8\nv_lshrrev_b32 v10, v9, v10\nv_lshlrev_b32 v10, 16, v10')
        s(f'{lf}:')
        s(f'v_lshl_add_u32 v6, v5, 1, v7\nv_mul_u32_u24 v6, 48, v6\nv_add_u32 v6, {LDP}, v6')
        s(f'v_mul_u32_u24 v7, 1280, v7\nv_lshl_add_u32 v5, v5, 1, v7\ns_lshl_b32 s8, s{S_DT}, 6')
        s.live('s_barrier')
        s.poll([f'buffer_load_dwordx4 v[16:19], v1, {WSR}, s5 offen sc1'], s.ck_tag([[17, 19]], 12), slp=o['aslp'], warmable=True)
        s.stamp(5)
        s('v_perm_b32 v17, v18, v16, s7\nv_perm_b32 v16, v18, v16, s6\nds_write2st64_b32 v2, v16, v17 offset0:0 offset1:1\ns_waitcnt lgkmcnt(0)')
        for T in range(4): s(f'ds_read_b128 {Q4(A+4*T)}, v3 offset:{64*T}')
        for T in range(4):
            s(f's_waitcnt lgkmcnt({3-T})')
            for tt in range(2): s.mfma(D + 4 * tt, A + 4 * T, BW + 16 * tt + 4 * T, T == 0)
        for b in range(2): s(f'v_mov_b32_dpp v{D+b}, v{D+4+b} quad_perm:[0,1,2,3] row_mask:0xa bank_mask:0xf')
        s(f'ds_write2_b32 v4, v{D}, v{D+1} offset0:0 offset1:12\ns_waitcnt lgkmcnt(0)'); s.stamp(1); s.live('s_barrier'); s.stamp(2)
        s(f's_cmp_eq_u32 s{SV}, 0\ns_cbranch_scc0 L_exit')
        for k in range(3): s(f'ds_read_b128 {Q4(16+4*k)}, v6 offset:{16*k}')
        s('s_waitcnt lgkmcnt(1)\nv_pk_add_f32 v[16:17], v[16:17], v[18:19]\nv_pk_add_f32 v[20:21], v[20:21], v[22:23]\nv_pk_add_f32 v[16:17], v[16:17], v[20:21]')
        s('s_waitcnt lgkmcnt(0)\nv_pk_add_f32 v[24:25], v[24:25], v[26:27]\nv_pk_add_f32 v[16:17], v[16:17], v[24:25]\nv_add_f32 v16, v16, v17')
        s('v_fma_f32 v16, v16, v10, v8\nv_mov_b32_dpp v17, v16 quad_perm:[1,1,3,3] row_mask:0xf bank_mask:0xf\nv_cvt_pk_bf16_f32 v16, v16, v17')
        s.warmret('L_wD')
        s(f's_mov_b32 exec_lo, 0x55555555\ns_mov_b32 exec_hi, 0x55555555\nbuffer_store_dword v16, v5, {RBR}, s8 offen {o["oflag"]}')
        s.stamp(6)
        s(f's_cmp_eq_u32 s{S_DT}, 0\ns_cbranch_scc0 L_exit')
        s(f's_mov_b64 exec, 1\nv_mov_b32 v17, s{TAG}\nv_mov_b32 v18, 0\nbuffer_store_dword v17, v18, {WSR}, 0 offen {o["oflag"]}')
        if o['diag']:
            s(f'L_diag:\ns_memrealtime s[78:79]\ns_waitcnt lgkmcnt(0)\ns_sub_u32 s78, s78, s76\ns_cmp_lt_u32 s78, {o["diag"]}\ns_cbranch_scc1 L_diag')

    def exit(s):
        s('L_exit:')
        if s.o['stamps']:
            s('s_waitcnt vmcnt(0)')
            s.stamp(7, True)
            if s.o['stamps'] == 3: s(f's_memtime s[{ST0+12}:{ST0+13}]')
            s('s_mov_b64 exec, 1\ns_waitcnt lgkmcnt(0)')
            s(f's_mul_i32 s4, s2, 12\ns_add_u32 s4, s4, s3\ns_lshl_b32 s4, s4, 6\ns_add_u32 s4, s4, {W_STAMP}\nv_mov_b32 v1, 0')
            for k in range(4):
                for e in range(4): s(f'v_mov_b32 v{4+4*k+e}, s{ST0+4*k+e}')
                s(f'buffer_store_dwordx4 {Q4(4+4*k)}, v1, {WSR}, s4 offen offset:{16*k}')
        s('L_end:\ns_endpgm')

    def build(s):
        s.entry(); s.stream()
        s('L_service:')
        if s.o['noserv']: s.end()
        if s.o['prio']: s(f's_setprio {s.o["prio"]}')
        s('s_cmp_eq_u32 s3, 9\ns_cbranch_scc1 L_s1\ns_cmp_eq_u32 s3, 10\ns_cbranch_scc1 L_s2\ns_cmp_eq_u32 s3, 11\ns_cbranch_scc1 L_s3')
        s.s0(); s.bgather(); s('L_s1:'); s.s1(); s('L_s2:'); s.s2(); s('L_s3:'); s.s3(); s.crole(); s.drole(); s.exit()
        body, n = pad(s.L)
        out = [f'; @launch grid=(256,1,1) block=(768,1,1) lds={LEND}', '.amdgcn_target "amdgcn-amd-amdhsa--gfx950"', '.text',
               f'.globl {KN}', '.p2align 8', f'.type {KN},@function', f'{KN}:']
        out += [l if l.endswith(':') else '    ' + l for l in body]
        out += ['.section .rodata,"a"', '.p2align 6', f'.amdhsa_kernel {KN}', '  .amdhsa_next_free_vgpr 168', '  .amdhsa_next_free_sgpr 96',
                '  .amdhsa_accum_offset 168', '  .amdhsa_group_segment_fixed_size 0', '  .amdhsa_kernarg_size 112', '  .amdhsa_user_sgpr_count 2',
                '  .amdhsa_user_sgpr_kernarg_segment_ptr 1', '  .amdhsa_system_sgpr_workgroup_id_x 1', '  .amdhsa_float_denorm_mode_32 3', '.end_amdhsa_kernel']
        return '\n'.join(out) + '\n', n

if __name__ == '__main__':
    names = []
    for spec in sys.argv[1:]:
        kw = {}
        name, _, rest = spec.partition(':')
        for kv in filter(None, rest.split(',')):
            k, v = kv.split('=')
            kw[k] = int(v) if v.isdigit() else v.replace('+', ' ').replace('_', '')
        t, n = G(**kw).build()
        open(name, 'w').write(t)
        names.append(name)
    print(' '.join(names))
```

```python
import sys, struct
from asmlib import pad
KN = 'adaLN_cond__gqa_block_cached__swiglu_ffn__decode_kernel'

def f2u(x): return struct.unpack('<I', struct.pack('<f', x))[0]
def hx(x): return hex(f2u(x))
LOG2E = 1.4426950408889634
W_E, W_PG, W_MOD, W_XL, W_XC, W_ACT = 0, 0x800, 0x1000, 0x2000, 0x9000, 0xA000
W_X1, W_GL, W_AL, W_YL, W_Y, W_ATT, W_ML, W_MP, W_QP, W_END = 0x10000, 0x20000, 0x28000, 0x30000, 0x58000, 0x80000, 0x180000, 0x1A0000, 0x1E0000, 0x260000
W_STAMP = 512 << 20
LQ, LFLAG, LPRG, LMODE, LQF, LCNT, LXS, LHS, LO, LH2, LPO, LBIG = 0, 1536, 1544, 1552, 1556, 1568, 1664, 2304, 2816, 6144, 9216, 58368
LACT, LDP = LPO, LPO + 6144
OS = 768 + 64
HS = 1280 + 64
LM, LWQ, LB, LEND = LBIG, LBIG + 20480, LBIG + 51200, LBIG + 100352
P_X, P_K, P_V, P_WQ, P_WO, P_BX, P_G, P_U, P_D, P_C, P_WM, P_OUT, P_DBG, P_WS = range(16, 44, 2)
TAG, S_H, S_J, S_R, S_X, S_IDX, LOC, S_CS = 44, 45, 46, 47, 48, 49, 50, 51
WS = 52; RA = 56; RB = 60
S_ROLE = 15
S_DT = 14
SPIN = 13
SV = 12
ST0 = 80
WSR = f's[{WS}:{WS+3}]'; RAR = f's[{RA}:{RA+3}]'; RBR = f's[{RB}:{RB+3}]'
P = lambda r: f'v[{r}:{r+1}]'
Q4 = lambda r: f'v[{r}:{r+3}]'

class G:
    def __init__(s, **o):
        s.o = dict(F=3, NPF=12, RC=3, endF=5, endN=9, rot=6, wflag='nt', sflag='nt', spin=1 << 22, pslp=8, mlslp=32,
                   qF=63, mF=63, bF=1, cF=1, dF=1, cE=3, dE=3, bE=0, bEF=2, bonus=0, eg=180, xab=6, oflag='', warm=1, loc=1,
                   bal=1, stat1=120, cstep=12, bdel=25, n1=7, cstep2=6, bdel2=17, c0=6, bslp=24, Flo=2, bend=180,
                   stamps=0, stk='', phst=0, remap=0, diag=0, nox='')
        s.o.update(o); s.L = []; s.uid = 0; s.cur = '?'
    def __call__(s, t):
        for l in t.split('\n'):
            l = l.strip()
            if l: s.L.append(l)
    def lab(s, n): s.uid += 1; return f'L_{n}_{s.uid}'
    def srd(s, d, ptr, size):
        s(f's_mov_b32 s{d}, s{ptr}\ns_mov_b32 s{d+1}, s{ptr+1}\ns_mov_b32 s{d+2}, {size}\ns_mov_b32 s{d+3}, 0x20000')
    def stamp(s, k, lite=False):
        if s.o['stamps'] == 1 or (s.o['stamps'] and (lite or str(k) + s.cur in s.o['stk'])): s(f's_memrealtime s[{ST0+2*k}:{ST0+2*k+1}]')
    def bf16r(s, d, src=None):
        src = d if src is None else src
        s(f'v_cvt_pk_bf16_f32 v{d}, v{src}, v{src}\nv_and_b32 v{d}, 0xffff0000, v{d}')
    def dppop(s, op, v, ctl): s(f'{op}_dpp v{v}, v{v}, v{v} {ctl} row_mask:0xf bank_mask:0xf')
    def red16(s, op, vs, skip1=False, fill=None):
        for ctl in (['quad_perm:[1,0,3,2]'] if not skip1 else []) + ['quad_perm:[2,3,0,1]', 'row_half_mirror', 'row_mirror']:
            if fill:
                for _ in range(2):
                    if fill: s(fill.pop(0))
            for v in vs: s.dppop(op, v, ctl)
    def swapred(s, op, v, t, w, fill=None):
        s(f'v_mov_b32 v{t}, v{v}')
        if fill:
            for _ in range(2):
                if fill: s(fill.pop(0))
        s(f'v_permlane{w}_swap_b32 v{v}, v{t}\n{op} v{v}, v{v}, v{t}')
    def live(s, text):
        if not s.o['warm']: s(text); return
        l = s.lab('lv'); s(f's_cbranch_execz {l}'); s(text); s(f'{l}:')
    def warm(s, entry, ret):
        if not s.o['warm']: return
        for r in range(1, 8): s(f'v_mov_b32 v{r}, 0')
        s(f's_mov_b64 exec, 0\ns_branch {entry}\n{ret}:\ns_mov_b64 exec, -1')
    def warmret(s, ret):
        if s.o['warm']: s(f's_cbranch_execz {ret}')
    def ck_tag(s, groups, t):
        out = []; first = True
        for g in groups:
            l = []
            for r in g:
                l.append(f'v_xor_b32 v{t}, s{TAG}, v{r}' if first else f'v_bitop3_b32 v{t}, v{r}, s{TAG}, v{t} bitop3:0xbe'); first = False
            out.append('\n'.join(l))
        return out, t
    def ck_xor(s, bases, n, t, t2):
        out = []
        for i, b in enumerate(bases):
            l = [f'v_bitop3_b32 v{t2}, v{b}, v{b+1}, v{b+2} bitop3:0x96']
            if n == 3: l.append(f'v_xor_b32 v{t2}, v{t2}, v{b+3}')
            l.append(f'v_xor_b32 v{t}, s{TAG}, v{t2}' if i == 0 else f'v_bitop3_b32 v{t}, v{t2}, s{TAG}, v{t} bitop3:0xbe')
            out.append('\n'.join(l))
        return out, t
    def poll(s, loads, ck, slp=0, warmable=False, nm='?', slpif=None, spin=None):
        if nm in s.o['nox']: return
        checks, t = ck
        a = s.lab('poll'); b = s.lab('ok')
        s(f's_mov_b32 s{SPIN}, {spin or s.o["spin"]}\n{a}:')
        (s.live if warmable else s)('\n'.join(loads))
        for i, c in enumerate(checks): s(f's_waitcnt vmcnt({len(loads) - 1 - i})'); s(c)
        s(f'v_cmp_ne_u32 vcc, 0, v{t}\ns_cbranch_vccz {b}')
        if slpif: c = s.lab('ns'); s(f'{slpif}\ns_cbranch_scc1 {c}\ns_sleep {s.o["mlslp"]}\n{c}:')
        if slp: s(f's_sleep {slp}')
        s(f's_sub_u32 s{SPIN}, s{SPIN}, 1\ns_cbranch_scc0 {a}\n{b}:')
    def gather(s, loads, cks, sm, slp=0, nm='?'):
        if nm in s.o['nox']: return
        n = len(loads); a = s.lab('gat'); b = s.lab('ok')
        s(f's_mov_b32 s{SPIN}, {s.o["spin"]}\ns_mov_b32 s{sm}, {(1 << n) - 1}\n{a}:')
        for k in range(n):
            l = s.lab('sk'); s(f's_bitcmp1_b32 s{sm}, {k}\ns_cbranch_scc0 {l}\n{loads[k]}\n{l}:')
        s(f's_mov_b32 s{sm}, 0\ns_waitcnt vmcnt(0)')
        for k in reversed(range(n)):
            s(cks[k][0][0]); s(f'v_cmp_ne_u32 vcc, 0, v{cks[k][1]}\ns_cmp_lg_u64 vcc, 0\ns_addc_u32 s{sm}, s{sm}, s{sm}')
        s(f's_cmp_eq_u32 s{sm}, 0\ns_cbranch_scc1 {b}')
        if slp: s(f's_sleep {slp}')
        s(f's_sub_u32 s{SPIN}, s{SPIN}, 1\ns_cbranch_scc0 {a}\n{b}:')
    def gstore(s, stores, nm='?'):
        if nm in s.o['nox']: return
        a = s.lab('pl'); b = s.lab('st')
        s(f's_cmp_eq_u32 s{LOC}, 1\ns_cbranch_scc1 {a}')
        for t in stores: s(t + ' sc1')
        s(f's_branch {b}\n{a}:')
        for t in stores: s(t)
        s(f'{b}:')
    def getloc(s, t, spin=True, at=LFLAG):
        a = s.lab('loc'); b = s.lab('locok')
        if spin: s(f's_mov_b32 s{SPIN}, {s.o["spin"] * 8}\n{a}:')
        s(f'v_mov_b32 v{t}, {at}\nds_read_b32 v{t}, v{t}\ns_waitcnt lgkmcnt(0)\nv_readfirstlane_b32 s{LOC}, v{t}\ns_sub_u32 s{LOC}, s{LOC}, s{TAG}')
        if spin: s(f's_cmp_le_u32 s{LOC}, 1\ns_cbranch_scc1 {b}\ns_sleep 1\ns_sub_u32 s{SPIN}, s{SPIN}, 1\ns_cbranch_scc0 {a}\n{b}:')
    def dma(s, n, voff, srd, soff, sstep, lds, F):
        out = []
        for t in range(n):
            st = sstep(t) if callable(sstep) else sstep
            out.append(lds(t) if callable(lds) else f's_mov_b32 m0, {lds + 1024 * t}')
            if F < 60: out.append(f's_waitcnt vmcnt({F - 1})')
            out.append(f'buffer_load_dwordx4 v{voff}, s[{srd}:{srd+3}], s{soff} offen {s.o["wflag"]} lds')
            if t < n - 1: out.append(f's_add_u32 s{soff}, s{soff}, {st}')
        return '\n'.join(out)
    def rows(s, d, t, sh, stride):
        s(f'v_lshrrev_b32 v{d}, {sh}, v0\nv_mul_u32_u24 v{d}, {stride}, v{d}\nv_and_b32 v{t}, {(1 << sh) - 1}, v0\nv_lshl_add_u32 v{d}, v{t}, 4, v{d}')
    def tr_lane(s, d, t, gs, rs):
        s(f'v_lshrrev_b32 v{d}, 4, v0\nv_mul_u32_u24 v{d}, {gs}, v{d}')
        s(f'v_bfe_u32 v{t}, v0, 2, 2\nv_mul_u32_u24 v{t}, {rs}, v{t}\nv_add_u32 v{d}, v{d}, v{t}')
        s(f'v_and_b32 v{t}, 3, v0\nv_lshl_add_u32 v{d}, v{t}, 3, v{d}')
    def a_lane(s, d, t, bs, gs, base):
        s(f'v_and_b32 v{d}, 1, v0\nv_mul_u32_u24 v{d}, {bs}, v{d}\nv_lshrrev_b32 v{t}, 4, v0\nv_mul_u32_u24 v{t}, {gs}, v{t}')
        s(f'v_add_u32 v{d}, v{d}, v{t}')
        if base: s(f'v_add_u32 v{d}, {base}, v{d}')
    def mfma(s, d, a, b, first, k=32):
        n = 4 if k == 32 else 2
        s(f'v_mfma_f32_16x16x{k}_bf16 v[{d}:{d+3}], v[{a}:{a+n-1}], v[{b}:{b+n-1}], ' + ('0' if first else f'v[{d}:{d+3}]'))
    def role(s, bit, label, ifset=True): s(f's_bitcmp1_b32 s{S_ROLE}, {bit}\ns_cbranch_scc{1 if ifset else 0} {label}')
    def end(s): s('s_branch L_exit' if s.o['stamps'] else 's_endpgm')
    def tagwait(s): s(f's_waitcnt lgkmcnt(0)\ns_add_u32 s{TAG}, s{TAG}, 0x9e3779b1')

    def entry(s):
        o = s.o
        s(f's_cmp_ge_u32 s2, 256\ns_cbranch_scc1 L_end')
        s.stamp(0, True)
        s('s_load_dwordx16 s[16:31], s[0:1], 0\ns_load_dwordx8 s[32:39], s[0:1], 64\ns_load_dwordx4 s[40:43], s[0:1], 96')
        if o['diag']: s('s_memrealtime s[78:79]')
        s('v_readfirstlane_b32 s3, v0\nv_and_b32 v0, 63, v0')
        if o['remap']: s('s_lshr_b32 s4, s2, 3\ns_and_b32 s4, s4, 7\ns_xor_b32 s2, s2, s4')
        s(f's_and_b32 s{S_X}, s2, 7\ns_lshr_b32 s4, s2, 6\ns_bfe_u32 s{S_J}, s2, 0x30003\ns_lshl2_add_u32 s{S_H}, s{S_X}, s4\ns_lshr_b32 s3, s3, 6')
        s('s_cmp_ge_u32 s3, 8\ns_cbranch_scc1 L_service')

    def roles(s):
        o = s.o
        for k in range(1, 8): s.stamp(k, True)
        s(f's_lshr_b32 s{S_IDX}, s2, 3\ns_lshr_b32 s11, s2, 6')
        lb = s.lab('nonB'); lr = s.lab('roles')
        s(f's_mov_b32 s{S_DT}, 0\ns_mov_b32 s{SV}, s3')
        s(f's_cmp_lt_u32 s{S_J}, 5\ns_cbranch_scc0 {lb}')
        s(f's_mul_i32 s{S_CS}, s11, 5\ns_add_u32 s{S_CS}, s{S_CS}, s{S_J}\ns_lshl_b32 s{S_CS}, s{S_CS}, 1\ns_and_b32 s9, s3, 1\ns_add_u32 s{S_CS}, s{S_CS}, s9')
        s(f's_mov_b32 s{S_ROLE}, 1\ns_branch {lr}')
        s(f'{lb}:')
        s(f's_mul_i32 s8, s11, 3\ns_add_u32 s8, s8, s{S_J}\ns_sub_u32 s8, s8, 5')
        s(f's_mul_i32 s{S_CS}, s{S_X}, 6\ns_add_u32 s{S_CS}, s{S_CS}, s8')
        s(f's_add_u32 s9, s8, 10\ns_and_b32 s9, s9, 14\ns_lshl_b32 s10, s9, 2\ns_add_u32 s10, s10, s{S_X}')
        s(f's_lshl_b32 s{S_DT}, s10, 1\ns_and_b32 s9, s8, 1\ns_add_u32 s{S_DT}, s{S_DT}, s9')
        s(f's_cmp_lt_u32 s10, 10\ns_cselect_b32 s{S_ROLE}, 8, 0')
        s(f's_cmp_lt_u32 s8, 6\ns_cselect_b32 s{S_ROLE}, 2, s{S_ROLE}')
        s(f'{lr}:')
        s('s_waitcnt lgkmcnt(0)')
        s(f's_load_dword s{TAG}, s[{P_WS}:{P_WS+1}], 0')
        s.srd(WS, P_WS, 805306368 if o['stamps'] else W_END)

    def stream(s):
        s.cur = 'w'
        o = s.o; F = o['F']; NPF = o['NPF']
        VK, QA, ACC, TS, MX = 1, 4, 16, 2, 3
        RING = 24
        SC = RING
        T1, T2, LS, PPT = RING + 8, RING + 9, RING + 10, RING + 11
        MK = RING + 12
        VV, BP, PP2, T3 = RING + 16, RING + 17, RING + 18, RING + 19
        ML = RING + 20
        RET = 7
        BM, BA, BZ = RING + 24, RING + 25, RING + 26
        A2 = []
        s(f'v_bfe_u32 v{VK}, v0, 1, 3\nv_mul_u32_u24 v{VK}, 384, v{VK}\nv_lshrrev_b32 v2, 4, v0\nv_lshl_add_u32 v{VK}, v2, 5, v{VK}')
        s(f'v_and_b32 v2, 1, v0\nv_lshl_add_u32 v{VK}, v2, 4, v{VK}')
        PD = 16 * 3145728; STEP = 393216
        s(f's_bfe_u32 s7, s2, 0x40003\ns_lshl3_add_u32 s7, s7, s3\ns_mul_i32 s4, s7, 3072\ns_lshr_b32 s10, s{S_H}, 1')
        s(f's_mul_i32 s5, s10, 3145728\ns_add_u32 s4, s4, s5\ns_add_u32 s6, s4, 3145728')
        s(f's_mul_i32 s5, s10, {o["rot"]}\ns_and_b32 s5, s5, 7\ns_mul_i32 s5, s5, {STEP}\ns_add_u32 s5, s5, s4')
        s(f's_mov_b32 s{RA+2}, 201326592\ns_mov_b32 s{RA+3}, 0x20000\ns_waitcnt lgkmcnt(0)\ns_mov_b64 s[{RA}:{RA+1}], s[{P_K}:{P_K+1}]')
        NL = 192
        quad = {}; free = list(range(3 * NPF)); vm = []
        done = [0]
        def wait(n):
            if len(vm) - done[0] > n:
                s(f's_waitcnt vmcnt({n})'); done[0] = len(vm) - n
        def issue(u):
            wait((o['endF'] if u >= NL - o['endN'] else F) - 1)
            if o['bal'] and 3 * NPF + 9 <= u < NL - o['endN']:
                l = s.lab('th'); s(f's_cbranch_vccz {l}\ns_waitcnt vmcnt({o["Flo"] - 1})\n{l}:')
            q = free.pop(0); quad[u] = q; r = RING + 4 * q
            srd, vo = (RAR, VK) if u < 96 else (RBR, VV)
            s(f'buffer_load_dwordx4 {Q4(r)}, v{vo}, {srd}, s5 offen offset:{128 * (u % 3)} {o["sflag"]}')
            vm.append(u)
            if u % 3 == 2 and u < NL - 1:
                s(f's_add_u32 s5, s5, {STEP}\ns_cmp_ge_u32 s5, s6\ns_cselect_b32 s5, s4, s5')
                if u % 24 == 23:
                    for r in (4, 5, 6): s(f's_sub_u32 s{r}, s{r}, {3 * PD}' if u == 95 else f's_add_u32 s{r}, s{r}, {PD}')
                if o['phst'] and u % 48 == 47: s.stamp({47: 3, 95: 5, 143: 6}[u], True)
            if u >= 3 * NPF + 3:
                if u >= 3 * NPF + 6: s(f's_waitcnt lgkmcnt(0)\nv_cmp_gt_u32 vcc, {u + 1}, v{BM}')
                s(f'v_mov_b32 v{BM}, {u + 1}\nds_write_b32 v{BA}, v{BM} offset:{LPRG}\nds_read_b32 v{BM}, v{BZ} offset:{LMODE}')
        def ready(u): return u in vm and vm.index(u) < done[0]
        def kpost(g):
            a = ACC + 4 * (g & 1); sc = SC + (g >> 2)
            s(f'v_cndmask_b32_e64 v{TS}, v{a}, v{a+1}, s[8:9]')
            s(f'v_add_f32_dpp v{sc}, v{TS}, v{TS} quad_perm:[1,0,3,2] row_mask:{1 << (g & 3)} bank_mask:0xf')
            if g & 3 == 3:
                s.bf16r(sc); s(f'v_mul_f32 v{sc}, {hx(192 ** -0.5)}, v{sc}'); s.bf16r(sc)
            if g & 7 == 7:
                a = sc - 1; row = f'quad_perm:[0,1,2,3] row_mask:{1 << (g >> 3)} bank_mask:0xf'
                s(f'v_max_f32 v{MX}, v{a}, v{a+1}')
                s.red16('v_max_f32', [MX], skip1=True); s.swapred('v_max_f32', MX, T1, 16); s.swapred('v_max_f32', MX, T1, 32)
                s(f's_mov_b32 s10, {hx(LOG2E)}\nv_mul_f32 v{T1}, s10, v{MX}')
                for k in range(2): s(f'v_fma_f32 v{a+k}, v{a+k}, s10, -v{T1}')
                for k in range(2): s(f'v_exp_f32 v{a+k}, v{a+k}')
                s(f'v_mov_b32_dpp v{ML}, v{MX} {row}\nv_add_f32 v{LS}, v{a}, v{a+1}')
                for k in range(2): s(f'v_cvt_pk_bf16_f32 v{a+k}, v{a+k}, v{a+k}')
                s.red16('v_add_f32', [LS], skip1=True); s.swapred('v_add_f32', LS, T1, 16); s.swapred('v_add_f32', LS, T1, 32)
                s(f'v_mov_b32_dpp v{ML+1}, v{LS} {row}')
        def bperm(g):
            s(f'ds_bpermute_b32 v{PPT if g & 1 == 0 else PP2}, v{BP}, v{SC + (g >> 2)} offset:{64 * (g & 3)}')
        def switch():
            s.stamp(3)
            bperm(0)
            s(f'v_bitop3_b32 v{ML+2}, v{ML}, v{ML+1}, s{TAG} bitop3:0x96\nv_lshlrev_b32 v{ML+3}, 7, v0')
            s(f's_lshr_b32 s10, s{S_H}, 1\ns_lshl_b32 s10, s10, 9\ns_add_u32 s10, s10, s7\ns_lshl_b32 s10, s10, 4\ns_add_u32 s10, s10, {W_ML}')
            s('s_mov_b32 exec_lo, 0x00010001\ns_mov_b32 exec_hi, 0x00010001')
            s.gstore([f'buffer_store_dwordx4 {Q4(ML)}, v{ML+3}, {WSR}, s10 offen'])
            s('s_mov_b64 exec, -1')
            vm.append(None)
            s(f'v_lshrrev_b32 v{T1}, 5, v0\nv_mul_u32_u24 v{T1}, 768, v{T1}\nv_and_b32 v{T2}, 7, v0\nv_lshl_add_u32 v{T1}, v{T2}, 5, v{T1}')
            s(f'v_and_b32 v{T2}, 16, v0\nv_add_u32 v{T1}, v{T1}, v{T2}\ns_mul_i32 s10, s3, 1536\ns_add_u32 s10, s10, {LPO}\nv_add_u32 v{T1}, s10, v{T1}')
        def outp(acc, b):
            s('s_mov_b32 exec_lo, 0x00ff00ff\ns_mov_b32 exec_hi, 0xff00ff00')
            for jj in range(3): s(f'ds_write_b128 v{T1}, {Q4(acc[jj])} offset:{256*jj + 12288*b}')
            s('s_mov_b64 exec, -1')
        def proc(u):
            g, jj = divmod(u, 3)
            if g >= 32 and jj == 0:
                a = ACC + 4 * (g & 1)
                s('s_waitcnt lgkmcnt(0)')
                for k in range(4): s(f'v_and_b32 v{a+k}, v{PPT if g & 1 == 0 else PP2}, v{MK+k}')
                if g < 63: bperm(g - 31)
            wait(len(vm) - 1 - vm.index(u))
            r = RING + 4 * quad[u]
            if g < 32:
                s.mfma(ACC + 4 * (g & 1), QA + 4 * jj, r, jj == 0)
                if jj == 2 and g > 0: kpost(g - 1)
                if u == 5:
                    s(f'v_lshrrev_b32 v{BP}, 3, v0\nv_mul_u32_u24 v{VV}, 384, v{BP}\nv_lshlrev_b32 v{BP}, 3, v{BP}')
                    s(f'v_and_b32 v{T3}, 7, v0\nv_lshl_add_u32 v{VV}, v{T3}, 4, v{VV}')
                    s(f'v_and_b32 v{PP2}, 1, v0\nv_lshlrev_b32 v{PP2}, 4, v{PP2}\nv_mov_b32 v{MK}, 0xffff\nv_lshlrev_b32 v{PP2}, v{PP2}, v{MK}')
                    s(f'v_lshrrev_b32 v{T3}, 1, v{T3}')
                    for k in range(4):
                        s(f'v_cmp_eq_u32 vcc, {k}, v{T3}\nv_cndmask_b32 v{MK+k}, 0, v{PP2}, vcc')
                    s.a_lane(T3, PP2, 16, 32, LQ)
                if u in (23, 47, 71):
                    for k in range(3): s(f'ds_read_b128 {Q4(QA+4*k)}, v{T3} offset:{128*k + 16*(u+1)}')
                    s('s_waitcnt lgkmcnt(0)')
                if u == 6:
                    s(f's_cmp_eq_u32 s3, 3\ns_cselect_b32 s10, 0, 4\nv_mov_b32 v{BA}, s10\nv_mov_b32 v{BZ}, 0')
                if u == 95: kpost(31); switch()
            else:
                if u == 120: A2.extend(RING + 4 * free.pop() for _ in range(3))
                acc = lambda p: A2 if p & 1 else [QA, QA + 4, QA + 8]
                p = (g - 32) >> 3
                s.mfma(acc(p)[jj], ACC + 4 * (g & 1), r, g & 7 == 0)
                if u >= 190:
                    s(f's_mov_b32 exec_lo, 0x00ff00ff\ns_mov_b32 exec_hi, 0xff00ff00\nds_write_b128 v{T1}, {Q4(A2[jj-1])} offset:{256*(jj-1) + 3*12288}')
                    if u == 190: s('s_mov_b64 exec, -1')
                if p and u % 24 == 2:
                    outp(acc(p - 1), p - 1)
                    s(f's_mov_b64 exec, 1\nv_mov_b32 v{T2}, 1\nds_add_u32 v{BZ}, v{T2} offset:{LCNT + 4*(p-1)}\ns_mov_b64 exec, -1')
            if quad[u] >= RET: free.append(quad[u])
        li = 0
        while li < 3 * NPF:
            issue(li); li += 1
            if li == F: s.roles(); s.srd(RB, P_V, 201326592)
            if li == F + 1: s('s_mov_b32 s8, 0xaaaaaaaa\ns_mov_b32 s9, 0xaaaaaaaa'); s.a_lane(TS, MX, 16, 32, LQ); s.tagwait()
        s.stamp(1, True)
        s('s_barrier')
        s.stamp(2, True)
        for jj in range(3): s(f'ds_read_b128 {Q4(QA+4*jj)}, v{TS} offset:{128*jj}')
        s.getloc(MX, spin=False)
        pi = 0
        while pi < NL:
            if li < NL:
                while not free: proc(pi); pi += 1
                issue(li); li += 1
                n = 0
                while n < o['RC'] and pi < NL and ready(pi): proc(pi); pi += 1; n += 1
            else:
                proc(pi); pi += 1
        s(f'ds_write_b128 v{T1}, {Q4(A2[2])} offset:{512 + 3*12288}\ns_mov_b64 exec, -1')
        s('s_waitcnt lgkmcnt(0)')
        s.stamp(4, True)
        s('s_barrier')
        s.role(3, 'L_D'); s.role(1, 'L_C'); s.role(0, 'L_exit', False)
        s(f'L_B:\ns_cmp_lt_u32 s{SV}, 4\ns_cbranch_scc0 L_exit')
        BW, AW, D = 40, 88, 136
        s.tr_lane(2, 3, 1024, 128)
        s(f'v_bfe_u32 v3, v0, 3, 2\nv_xor_b32 v3, s{SV}, v3\nv_lshl_add_u32 v2, v3, 5, v2\nv_add_u32 v2, {LB}, v2')
        for T in range(12):
            for hi in range(2): s(f'ds_read_b64_tr_b16 {P(BW+4*T+2*hi)}, v2 offset:{4096*T + 512*hi}')
        s(f'v_and_b32 v3, 3, v0\nv_mul_u32_u24 v3, {OS}, v3\nv_and_b32 v4, 48, v0\nv_add_u32 v3, v3, v4\nv_add_u32 v3, {LO}, v3')
        for T in range(6): s(f'ds_read_b128 {Q4(AW+4*T)}, v3 offset:{64*T}')
        s(f'v_lshlrev_b32 v4, 4, v0')
        s(f's_lshr_b32 s10, s{S_H}, 1\ns_mul_i32 s10, s10, 40\ns_and_b32 s11, s{S_H}, 1\ns_mul_i32 s11, s11, 5\ns_add_u32 s11, s11, s{S_J}')
        s(f's_lshl2_add_u32 s10, s11, s10\ns_add_u32 s10, s10, s{SV}\ns_lshl_b32 s10, s10, 8\ns_add_u32 s10, s10, {W_Y}\ns_sub_u32 s11, s10, {W_Y - W_YL}')
        s('s_waitcnt lgkmcnt(0)')
        for T in range(6): s.mfma(D, AW + 4 * T, BW + 4 * T, T == 0)
        s.live('s_barrier')
        s.stamp(5)
        for T in range(6, 12): s(f'ds_read_b128 {Q4(AW+4*T)}, v3 offset:{64*T}')
        for T in range(6, 12):
            s(f's_waitcnt lgkmcnt({11-T})'); s.mfma(D, AW + 4 * T, BW + 4 * T, False)
        s.warmret('L_wB')
        s(f's_mov_b64 exec, 0xffff\nv_pk_add_f32 {P(D)}, {P(D)}, {P(D+2)}\nv_bitop3_b32 v{D+2}, v{D}, v{D+1}, s{TAG} bitop3:0x96')
        s(f'buffer_store_dwordx4 {Q4(D)}, v4, {WSR}, s10 offen sc1\nbuffer_store_dwordx4 {Q4(D)}, v4, {WSR}, s11 offen')
        s.stamp(6)
        s('s_barrier')
        s.end()

    def s0(s):
        s.cur = 'a'
        o = s.o
        lsk = s.lab('noM'); lj = s.lab('Mj'); ln = s.lab('Mn')
        s(f's_lshr_b32 s4, s{S_IDX}, 2\ns_lshl_b32 s4, s4, 3\ns_add_u32 s4, s4, s{S_X}')
        s(f's_cmp_lt_u32 s4, 60\ns_cbranch_scc0 {lsk}')
        s(f's_and_b32 s7, s{S_IDX}, 3')
        s.srd(RA, P_C, 2560); s.srd(RB, P_WM, 640 * 7680)
        s('v_min_u32 v1, 39, v0\nv_cmp_lt_u32 vcc, 19, v1\nv_lshlrev_b32 v1, 4, v1\nv_mov_b32 v3, 960\nv_cndmask_b32 v3, 0, v3, vcc\nv_add_u32 v3, v3, v1')
        s(f's_mul_i32 s5, s7, 320\nbuffer_load_dwordx4 v[8:11], v3, {RAR}, s5 offen')
        s.rows(2, 3, 3, 7680)
        s(f's_mul_i32 s5, s7, {160 * 7680}\ns_lshl_b32 s6, s4, 7\ns_add_u32 s5, s5, s6')
        s(s.dma(20, 2, RB, 5, 8 * 7680, LM, o['mF']))
        s('s_waitcnt vmcnt(20)')
        s(f's_mov_b32 s6, {hx(-LOG2E)}')
        for k in range(4): s(f'v_lshlrev_b32 v{20+2*k}, 16, v{8+k}\nv_and_b32 v{21+2*k}, 0xffff0000, v{8+k}')
        for k in range(8): s(f'v_mul_f32 v{40+k}, s6, v{20+k}')
        for k in range(8): s(f'v_exp_f32 v{40+k}, v{40+k}')
        for k in range(8): s(f'v_add_f32 v{40+k}, 1.0, v{40+k}')
        for k in range(8): s(f'v_min_f32 v{40+k}, 0x7f000000, v{40+k}')
        for k in range(8): s(f'v_rcp_f32 v{48+k}, v{40+k}')
        for k in range(8): s(f'v_mul_f32 v{56+k}, v{20+k}, v{48+k}')
        for k in range(8): s(f'v_fma_f32 v{20+k}, -v{56+k}, v{40+k}, v{20+k}')
        for k in range(8): s(f'v_fma_f32 v{20+k}, v{20+k}, v{48+k}, v{56+k}')
        for k in range(4): s(f'v_cvt_pk_bf16_f32 v{8+k}, v{20+2*k}, v{21+2*k}')
        s(f'ds_write_b128 v1, v[8:11] offset:{LXS}')
        s.a_lane(4, 5, 320, 16, LXS)
        s.tr_lane(5, 6, 1024, 128); s(f'v_add_u32 v5, {LM}, v5')
        A, B, D = 12, 48, 32
        s.tagwait()
        for T in range(5): s(f'ds_read_b128 {Q4(A+4*T)}, v4 offset:{64*T}')
        l = s.lab('ini')
        s(f's_cmp_eq_u32 s{S_IDX}, 0\ns_cbranch_scc0 {l}\ns_lshl_b32 s5, s{S_X}, 7\ns_add_u32 s5, s5, {W_PG}\ns_add_u32 s6, s{TAG}, 999')
        s(f'v_and_b32 v1, 31, v0\nv_lshlrev_b32 v1, 2, v1\nv_mov_b32 v6, s6\nbuffer_store_dword v6, v1, {WSR}, s5 offen\n{l}:')
        s(f'v_lshlrev_b32 v1, 4, v0\ns_mul_i32 s5, s7, {3840 * 16}\ns_lshl_b32 s6, s4, 10\ns_add_u32 s5, s5, s6\ns_add_u32 s5, s5, {W_MP}')
        s.rows(2, 3, 4, 3840 * 16)
        s(f's_lshl_b32 s4, s4, 2\ns_add_u32 s4, s4, s7\ns_lshl_b32 s6, s4, 8\ns_add_u32 s6, s6, {W_MP}')
        s('s_waitcnt vmcnt(0)')
        s.stamp(1)
        for T in range(5):
            for ct in range(4):
                for hi in range(2): s(f'ds_read_b64_tr_b16 {P(B + 16*T + 4*ct + 2*hi)}, v5 offset:{4096*T + 512*hi + 32*ct}')
            if T:
                s('s_waitcnt lgkmcnt(8)')
                for ct in range(4): s.mfma(D + 4 * ct, A + 4 * (T - 1), B + 16 * (T - 1) + 4 * ct, T == 1)
        s('s_waitcnt lgkmcnt(0)')
        for ct in range(4): s.mfma(D + 4 * ct, A + 16, B + 64 + 4 * ct, False)
        for ct in range(1, 4):
            for b in range(2): s(f'v_mov_b32_dpp v{D+b}, v{D+4*ct+b} quad_perm:[0,1,2,3] row_mask:{1 << ct} bank_mask:0xf')
        s(f'v_bitop3_b32 v{D+2}, v{D}, v{D+1}, s{TAG} bitop3:0x96')
        l2 = s.lab('M2')
        s(f's_cmp_lt_u32 s4, 80\ns_cbranch_scc0 {l2}')
        if 'P' not in o['nox']: s(f'buffer_store_dwordx4 {Q4(D)}, v1, {WSR}, s5 offen sc1')
        s.stamp(2)
        s(f's_branch {ln}\n{l2}:')
        s.getloc(6)
        s.gstore([f'buffer_store_dwordx4 {Q4(D)}, v1, {WSR}, s5 offen'], nm='m')
        s.stamp(2)
        s('s_barrier')
        s.poll([f'buffer_load_dwordx3 v[4:6], v2, {WSR}, s6 offen sc1'], s.ck_xor([4], 2, 8, 9), slp=o['mlslp'], nm='m')
        for w in (32, 16):
            s.swapred('v_add_f32', 4, 8, w); s.swapred('v_add_f32', 5, 9, w)
        s(f'v_cvt_pk_bf16_f32 v4, v4, v5\nv_mov_b32 v5, s{TAG}\nv_lshlrev_b32 v3, 3, v0\ns_lshl_b32 s5, s4, 7\ns_add_u32 s5, s5, {W_MOD}')
        s(f's_mov_b64 exec, 0xffff\nbuffer_store_dwordx2 v[4:5], v3, {WSR}, s5 offen sc1\ns_mov_b64 exec, -1')
        s(f's_branch {lj}\n{lsk}:'); s.tagwait(); s(f'{ln}:\ns_barrier'); s.getloc(6, spin=False); s(f'{lj}:')
        s.waitprog(108, 1)
        s('s_mov_b32 s5, 0\nL_pair:')
        s.stats()
        s.stamp(3)
        l = s.lab('cnt')
        s(f's_lshl_b32 s8, s5, 2\nv_mov_b32 v4, s8\ns_mov_b32 s{SPIN}, {o["spin"]}\n{l}:\ns_sleep {o["pslp"]}\nds_read_b32 v5, v4 offset:{LCNT}\ns_sub_u32 s{SPIN}, s{SPIN}, 1\ns_waitcnt lgkmcnt(0)')
        s(f'v_readfirstlane_b32 s8, v5\ns_cselect_b32 s8, 8, s8\ns_cmp_lt_u32 s8, 8\ns_cbranch_scc1 {l}')
        s('L_T0:')
        s.stamp(4)
        T = 16
        for k in range(24): s(f'ds_read2st64_b32 {P(T+2*k)}, v1 offset0:{2*k} offset1:{2*k+1}')
        for w in range(8):
            if w >= 3: s(f's_waitcnt lgkmcnt({3 * (7 - w)})')
            elif w == 0: s('s_waitcnt lgkmcnt(15)')
            f = f's[{64 + (w & 6)}:{65 + (w & 6)}]'; e = w & 1
            for c in range(3):
                r = T + 6 * w + 2 * c; a = (8, 10, 12)[c]
                s(f'v_pk_mul_f32 {P(a)}, {P(r)}, {f} op_sel:[0,{e}] op_sel_hi:[1,{e}]' if w == 0 else
                  f'v_pk_fma_f32 {P(a)}, {P(r)}, {f}, {P(a)} op_sel:[0,{e},0] op_sel_hi:[1,{e},1]')
        s('v_add_f32 v8, v8, v11\nv_add_f32 v9, v9, v12\nv_add_f32 v10, v10, v13')
        s(f'v_bitop3_b32 v11, v8, v9, v10 bitop3:0x96\nv_xor_b32 v11, s{TAG}, v11')
        s.gstore([f'buffer_store_dwordx4 v[8:11], v2, {WSR}, s4 offen'])
        s.stamp(5)
        l = s.lab('early'); l2 = s.lab('next'); l3 = s.lab('fin')
        s(f's_cmp_eq_u32 s5, 3\ns_cbranch_scc0 {l}')
        s.role(0, 'L_Bg'); s.role(3, 'L_D'); s.role(1, 'L_exit', False)
        s('s_barrier')
        s.end()
        s(f'{l}:')
        s.role(0, l2, False)
        s(f's_mul_i32 s9, s5, 24\ns_add_u32 s9, s9, {o["eg"] - 48}')
        s.waitprog('s9', 12, o['pslp'])
        s.gath(2, o['pslp'])
        s(f'{l2}:\ns_add_u32 s5, s5, 1\ns_cmp_lt_u32 s5, 3\ns_cbranch_scc1 L_pair')
        s.role(0, l3); s.role(3, 'L_exit', False)
        s(f's_barrier\ns_branch L_D\n{l3}:')
        s(f's_add_u32 s6, s6, 16384\ns_add_u32 s7, s6, 4096\nv_add_u32 v3, 384, v3\ns_waitcnt lgkmcnt(0)\ns_barrier')

    def stats(s):
        s(f'v_lshlrev_b32 v2, 4, v0\ns_lshr_b32 s6, s{S_H}, 1\ns_lshl2_add_u32 s6, s6, s5\ns_lshl_b32 s4, s6, 11\ns_add_u32 s4, s4, {W_ML}')
        s.poll([f'buffer_load_dwordx3 v[{4+4*k}:{6+4*k}], v2, {WSR}, s4 offen offset:{1024*k} sc1' for k in range(2)], s.ck_xor([4, 8], 2, 12, 13), slp=s.o['mlslp'])
        s('v_max_f32 v12, v4, v8')
        s.red16('v_max_f32', [12]); s.swapred('v_max_f32', 12, 13, 16); s.swapred('v_max_f32', 12, 13, 32)
        for r in (4, 8): s(f'v_sub_f32 v{r}, v{r}, v12\nv_mul_f32 v{r}, {hx(LOG2E)}, v{r}\nv_exp_f32 v{r}, v{r}')
        s('v_mul_f32 v5, v5, v4\nv_fmac_f32 v5, v9, v8')
        s.red16('v_add_f32', [5]); s.swapred('v_add_f32', 5, 13, 16); s.swapred('v_add_f32', 5, 13, 32)
        s(f'v_rcp_f32 v5, v5\ns_bitcmp1_b32 s{S_H}, 0\ns_cselect_b64 vcc, -1, 0\nv_cndmask_b32 v4, v4, v8, vcc\nv_mul_f32 v4, v4, v5')
        s(f's_lshl_b32 s4, s{S_J}, 3')
        for w in range(8):
            s(f'v_readlane_b32 s{64+w}, v4, s4')
            if w < 7: s('s_add_u32 s4, s4, 1')
        s(f's_mul_i32 s4, s5, 12288\ns_add_u32 s4, s4, {LPO}\nv_lshl_add_u32 v1, v0, 2, s4')
        s(f's_lshr_b32 s4, s5, 1\ns_mul_i32 s4, s4, {OS}\ns_and_b32 s7, s5, 1\ns_mul_i32 s7, s7, 384\ns_add_u32 s4, s4, s7\ns_add_u32 s4, s4, {LO}\nv_lshl_add_u32 v3, v0, 1, s4')
        s(f's_lshl_b32 s6, s6, 14\ns_add_u32 s6, s6, {W_ATT}\ns_and_b32 s4, s{S_IDX}, 15\ns_lshl_b32 s4, s4, 10\ns_add_u32 s4, s4, s6\ns_add_u32 s7, s6, 4096')

    def gath(s, nh, slp):
        G = 24
        if nh == 2: s('s_add_u32 s8, s6, 8192\ns_add_u32 s9, s6, 12288')
        ck, t = s.ck_xor([G + 4 * k for k in range(8 * nh)], 3, 12, 13)
        for k in range(8 * nh):
            a = 16 + 4 * (k >> 3); r = G + 4 * k
            if k & 7: ck[k] += f'\nv_pk_add_f32 {P(a)}, {P(r-4) if k & 7 == 1 else P(a)}, {P(r)}\nv_add_f32 v{a+2}, v{r-2 if k & 7 == 1 else a+2}, v{r+2}'
        s.poll([f'buffer_load_dwordx4 {Q4(G+4*k)}, v2, {WSR}, s{6 + (k >> 2)} offen offset:{1024*(k & 3)} sc1' for k in range(8 * nh)], (ck, t), slp=slp, warmable=(nh == 1))
        for h in range(nh):
            a = 16 + 4 * h; of = 2 * OS * h
            s(f'v_cvt_pk_bf16_f32 v{a}, v{a}, v{a+1}\nv_cvt_pk_bf16_f32 v{a+2}, v{a+2}, v{a+2}')
            s(f'ds_write_b16 v3, v{a} offset:{of}\nds_write_b16_d16_hi v3, v{a} offset:{of+128}\nds_write_b16 v3, v{a+2} offset:{of+256}')

    def bgather(s):
        s.cur = 'g'
        s('L_Bg:')
        s.gath(1, 0)
        s.warmret('L_wBg')
        s('s_waitcnt lgkmcnt(0)')
        s.stamp(6)
        s('s_barrier')
        s.end()

    def s1(s):
        s.cur = 'b'
        o = s.o
        s.srd(RA, P_X, 2560); s.srd(RB, P_WQ, 640 * 12288)
        s('v_and_b32 v1, 31, v0\nv_lshlrev_b32 v1, 3, v1\nv_lshrrev_b32 v2, 5, v0\nv_mul_u32_u24 v2, 1280, v2\nv_add_u32 v1, v1, v2')
        for u in range(5): s(f'buffer_load_dwordx2 {P(10+2*u)}, v1, {RAR}, 0 offen offset:{256*u}')
        s(f'v_and_b32 v7, 15, v0\nv_lshl_add_u32 v2, v7, 1, v2\ns_mul_i32 s4, s{S_J}, 160')
        for u in range(5): s(f'buffer_load_ushort v{160+u}, v2, {RAR}, s4 offen offset:{32*u}')
        s.rows(3, 4, 3, 12288)
        s(f's_mul_i32 s5, s{S_J}, {80*12288}\ns_lshr_b32 s6, s{S_H}, 1\ns_and_b32 s7, s{S_H}, 1\ns_lshl4_add_u32 s6, s7, s6\ns_mul_i32 s6, s6, 384\ns_add_u32 s5, s5, s6')
        s(s.dma(30, 3, RB, 5, lambda t: 128 if t % 3 < 2 else 8 * 12288 - 256, LWQ, o['qF']))
        s('s_waitcnt vmcnt(30)')
        X = 20
        for k in range(10): s(f'v_lshlrev_b32 v{X+2*k}, 16, v{10+k}\nv_and_b32 v{X+2*k+1}, 0xffff0000, v{10+k}')
        s(f'v_add_f32 v4, v{X}, v{X+1}')
        for k in range(2, 20): s(f'v_add_f32 v4, v4, v{X+k}')
        s.red16('v_add_f32', [4]); s.swapred('v_add_f32', 4, 5, 16)
        s(f'v_mul_f32 v4, {hx(1/640)}, v4')
        for k in range(20): s(f'v_sub_f32 v{X+k}, v{X+k}, v4')
        s(f'v_mul_f32 v5, v{X}, v{X}')
        for k in range(1, 20): s(f'v_fmac_f32 v5, v{X+k}, v{X+k}')
        s.red16('v_add_f32', [5]); s.swapred('v_add_f32', 5, 6, 16)
        s(f'v_mul_f32 v5, {hx(1/640)}, v5')
        s.bf16r(4); s.bf16r(5)
        s(f'v_add_f32 v5, {hx(1e-5)}, v5'); s.bf16r(5)
        s('v_sqrt_f32 v5, v5'); s.bf16r(5); s('v_rcp_f32 v5, v5')
        for u in range(5):
            r = 160 + u
            s(f'v_lshlrev_b32 v{r}, 16, v{r}\nv_sub_f32 v{r}, v{r}, v4'); s.bf16r(r)
            s(f'v_mul_f32 v{r}, v{r}, v5'); s.bf16r(r)
        s.tr_lane(4, 5, 3072, 128)
        s(f'v_add_u32 v4, {LWQ}, v4')
        s.tr_lane(5, 6, 512, 128)
        s(f'v_lshrrev_b32 v6, 5, v0\nv_mul_u32_u24 v6, 2048, v6\nv_add_u32 v5, v5, v6\nv_add_u32 v5, {LWQ + 8*3072}, v5')
        BW, AC, A = 100, 40, 88
        def rd(ct):
            b = BW + 10 * (ct % 6); off = 1024 * (ct >> 2) + 32 * (ct & 3)
            for T in range(2):
                for hi in range(2): s(f'ds_read_b64_tr_b16 {P(b+4*T+2*hi)}, v4 offset:{off + 12288*T + 512*hi}')
            s(f'ds_read_b64_tr_b16 {P(b+8)}, v5 offset:{off}')
        s.tagwait()
        s.rows(2, 6, 4, 3840 * 16)
        s(f's_mul_i32 s4, s{S_J}, 1280\ns_add_u32 s4, s4, {W_MP}\ns_add_u32 s5, s4, 10240')
        s('s_waitcnt vmcnt(0)')
        s.stamp(1)
        for ct in range(6): rd(ct)
        M = 40
        s.gather([f'buffer_load_dwordx3 v[{M+4*u}:{M+4*u+2}], v2, {WSR}, s{4 + u // 5} offen offset:{256 * (u % 5)} sc1' for u in range(10)],
                 [s.ck_xor([M + 4 * u], 2, 12, 13) for u in range(10)], 8, slp=o['pslp'], nm='P')
        s.stamp(2)
        for u in range(10): s(f'v_permlane32_swap_b32 v{M+4*u}, v{M+4*u+1}')
        for u in range(10): s(f'v_add_f32 v{M+4*u}, v{M+4*u}, v{M+4*u+1}')
        for u in range(10): s(f'v_mov_b32 v{M+4*u+1}, v{M+4*u}')
        for u in range(10): s(f'v_permlane16_swap_b32 v{M+4*u}, v{M+4*u+1}')
        for u in range(10): s(f'v_add_f32 v{M+4*u}, v{M+4*u}, v{M+4*u+1}')
        for u in range(10): s.bf16r(M + 4 * u)
        s(f'v_lshrrev_b32 v2, 5, v0\nv_mul_u32_u24 v2, 192, v2\nv_lshl_add_u32 v2, v7, 1, v2')
        for u in range(5):
            c = M + 20 + 4 * u; r = 160 + u
            s(f'v_add_f32 v{c}, 1.0, v{c}'); s.bf16r(c)
            s(f'v_mul_f32 v{r}, v{r}, v{c}'); s.bf16r(r)
            s(f'v_add_f32 v{r}, v{r}, v{M+4*u}\nv_cvt_pk_bf16_f32 v{r}, v{r}, v{r}\nds_write_b16 v2, v{r} offset:{LHS + 32*u}')
        s.getloc(6)
        s.a_lane(2, 3, 192, 16, LHS); s.a_lane(3, 6, 192, 8, LHS + 128)
        s('s_waitcnt lgkmcnt(0)')
        s(f'ds_read_b128 {Q4(A)}, v2\nds_read_b128 {Q4(A+4)}, v2 offset:64\nds_read_b64 {P(A+8)}, v3')
        for half in range(2):
            s('s_waitcnt lgkmcnt(0)')
            for ct in range(6 * half, 6 * half + 6): s.mfma(AC + 4 * ct, A + 8, BW + 10 * (ct % 6) + 8, True, k=16)
            for T in range(2):
                for ct in range(6 * half, 6 * half + 6):
                    s.mfma(AC + 4 * ct, A + 4 * T, BW + 10 * (ct % 6) + 4 * T, False)
                    if half == 0 and T == 1: rd(ct + 6)
        s(f'v_lshlrev_b32 v2, 4, v0\ns_lshl_b32 s4, s{S_H}, 3\ns_add_u32 s5, s4, s{S_J}\ns_lshl_b32 s5, s5, 11\ns_add_u32 s5, s5, {W_QP}')
        for b in range(2):
            for u in range(4):
                for c in range(3):
                    s(f'v_mov_b32_dpp v{16+4*b+c}, v{AC + 4*(3*u+c) + b} quad_perm:[0,1,2,3] row_mask:{1 << u} bank_mask:0xf')
        for b in range(2):
            t = 16 + 4 * b
            s(f'v_bitop3_b32 v{t+3}, v{t}, v{t+1}, v{t+2} bitop3:0x96\nv_xor_b32 v{t+3}, s{TAG}, v{t+3}')
        s.gstore([f'buffer_store_dwordx4 {Q4(16+4*b)}, v2, {WSR}, s5 offen offset:{1024*b}' for b in range(2)], nm='Q')
        s.stamp(3)
        s(f'v_mov_b32 v3, {LQF}\nv_mov_b32 v4, s{TAG}\nds_write_b32 v3, v4')
        s(f'L_Qg:\ns_bfe_u32 s9, s3, 0x10001\ns_and_b32 s4, s{S_H}, 30\ns_add_u32 s4, s4, s9\ns_lshl_b32 s4, s4, 14\ns_add_u32 s4, s4, {W_QP}\ns_mul_i32 s9, s9, 384')
        for k in range(1, 4): s(f's_add_u32 s{4+k}, s4, {4096*k}')
        Q = 40
        def ck2(k):
            c, t = s.ck_xor([Q + 8 * k, Q + 8 * k + 4], 3, 12, 13); return ['\n'.join(c)], t
        s.gather(['\n'.join(f'buffer_load_dwordx4 {Q4(Q+8*k+4*b)}, v2, {WSR}, s{4 + (k >> 1)} offen offset:{2048*(k & 1) + 1024*b} sc1' for b in range(2)) for k in range(8)],
                 [ck2(k) for k in range(8)], 8, slp=o['pslp'], nm='Q')
        s('v_lshrrev_b32 v3, 4, v0\nv_mul_u32_u24 v3, 96, v3\nv_and_b32 v4, 15, v0\nv_lshl_add_u32 v3, v4, 1, v3\nv_add_u32 v3, s9, v3')
        for k in range(1, 8):
            for b in range(2):
                r = Q + 4 * b
                s(f'v_pk_add_f32 {P(r)}, {P(r)}, {P(r+8*k)}\nv_add_f32 v{r+2}, v{r+2}, v{r+8*k+2}')
        for b in range(2):
            r = Q + 4 * b; lq = LQ + 768 * b
            s(f'v_cvt_pk_bf16_f32 v{r}, v{r}, v{r+1}\nv_cvt_pk_bf16_f32 v{r+2}, v{r+2}, v{r+2}')
            s(f'ds_write_b16 v3, v{r} offset:{lq}\nds_write_b16_d16_hi v3, v{r} offset:{lq+32}\nds_write_b16 v3, v{r+2} offset:{lq+64}')
        s('s_waitcnt lgkmcnt(0)')
        s.stamp(4)
        s('s_barrier\ns_cmp_eq_u32 s3, 11\ns_cbranch_scc1 L_s3b')
        lc = s.lab('s1C'); ld = s.lab('s1D'); lw = s.lab('s1W')
        if o['warm']:
            s.role(1, lc); s.role(3, ld); s.role(0, lw, False)
            s(f's_mov_b32 s{SV}, 0'); s.warm('L_B', 'L_wB'); s.warm('L_Bg', 'L_wBg'); s(f's_branch {lw}')
            s(f'{lc}:\ns_mov_b32 s{SV}, 0'); s.warm('L_C', 'L_wC'); s(f's_branch {lw}')
            s(f'{ld}:\ns_mov_b32 s{SV}, 0'); s.warm('L_D', 'L_wD')
            s(f'{lw}:\ns_mov_b32 s{SV}, 9')
        s.balance5()
        s(f's_add_u32 s6, s6, 8192\ns_add_u32 s7, s7, 8192\nv_add_u32 v3, {2 * OS}, v3')
        s('s_barrier\ns_branch L_T0')

    def balance5(s):
        o = s.o; p0 = 3 * o['NPF']
        a = s.lab('bal'); e = s.lab('balE'); c = s.lab('nox'); d = s.lab('nost')
        V = 100
        s(f'v_mov_b32 v{V+1}, 0\ns_mov_b32 s11, 4096\ns_lshl_b32 s72, s{S_X}, 7\ns_add_u32 s72, s72, {W_PG}\ns_mov_b32 s75, {o["stat1"]}')
        s(f's_cmp_lt_u32 s{S_IDX}, {o["n1"]}\ns_cselect_b32 s78, {o["cstep"]}, {o["cstep2"]}\ns_cselect_b32 s79, {o["bdel"]}, {o["bdel2"]}')
        s(f's_cselect_b32 s74, 0, {o["n1"] * (o["cstep"] - o["cstep2"])}\ns_add_u32 s74, s74, {p0 + o["c0"]}')
        s(f's_lshl_b32 s5, s{S_IDX}, 3\ns_add_u32 s5, s5, s{S_X}\ns_mul_i32 s5, s5, s78\ns_lshr_b32 s5, s5, 3\ns_add_u32 s74, s74, s5\ns_add_u32 s79, s79, s{TAG}')
        s(f'v_and_b32 v{V}, 31, v0\nv_lshlrev_b32 v{V}, 2, v{V}')
        s(f's_lshl_b32 s73, s{S_X}, 12\ns_add_u32 s73, s73, {W_GL}\ns_mov_b32 s10, {W_GL}\nv_and_b32 v{V+5}, 7, v0\nv_cmp_eq_u32 s[76:77], s{S_X}, v{V+5}\nv_lshlrev_b32 v{V+5}, 12, v{V+5}\nv_mov_b32 v{V+6}, {p0}')
        s(f'v_xor_b32 v{V+4}, 4096, v{V+5}\nv_cndmask_b32_e64 v{V+5}, v{V+5}, v{V+4}, s[76:77]')
        s(f's_and_b32 s8, s{S_ROLE}, 1\ns_mul_i32 s8, s8, {o["bonus"]}\ns_sub_u32 s8, s{TAG}, s8')
        s(f'{a}:\nbuffer_load_dword v{V+3}, v{V+1}, {WSR}, s72 offen sc1\ns_waitcnt vmcnt(0)\nds_read_b32 v{V+2}, v{V+1} offset:{LPRG}')
        s(f'v_subrev_u32 v{V+3}, s8, v{V+3}\nds_write_b32 v{V+1}, v{V+3} offset:{LMODE}\ns_waitcnt lgkmcnt(0)\nv_readfirstlane_b32 s9, v{V+2}')
        s(f's_cmp_ge_u32 s9, s75\ns_cbranch_scc0 {d}\ns_mov_b32 s75, 999')
        s('s_mov_b32 s5, 3'); s.stats()
        s(f's_branch {a}\n{d}:')
        s(f's_cmp_ge_u32 s9, {o["bend"]}\ns_cbranch_scc1 {e}')
        s(f's_cmp_ge_u32 s9, s74\ns_cbranch_scc0 {c}')
        s(f's_mov_b32 s74, 999\nv_add_u32 v{V+3}, s{TAG}, v{V+2}\nbuffer_load_dword v{V+4}, v{V+5}, {WSR}, s10 offen sc1\nbuffer_store_dword v{V+3}, v{V}, {WSR}, s73 offen sc1\ns_waitcnt vmcnt(1)')
        s(f'v_subrev_u32 v{V+4}, s{TAG}, v{V+4}\nv_cmp_lt_u32 vcc, 192, v{V+4}\nv_cndmask_b32 v{V+4}, v{V+4}, v{V+6}, vcc')
        s(f'v_subrev_u32 v{V+2}, s78, v{V+2}\nv_cndmask_b32_e64 v{V+4}, v{V+4}, v{V+2}, s[76:77]')
        for ctl in ('quad_perm:[1,0,3,2]', 'quad_perm:[2,3,0,1]', 'row_half_mirror'): s.dppop('v_add_u32', V + 4, ctl)
        s(f'v_lshrrev_b32 v{V+4}, 3, v{V+4}\nv_add_u32 v{V+4}, s79, v{V+4}\nbuffer_store_dword v{V+4}, v{V}, {WSR}, s72 offen')
        s(f'{c}:\ns_sleep {o["bslp"]}\ns_sub_u32 s11, s11, 1\ns_cbranch_scc0 {a}')
        s('s_mov_b32 s5, 3'); s.stats()
        s(f'{e}:')

    def bstage(s, t0, t1, F):
        o = s.o; l = s.lab('dma')
        s.srd(RA, P_WO, 6144 * 1280)
        s.swz(1280)
        s(f's_lshr_b32 s5, s{S_H}, 1\ns_mul_i32 s5, s5, {192*1280}\ns_and_b32 s4, s{S_H}, 1\ns_mul_i32 s4, s4, 5\ns_add_u32 s4, s4, s{S_J}\ns_lshl_b32 s4, s4, 7')
        s(f's_add_u32 s5, s5, s4\ns_add_u32 s5, s5, {8 * 1280 * t0 + (15*192*1280 if t0 >= 24 else 0)}')
        s(f's_mov_b32 s4, {LB + 1024 * t0}\n{l}:')
        for t in range(2):
            s(f's_mov_b32 m0, s4\ns_waitcnt vmcnt({F - 1})\nbuffer_load_dwordx4 v{3 if t else 1}, {RAR}, s5 offen {o["wflag"]} lds')
            s(f's_add_u32 s5, s5, {8 * 1280}\ns_add_u32 s4, s4, 1024')
        if t0 < 24 < t1: s(f's_cmp_eq_u32 s4, {LB + 24576}\ns_cselect_b32 s6, {15*192*1280}, 0\ns_add_u32 s5, s5, s6')
        s(f's_cmp_lt_u32 s4, {LB + 1024 * t1}\ns_cbranch_scc1 {l}')

    def stage(s, half):
        o = s.o
        ld = s.lab('stD'); lc = s.lab('stC'); le = s.lab('stE'); l = s.lab('dma')
        s.role(0, ld, False)
        E = o['bE']; n0 = E + (48 - E) // 4 * 2
        s.bstage(*((E, n0) if half == 0 else (n0, 48)), o['bF'])
        s(f's_branch {le}\n{ld}:')
        s.role(3, lc, False)
        E = o['dE']
        if E:
            s.srd(RA, P_D, 1536 * 1280); s.rows(1, 2, 2, 1280)
            s(f's_lshl_b32 s4, s{S_DT}, 6\ns_add_u32 s4, s4, {half*768*1280}')
            s(s.dma(6 * E, 1, RA, 4, lambda t: 16 * 1280 * (1 if t % E < E - 1 else 9 - E), lambda t: f's_mov_b32 m0, {LBIG + half * 49152 + 8192 * (t // E) + 1024 * (t % E)}', o['dF']))
        s(f's_branch {le}\n{lc}:')
        s.role(1, le, False)
        E = o['cE']
        if E:
            s.caddr()
            s(f's_add_u32 s5, s5, {half * 4 * E * 8 * 3072}')
            s(s.cdma(4 * E, lambda t: f's_mov_b32 m0, {LBIG + 1024 * (half * 4 * E + t)}', o['cF']))
        s(f'{le}:\ns_waitcnt vmcnt(0)')

    def s2(s):
        s.cur = 'r'
        o = s.o
        s('s_getreg_b32 s4, hwreg(HW_REG_XCC_ID)')
        s(f'v_and_b32 v1, 31, v0\nv_lshlrev_b32 v1, 3, v1\ns_lshl_b32 s5, s{S_X}, 8\ns_add_u32 s5, s5, {W_XC}\ns_lshl3_add_u32 s6, s{S_IDX}, s5')
        s.tagwait()
        s(f'v_mov_b32 v2, s4\nv_mov_b32 v3, s{TAG}\ns_mov_b64 exec, 1')
        if o['xab']: s(f's_add_u32 s7, s6, {W_XL - W_XC}\nbuffer_store_dwordx2 v[2:3], v1, {WSR}, s7 offen')
        if 'X' not in o['nox']: s(f'buffer_store_dwordx2 v[2:3], v1, {WSR}, s6 offen sc1')
        s('s_mov_b64 exec, -1')
        s.idpoll(o['pslp'])
        s(f'v_xor_b32 v4, s4, v4\nv_or_b32 v4, v4, v6\nv_cmp_ne_u32 vcc, 0, v4\ns_cmp_eq_u64 vcc, 0\ns_addc_u32 s4, s{TAG}, 0')
        if not o['loc']: s(f's_mov_b32 s4, s{TAG}')
        s(f'v_mov_b32 v4, s4\nv_mov_b32 v5, {LFLAG}\nds_write_b32 v5, v4\nv_mov_b32 v4, 0\nds_write_b32 v4, v4 offset:{LPRG}\nds_write_b32 v4, v4 offset:{LCNT}\nds_write_b32 v4, v4 offset:{LCNT+4}\nds_write_b32 v4, v4 offset:{LCNT+8}\nv_mov_b32 v5, 999\nds_write_b32 v4, v5 offset:{LMODE}\ns_waitcnt lgkmcnt(0)')
        s.stamp(2)
        if o['bE']:
            l = s.lab('noBe'); s.role(0, l, False); s.bstage(0, o['bE'], o['bEF']); s(f'{l}:')
        s('s_barrier')
        s.stage(0)
        s.stamp(1)
        s.role(1, 'L_LN0')
        s.role(0, 'L_s23', False)
        s.warm('L_R', 'L_wR')
        s('L_R0:')
        s.getloc(1, spin=False)
        s.srd(RA, P_X, 2560)
        s(f'v_and_b32 v1, 15, v0\nv_lshlrev_b32 v2, 1, v1\ns_lshl_b32 s5, s{S_CS}, 5')
        s(f'buffer_load_ushort v4, v2, {RAR}, s5 offen\nbuffer_load_ushort v5, v2, {RAR}, s5 offen offset:1280')
        s(f'v_lshlrev_b32 v2, 3, v1\ns_lshl_b32 s5, s{S_CS}, 7\ns_add_u32 s6, s5, {W_MOD + 1280*8}')
        s.poll([f'buffer_load_dwordx2 v[6:7], v2, {WSR}, s6 offen sc1'], s.ck_tag([[7]], 8), slp=o['mlslp'])
        s('v_lshlrev_b32 v4, 16, v4\nv_lshlrev_b32 v5, 16, v5\nv_and_b32 v7, 0xffff0000, v6\nv_lshlrev_b32 v6, 16, v6')
        s(f's_add_u32 s5, s5, {W_X1}\nv_mov_b32 v9, s{TAG}\ns_lshl_b32 s6, s{S_X}, 13\ns_add_u32 s5, s5, s6')
        s.rows(3, 8, 4, 10240)
        s(f's_lshl_b32 s64, s{S_CS}, 8\ns_add_u32 s64, s64, {W_Y}')
        s(f's_sub_u32 s64, s64, {W_Y - W_YL}\ns_sub_u32 s6, 1, s{LOC}\ns_mul_i32 s6, s6, {W_Y - W_YL}\nv_mov_b32 v12, s6\nv_mov_b32 v13, {W_Y - W_YL}\nv_lshrrev_b32 v14, 5, v0')
        for k in range(4):
            s(f'v_add_u32 v15, {2*k}, v14\nv_cmp_eq_u32 vcc, s{S_X}, v15\nv_cndmask_b32 v15, v13, v12, vcc\nv_add_u32 v15, {40960*k}, v15\nv_add_u32 v{32+k}, v15, v3')
        s('s_barrier\ns_barrier\ns_barrier')
        s('L_R:')
        s.stamp(4)
        Y = 16
        ck, t = s.ck_xor([Y + 4 * k for k in range(4)], 2, 12, 13)
        for k in range(1, 4): ck[k] += f'\nv_pk_add_f32 v[10:11], {P(Y) if k == 1 else "v[10:11]"}, {P(Y+4*k)}'
        s.poll([f'buffer_load_dwordx3 v[{Y+4*k}:{Y+4*k+2}], v{32+k}, {WSR}, s64 offen sc1' for k in range(4)], (ck, t), warmable=True)
        s.stamp(5)
        for w in (16, 32):
            s(f'v_mov_b32 v14, v10\nv_mov_b32 v15, v11\nv_permlane{w}_swap_b32 v10, v14\nv_permlane{w}_swap_b32 v11, v15\nv_pk_add_f32 v[10:11], v[10:11], v[14:15]')
        s(f'v_pk_fma_f32 v[10:11], v[10:11], v[6:7], v[4:5]\nv_cvt_pk_bf16_f32 v8, v10, v11')
        s.warmret('L_wR')
        s('s_mov_b64 exec, 0xffff')
        s.gstore([f'buffer_store_dwordx2 v[8:9], v2, {WSR}, s5 offen'])
        s.stamp(6)
        s.end()

    def s3(s):
        s.cur = 'l'
        o = s.o
        s.tagwait()
        l = s.lab('qf')
        s(f'v_mov_b32 v3, {LQF}\nv_lshlrev_b32 v2, 4, v0\ns_mov_b32 s{SPIN}, {o["spin"]}\n{l}:\ns_sleep {o["pslp"]}\nds_read_b32 v4, v3\ns_sub_u32 s{SPIN}, s{SPIN}, 1\ns_waitcnt lgkmcnt(0)')
        s(f'v_readfirstlane_b32 s4, v4\ns_cselect_b32 s4, s{TAG}, s4\ns_cmp_eq_u32 s4, s{TAG}\ns_cbranch_scc0 {l}\ns_branch L_Qg\nL_s3b:')
        s.stage(1)
        s.stamp(1)
        s.role(0, 'L_R0')
        s.role(1, 'L_s23', False)
        s.warm('L_LN', 'L_wLN')
        s('L_LN0:')
        s.waitprog(72, 1)
        C1, SB, X = 8, 28, 48
        s(f'v_lshlrev_b32 v1, 4, v0\ns_and_b32 s8, s3, 1\ns_mul_i32 s11, s8, 0x02020000\ns_add_u32 s11, s11, 0x01000c0c')
        s(f's_mov_b32 s4, {W_MOD + 3*5120}\ns_mov_b32 s5, {W_MOD + 3*5120 + 4096}\ns_mov_b32 s6, {W_MOD + 4*5120}\ns_mov_b32 s7, {W_MOD + 4*5120 + 4096}')
        def ld5(base, sa): return [f'buffer_load_dwordx4 {Q4(base+4*u)}, v1, {WSR}, s{sa + (u >> 2)} offen offset:{1024*(u & 3)} sc1' for u in range(5)]
        pick = lambda r: f'v_perm_b32 v{r}, v{r}, v{r}, s11\nv_perm_b32 v{r+1}, v{r+2}, v{r+2}, s11'
        s.poll(ld5(C1, 6) + ld5(SB, 4), s.ck_tag([[C1 + 1 + 4 * k, C1 + 3 + 4 * k] for k in range(10)], 4), slp=o['mlslp'])
        for k in range(10): s(pick(C1 + 4 * k))
        for u in range(5):
            for e in range(2): s(f'v_add_f32 v{C1+4*u+e}, 1.0, v{C1+4*u+e}'); s.bf16r(C1 + 4 * u + e)
        s(f's_lshl_b32 s4, s{S_X}, 13\ns_add_u32 s4, s4, {W_X1}\ns_add_u32 s5, s4, 4096')
        s(f's_mul_i32 s8, s8, {HS}\ns_add_u32 s8, s8, {LH2}\nv_lshl_add_u32 v2, v0, 2, s8')
        s(f's_mov_b32 s10, {hx(1/640)}\nv_mov_b32 v68, {hx(1e-5)}')
        s('s_barrier\ns_barrier\ns_barrier')
        s('L_LN:')
        s.stamp(4)
        ck, t = s.ck_tag([[X + 1 + 4 * u, X + 3 + 4 * u] for u in range(5)], 70)
        for u in range(5):
            r = X + 4 * u
            ck[u] += '\n' + pick(r)
            if u == 0: ck[u] += f'\nv_readlane_b32 s8, v{X}, 0'
            ck[u] += f'\nv_pk_add_f32 {P(r)}, {P(r)}, s[8:9] op_sel_hi:[1,0] neg_lo:[0,1] neg_hi:[0,1]'
            if u == 0: ck[u] += f'\nv_pk_mul_f32 v[6:7], {P(r)}, {P(r)}'
            else: ck[u] += f'\nv_pk_add_f32 v[4:5], {P(X) if u == 1 else "v[4:5]"}, {P(r)}\nv_pk_fma_f32 v[6:7], {P(r)}, {P(r)}, v[6:7]'
        s.poll(ld5(X, 4), (ck, t), warmable=True)
        s.stamp(5)
        fill = [f'v_pk_mul_f32 {P(X+4*u)}, {P(X+4*u)}, {P(C1+4*u)}' for u in range(5)]
        s('v_add_f32 v4, v4, v5\nv_add_f32 v6, v6, v7'); s(fill.pop(0))
        s('v_permlane32_swap_b32 v4, v6\nv_add_f32 v4, v4, v6')
        s.red16('v_add_f32', [4], fill=fill); s.swapred('v_add_f32', 4, 5, 16)
        s('v_mul_f32 v4, s10, v4\nv_mov_b32 v6, v4\nv_permlane32_swap_b32 v4, v6')
        s('v_fma_f32 v6, -v4, v4, v6\nv_max_f32 v6, 0, v6\nv_add_f32 v6, v6, v68\nv_rsq_f32 v6, v6')
        for u in range(5): s(f'v_pk_fma_f32 {P(X+4*u)}, {P(C1+4*u)}, v[4:5], {P(X+4*u)} op_sel_hi:[1,0,1] neg_lo:[0,1,0] neg_hi:[0,1,0]')
        for u in range(5):
            r = X + 4 * u
            s(f'v_pk_fma_f32 {P(r)}, {P(r)}, v[6:7], {P(SB+4*u)} op_sel_hi:[1,0,1]\nv_cvt_pk_bf16_f32 v{r}, v{r}, v{r+1}')
            if u & 1: s(f'ds_write2st64_b32 v2, v{r-4}, v{r} offset0:{u-1} offset1:{u}')
        s(f'ds_write_b32 v2, v{X+16} offset:1024')
        s.warmret('L_wLN')
        s('s_waitcnt lgkmcnt(0)')
        s.stamp(3)
        s('s_barrier')
        s.end()
        s('L_s23:')
        s.role(3, 'L_exit', False)
        s('s_barrier\ns_branch L_D')
        s.end()

    def waitprog(s, n, v, slp=None):
        l = s.lab('prog')
        s(f'v_mov_b32 v{v}, 0\ns_mov_b32 s{SPIN}, {s.o["spin"]}\n{l}:\ns_sleep {slp or s.o["mlslp"]}\nds_read_b32 v{v+1}, v{v} offset:{LPRG}\ns_sub_u32 s{SPIN}, s{SPIN}, 1\ns_waitcnt lgkmcnt(0)')
        s(f'v_readfirstlane_b32 s4, v{v+1}\ns_cselect_b32 s4, 999, s4\ns_cmp_lt_u32 s4, {n}\ns_cbranch_scc1 {l}')
    def idpoll(s, slp):
        l = s.lab('gotid')
        if s.o['xab']:
            s(f's_add_u32 s7, s5, {W_XL - W_XC}')
            s.poll([f'buffer_load_dwordx2 v[4:5], v1, {WSR}, s7 offen sc1'], s.ck_tag([[5]], 6), slp=slp, spin=s.o['xab'])
            s(f's_cbranch_vccz {l}')
        s.poll([f'buffer_load_dwordx2 v[4:5], v1, {WSR}, s5 offen sc1'], s.ck_tag([[5]], 6), slp=slp)
        s(f'{l}:')

    def caddr(s):
        s(f's_bitcmp1_b32 s{S_CS}, 0\ns_cselect_b64 s[{RA}:{RA+1}], s[{P_U}:{P_U+1}], s[{P_G}:{P_G+1}]\ns_mov_b32 s{RA+2}, {640 * 3072}\ns_mov_b32 s{RA+3}, 0x20000')
        s.swz(3072)
        s(f's_lshr_b32 s5, s{S_CS}, 1\ns_lshl_b32 s5, s5, 7')
    def swz(s, stride):
        s(f'v_lshrrev_b32 v2, 3, v0\nv_mul_u32_u24 v1, {stride}, v2\nv_and_b32 v2, 2, v2\nv_and_b32 v3, 7, v0\nv_xor_b32 v2, v2, v3\nv_xor_b32 v3, 4, v2')
        s('v_lshl_add_u32 v3, v3, 4, v1\nv_lshl_add_u32 v1, v2, 4, v1')
    def cdma(s, n, lds, F):
        out = []
        for t in range(n):
            out.append(lds(t))
            if F < 60: out.append(f's_waitcnt vmcnt({F - 1})')
            out.append(f'buffer_load_dwordx4 v{3 if t & 1 else 1}, {RAR}, s5 offen {s.o["wflag"]} lds')
            if t < n - 1: out.append(f's_add_u32 s5, s5, {8 * 3072}')
        return '\n'.join(out)

    def crole(s):
        s.cur = 'c'
        o = s.o; E = o['cE']; n = 2 * (10 - E)
        s(f'L_C:\ns_cmp_lt_u32 s{SV}, 4\ns_cbranch_scc0 L_exit')
        BW, A, D = 88, 8, 72
        s.caddr()
        s(f's_mul_i32 s4, s{SV}, {n}\ns_add_u32 s4, s4, {8 * E}\ns_mul_i32 s6, s4, {8 * 3072}\ns_add_u32 s5, s5, s6\ns_lshl_b32 s4, s4, 10\ns_add_u32 s4, s4, {LBIG}')
        s.live('s_barrier\n' + s.cdma(n, lambda t: f's_add_u32 m0, s4, {1024 * t}', 63))
        s.tr_lane(2, 3, 1024, 128)
        s(f'v_bfe_u32 v3, v0, 3, 2\nv_xor_b32 v3, s{SV}, v3\nv_lshl_add_u32 v2, v3, 5, v2\nv_add_u32 v2, {LBIG}, v2\nv_add_u32 v5, 40960, v2')
        s.a_lane(3, 4, HS, 16, LH2)
        s(f's_and_b32 s4, s{S_CS}, 1\ns_mul_i32 s6, s4, 12288\ns_lshr_b32 s5, s{S_CS}, 1\ns_lshl2_add_u32 s5, s5, s{SV}\ns_lshl_b32 s5, s5, 7\ns_add_u32 s6, s6, s5\ns_add_u32 s6, s6, {W_ACT}')
        s(f'v_lshlrev_b32 v1, 3, v0\ns_mov_b32 s7, {hx(-LOG2E)}\nv_mov_b32 v77, s{TAG}')
        s('s_waitcnt vmcnt(0)')
        s.stamp(3)
        s.live('s_barrier')
        for T in range(20):
            for hi in range(2): s(f'ds_read_b64_tr_b16 {P(BW + 4*T + 2*hi)}, v{2 if T < 10 else 5} offset:{4096*(T % 10) + 512*hi}')
        s('s_waitcnt lgkmcnt(0)'); s.live('s_barrier')
        s.stamp(5)
        for T in range(15): s(f'ds_read_b128 {Q4(A+4*T)}, v3 offset:{64*T}')
        for T in range(20):
            s(f's_waitcnt lgkmcnt({min(14, 19 - T)})')
            s.mfma(D, A + 4 * (T % 15), BW + 4 * T, T == 0)
            if T < 5: s(f'ds_read_b128 {Q4(A+4*T)}, v3 offset:{64*(T+15)}')
        l = s.lab('up')
        s(f's_cmp_eq_u32 s4, 1\ns_cbranch_scc1 {l}')
        for op in (f'v_mul_f32 v{{t}}, s7, v{{d}}', 'v_exp_f32 v{t}, v{t}', 'v_add_f32 v{t}, 1.0, v{t}', 'v_rcp_f32 v{t}, v{t}', 'v_mul_f32 v{d}, v{d}, v{t}'):
            for b in range(2): s(op.format(t=D + 2 + b, d=D + b))
        s(f'{l}:\nv_cvt_pk_bf16_f32 v76, v{D}, v{D+1}')
        s.warmret('L_wC')
        s(f's_mov_b64 exec, 0xffff\nbuffer_store_dwordx2 v[76:77], v1, {WSR}, s6 offen sc1')
        s(f's_add_u32 s6, s6, {W_AL - W_ACT}\nbuffer_store_dwordx2 v[76:77], v1, {WSR}, s6 offen')
        s.stamp(6)
        s.end()

    def drole(s):
        s.cur = 'd'
        o = s.o; E = o['dE']
        s('L_D:')
        BW, A, D = 40, 72, 88
        s(f's_lshl_b32 s4, s{SV}, 13\ns_add_u32 s4, s4, {LBIG}')
        s.srd(RA, P_D, 1536 * 1280); s.srd(RB, P_OUT, 2560); s.rows(1, 2, 2, 1280)
        s(f's_mul_i32 s5, s{SV}, {128 * 1280}\ns_lshl_b32 s6, s{S_DT}, 6\ns_add_u32 s5, s5, s6\ns_add_u32 s5, s5, {16 * 1280 * E}')
        s.live('s_barrier\n' + s.dma(8 - E, 1, RA, 5, 16 * 1280, lambda t: f's_add_u32 m0, s4, {1024 * (E + t)}', 63))
        s.tr_lane(2, 3, 512, 64)
        s('v_add_u32 v2, s4, v2\ns_waitcnt vmcnt(0)')
        s.stamp(3)
        for tt in range(2):
            for T in range(4):
                for hi in range(2): s(f'ds_read_b64_tr_b16 {P(BW + 16*tt + 4*T + 2*hi)}, v2 offset:{2048*T + 256*hi + 32*tt}')
        s(f's_lshl_b32 s4, s{SV}, 9\ns_add_u32 s4, s4, {LACT}\nv_lshl_add_u32 v2, v0, 2, s4')
        s.a_lane(3, 4, 256, 16, 0); s('v_add_u32 v3, s4, v3')
        s(f'v_and_b32 v4, 31, v0\nv_mul_u32_u24 v4, 96, v4\ns_lshl_b32 s4, s{SV}, 2\ns_add_u32 s4, s4, {LDP}\nv_add_u32 v4, s4, v4')
        s(f'v_lshlrev_b32 v1, 4, v0\ns_lshl_b32 s5, s{SV}, 10\ns_add_u32 s5, s5, {W_ACT}')
        s('s_add_u32 s6, s5, 12288')
        if True:
            s(f'v_mov_b32 v5, {LFLAG}\nds_read_b32 v6, v5\ns_lshl_b32 s7, s{SV}, 1\ns_mul_i32 s8, s{S_X}, 3\ns_sub_u32 s7, s7, s8\nv_lshrrev_b32 v5, 5, v0\nv_add_u32 v5, s7, v5\nv_cmp_gt_u32 vcc, 3, v5')
            s(f's_waitcnt lgkmcnt(0)\nv_subrev_u32 v6, s{TAG}, v6\nv_mul_u32_u24 v6, {W_AL - W_ACT}, v6\nv_cndmask_b32 v5, 0, v6, vcc\nv_add_u32 v1, v1, v5')
        s(f'v_and_b32 v5, 31, v0\nv_lshlrev_b32 v6, 3, v5\nv_lshrrev_b32 v7, 5, v0')
        lf = s.lab('nofin')
        s(f's_cmp_eq_u32 s{SV}, 0\ns_cbranch_scc0 {lf}')
        s(f's_lshl_b32 s8, s{S_DT}, 8\ns_add_u32 s9, s8, {W_MOD + 5*5120}\ns_add_u32 s8, s8, {W_X1}')
        s(f's_lshl_b32 s10, s{S_X}, 13\ns_add_u32 s8, s8, s10')
        s.poll([f'buffer_load_dwordx2 v[10:11], v6, {WSR}, s9 offen sc1', f'buffer_load_dwordx2 v[8:9], v6, {WSR}, s8 offen sc1'], s.ck_tag([[11], [9]], 12), slp=o['pslp'], warmable=True)
        s('v_lshlrev_b32 v9, 4, v7\nv_lshrrev_b32 v8, v9, v8\nv_lshlrev_b32 v8, 16, v8\nv_lshrrev_b32 v10, v9, v10\nv_lshlrev_b32 v10, 16, v10')
        s(f'{lf}:')
        s(f'v_lshl_add_u32 v6, v5, 1, v7\nv_mul_u32_u24 v6, 48, v6\nv_add_u32 v6, {LDP}, v6')
        s(f'v_mul_u32_u24 v7, 1280, v7\nv_lshl_add_u32 v5, v5, 1, v7\ns_lshl_b32 s8, s{S_DT}, 6')
        s.live('s_barrier')
        ck, t = s.ck_tag([[17, 19], [21, 23]], 12)
        for k in range(2):
            for r in (16 + 4 * k, 18 + 4 * k): ck[k] += f'\nv_and_b32 v{r+1}, 0xffff0000, v{r}\nv_lshlrev_b32 v{r}, 16, v{r}'
        s.poll([f'buffer_load_dwordx4 {Q4(16+4*k)}, v1, {WSR}, s{5+k} offen sc1' for k in range(2)], (ck, t), warmable=True)
        s.stamp(5)
        s('v_pk_mul_f32 v[16:17], v[16:17], v[20:21]\nv_pk_mul_f32 v[18:19], v[18:19], v[22:23]\nv_cvt_pk_bf16_f32 v16, v16, v18\nv_cvt_pk_bf16_f32 v17, v17, v19')
        s('ds_write2st64_b32 v2, v16, v17 offset0:0 offset1:1\ns_waitcnt lgkmcnt(0)')
        for T in range(4): s(f'ds_read_b128 {Q4(A+4*T)}, v3 offset:{64*T}')
        for T in range(4):
            s(f's_waitcnt lgkmcnt({3-T})')
            for tt in range(2): s.mfma(D + 4 * tt, A + 4 * T, BW + 16 * tt + 4 * T, T == 0)
        for b in range(2): s(f'v_mov_b32_dpp v{D+b}, v{D+4+b} quad_perm:[0,1,2,3] row_mask:0xa bank_mask:0xf')
        s(f'ds_write2_b32 v4, v{D}, v{D+1} offset0:0 offset1:12\ns_waitcnt lgkmcnt(0)'); s.stamp(1); s.live('s_barrier'); s.stamp(2)
        s(f's_cmp_eq_u32 s{SV}, 0\ns_cbranch_scc0 L_exit')
        for k in range(3): s(f'ds_read_b128 {Q4(16+4*k)}, v6 offset:{16*k}')
        s('s_waitcnt lgkmcnt(1)\nv_pk_add_f32 v[16:17], v[16:17], v[18:19]\nv_pk_add_f32 v[20:21], v[20:21], v[22:23]\nv_pk_add_f32 v[16:17], v[16:17], v[20:21]')
        s('s_waitcnt lgkmcnt(0)\nv_pk_add_f32 v[24:25], v[24:25], v[26:27]\nv_pk_add_f32 v[16:17], v[16:17], v[24:25]\nv_add_f32 v16, v16, v17')
        s('v_fma_f32 v16, v16, v10, v8\nv_mov_b32_dpp v17, v16 quad_perm:[1,1,3,3] row_mask:0xf bank_mask:0xf\nv_cvt_pk_bf16_f32 v16, v16, v17')
        s.warmret('L_wD')
        s(f's_mov_b32 exec_lo, 0x55555555\ns_mov_b32 exec_hi, 0x55555555\nbuffer_store_dword v16, v5, {RBR}, s8 offen {o["oflag"]}')
        s.stamp(6)
        s(f's_cmp_eq_u32 s{S_DT}, 0\ns_cbranch_scc0 L_exit')
        s(f's_mov_b64 exec, 1\nv_mov_b32 v17, s{TAG}\nv_mov_b32 v18, 0\nbuffer_store_dword v17, v18, {WSR}, 0 offen {o["oflag"]}')
        if o['diag']:
            s(f'L_diag:\ns_memrealtime s[76:77]\ns_waitcnt lgkmcnt(0)\ns_sub_u32 s76, s76, s78\ns_cmp_lt_u32 s76, {o["diag"]}\ns_cbranch_scc1 L_diag')

    def exit(s):
        s('L_exit:')
        if s.o['stamps']:
            s('s_waitcnt vmcnt(0)')
            s.stamp(7, True)
            if s.o['stamps'] == 3: s(f's_memtime s[{ST0+12}:{ST0+13}]')
            s('s_mov_b64 exec, 1\ns_waitcnt lgkmcnt(0)')
            s(f's_mul_i32 s4, s2, 12\ns_add_u32 s4, s4, s3\ns_lshl_b32 s4, s4, 6\ns_add_u32 s4, s4, {W_STAMP}\nv_mov_b32 v1, 0')
            for k in range(4):
                for e in range(4): s(f'v_mov_b32 v{4+4*k+e}, s{ST0+4*k+e}')
                s(f'buffer_store_dwordx4 {Q4(4+4*k)}, v1, {WSR}, s4 offen offset:{16*k}')
        s('L_end:\ns_endpgm')

    def build(s):
        s.entry(); s.stream()
        s('L_service:')
        s.roles()
        s('s_cmp_eq_u32 s3, 9\ns_cbranch_scc1 L_s1\ns_cmp_eq_u32 s3, 10\ns_cbranch_scc1 L_s2\ns_cmp_eq_u32 s3, 11\ns_cbranch_scc1 L_s3')
        s.s0(); s.bgather(); s('L_s1:'); s.s1(); s('L_s2:'); s.s2(); s('L_s3:'); s.s3(); s.crole(); s.drole(); s.exit()
        body, n = pad(s.L)
        out = [f'; @launch grid=(256,1,1) block=(768,1,1) lds={LEND}', '.amdgcn_target "amdgcn-amd-amdhsa--gfx950"', '.text',
               f'.globl {KN}', '.p2align 8', f'.type {KN},@function', f'{KN}:']
        out += [l if l.endswith(':') else '    ' + l for l in body]
        out += ['.section .rodata,"a"', '.p2align 6', f'.amdhsa_kernel {KN}', '  .amdhsa_next_free_vgpr 168', '  .amdhsa_next_free_sgpr 96',
                '  .amdhsa_accum_offset 168', '  .amdhsa_group_segment_fixed_size 0', '  .amdhsa_kernarg_size 112', '  .amdhsa_user_sgpr_count 2',
                '  .amdhsa_user_sgpr_kernarg_segment_ptr 1', '  .amdhsa_system_sgpr_workgroup_id_x 1', '  .amdhsa_float_denorm_mode_32 3', '.end_amdhsa_kernel']
        return '\n'.join(out) + '\n', n

if __name__ == '__main__':
    names = []
    for spec in sys.argv[1:]:
        kw = {}
        name, _, rest = spec.partition(':')
        for kv in filter(None, rest.split(',')):
            k, v = kv.split('=')
            kw[k] = int(v) if v.isdigit() else v.replace('+', ' ').replace('_', '')
        t, n = G(**kw).build()
        open(name, 'w').write(t)
        names.append(name)
    print(' '.join(names))
```

```python
import sys, struct
from asmlib import pad
KN = 'adaLN_cond__gqa_block_cached__swiglu_ffn__decode_kernel'

def f2u(x): return struct.unpack('<I', struct.pack('<f', x))[0]
def hx(x): return hex(f2u(x))
LOG2E = 1.4426950408889634
W_E, W_PG, W_MOD, W_XL, W_XC, W_ACT = 0, 0x800, 0x1000, 0x2000, 0x9000, 0xA000
W_X1, W_GL, W_AL, W_YL, W_Y, W_ATT, W_ML, W_MP, W_QP, W_END = 0x10000, 0x20000, 0x28000, 0x30000, 0x58000, 0x80000, 0x180000, 0x1A0000, 0x1E0000, 0x260000
W_STAMP = 512 << 20
LQ, LFLAG, LPRG, LMODE, LQF, LGO, LCNT, LXS, LHS, LO, LH2, LPO, LBIG = 0, 1536, 1544, 1552, 1556, 1560, 1568, 1664, 2304, 2816, 6144, 9216, 58368
LACT, LDP = LPO, LPO + 6144
OS = 768 + 64
HS = 1280 + 64
LM, LWQ, LB, LEND = LBIG, LBIG + 20480, LBIG + 51200, LBIG + 100352
P_X, P_K, P_V, P_WQ, P_WO, P_BX, P_G, P_U, P_D, P_C, P_WM, P_OUT, P_DBG, P_WS = range(16, 44, 2)
TAG, S_H, S_J, S_R, S_X, S_IDX, LOC, S_CS = 44, 45, 46, 47, 48, 49, 50, 51
WS = 52; RA = 56; RB = 60
S_ROLE = 15
S_DT = 14
SPIN = 13
SV = 12
ST0 = 80
WSR = f's[{WS}:{WS+3}]'; RAR = f's[{RA}:{RA+3}]'; RBR = f's[{RB}:{RB+3}]'
P = lambda r: f'v[{r}:{r+1}]'
Q4 = lambda r: f'v[{r}:{r+3}]'

class G:
    def __init__(s, **o):
        s.o = dict(F=3, NPF=12, RC=3, endF=5, endN=9, rot=6, wflag='nt', sflag='nt', spin=1 << 22, pslp=8, mlslp=32,
                   qF=63, mF=63, bF=1, cF=1, dF=1, cE=3, dE=3, bE=0, bEF=2, bonus=1, ord='2301', up=1, upF=24, F0=3, N0=0, upe=0, qfirst=1, sep=0, dW=9, eg=180, xab=6, oflag='', warm=1, loc=1,
                   bal=1, stat1=120, cstep=12, bdel=25, n1=7, cstep2=6, bdel2=17, c0=6, bslp=24, Flo=2, bend=180,
                   stamps=0, stk='', phst=0, remap=0, diag=0, nox='')
        s.o.update(o); s.L = []; s.uid = 0; s.cur = '?'
    def __call__(s, t):
        for l in t.split('\n'):
            l = l.strip()
            if l: s.L.append(l)
    def lab(s, n): s.uid += 1; return f'L_{n}_{s.uid}'
    def srd(s, d, ptr, size):
        s(f's_mov_b32 s{d}, s{ptr}\ns_mov_b32 s{d+1}, s{ptr+1}\ns_mov_b32 s{d+2}, {size}\ns_mov_b32 s{d+3}, 0x20000')
    def stamp(s, k, lite=False):
        if s.o['stamps'] == 1 or (s.o['stamps'] and (lite or str(k) + s.cur in s.o['stk'])): s(f's_memrealtime s[{ST0+2*k}:{ST0+2*k+1}]')
    def bf16r(s, d, src=None):
        src = d if src is None else src
        s(f'v_cvt_pk_bf16_f32 v{d}, v{src}, v{src}\nv_and_b32 v{d}, 0xffff0000, v{d}')
    def dppop(s, op, v, ctl): s(f'{op}_dpp v{v}, v{v}, v{v} {ctl} row_mask:0xf bank_mask:0xf')
    def red16(s, op, vs, skip1=False, fill=None):
        for ctl in (['quad_perm:[1,0,3,2]'] if not skip1 else []) + ['quad_perm:[2,3,0,1]', 'row_half_mirror', 'row_mirror']:
            if fill:
                for _ in range(2):
                    if fill: s(fill.pop(0))
            for v in vs: s.dppop(op, v, ctl)
    def swapred(s, op, v, t, w, fill=None):
        s(f'v_mov_b32 v{t}, v{v}')
        if fill:
            for _ in range(2):
                if fill: s(fill.pop(0))
        s(f'v_permlane{w}_swap_b32 v{v}, v{t}\n{op} v{v}, v{v}, v{t}')
    def live(s, text):
        if not s.o['warm']: s(text); return
        l = s.lab('lv'); s(f's_cbranch_execz {l}'); s(text); s(f'{l}:')
    def warm(s, entry, ret):
        if not s.o['warm']: return
        for r in range(1, 8): s(f'v_mov_b32 v{r}, 0')
        s(f's_mov_b64 exec, 0\ns_branch {entry}\n{ret}:\ns_mov_b64 exec, -1')
    def warmret(s, ret):
        if s.o['warm']: s(f's_cbranch_execz {ret}')
    def ck_tag(s, groups, t):
        out = []; first = True
        for g in groups:
            l = []
            for r in g:
                l.append(f'v_xor_b32 v{t}, s{TAG}, v{r}' if first else f'v_bitop3_b32 v{t}, v{r}, s{TAG}, v{t} bitop3:0xbe'); first = False
            out.append('\n'.join(l))
        return out, t
    def ck_xor(s, bases, n, t, t2):
        out = []
        for i, b in enumerate(bases):
            l = [f'v_bitop3_b32 v{t2}, v{b}, v{b+1}, v{b+2} bitop3:0x96']
            if n == 3: l.append(f'v_xor_b32 v{t2}, v{t2}, v{b+3}')
            l.append(f'v_xor_b32 v{t}, s{TAG}, v{t2}' if i == 0 else f'v_bitop3_b32 v{t}, v{t2}, s{TAG}, v{t} bitop3:0xbe')
            out.append('\n'.join(l))
        return out, t
    def poll(s, loads, ck, slp=0, warmable=False, nm='?', slpif=None, spin=None):
        if nm in s.o['nox']: return
        checks, t = ck
        a = s.lab('poll'); b = s.lab('ok')
        s(f's_mov_b32 s{SPIN}, {spin or s.o["spin"]}\n{a}:')
        (s.live if warmable else s)('\n'.join(loads))
        for i, c in enumerate(checks): s(f's_waitcnt vmcnt({len(loads) - 1 - i})'); s(c)
        s(f'v_cmp_ne_u32 vcc, 0, v{t}\ns_cbranch_vccz {b}')
        if slpif: c = s.lab('ns'); s(f'{slpif}\ns_cbranch_scc1 {c}\ns_sleep {s.o["mlslp"]}\n{c}:')
        if slp: s(f's_sleep {slp}')
        s(f's_sub_u32 s{SPIN}, s{SPIN}, 1\ns_cbranch_scc0 {a}\n{b}:')
    def gather(s, loads, cks, sm, slp=0, nm='?'):
        if nm in s.o['nox']: return
        n = len(loads); a = s.lab('gat'); b = s.lab('ok')
        s(f's_mov_b32 s{SPIN}, {s.o["spin"]}\ns_mov_b32 s{sm}, {(1 << n) - 1}\n{a}:')
        for k in range(n):
            l = s.lab('sk'); s(f's_bitcmp1_b32 s{sm}, {k}\ns_cbranch_scc0 {l}\n{loads[k]}\n{l}:')
        s(f's_mov_b32 s{sm}, 0\ns_waitcnt vmcnt(0)')
        for k in reversed(range(n)):
            s(cks[k][0][0]); s(f'v_cmp_ne_u32 vcc, 0, v{cks[k][1]}\ns_cmp_lg_u64 vcc, 0\ns_addc_u32 s{sm}, s{sm}, s{sm}')
        s(f's_cmp_eq_u32 s{sm}, 0\ns_cbranch_scc1 {b}')
        if slp: s(f's_sleep {slp}')
        s(f's_sub_u32 s{SPIN}, s{SPIN}, 1\ns_cbranch_scc0 {a}\n{b}:')
    def gstore(s, stores, nm='?'):
        if nm in s.o['nox']: return
        a = s.lab('pl'); b = s.lab('st')
        s(f's_cmp_eq_u32 s{LOC}, 1\ns_cbranch_scc1 {a}')
        for t in stores: s(t + ' sc1')
        s(f's_branch {b}\n{a}:')
        for t in stores: s(t)
        s(f'{b}:')
    def getloc(s, t, spin=True, at=LFLAG):
        a = s.lab('loc'); b = s.lab('locok')
        if spin: s(f's_mov_b32 s{SPIN}, {s.o["spin"] * 8}\n{a}:')
        s(f'v_mov_b32 v{t}, {at}\nds_read_b32 v{t}, v{t}\ns_waitcnt lgkmcnt(0)\nv_readfirstlane_b32 s{LOC}, v{t}\ns_sub_u32 s{LOC}, s{LOC}, s{TAG}')
        if spin: s(f's_cmp_le_u32 s{LOC}, 1\ns_cbranch_scc1 {b}\ns_sleep 1\ns_sub_u32 s{SPIN}, s{SPIN}, 1\ns_cbranch_scc0 {a}\n{b}:')
    def dma(s, n, voff, srd, soff, sstep, lds, F):
        out = []
        for t in range(n):
            st = sstep(t) if callable(sstep) else sstep
            out.append(lds(t) if callable(lds) else f's_mov_b32 m0, {lds + 1024 * t}')
            if F < 60: out.append(f's_waitcnt vmcnt({F - 1})')
            out.append(f'buffer_load_dwordx4 v{voff}, s[{srd}:{srd+3}], s{soff} offen {s.o["wflag"]} lds')
            if t < n - 1: out.append(f's_add_u32 s{soff}, s{soff}, {st}')
        return '\n'.join(out)
    def rows(s, d, t, sh, stride):
        s(f'v_lshrrev_b32 v{d}, {sh}, v0\nv_mul_u32_u24 v{d}, {stride}, v{d}\nv_and_b32 v{t}, {(1 << sh) - 1}, v0\nv_lshl_add_u32 v{d}, v{t}, 4, v{d}')
    def tr_lane(s, d, t, gs, rs):
        s(f'v_lshrrev_b32 v{d}, 4, v0\nv_mul_u32_u24 v{d}, {gs}, v{d}')
        s(f'v_bfe_u32 v{t}, v0, 2, 2\nv_mul_u32_u24 v{t}, {rs}, v{t}\nv_add_u32 v{d}, v{d}, v{t}')
        s(f'v_and_b32 v{t}, 3, v0\nv_lshl_add_u32 v{d}, v{t}, 3, v{d}')
    def a_lane(s, d, t, bs, gs, base):
        s(f'v_and_b32 v{d}, 1, v0\nv_mul_u32_u24 v{d}, {bs}, v{d}\nv_lshrrev_b32 v{t}, 4, v0\nv_mul_u32_u24 v{t}, {gs}, v{t}')
        s(f'v_add_u32 v{d}, v{d}, v{t}')
        if base: s(f'v_add_u32 v{d}, {base}, v{d}')
    def mfma(s, d, a, b, first, k=32):
        n = 4 if k == 32 else 2
        s(f'v_mfma_f32_16x16x{k}_bf16 v[{d}:{d+3}], v[{a}:{a+n-1}], v[{b}:{b+n-1}], ' + ('0' if first else f'v[{d}:{d+3}]'))
    def role(s, bit, label, ifset=True): s(f's_bitcmp1_b32 s{S_ROLE}, {bit}\ns_cbranch_scc{1 if ifset else 0} {label}')
    def end(s): s('s_branch L_exit' if s.o['stamps'] else 's_endpgm')
    def tagwait(s): s(f's_waitcnt lgkmcnt(0)\ns_add_u32 s{TAG}, s{TAG}, 0x9e3779b1')

    def entry(s):
        o = s.o
        s(f's_cmp_ge_u32 s2, 256\ns_cbranch_scc1 L_end')
        s.stamp(0, True)
        s('s_load_dwordx16 s[16:31], s[0:1], 0\ns_load_dwordx8 s[32:39], s[0:1], 64\ns_load_dwordx4 s[40:43], s[0:1], 96')
        if o['diag']: s('s_memrealtime s[78:79]')
        s('v_readfirstlane_b32 s3, v0\nv_and_b32 v0, 63, v0')
        if o['remap']: s('s_lshr_b32 s4, s2, 3\ns_and_b32 s4, s4, 7\ns_xor_b32 s2, s2, s4')
        s(f's_and_b32 s{S_X}, s2, 7\ns_lshr_b32 s4, s2, 6\ns_bfe_u32 s{S_J}, s2, 0x30003\ns_lshl2_add_u32 s{S_H}, s{S_X}, s4\ns_lshr_b32 s3, s3, 6')
        s('s_cmp_ge_u32 s3, 8\ns_cbranch_scc1 L_service')

    def roles(s):
        o = s.o
        for k in range(1, 8): s.stamp(k, True)
        s(f's_lshr_b32 s{S_IDX}, s2, 3\ns_lshr_b32 s11, s2, 6')
        lb = s.lab('nonB'); lr = s.lab('roles')
        s(f's_mov_b32 s{S_DT}, 0\ns_mov_b32 s{SV}, s3')
        s(f's_cmp_lt_u32 s{S_J}, 5\ns_cbranch_scc0 {lb}')
        s(f's_mul_i32 s{S_CS}, s11, 5\ns_add_u32 s{S_CS}, s{S_CS}, s{S_J}\ns_lshl_b32 s{S_CS}, s{S_CS}, 1\ns_and_b32 s9, s3, 1\ns_add_u32 s{S_CS}, s{S_CS}, s9')
        s(f's_mov_b32 s{S_ROLE}, 1\ns_branch {lr}')
        s(f'{lb}:')
        s(f's_mul_i32 s8, s11, 3\ns_add_u32 s8, s8, s{S_J}\ns_sub_u32 s8, s8, 5')
        s(f's_mul_i32 s{S_CS}, s{S_X}, 6\ns_add_u32 s{S_CS}, s{S_CS}, s8')
        s(f's_add_u32 s9, s8, 10\ns_and_b32 s9, s9, 14\ns_lshl_b32 s10, s9, 2\ns_add_u32 s10, s10, s{S_X}')
        s(f's_lshl_b32 s{S_DT}, s10, 1\ns_and_b32 s9, s8, 1\ns_add_u32 s{S_DT}, s{S_DT}, s9')
        s(f's_cmp_lt_u32 s10, 10\ns_cselect_b32 s{S_ROLE}, 8, 0')
        s(f's_cmp_lt_u32 s8, 6\ns_cselect_b32 s{S_ROLE}, 2, s{S_ROLE}')
        s(f'{lr}:')
        s('s_waitcnt lgkmcnt(0)')
        s(f's_load_dword s{TAG}, s[{P_WS}:{P_WS+1}], 0')
        s.srd(WS, P_WS, 805306368 if o['stamps'] else W_END)

    def stream(s):
        s.cur = 'w'
        o = s.o; F = o['F']; NPF = o['NPF']
        VK, QA, ACC, TS, MX = 1, 4, 16, 2, 3
        RING = 24
        SC = RING
        T1, T2, LS, PPT = RING + 8, RING + 9, RING + 10, RING + 11
        MK = RING + 12
        VV, BP, PP2, T3 = RING + 16, RING + 17, RING + 18, RING + 19
        ML = RING + 20
        RET = 7
        BM, BA, BZ = RING + 24, RING + 25, RING + 26
        A2 = []
        s(f'v_bfe_u32 v{VK}, v0, 1, 3\nv_mul_u32_u24 v{VK}, 384, v{VK}\nv_lshrrev_b32 v2, 4, v0\nv_lshl_add_u32 v{VK}, v2, 5, v{VK}')
        s(f'v_and_b32 v2, 1, v0\nv_lshl_add_u32 v{VK}, v2, 4, v{VK}')
        PD = 16 * 3145728; STEP = 393216; OD = [int(c) for c in str(o['ord']).zfill(4)]
        s(f's_bfe_u32 s7, s2, 0x40003\ns_lshl3_add_u32 s7, s7, s3\ns_mul_i32 s4, s7, 3072\ns_lshr_b32 s10, s{S_H}, 1')
        s(f's_mul_i32 s5, s10, 3145728\ns_add_u32 s4, s4, s5\ns_add_u32 s4, s4, {OD[0] * PD}\ns_add_u32 s6, s4, 3145728')
        s(f's_mul_i32 s5, s10, {o["rot"]}\ns_and_b32 s5, s5, 7\ns_mul_i32 s5, s5, {STEP}\ns_add_u32 s5, s5, s4')
        s(f's_mov_b32 s{RA+2}, 201326592\ns_mov_b32 s{RA+3}, 0x20000\ns_waitcnt lgkmcnt(0)\ns_mov_b64 s[{RA}:{RA+1}], s[{P_K}:{P_K+1}]')
        NL = 192
        quad = {}; free = list(range(3 * NPF)); vm = []
        done = [0]
        def wait(n):
            if len(vm) - done[0] > n:
                s(f's_waitcnt vmcnt({n})'); done[0] = len(vm) - n
        def issue(u):
            wait((o['endF'] if u >= NL - o['endN'] else o['F0'] if u < o['N0'] else F) - 1)
            if o['bal'] and 3 * NPF + 9 <= u < NL - o['endN']:
                l = s.lab('th'); s(f's_cbranch_vccz {l}\ns_waitcnt vmcnt({o["Flo"] - 1})\n{l}:')
            q = free.pop(0); quad[u] = q; r = RING + 4 * q
            srd, vo = (RAR, VK) if u < 96 else (RBR, VV)
            s(f'buffer_load_dwordx4 {Q4(r)}, v{vo}, {srd}, s5 offen offset:{128 * (u % 3)} {o["sflag"]}')
            vm.append(u)
            if u % 3 == 2 and u < NL - 1:
                s(f's_add_u32 s5, s5, {STEP}\ns_cmp_ge_u32 s5, s6\ns_cselect_b32 s5, s4, s5')
                if u % 24 == 23:
                    t = (u // 24) & 3; dl = OD[(t + 1) & 3] - OD[t]
                    for r in (4, 5, 6): s(f's_{"add" if dl > 0 else "sub"}_u32 s{r}, s{r}, {abs(dl) * PD}')
                if o['phst'] and u % 48 == 47: s.stamp({47: 3, 95: 5, 143: 6}[u], True)
            if u >= 3 * NPF + 3:
                if u >= 3 * NPF + 6: s(f's_waitcnt lgkmcnt(0)\nv_cmp_gt_u32 vcc, {u + 1}, v{BM}')
                s(f'v_mov_b32 v{BM}, {u + 1}\nds_write_b32 v{BA}, v{BM} offset:{LPRG}\nds_read_b32 v{BM}, v{BZ} offset:{LMODE}')
        def ready(u): return u in vm and vm.index(u) < done[0]
        def kpost(g):
            a = ACC + 4 * (g & 1); sc = SC + (g >> 2)
            s(f'v_cndmask_b32_e64 v{TS}, v{a}, v{a+1}, s[8:9]')
            s(f'v_add_f32_dpp v{sc}, v{TS}, v{TS} quad_perm:[1,0,3,2] row_mask:{1 << (g & 3)} bank_mask:0xf')
            if g & 3 == 3:
                s.bf16r(sc); s(f'v_mul_f32 v{sc}, {hx(192 ** -0.5)}, v{sc}'); s.bf16r(sc)
            if g & 7 == 7:
                a = sc - 1; row = f'quad_perm:[0,1,2,3] row_mask:{1 << (g >> 3)} bank_mask:0xf'
                s(f'v_max_f32 v{MX}, v{a}, v{a+1}')
                s.red16('v_max_f32', [MX], skip1=True); s.swapred('v_max_f32', MX, T1, 16); s.swapred('v_max_f32', MX, T1, 32)
                s(f's_mov_b32 s10, {hx(LOG2E)}\nv_mul_f32 v{T1}, s10, v{MX}')
                for k in range(2): s(f'v_fma_f32 v{a+k}, v{a+k}, s10, -v{T1}')
                for k in range(2): s(f'v_exp_f32 v{a+k}, v{a+k}')
                s(f'v_mov_b32_dpp v{ML}, v{MX} {row}\nv_add_f32 v{LS}, v{a}, v{a+1}')
                for k in range(2): s(f'v_cvt_pk_bf16_f32 v{a+k}, v{a+k}, v{a+k}')
                s.red16('v_add_f32', [LS], skip1=True); s.swapred('v_add_f32', LS, T1, 16); s.swapred('v_add_f32', LS, T1, 32)
                s(f'v_mov_b32_dpp v{ML+1}, v{LS} {row}')
        def bperm(g):
            s(f'ds_bpermute_b32 v{PPT if g & 1 == 0 else PP2}, v{BP}, v{SC + (g >> 2)} offset:{64 * (g & 3)}')
        def switch():
            s.stamp(3)
            bperm(0)
            s(f'v_bitop3_b32 v{ML+2}, v{ML}, v{ML+1}, s{TAG} bitop3:0x96\nv_lshlrev_b32 v{ML+3}, 7, v0')
            s(f's_lshr_b32 s10, s{S_H}, 1\ns_lshl_b32 s10, s10, 9\ns_add_u32 s10, s10, s7\ns_lshl_b32 s10, s10, 4\ns_add_u32 s10, s10, {W_ML}')
            s('s_mov_b32 exec_lo, 0x00010001\ns_mov_b32 exec_hi, 0x00010001')
            s.gstore([f'buffer_store_dwordx4 {Q4(ML)}, v{ML+3}, {WSR}, s10 offen'])
            s('s_mov_b64 exec, -1')
            vm.append(None)
            s(f'v_lshrrev_b32 v{T1}, 5, v0\nv_mul_u32_u24 v{T1}, 768, v{T1}\nv_and_b32 v{T2}, 7, v0\nv_lshl_add_u32 v{T1}, v{T2}, 5, v{T1}')
            s(f'v_and_b32 v{T2}, 16, v0\nv_add_u32 v{T1}, v{T1}, v{T2}\ns_mul_i32 s10, s3, 1536\ns_add_u32 s10, s10, {LPO}\nv_add_u32 v{T1}, s10, v{T1}')
        def outp(acc, b):
            s('s_mov_b32 exec_lo, 0x00ff00ff\ns_mov_b32 exec_hi, 0xff00ff00')
            for jj in range(3): s(f'ds_write_b128 v{T1}, {Q4(acc[jj])} offset:{256*jj + 12288*b}')
            s('s_mov_b64 exec, -1')
        def proc(u):
            g, jj = divmod(u, 3)
            if g >= 32 and jj == 0:
                a = ACC + 4 * (g & 1)
                s('s_waitcnt lgkmcnt(0)')
                for k in range(4): s(f'v_and_b32 v{a+k}, v{PPT if g & 1 == 0 else PP2}, v{MK+k}')
                if g < 63: bperm(g - 31)
            wait(len(vm) - 1 - vm.index(u))
            r = RING + 4 * quad[u]
            if g < 32:
                s.mfma(ACC + 4 * (g & 1), QA + 4 * jj, r, jj == 0)
                if jj == 2 and g > 0: kpost(g - 1)
                if u == 5:
                    s(f'v_lshrrev_b32 v{BP}, 3, v0\nv_mul_u32_u24 v{VV}, 384, v{BP}\nv_lshlrev_b32 v{BP}, 3, v{BP}')
                    s(f'v_and_b32 v{T3}, 7, v0\nv_lshl_add_u32 v{VV}, v{T3}, 4, v{VV}')
                    s(f'v_and_b32 v{PP2}, 1, v0\nv_lshlrev_b32 v{PP2}, 4, v{PP2}\nv_mov_b32 v{MK}, 0xffff\nv_lshlrev_b32 v{PP2}, v{PP2}, v{MK}')
                    s(f'v_lshrrev_b32 v{T3}, 1, v{T3}')
                    for k in range(4):
                        s(f'v_cmp_eq_u32 vcc, {k}, v{T3}\nv_cndmask_b32 v{MK+k}, 0, v{PP2}, vcc')
                    s.a_lane(T3, PP2, 16, 32, LQ)
                if u in (23, 47, 71):
                    for k in range(3): s(f'ds_read_b128 {Q4(QA+4*k)}, v{T3} offset:{128*k + 384*OD[(u+1)//24]}')
                    s('s_waitcnt lgkmcnt(0)')
                if u == 6:
                    s(f's_cmp_eq_u32 s3, 3\ns_cselect_b32 s10, 0, 4\nv_mov_b32 v{BA}, s10\nv_mov_b32 v{BZ}, 0')
                if u == 95: kpost(31); switch()
            else:
                if u == 120: A2.extend(RING + 4 * free.pop() for _ in range(3))
                acc = lambda p: A2 if p & 1 else [QA, QA + 4, QA + 8]
                p = (g - 32) >> 3
                s.mfma(acc(p)[jj], ACC + 4 * (g & 1), r, g & 7 == 0)
                if u >= 190:
                    s(f's_mov_b32 exec_lo, 0x00ff00ff\ns_mov_b32 exec_hi, 0xff00ff00\nds_write_b128 v{T1}, {Q4(A2[jj-1])} offset:{256*(jj-1) + 3*12288}')
                    if u == 190: s('s_mov_b64 exec, -1')
                if p and u % 24 == 2:
                    outp(acc(p - 1), p - 1)
                    s(f's_mov_b64 exec, 1\nv_mov_b32 v{T2}, 1\nds_add_u32 v{BZ}, v{T2} offset:{LCNT + 4*(p-1)}\ns_mov_b64 exec, -1')
            if quad[u] >= RET: free.append(quad[u])
        li = 0
        if o['sep']:
            s.roles(); s.tagwait(); s.ldswait(LGO, TS)
        while li < 3 * NPF:
            issue(li); li += 1
            if li == (min(F, o['F0']) if o['N0'] else F):
                if not o['sep']: s.roles()
                s.srd(RB, P_V, 201326592)
            if li == F + 1:
                s('s_mov_b32 s8, 0xaaaaaaaa\ns_mov_b32 s9, 0xaaaaaaaa'); s.a_lane(TS, MX, 16, 32, LQ)
                if not o['sep']: s.tagwait()
        s.stamp(1, True)
        s('s_barrier')
        s.stamp(2, True)
        for jj in range(3): s(f'ds_read_b128 {Q4(QA+4*jj)}, v{TS} offset:{128*jj + 384*OD[0]}')
        s.getloc(MX, spin=False)
        pi = 0
        while pi < NL:
            if li < NL:
                while not free: proc(pi); pi += 1
                issue(li); li += 1
                n = 0
                while n < o['RC'] and pi < NL and ready(pi): proc(pi); pi += 1; n += 1
            else:
                proc(pi); pi += 1
        s(f'ds_write_b128 v{T1}, {Q4(A2[2])} offset:{512 + 3*12288}\ns_mov_b64 exec, -1')
        s('s_waitcnt lgkmcnt(0)')
        s.stamp(4, True)
        s('s_barrier')
        s.role(3, 'L_D'); s.role(1, 'L_C'); s.role(0, 'L_exit', False)
        s(f'L_B:\ns_cmp_lt_u32 s{SV}, 4\ns_cbranch_scc0 L_exit')
        BW, AW, D = 40, 88, 136
        s.tr_lane(2, 3, 1024, 128)
        s(f'v_bfe_u32 v3, v0, 3, 2\nv_xor_b32 v3, s{SV}, v3\nv_lshl_add_u32 v2, v3, 5, v2\nv_add_u32 v2, {LB}, v2')
        for T in range(12):
            for hi in range(2): s(f'ds_read_b64_tr_b16 {P(BW+4*T+2*hi)}, v2 offset:{4096*T + 512*hi}')
        s(f'v_and_b32 v3, 3, v0\nv_mul_u32_u24 v3, {OS}, v3\nv_and_b32 v4, 48, v0\nv_add_u32 v3, v3, v4\nv_add_u32 v3, {LO}, v3')
        for T in range(6): s(f'ds_read_b128 {Q4(AW+4*T)}, v3 offset:{64*T}')
        s(f'v_lshlrev_b32 v4, 4, v0')
        s(f's_lshr_b32 s10, s{S_H}, 1\ns_mul_i32 s10, s10, 40\ns_and_b32 s11, s{S_H}, 1\ns_mul_i32 s11, s11, 5\ns_add_u32 s11, s11, s{S_J}')
        s(f's_lshl2_add_u32 s10, s11, s10\ns_add_u32 s10, s10, s{SV}\ns_lshl_b32 s10, s10, 8\ns_add_u32 s10, s10, {W_Y}\ns_sub_u32 s11, s10, {W_Y - W_YL}')
        s('s_waitcnt lgkmcnt(0)')
        for T in range(6): s.mfma(D, AW + 4 * T, BW + 4 * T, T == 0)
        s.live('s_barrier')
        s.stamp(5)
        for T in range(6, 12): s(f'ds_read_b128 {Q4(AW+4*T)}, v3 offset:{64*T}')
        for T in range(6, 12):
            s(f's_waitcnt lgkmcnt({11-T})'); s.mfma(D, AW + 4 * T, BW + 4 * T, False)
        s.warmret('L_wB')
        s(f's_mov_b64 exec, 0xffff\nv_pk_add_f32 {P(D)}, {P(D)}, {P(D+2)}\nv_bitop3_b32 v{D+2}, v{D}, v{D+1}, s{TAG} bitop3:0x96')
        s(f'buffer_store_dwordx4 {Q4(D)}, v4, {WSR}, s10 offen sc1\nbuffer_store_dwordx4 {Q4(D)}, v4, {WSR}, s11 offen')
        s.stamp(6)
        s('s_barrier')
        s.end()

    def s0(s):
        s.cur = 'a'
        o = s.o
        lsk = s.lab('noM'); lj = s.lab('Mj'); ln = s.lab('Mn')
        s(f's_lshr_b32 s4, s{S_IDX}, 2\ns_lshl_b32 s4, s4, 3\ns_add_u32 s4, s4, s{S_X}')
        s(f's_cmp_lt_u32 s4, 60\ns_cbranch_scc0 {lsk}')
        s(f's_and_b32 s7, s{S_IDX}, 3')
        s.srd(RA, P_C, 2560); s.srd(RB, P_WM, 640 * 7680)
        s('v_min_u32 v1, 39, v0\nv_cmp_lt_u32 vcc, 19, v1\nv_lshlrev_b32 v1, 4, v1\nv_mov_b32 v3, 960\nv_cndmask_b32 v3, 0, v3, vcc\nv_add_u32 v3, v3, v1')
        s(f's_mul_i32 s5, s7, 320\nbuffer_load_dwordx4 v[8:11], v3, {RAR}, s5 offen')
        s.rows(2, 3, 3, 7680)
        s(f's_mul_i32 s5, s7, {160 * 7680}\ns_lshl_b32 s6, s4, 7\ns_add_u32 s5, s5, s6')
        s(s.dma(20, 2, RB, 5, 8 * 7680, LM, o['mF']))
        s('s_waitcnt vmcnt(20)')
        s(f's_mov_b32 s6, {hx(-LOG2E)}')
        for k in range(4): s(f'v_lshlrev_b32 v{20+2*k}, 16, v{8+k}\nv_and_b32 v{21+2*k}, 0xffff0000, v{8+k}')
        for k in range(8): s(f'v_mul_f32 v{40+k}, s6, v{20+k}')
        for k in range(8): s(f'v_exp_f32 v{40+k}, v{40+k}')
        for k in range(8): s(f'v_add_f32 v{40+k}, 1.0, v{40+k}')
        for k in range(8): s(f'v_min_f32 v{40+k}, 0x7f000000, v{40+k}')
        for k in range(8): s(f'v_rcp_f32 v{48+k}, v{40+k}')
        for k in range(8): s(f'v_mul_f32 v{56+k}, v{20+k}, v{48+k}')
        for k in range(8): s(f'v_fma_f32 v{20+k}, -v{56+k}, v{40+k}, v{20+k}')
        for k in range(8): s(f'v_fma_f32 v{20+k}, v{20+k}, v{48+k}, v{56+k}')
        for k in range(4): s(f'v_cvt_pk_bf16_f32 v{8+k}, v{20+2*k}, v{21+2*k}')
        s(f'ds_write_b128 v1, v[8:11] offset:{LXS}')
        s.a_lane(4, 5, 320, 16, LXS)
        s.tr_lane(5, 6, 1024, 128); s(f'v_add_u32 v5, {LM}, v5')
        A, B, D = 12, 48, 32
        s.tagwait()
        for T in range(5): s(f'ds_read_b128 {Q4(A+4*T)}, v4 offset:{64*T}')
        l = s.lab('ini')
        s(f's_cmp_eq_u32 s{S_IDX}, 0\ns_cbranch_scc0 {l}\ns_lshl_b32 s5, s{S_X}, 7\ns_add_u32 s5, s5, {W_PG}\ns_add_u32 s6, s{TAG}, 999')
        s(f'v_and_b32 v1, 31, v0\nv_lshlrev_b32 v1, 2, v1\nv_mov_b32 v6, s6\nbuffer_store_dword v6, v1, {WSR}, s5 offen\n{l}:')
        s(f'v_lshlrev_b32 v1, 4, v0\ns_mul_i32 s5, s7, {3840 * 16}\ns_lshl_b32 s6, s4, 10\ns_add_u32 s5, s5, s6\ns_add_u32 s5, s5, {W_MP}')
        s.rows(2, 3, 4, 3840 * 16)
        s(f's_lshl_b32 s4, s4, 2\ns_add_u32 s4, s4, s7\ns_lshl_b32 s6, s4, 8\ns_add_u32 s6, s6, {W_MP}')
        s('s_waitcnt vmcnt(0)')
        s.stamp(1)
        for T in range(5):
            for ct in range(4):
                for hi in range(2): s(f'ds_read_b64_tr_b16 {P(B + 16*T + 4*ct + 2*hi)}, v5 offset:{4096*T + 512*hi + 32*ct}')
            if T:
                s('s_waitcnt lgkmcnt(8)')
                for ct in range(4): s.mfma(D + 4 * ct, A + 4 * (T - 1), B + 16 * (T - 1) + 4 * ct, T == 1)
        s('s_waitcnt lgkmcnt(0)')
        for ct in range(4): s.mfma(D + 4 * ct, A + 16, B + 64 + 4 * ct, False)
        for ct in range(1, 4):
            for b in range(2): s(f'v_mov_b32_dpp v{D+b}, v{D+4*ct+b} quad_perm:[0,1,2,3] row_mask:{1 << ct} bank_mask:0xf')
        s(f'v_bitop3_b32 v{D+2}, v{D}, v{D+1}, s{TAG} bitop3:0x96')
        l2 = s.lab('M2')
        s(f's_cmp_lt_u32 s4, 80\ns_cbranch_scc0 {l2}')
        if 'P' not in o['nox']: s(f'buffer_store_dwordx4 {Q4(D)}, v1, {WSR}, s5 offen sc1')
        s.stamp(2)
        s(f's_branch {ln}\n{l2}:')
        s.getloc(6)
        s.gstore([f'buffer_store_dwordx4 {Q4(D)}, v1, {WSR}, s5 offen'], nm='m')
        s.stamp(2)
        s('s_barrier')
        s.poll([f'buffer_load_dwordx3 v[4:6], v2, {WSR}, s6 offen sc1'], s.ck_xor([4], 2, 8, 9), slp=o['mlslp'], nm='m')
        for w in (32, 16):
            s.swapred('v_add_f32', 4, 8, w); s.swapred('v_add_f32', 5, 9, w)
        s(f'v_cvt_pk_bf16_f32 v4, v4, v5\nv_mov_b32 v5, s{TAG}\nv_lshlrev_b32 v3, 3, v0\ns_lshl_b32 s5, s4, 7\ns_add_u32 s5, s5, {W_MOD}')
        s(f's_mov_b64 exec, 0xffff\nbuffer_store_dwordx2 v[4:5], v3, {WSR}, s5 offen sc1\ns_mov_b64 exec, -1')
        s(f's_branch {lj}\n{lsk}:'); s.tagwait(); s(f'{ln}:\ns_barrier'); s.getloc(6, spin=False); s(f'{lj}:')
        s.waitprog(108, 1)
        s('s_mov_b32 s5, 0\nL_pair:')
        s.stats()
        s.stamp(3)
        l = s.lab('cnt')
        s(f's_lshl_b32 s8, s5, 2\nv_mov_b32 v4, s8\ns_mov_b32 s{SPIN}, {o["spin"]}\n{l}:\ns_sleep {o["pslp"]}\nds_read_b32 v5, v4 offset:{LCNT}\ns_sub_u32 s{SPIN}, s{SPIN}, 1\ns_waitcnt lgkmcnt(0)')
        s(f'v_readfirstlane_b32 s8, v5\ns_cselect_b32 s8, 8, s8\ns_cmp_lt_u32 s8, 8\ns_cbranch_scc1 {l}')
        s('L_T0:')
        s.stamp(4)
        T = 16
        for k in range(24): s(f'ds_read2st64_b32 {P(T+2*k)}, v1 offset0:{2*k} offset1:{2*k+1}')
        for w in range(8):
            if w >= 3: s(f's_waitcnt lgkmcnt({3 * (7 - w)})')
            elif w == 0: s('s_waitcnt lgkmcnt(15)')
            f = f's[{64 + (w & 6)}:{65 + (w & 6)}]'; e = w & 1
            for c in range(3):
                r = T + 6 * w + 2 * c; a = (8, 10, 12)[c]
                s(f'v_pk_mul_f32 {P(a)}, {P(r)}, {f} op_sel:[0,{e}] op_sel_hi:[1,{e}]' if w == 0 else
                  f'v_pk_fma_f32 {P(a)}, {P(r)}, {f}, {P(a)} op_sel:[0,{e},0] op_sel_hi:[1,{e},1]')
        s('v_add_f32 v8, v8, v11\nv_add_f32 v9, v9, v12\nv_add_f32 v10, v10, v13')
        s(f'v_bitop3_b32 v11, v8, v9, v10 bitop3:0x96\nv_xor_b32 v11, s{TAG}, v11')
        s.gstore([f'buffer_store_dwordx4 v[8:11], v2, {WSR}, s4 offen'])
        s.stamp(5)
        l = s.lab('early'); l2 = s.lab('next'); l3 = s.lab('fin')
        s(f's_cmp_eq_u32 s5, 3\ns_cbranch_scc0 {l}')
        s.role(0, 'L_Bg'); s.role(3, 'L_D'); s.role(1, 'L_exit', False)
        s('s_barrier')
        s.end()
        s(f'{l}:')
        s.role(0, l2, False)
        s(f's_mul_i32 s9, s5, 24\ns_add_u32 s9, s9, {o["eg"] - 48}')
        s.waitprog('s9', 12, o['pslp'])
        s.gath(2, o['pslp'])
        s(f'{l2}:\ns_add_u32 s5, s5, 1\ns_cmp_lt_u32 s5, 3\ns_cbranch_scc1 L_pair')
        s.role(0, l3); s.role(3, 'L_exit', False)
        s(f's_barrier\ns_branch L_D\n{l3}:')
        s(f's_add_u32 s6, s6, 16384\ns_add_u32 s7, s6, 4096\nv_lshlrev_b32 v3, 1, v0\nv_add_u32 v3, {LO + 384 + OS * (int(str(o["ord"])[-1]) >> 1)}, v3\ns_waitcnt lgkmcnt(0)\ns_barrier')

    def stats(s):
        s(f'v_lshlrev_b32 v2, 4, v0\ns_lshr_b32 s6, s{S_H}, 1\ns_lshl2_add_u32 s6, s6, s5\ns_lshl_b32 s4, s6, 11\ns_add_u32 s4, s4, {W_ML}')
        s.poll([f'buffer_load_dwordx3 v[{4+4*k}:{6+4*k}], v2, {WSR}, s4 offen offset:{1024*k} sc1' for k in range(2)], s.ck_xor([4, 8], 2, 12, 13), slp=s.o['mlslp'])
        s('v_max_f32 v12, v4, v8')
        s.red16('v_max_f32', [12]); s.swapred('v_max_f32', 12, 13, 16); s.swapred('v_max_f32', 12, 13, 32)
        for r in (4, 8): s(f'v_sub_f32 v{r}, v{r}, v12\nv_mul_f32 v{r}, {hx(LOG2E)}, v{r}\nv_exp_f32 v{r}, v{r}')
        s('v_mul_f32 v5, v5, v4\nv_fmac_f32 v5, v9, v8')
        s.red16('v_add_f32', [5]); s.swapred('v_add_f32', 5, 13, 16); s.swapred('v_add_f32', 5, 13, 32)
        s(f'v_rcp_f32 v5, v5\ns_bitcmp1_b32 s{S_H}, 0\ns_cselect_b64 vcc, -1, 0\nv_cndmask_b32 v4, v4, v8, vcc\nv_mul_f32 v4, v4, v5')
        s(f's_lshl_b32 s4, s{S_J}, 3')
        for w in range(8):
            s(f'v_readlane_b32 s{64+w}, v4, s4')
            if w < 7: s('s_add_u32 s4, s4, 1')
        s(f's_mul_i32 s4, s5, 12288\ns_add_u32 s4, s4, {LPO}\nv_lshl_add_u32 v1, v0, 2, s4')
        s(f's_lshl_b32 s7, s5, 2\ns_lshr_b32 s7, 0x{str(s.o["ord"]).zfill(4)[::-1]}, s7')
        s(f's_bfe_u32 s4, s7, 0x10001\ns_mul_i32 s4, s4, {OS}\ns_and_b32 s7, s7, 1\ns_mul_i32 s7, s7, 384\ns_add_u32 s4, s4, s7\ns_add_u32 s4, s4, {LO}\nv_lshl_add_u32 v3, v0, 1, s4')
        s(f's_lshl_b32 s6, s6, 14\ns_add_u32 s6, s6, {W_ATT}\ns_and_b32 s4, s{S_IDX}, 15\ns_lshl_b32 s4, s4, 10\ns_add_u32 s4, s4, s6\ns_add_u32 s7, s6, 4096')

    def gath(s, nh, slp):
        G = 24
        if nh == 2: s('s_add_u32 s8, s6, 8192\ns_add_u32 s9, s6, 12288')
        ck, t = s.ck_xor([G + 4 * k for k in range(8 * nh)], 3, 12, 13)
        for k in range(8 * nh):
            a = 16 + 4 * (k >> 3); r = G + 4 * k
            if k & 7: ck[k] += f'\nv_pk_add_f32 {P(a)}, {P(r-4) if k & 7 == 1 else P(a)}, {P(r)}\nv_add_f32 v{a+2}, v{r-2 if k & 7 == 1 else a+2}, v{r+2}'
        s.poll([f'buffer_load_dwordx4 {Q4(G+4*k)}, v2, {WSR}, s{6 + (k >> 2)} offen offset:{1024*(k & 3)} sc1' for k in range(8 * nh)], (ck, t), slp=slp, warmable=(nh == 1))
        for h in range(nh):
            a = 16 + 4 * h; of = 2 * OS * h
            s(f'v_cvt_pk_bf16_f32 v{a}, v{a}, v{a+1}\nv_cvt_pk_bf16_f32 v{a+2}, v{a+2}, v{a+2}')
            s(f'ds_write_b16 v3, v{a} offset:{of}\nds_write_b16_d16_hi v3, v{a} offset:{of+128}\nds_write_b16 v3, v{a+2} offset:{of+256}')

    def bgather(s):
        s.cur = 'g'
        s('L_Bg:')
        s.gath(1, 0)
        s.warmret('L_wBg')
        s('s_waitcnt lgkmcnt(0)')
        s.stamp(6)
        s('s_barrier')
        s.end()

    def s1(s):
        s.cur = 'b'
        o = s.o
        s.srd(RA, P_X, 2560); s.srd(RB, P_WQ, 640 * 12288)
        s('v_and_b32 v1, 31, v0\nv_lshlrev_b32 v1, 3, v1\nv_lshrrev_b32 v2, 5, v0\nv_mul_u32_u24 v2, 1280, v2\nv_add_u32 v1, v1, v2')
        for u in range(5): s(f'buffer_load_dwordx2 {P(10+2*u)}, v1, {RAR}, 0 offen offset:{256*u}')
        s(f'v_and_b32 v7, 15, v0\nv_lshl_add_u32 v2, v7, 1, v2\ns_mul_i32 s4, s{S_J}, 160')
        for u in range(5): s(f'buffer_load_ushort v{160+u}, v2, {RAR}, s4 offen offset:{32*u}')
        s.rows(3, 4, 3, 12288)
        s(f's_mul_i32 s5, s{S_J}, {80*12288}\ns_lshr_b32 s6, s{S_H}, 1\ns_and_b32 s7, s{S_H}, 1\ns_lshl4_add_u32 s6, s7, s6\ns_mul_i32 s6, s6, 384\ns_add_u32 s5, s5, s6')
        s(s.dma(30, 3, RB, 5, lambda t: 128 if t % 3 < 2 else 8 * 12288 - 256, LWQ, o['qF']))
        s.tagwait()
        if o['qfirst']: s(f'v_mov_b32 v4, {LGO}\nv_mov_b32 v5, s{TAG}\nds_write_b32 v4, v5')
        s('s_waitcnt vmcnt(30)')
        X = 20
        for k in range(10): s(f'v_lshlrev_b32 v{X+2*k}, 16, v{10+k}\nv_and_b32 v{X+2*k+1}, 0xffff0000, v{10+k}')
        s(f'v_add_f32 v4, v{X}, v{X+1}')
        for k in range(2, 20): s(f'v_add_f32 v4, v4, v{X+k}')
        s.red16('v_add_f32', [4]); s.swapred('v_add_f32', 4, 5, 16)
        s(f'v_mul_f32 v4, {hx(1/640)}, v4')
        for k in range(20): s(f'v_sub_f32 v{X+k}, v{X+k}, v4')
        s(f'v_mul_f32 v5, v{X}, v{X}')
        for k in range(1, 20): s(f'v_fmac_f32 v5, v{X+k}, v{X+k}')
        s.red16('v_add_f32', [5]); s.swapred('v_add_f32', 5, 6, 16)
        s(f'v_mul_f32 v5, {hx(1/640)}, v5')
        s.bf16r(4); s.bf16r(5)
        s(f'v_add_f32 v5, {hx(1e-5)}, v5'); s.bf16r(5)
        s('v_sqrt_f32 v5, v5'); s.bf16r(5); s('v_rcp_f32 v5, v5')
        for u in range(5):
            r = 160 + u
            s(f'v_lshlrev_b32 v{r}, 16, v{r}\nv_sub_f32 v{r}, v{r}, v4'); s.bf16r(r)
            s(f'v_mul_f32 v{r}, v{r}, v5'); s.bf16r(r)
        s.tr_lane(4, 5, 3072, 128)
        s(f'v_add_u32 v4, {LWQ}, v4')
        s.tr_lane(5, 6, 512, 128)
        s(f'v_lshrrev_b32 v6, 5, v0\nv_mul_u32_u24 v6, 2048, v6\nv_add_u32 v5, v5, v6\nv_add_u32 v5, {LWQ + 8*3072}, v5')
        BW, AC, A = 100, 40, 88
        def rd(ct):
            b = BW + 10 * (ct % 6); off = 1024 * (ct >> 2) + 32 * (ct & 3)
            for T in range(2):
                for hi in range(2): s(f'ds_read_b64_tr_b16 {P(b+4*T+2*hi)}, v4 offset:{off + 12288*T + 512*hi}')
            s(f'ds_read_b64_tr_b16 {P(b+8)}, v5 offset:{off}')
        s.rows(2, 6, 4, 3840 * 16)
        s(f's_mul_i32 s4, s{S_J}, 1280\ns_add_u32 s4, s4, {W_MP}\ns_add_u32 s5, s4, 10240')
        s('s_waitcnt vmcnt(0)')
        s.stamp(1)
        for ct in range(6): rd(ct)
        M = 40
        s.gather([f'buffer_load_dwordx3 v[{M+4*u}:{M+4*u+2}], v2, {WSR}, s{4 + u // 5} offen offset:{256 * (u % 5)} sc1' for u in range(10)],
                 [s.ck_xor([M + 4 * u], 2, 12, 13) for u in range(10)], 8, slp=o['pslp'], nm='P')
        s.stamp(2)
        for u in range(10): s(f'v_permlane32_swap_b32 v{M+4*u}, v{M+4*u+1}')
        for u in range(10): s(f'v_add_f32 v{M+4*u}, v{M+4*u}, v{M+4*u+1}')
        for u in range(10): s(f'v_mov_b32 v{M+4*u+1}, v{M+4*u}')
        for u in range(10): s(f'v_permlane16_swap_b32 v{M+4*u}, v{M+4*u+1}')
        for u in range(10): s(f'v_add_f32 v{M+4*u}, v{M+4*u}, v{M+4*u+1}')
        for u in range(10): s.bf16r(M + 4 * u)
        s(f'v_lshrrev_b32 v2, 5, v0\nv_mul_u32_u24 v2, 192, v2\nv_lshl_add_u32 v2, v7, 1, v2')
        for u in range(5):
            c = M + 20 + 4 * u; r = 160 + u
            s(f'v_add_f32 v{c}, 1.0, v{c}'); s.bf16r(c)
            s(f'v_mul_f32 v{r}, v{r}, v{c}'); s.bf16r(r)
            s(f'v_add_f32 v{r}, v{r}, v{M+4*u}\nv_cvt_pk_bf16_f32 v{r}, v{r}, v{r}\nds_write_b16 v2, v{r} offset:{LHS + 32*u}')
        s.getloc(6)
        s.a_lane(2, 3, 192, 16, LHS); s.a_lane(3, 6, 192, 8, LHS + 128)
        s('s_waitcnt lgkmcnt(0)')
        s(f'ds_read_b128 {Q4(A)}, v2\nds_read_b128 {Q4(A+4)}, v2 offset:64\nds_read_b64 {P(A+8)}, v3')
        for half in range(2):
            s('s_waitcnt lgkmcnt(0)')
            for ct in range(6 * half, 6 * half + 6): s.mfma(AC + 4 * ct, A + 8, BW + 10 * (ct % 6) + 8, True, k=16)
            for T in range(2):
                for ct in range(6 * half, 6 * half + 6):
                    s.mfma(AC + 4 * ct, A + 4 * T, BW + 10 * (ct % 6) + 4 * T, False)
                    if half == 0 and T == 1: rd(ct + 6)
        s(f'v_lshlrev_b32 v2, 4, v0\ns_lshl_b32 s4, s{S_H}, 3\ns_add_u32 s5, s4, s{S_J}\ns_lshl_b32 s5, s5, 11\ns_add_u32 s5, s5, {W_QP}')
        for b in range(2):
            for u in range(4):
                for c in range(3):
                    s(f'v_mov_b32_dpp v{16+4*b+c}, v{AC + 4*(3*u+c) + b} quad_perm:[0,1,2,3] row_mask:{1 << u} bank_mask:0xf')
        for b in range(2):
            t = 16 + 4 * b
            s(f'v_bitop3_b32 v{t+3}, v{t}, v{t+1}, v{t+2} bitop3:0x96\nv_xor_b32 v{t+3}, s{TAG}, v{t+3}')
        s.gstore([f'buffer_store_dwordx4 {Q4(16+4*b)}, v2, {WSR}, s5 offen offset:{1024*b}' for b in range(2)], nm='Q')
        s.stamp(3)
        s(f'v_mov_b32 v3, {LQF}\nv_mov_b32 v4, s{TAG}\nds_write_b32 v3, v4')
        s(f'L_Qg:\ns_bfe_u32 s9, s3, 0x10001\ns_and_b32 s4, s{S_H}, 30\ns_add_u32 s4, s4, s9\ns_lshl_b32 s4, s4, 14\ns_add_u32 s4, s4, {W_QP}\ns_mul_i32 s9, s9, 384')
        for k in range(1, 4): s(f's_add_u32 s{4+k}, s4, {4096*k}')
        Q = 40
        def ck2(k):
            c, t = s.ck_xor([Q + 8 * k, Q + 8 * k + 4], 3, 12, 13); return ['\n'.join(c)], t
        s.gather(['\n'.join(f'buffer_load_dwordx4 {Q4(Q+8*k+4*b)}, v2, {WSR}, s{4 + (k >> 1)} offen offset:{2048*(k & 1) + 1024*b} sc1' for b in range(2)) for k in range(8)],
                 [ck2(k) for k in range(8)], 8, slp=o['pslp'], nm='Q')
        s('v_lshrrev_b32 v3, 4, v0\nv_mul_u32_u24 v3, 96, v3\nv_and_b32 v4, 15, v0\nv_lshl_add_u32 v3, v4, 1, v3\nv_add_u32 v3, s9, v3')
        for k in range(1, 8):
            for b in range(2):
                r = Q + 4 * b
                s(f'v_pk_add_f32 {P(r)}, {P(r)}, {P(r+8*k)}\nv_add_f32 v{r+2}, v{r+2}, v{r+8*k+2}')
        for b in range(2):
            r = Q + 4 * b; lq = LQ + 768 * b
            s(f'v_cvt_pk_bf16_f32 v{r}, v{r}, v{r+1}\nv_cvt_pk_bf16_f32 v{r+2}, v{r+2}, v{r+2}')
            s(f'ds_write_b16 v3, v{r} offset:{lq}\nds_write_b16_d16_hi v3, v{r} offset:{lq+32}\nds_write_b16 v3, v{r+2} offset:{lq+64}')
        s('s_waitcnt lgkmcnt(0)')
        s.stamp(4)
        s('s_barrier\ns_cmp_eq_u32 s3, 11\ns_cbranch_scc1 L_s3b')
        lc = s.lab('s1C'); ld = s.lab('s1D'); lw = s.lab('s1W')
        if o['warm']:
            s.role(1, lc); s.role(3, ld); s.role(0, lw, False)
            s(f's_mov_b32 s{SV}, 0'); s.warm('L_B', 'L_wB'); s.warm('L_Bg', 'L_wBg'); s(f's_branch {lw}')
            s(f'{lc}:\ns_mov_b32 s{SV}, 0'); s.warm('L_C', 'L_wC'); s(f's_branch {lw}')
            s(f'{ld}:\ns_mov_b32 s{SV}, 0'); s.warm('L_D', 'L_wD')
            s(f'{lw}:\ns_mov_b32 s{SV}, 9')
        s.balance5()
        s(f's_add_u32 s6, s6, 8192\ns_add_u32 s7, s7, 8192\nv_add_u32 v3, {2 * OS}, v3')
        s('s_barrier\ns_branch L_T0')

    def balance5(s):
        o = s.o; p0 = 3 * o['NPF']
        a = s.lab('bal'); e = s.lab('balE'); c = s.lab('nox'); d = s.lab('nost')
        V = 100
        s(f'v_mov_b32 v{V+1}, 0\ns_mov_b32 s11, 4096\ns_lshl_b32 s72, s{S_X}, 7\ns_add_u32 s72, s72, {W_PG}\ns_mov_b32 s75, {o["stat1"]}')
        s(f's_cmp_lt_u32 s{S_IDX}, {o["n1"]}\ns_cselect_b32 s78, {o["cstep"]}, {o["cstep2"]}\ns_cselect_b32 s79, {o["bdel"]}, {o["bdel2"]}')
        s(f's_cselect_b32 s74, 0, {o["n1"] * (o["cstep"] - o["cstep2"])}\ns_add_u32 s74, s74, {p0 + o["c0"]}')
        s(f's_lshl_b32 s5, s{S_IDX}, 3\ns_add_u32 s5, s5, s{S_X}\ns_mul_i32 s5, s5, s78\ns_lshr_b32 s5, s5, 3\ns_add_u32 s74, s74, s5\ns_add_u32 s79, s79, s{TAG}')
        s(f'v_and_b32 v{V}, 31, v0\nv_lshlrev_b32 v{V}, 2, v{V}')
        s(f's_lshl_b32 s73, s{S_X}, 12\ns_add_u32 s73, s73, {W_GL}\ns_mov_b32 s10, {W_GL}\nv_and_b32 v{V+5}, 7, v0\nv_cmp_eq_u32 s[76:77], s{S_X}, v{V+5}\nv_lshlrev_b32 v{V+5}, 12, v{V+5}\nv_mov_b32 v{V+6}, {p0}')
        s(f'v_xor_b32 v{V+4}, 4096, v{V+5}\nv_cndmask_b32_e64 v{V+5}, v{V+5}, v{V+4}, s[76:77]')
        s(f's_and_b32 s8, s{S_ROLE}, 1\ns_mul_i32 s8, s8, {o["bonus"]}\ns_sub_u32 s8, s{TAG}, s8')
        s(f'{a}:\nbuffer_load_dword v{V+3}, v{V+1}, {WSR}, s72 offen sc1\ns_waitcnt vmcnt(0)\nds_read_b32 v{V+2}, v{V+1} offset:{LPRG}')
        s(f'v_subrev_u32 v{V+3}, s8, v{V+3}\nds_write_b32 v{V+1}, v{V+3} offset:{LMODE}\ns_waitcnt lgkmcnt(0)\nv_readfirstlane_b32 s9, v{V+2}')
        s(f's_cmp_ge_u32 s9, s75\ns_cbranch_scc0 {d}\ns_mov_b32 s75, 999')
        s('s_mov_b32 s5, 3'); s.stats()
        s(f's_branch {a}\n{d}:')
        s(f's_cmp_ge_u32 s9, {o["bend"]}\ns_cbranch_scc1 {e}')
        s(f's_cmp_ge_u32 s9, s74\ns_cbranch_scc0 {c}')
        s(f's_mov_b32 s74, 999\nv_add_u32 v{V+3}, s{TAG}, v{V+2}\nbuffer_load_dword v{V+4}, v{V+5}, {WSR}, s10 offen sc1\nbuffer_store_dword v{V+3}, v{V}, {WSR}, s73 offen sc1\ns_waitcnt vmcnt(1)')
        s(f'v_subrev_u32 v{V+4}, s{TAG}, v{V+4}\nv_cmp_lt_u32 vcc, 192, v{V+4}\nv_cndmask_b32 v{V+4}, v{V+4}, v{V+6}, vcc')
        s(f'v_subrev_u32 v{V+2}, s78, v{V+2}\nv_cndmask_b32_e64 v{V+4}, v{V+4}, v{V+2}, s[76:77]')
        for ctl in ('quad_perm:[1,0,3,2]', 'quad_perm:[2,3,0,1]', 'row_half_mirror'): s.dppop('v_add_u32', V + 4, ctl)
        s(f'v_lshrrev_b32 v{V+4}, 3, v{V+4}\nv_add_u32 v{V+4}, s79, v{V+4}\nbuffer_store_dword v{V+4}, v{V}, {WSR}, s72 offen')
        s(f'{c}:\ns_sleep {o["bslp"]}\ns_sub_u32 s11, s11, 1\ns_cbranch_scc0 {a}')
        s('s_mov_b32 s5, 3'); s.stats()
        s(f'{e}:')

    def bstage(s, t0, t1, F):
        o = s.o; l = s.lab('dma')
        s.srd(RA, P_WO, 6144 * 1280)
        s.swz(1280)
        s(f's_lshr_b32 s5, s{S_H}, 1\ns_mul_i32 s5, s5, {192*1280}\ns_and_b32 s4, s{S_H}, 1\ns_mul_i32 s4, s4, 5\ns_add_u32 s4, s4, s{S_J}\ns_lshl_b32 s4, s4, 7')
        s(f's_add_u32 s5, s5, s4\ns_add_u32 s5, s5, {8 * 1280 * t0 + (15*192*1280 if t0 >= 24 else 0)}')
        s(f's_mov_b32 s4, {LB + 1024 * t0}\n{l}:')
        for t in range(2):
            s(f's_mov_b32 m0, s4\ns_waitcnt vmcnt({F - 1})\nbuffer_load_dwordx4 v{3 if t else 1}, {RAR}, s5 offen {o["wflag"]} lds')
            s(f's_add_u32 s5, s5, {8 * 1280}\ns_add_u32 s4, s4, 1024')
        if t0 < 24 < t1: s(f's_cmp_eq_u32 s4, {LB + 24576}\ns_cselect_b32 s6, {15*192*1280}, 0\ns_add_u32 s5, s5, s6')
        s(f's_cmp_lt_u32 s4, {LB + 1024 * t1}\ns_cbranch_scc1 {l}')

    def stage(s, half):
        o = s.o
        ld = s.lab('stD'); lc = s.lab('stC'); le = s.lab('stE')
        def part(n): return (0, n) if half is None else ((0, n // 4 * 2) if half == 0 else (n // 4 * 2, n))
        FF = lambda k: o['upF'] if half is None else o[k]
        s.role(0, ld, False)
        E = 0 if half is None else o['bE']; t0, t1 = part(48 - E)
        s.bstage(E + t0, E + t1, min(FF('bF'), 60))
        s(f's_branch {le}\n{ld}:')
        s.role(3, lc, False)
        W = o['dW']; t0, t1 = part(8 * (12 - W))
        s.srd(RA, P_D, 1536 * 1280); s.rows(1, 2, 2, 1280)
        s(f's_lshl_b32 s4, s{S_DT}, 6\ns_add_u32 s4, s4, {(8 * W + t0) * 16 * 1280}')
        s(s.dma(t1 - t0, 1, RA, 4, 16 * 1280, LBIG + 1024 * (8 * W + t0), FF('dF')))
        s(f's_branch {le}\n{lc}:')
        s.role(1, le, False)
        E = o['cE']; t0, t1 = part(8 * E)
        s.caddr()
        s(f's_add_u32 s5, s5, {(80 - 8 * E + t0) * 8 * 3072}')
        s(s.cdma(t1 - t0, lambda t: f's_mov_b32 m0, {LBIG + 1024 * (80 - 8 * E + t0 + t)}', FF('cF')))
        s(f'{le}:')
        if half is not None: s('s_waitcnt vmcnt(0)')

    def s2(s):
        s.cur = 'r'
        o = s.o
        s('s_getreg_b32 s4, hwreg(HW_REG_XCC_ID)')
        s(f'v_and_b32 v1, 31, v0\nv_lshlrev_b32 v1, 3, v1\ns_lshl_b32 s5, s{S_X}, 8\ns_add_u32 s5, s5, {W_XC}\ns_lshl3_add_u32 s6, s{S_IDX}, s5')
        s.tagwait()
        s(f'v_mov_b32 v2, s4\nv_mov_b32 v3, s{TAG}\ns_mov_b64 exec, 1')
        if o['xab']: s(f's_add_u32 s7, s6, {W_XL - W_XC}\nbuffer_store_dwordx2 v[2:3], v1, {WSR}, s7 offen')
        if 'X' not in o['nox']: s(f'buffer_store_dwordx2 v[2:3], v1, {WSR}, s6 offen sc1')
        s('s_mov_b64 exec, -1')
        s.idpoll(o['pslp'])
        s(f'v_xor_b32 v4, s4, v4\nv_or_b32 v4, v4, v6\nv_cmp_ne_u32 vcc, 0, v4\ns_cmp_eq_u64 vcc, 0\ns_addc_u32 s4, s{TAG}, 0')
        if not o['loc']: s(f's_mov_b32 s4, s{TAG}')
        s(f'v_mov_b32 v4, s4\nv_mov_b32 v5, {LFLAG}\nds_write_b32 v5, v4\nv_mov_b32 v4, 0\nds_write_b32 v4, v4 offset:{LPRG}\nds_write_b32 v4, v4 offset:{LCNT}\nds_write_b32 v4, v4 offset:{LCNT+4}\nds_write_b32 v4, v4 offset:{LCNT+8}\nv_mov_b32 v5, 999\nds_write_b32 v4, v5 offset:{LMODE}\ns_waitcnt lgkmcnt(0)')
        s.stamp(2)
        if o['bE']:
            l = s.lab('noBe'); s.role(0, l, False); s.bstage(0, o['bE'], o['bEF']); s(f'{l}:')
        s('s_barrier')
        if not o['up']: s.stage(0)
        s.stamp(1)
        s.role(1, 'L_LN0')
        s.role(0, 'L_s23', False)
        s.warm('L_R', 'L_wR')
        s('L_R0:')
        s.waitprog(72, 1)
        s.getloc(1, spin=False)
        s.srd(RA, P_X, 2560)
        s(f'v_and_b32 v1, 15, v0\nv_lshlrev_b32 v2, 1, v1\ns_lshl_b32 s5, s{S_CS}, 5')
        s(f'buffer_load_ushort v4, v2, {RAR}, s5 offen\nbuffer_load_ushort v5, v2, {RAR}, s5 offen offset:1280')
        s(f'v_lshlrev_b32 v2, 3, v1\ns_lshl_b32 s5, s{S_CS}, 7\ns_add_u32 s6, s5, {W_MOD + 1280*8}')
        s.poll([f'buffer_load_dwordx2 v[6:7], v2, {WSR}, s6 offen sc1'], s.ck_tag([[7]], 8), slp=o['mlslp'])
        s('v_lshlrev_b32 v4, 16, v4\nv_lshlrev_b32 v5, 16, v5\nv_and_b32 v7, 0xffff0000, v6\nv_lshlrev_b32 v6, 16, v6')
        s(f's_add_u32 s5, s5, {W_X1}\nv_mov_b32 v9, s{TAG}\ns_lshl_b32 s6, s{S_X}, 13\ns_add_u32 s5, s5, s6')
        s.rows(3, 8, 4, 10240)
        s(f's_lshl_b32 s64, s{S_CS}, 8\ns_add_u32 s64, s64, {W_Y}')
        s(f's_sub_u32 s64, s64, {W_Y - W_YL}\ns_sub_u32 s6, 1, s{LOC}\ns_mul_i32 s6, s6, {W_Y - W_YL}\nv_mov_b32 v12, s6\nv_mov_b32 v13, {W_Y - W_YL}\nv_lshrrev_b32 v14, 5, v0')
        for k in range(4):
            s(f'v_add_u32 v15, {2*k}, v14\nv_cmp_eq_u32 vcc, s{S_X}, v15\nv_cndmask_b32 v15, v13, v12, vcc\nv_add_u32 v15, {40960*k}, v15\nv_add_u32 v{32+k}, v15, v3')
        s('s_barrier\ns_barrier\ns_barrier')
        s('L_R:')
        s.stamp(4)
        Y = 16
        ck, t = s.ck_xor([Y + 4 * k for k in range(4)], 2, 12, 13)
        for k in range(1, 4): ck[k] += f'\nv_pk_add_f32 v[10:11], {P(Y) if k == 1 else "v[10:11]"}, {P(Y+4*k)}'
        s.poll([f'buffer_load_dwordx3 v[{Y+4*k}:{Y+4*k+2}], v{32+k}, {WSR}, s64 offen sc1' for k in range(4)], (ck, t), warmable=True)
        s.stamp(5)
        for w in (16, 32):
            s(f'v_mov_b32 v14, v10\nv_mov_b32 v15, v11\nv_permlane{w}_swap_b32 v10, v14\nv_permlane{w}_swap_b32 v11, v15\nv_pk_add_f32 v[10:11], v[10:11], v[14:15]')
        s(f'v_pk_fma_f32 v[10:11], v[10:11], v[6:7], v[4:5]\nv_cvt_pk_bf16_f32 v8, v10, v11')
        s.warmret('L_wR')
        s('s_mov_b64 exec, 0xffff')
        s.gstore([f'buffer_store_dwordx2 v[8:9], v2, {WSR}, s5 offen'])
        s.stamp(6)
        s.end()

    def s3(s):
        s.cur = 'l'
        o = s.o
        if not o['upe']: s.tagwait()
        if o['up']:
            if o['qfirst']: s.ldswait(LGO, 3)
            s.stage(None)
            if o['upe']: s.tagwait()
            if o['sep']: s(f's_waitcnt vmcnt({o["sep"]})\nv_mov_b32 v3, {LGO}\nv_mov_b32 v4, s{TAG}\nds_write_b32 v3, v4')
        s.ldswait(LQF, 3, o['pslp'])
        s('v_lshlrev_b32 v2, 4, v0\ns_branch L_Qg\nL_s3b:')
        if not o['up']: s.stage(1)
        s.stamp(1)
        s.role(0, 'L_R0')
        s.role(1, 'L_s23', False)
        s.warm('L_LN', 'L_wLN')
        s('L_LN0:')
        s.waitprog(72, 1)
        C1, SB, X = 8, 28, 48
        s(f'v_lshlrev_b32 v1, 4, v0\ns_and_b32 s8, s3, 1\ns_mul_i32 s11, s8, 0x02020000\ns_add_u32 s11, s11, 0x01000c0c')
        s(f's_mov_b32 s4, {W_MOD + 3*5120}\ns_mov_b32 s5, {W_MOD + 3*5120 + 4096}\ns_mov_b32 s6, {W_MOD + 4*5120}\ns_mov_b32 s7, {W_MOD + 4*5120 + 4096}')
        def ld5(base, sa): return [f'buffer_load_dwordx4 {Q4(base+4*u)}, v1, {WSR}, s{sa + (u >> 2)} offen offset:{1024*(u & 3)} sc1' for u in range(5)]
        pick = lambda r: f'v_perm_b32 v{r}, v{r}, v{r}, s11\nv_perm_b32 v{r+1}, v{r+2}, v{r+2}, s11'
        s.poll(ld5(C1, 6) + ld5(SB, 4), s.ck_tag([[C1 + 1 + 4 * k, C1 + 3 + 4 * k] for k in range(10)], 4), slp=o['mlslp'])
        for k in range(10): s(pick(C1 + 4 * k))
        for u in range(5):
            for e in range(2): s(f'v_add_f32 v{C1+4*u+e}, 1.0, v{C1+4*u+e}'); s.bf16r(C1 + 4 * u + e)
        s(f's_lshl_b32 s4, s{S_X}, 13\ns_add_u32 s4, s4, {W_X1}\ns_add_u32 s5, s4, 4096')
        s(f's_mul_i32 s8, s8, {HS}\ns_add_u32 s8, s8, {LH2}\nv_lshl_add_u32 v2, v0, 2, s8')
        s(f's_mov_b32 s10, {hx(1/640)}\nv_mov_b32 v68, {hx(1e-5)}')
        s('s_barrier\ns_barrier\ns_barrier')
        s('L_LN:')
        s.stamp(4)
        ck, t = s.ck_tag([[X + 1 + 4 * u, X + 3 + 4 * u] for u in range(5)], 70)
        for u in range(5):
            r = X + 4 * u
            ck[u] += '\n' + pick(r)
            if u == 0: ck[u] += f'\nv_readlane_b32 s8, v{X}, 0'
            ck[u] += f'\nv_pk_add_f32 {P(r)}, {P(r)}, s[8:9] op_sel_hi:[1,0] neg_lo:[0,1] neg_hi:[0,1]'
            if u == 0: ck[u] += f'\nv_pk_mul_f32 v[6:7], {P(r)}, {P(r)}'
            else: ck[u] += f'\nv_pk_add_f32 v[4:5], {P(X) if u == 1 else "v[4:5]"}, {P(r)}\nv_pk_fma_f32 v[6:7], {P(r)}, {P(r)}, v[6:7]'
        s.poll(ld5(X, 4), (ck, t), warmable=True)
        s.stamp(5)
        fill = [f'v_pk_mul_f32 {P(X+4*u)}, {P(X+4*u)}, {P(C1+4*u)}' for u in range(5)]
        s('v_add_f32 v4, v4, v5\nv_add_f32 v6, v6, v7'); s(fill.pop(0))
        s('v_permlane32_swap_b32 v4, v6\nv_add_f32 v4, v4, v6')
        s.red16('v_add_f32', [4], fill=fill); s.swapred('v_add_f32', 4, 5, 16)
        s('v_mul_f32 v4, s10, v4\nv_mov_b32 v6, v4\nv_permlane32_swap_b32 v4, v6')
        s('v_fma_f32 v6, -v4, v4, v6\nv_max_f32 v6, 0, v6\nv_add_f32 v6, v6, v68\nv_rsq_f32 v6, v6')
        for u in range(5): s(f'v_pk_fma_f32 {P(X+4*u)}, {P(C1+4*u)}, v[4:5], {P(X+4*u)} op_sel_hi:[1,0,1] neg_lo:[0,1,0] neg_hi:[0,1,0]')
        for u in range(5):
            r = X + 4 * u
            s(f'v_pk_fma_f32 {P(r)}, {P(r)}, v[6:7], {P(SB+4*u)} op_sel_hi:[1,0,1]\nv_cvt_pk_bf16_f32 v{r}, v{r}, v{r+1}')
            if u & 1: s(f'ds_write2st64_b32 v2, v{r-4}, v{r} offset0:{u-1} offset1:{u}')
        s(f'ds_write_b32 v2, v{X+16} offset:1024')
        s.warmret('L_wLN')
        s('s_waitcnt lgkmcnt(0)')
        s.stamp(3)
        s('s_barrier')
        s.end()
        s('L_s23:')
        s.role(3, 'L_exit', False)
        s('s_barrier\ns_branch L_D')
        s.end()

    def ldswait(s, at, v, slp=1):
        l = s.lab('lw')
        s(f'v_mov_b32 v{v}, {at}\ns_mov_b32 s{SPIN}, {s.o["spin"]}\n{l}:\ns_sleep {slp}\nds_read_b32 v{v+1}, v{v}\ns_sub_u32 s{SPIN}, s{SPIN}, 1\ns_waitcnt lgkmcnt(0)')
        s(f'v_readfirstlane_b32 s10, v{v+1}\ns_cselect_b32 s10, s{TAG}, s10\ns_cmp_eq_u32 s10, s{TAG}\ns_cbranch_scc0 {l}')
    def waitprog(s, n, v, slp=None):
        l = s.lab('prog')
        s(f'v_mov_b32 v{v}, 0\ns_mov_b32 s{SPIN}, {s.o["spin"]}\n{l}:\ns_sleep {slp or s.o["mlslp"]}\nds_read_b32 v{v+1}, v{v} offset:{LPRG}\ns_sub_u32 s{SPIN}, s{SPIN}, 1\ns_waitcnt lgkmcnt(0)')
        s(f'v_readfirstlane_b32 s4, v{v+1}\ns_cselect_b32 s4, 999, s4\ns_cmp_lt_u32 s4, {n}\ns_cbranch_scc1 {l}')
    def idpoll(s, slp):
        l = s.lab('gotid')
        if s.o['xab']:
            s(f's_add_u32 s7, s5, {W_XL - W_XC}')
            s.poll([f'buffer_load_dwordx2 v[4:5], v1, {WSR}, s7 offen sc1'], s.ck_tag([[5]], 6), slp=slp, spin=s.o['xab'])
            s(f's_cbranch_vccz {l}')
        s.poll([f'buffer_load_dwordx2 v[4:5], v1, {WSR}, s5 offen sc1'], s.ck_tag([[5]], 6), slp=slp)
        s(f'{l}:')

    def caddr(s):
        s(f's_bitcmp1_b32 s{S_CS}, 0\ns_cselect_b64 s[{RA}:{RA+1}], s[{P_U}:{P_U+1}], s[{P_G}:{P_G+1}]\ns_mov_b32 s{RA+2}, {640 * 3072}\ns_mov_b32 s{RA+3}, 0x20000')
        s.swz(3072)
        s(f's_lshr_b32 s5, s{S_CS}, 1\ns_lshl_b32 s5, s5, 7')
    def swz(s, stride):
        s(f'v_lshrrev_b32 v2, 3, v0\nv_mul_u32_u24 v1, {stride}, v2\nv_and_b32 v2, 2, v2\nv_and_b32 v3, 7, v0\nv_xor_b32 v2, v2, v3\nv_xor_b32 v3, 4, v2')
        s('v_lshl_add_u32 v3, v3, 4, v1\nv_lshl_add_u32 v1, v2, 4, v1')
    def cdma(s, n, lds, F):
        out = []
        for t in range(n):
            out.append(lds(t))
            if F < 60: out.append(f's_waitcnt vmcnt({F - 1})')
            out.append(f'buffer_load_dwordx4 v{3 if t & 1 else 1}, {RAR}, s5 offen {s.o["wflag"]} lds')
            if t < n - 1: out.append(f's_add_u32 s5, s5, {8 * 3072}')
        return '\n'.join(out)

    def crole(s):
        s.cur = 'c'
        o = s.o; E = o['cE']; n = 2 * (10 - E)
        s(f'L_C:\ns_cmp_lt_u32 s{SV}, 4\ns_cbranch_scc0 L_exit')
        BW, A, D = 88, 8, 72
        s.caddr()
        s(f's_mul_i32 s4, s{SV}, {n}\ns_mul_i32 s6, s4, {8 * 3072}\ns_add_u32 s5, s5, s6\ns_lshl_b32 s4, s4, 10\ns_add_u32 s4, s4, {LBIG}')
        s.live('s_barrier\n' + s.cdma(n, lambda t: f's_add_u32 m0, s4, {1024 * t}', 63))
        s.tr_lane(2, 3, 1024, 128)
        s(f'v_bfe_u32 v3, v0, 3, 2\nv_xor_b32 v3, s{SV}, v3\nv_lshl_add_u32 v2, v3, 5, v2\nv_add_u32 v2, {LBIG}, v2\nv_add_u32 v5, 40960, v2')
        s.a_lane(3, 4, HS, 16, LH2)
        s(f's_and_b32 s4, s{S_CS}, 1\ns_mul_i32 s6, s4, 12288\ns_lshr_b32 s5, s{S_CS}, 1\ns_lshl2_add_u32 s5, s5, s{SV}\ns_lshl_b32 s5, s5, 7\ns_add_u32 s6, s6, s5\ns_add_u32 s6, s6, {W_ACT}')
        s(f'v_lshlrev_b32 v1, 3, v0\ns_mov_b32 s7, {hx(-LOG2E)}\nv_mov_b32 v77, s{TAG}')
        s('s_waitcnt vmcnt(0)')
        s.stamp(3)
        s.live('s_barrier')
        for T in range(20):
            for hi in range(2): s(f'ds_read_b64_tr_b16 {P(BW + 4*T + 2*hi)}, v{2 if T < 10 else 5} offset:{4096*(T % 10) + 512*hi}')
        s('s_waitcnt lgkmcnt(0)'); s.live('s_barrier')
        s.stamp(5)
        for T in range(15): s(f'ds_read_b128 {Q4(A+4*T)}, v3 offset:{64*T}')
        for T in range(20):
            s(f's_waitcnt lgkmcnt({min(14, 19 - T)})')
            s.mfma(D, A + 4 * (T % 15), BW + 4 * T, T == 0)
            if T < 5: s(f'ds_read_b128 {Q4(A+4*T)}, v3 offset:{64*(T+15)}')
        l = s.lab('up')
        s(f's_cmp_eq_u32 s4, 1\ns_cbranch_scc1 {l}')
        for op in (f'v_mul_f32 v{{t}}, s7, v{{d}}', 'v_exp_f32 v{t}, v{t}', 'v_add_f32 v{t}, 1.0, v{t}', 'v_rcp_f32 v{t}, v{t}', 'v_mul_f32 v{d}, v{d}, v{t}'):
            for b in range(2): s(op.format(t=D + 2 + b, d=D + b))
        s(f'{l}:\nv_cvt_pk_bf16_f32 v76, v{D}, v{D+1}')
        s.warmret('L_wC')
        s(f's_mov_b64 exec, 0xffff\nbuffer_store_dwordx2 v[76:77], v1, {WSR}, s6 offen sc1')
        s(f's_add_u32 s6, s6, {W_AL - W_ACT}\nbuffer_store_dwordx2 v[76:77], v1, {WSR}, s6 offen')
        s.stamp(6)
        s.end()

    def drole(s):
        s.cur = 'd'
        o = s.o
        s('L_D:')
        BW, A, D = 40, 72, 88
        s(f's_lshl_b32 s4, s{SV}, 13\ns_add_u32 s4, s4, {LBIG}')
        s.srd(RA, P_D, 1536 * 1280); s.srd(RB, P_OUT, 2560); s.rows(1, 2, 2, 1280)
        s(f's_mul_i32 s5, s{SV}, {128 * 1280}\ns_lshl_b32 s6, s{S_DT}, 6\ns_add_u32 s5, s5, s6')
        l = s.lab('have')
        s.live(f's_barrier\ns_cmp_ge_u32 s{SV}, {o["dW"]}\ns_cbranch_scc1 {l}\n' + s.dma(8, 1, RA, 5, 16 * 1280, lambda t: f's_add_u32 m0, s4, {1024 * t}', 63) + f'\n{l}:')
        s.tr_lane(2, 3, 512, 64)
        s('v_add_u32 v2, s4, v2\ns_waitcnt vmcnt(0)')
        s.stamp(3)
        for tt in range(2):
            for T in range(4):
                for hi in range(2): s(f'ds_read_b64_tr_b16 {P(BW + 16*tt + 4*T + 2*hi)}, v2 offset:{2048*T + 256*hi + 32*tt}')
        s(f's_lshl_b32 s4, s{SV}, 9\ns_add_u32 s4, s4, {LACT}\nv_lshl_add_u32 v2, v0, 2, s4')
        s.a_lane(3, 4, 256, 16, 0); s('v_add_u32 v3, s4, v3')
        s(f'v_and_b32 v4, 31, v0\nv_mul_u32_u24 v4, 96, v4\ns_lshl_b32 s4, s{SV}, 2\ns_add_u32 s4, s4, {LDP}\nv_add_u32 v4, s4, v4')
        s(f'v_lshlrev_b32 v1, 4, v0\ns_lshl_b32 s5, s{SV}, 10\ns_add_u32 s5, s5, {W_ACT}')
        s('s_add_u32 s6, s5, 12288')
        if True:
            s(f'v_mov_b32 v5, {LFLAG}\nds_read_b32 v6, v5\ns_lshl_b32 s7, s{SV}, 1\ns_mul_i32 s8, s{S_X}, 3\ns_sub_u32 s7, s7, s8\nv_lshrrev_b32 v5, 5, v0\nv_add_u32 v5, s7, v5\nv_cmp_gt_u32 vcc, 3, v5')
            s(f's_waitcnt lgkmcnt(0)\nv_subrev_u32 v6, s{TAG}, v6\nv_mul_u32_u24 v6, {W_AL - W_ACT}, v6\nv_cndmask_b32 v5, 0, v6, vcc\nv_add_u32 v1, v1, v5')
        s(f'v_and_b32 v5, 31, v0\nv_lshlrev_b32 v6, 3, v5\nv_lshrrev_b32 v7, 5, v0')
        lf = s.lab('nofin')
        s(f's_cmp_eq_u32 s{SV}, 0\ns_cbranch_scc0 {lf}')
        s(f's_lshl_b32 s8, s{S_DT}, 8\ns_add_u32 s9, s8, {W_MOD + 5*5120}\ns_add_u32 s8, s8, {W_X1}')
        s(f's_lshl_b32 s10, s{S_X}, 13\ns_add_u32 s8, s8, s10')
        s.poll([f'buffer_load_dwordx2 v[10:11], v6, {WSR}, s9 offen sc1', f'buffer_load_dwordx2 v[8:9], v6, {WSR}, s8 offen sc1'], s.ck_tag([[11], [9]], 12), slp=o['pslp'], warmable=True)
        s('v_lshlrev_b32 v9, 4, v7\nv_lshrrev_b32 v8, v9, v8\nv_lshlrev_b32 v8, 16, v8\nv_lshrrev_b32 v10, v9, v10\nv_lshlrev_b32 v10, 16, v10')
        s(f'{lf}:')
        s(f'v_lshl_add_u32 v6, v5, 1, v7\nv_mul_u32_u24 v6, 48, v6\nv_add_u32 v6, {LDP}, v6')
        s(f'v_mul_u32_u24 v7, 1280, v7\nv_lshl_add_u32 v5, v5, 1, v7\ns_lshl_b32 s8, s{S_DT}, 6')
        s.live('s_barrier')
        ck, t = s.ck_tag([[17, 19], [21, 23]], 12)
        for k in range(2):
            for r in (16 + 4 * k, 18 + 4 * k): ck[k] += f'\nv_and_b32 v{r+1}, 0xffff0000, v{r}\nv_lshlrev_b32 v{r}, 16, v{r}'
        s.poll([f'buffer_load_dwordx4 {Q4(16+4*k)}, v1, {WSR}, s{5+k} offen sc1' for k in range(2)], (ck, t), warmable=True)
        s.stamp(5)
        s('v_pk_mul_f32 v[16:17], v[16:17], v[20:21]\nv_pk_mul_f32 v[18:19], v[18:19], v[22:23]\nv_cvt_pk_bf16_f32 v16, v16, v18\nv_cvt_pk_bf16_f32 v17, v17, v19')
        s('ds_write2st64_b32 v2, v16, v17 offset0:0 offset1:1\ns_waitcnt lgkmcnt(0)')
        for T in range(4): s(f'ds_read_b128 {Q4(A+4*T)}, v3 offset:{64*T}')
        for T in range(4):
            s(f's_waitcnt lgkmcnt({3-T})')
            for tt in range(2): s.mfma(D + 4 * tt, A + 4 * T, BW + 16 * tt + 4 * T, T == 0)
        for b in range(2): s(f'v_mov_b32_dpp v{D+b}, v{D+4+b} quad_perm:[0,1,2,3] row_mask:0xa bank_mask:0xf')
        s(f'ds_write2_b32 v4, v{D}, v{D+1} offset0:0 offset1:12\ns_waitcnt lgkmcnt(0)'); s.stamp(1); s.live('s_barrier'); s.stamp(2)
        s(f's_cmp_eq_u32 s{SV}, 0\ns_cbranch_scc0 L_exit')
        for k in range(3): s(f'ds_read_b128 {Q4(16+4*k)}, v6 offset:{16*k}')
        s('s_waitcnt lgkmcnt(1)\nv_pk_add_f32 v[16:17], v[16:17], v[18:19]\nv_pk_add_f32 v[20:21], v[20:21], v[22:23]\nv_pk_add_f32 v[16:17], v[16:17], v[20:21]')
        s('s_waitcnt lgkmcnt(0)\nv_pk_add_f32 v[24:25], v[24:25], v[26:27]\nv_pk_add_f32 v[16:17], v[16:17], v[24:25]\nv_add_f32 v16, v16, v17')
        s('v_fma_f32 v16, v16, v10, v8\nv_mov_b32_dpp v17, v16 quad_perm:[1,1,3,3] row_mask:0xf bank_mask:0xf\nv_cvt_pk_bf16_f32 v16, v16, v17')
        s.warmret('L_wD')
        s(f's_mov_b32 exec_lo, 0x55555555\ns_mov_b32 exec_hi, 0x55555555\nbuffer_store_dword v16, v5, {RBR}, s8 offen {o["oflag"]}')
        s.stamp(6)
        s(f's_cmp_eq_u32 s{S_DT}, 0\ns_cbranch_scc0 L_exit')
        s(f's_mov_b64 exec, 1\nv_mov_b32 v17, s{TAG}\nv_mov_b32 v18, 0\nbuffer_store_dword v17, v18, {WSR}, 0 offen {o["oflag"]}')
        if o['diag']:
            s(f'L_diag:\ns_memrealtime s[76:77]\ns_waitcnt lgkmcnt(0)\ns_sub_u32 s76, s76, s78\ns_cmp_lt_u32 s76, {o["diag"]}\ns_cbranch_scc1 L_diag')

    def exit(s):
        s('L_exit:')
        if s.o['stamps']:
            s('s_waitcnt vmcnt(0)')
            s.stamp(7, True)
            if s.o['stamps'] == 3: s(f's_memtime s[{ST0+12}:{ST0+13}]')
            s('s_mov_b64 exec, 1\ns_waitcnt lgkmcnt(0)')
            s(f's_mul_i32 s4, s2, 12\ns_add_u32 s4, s4, s3\ns_lshl_b32 s4, s4, 6\ns_add_u32 s4, s4, {W_STAMP}\nv_mov_b32 v1, 0')
            for k in range(4):
                for e in range(4): s(f'v_mov_b32 v{4+4*k+e}, s{ST0+4*k+e}')
                s(f'buffer_store_dwordx4 {Q4(4+4*k)}, v1, {WSR}, s4 offen offset:{16*k}')
        s('L_end:\ns_endpgm')

    def build(s):
        s.entry(); s.stream()
        s('L_service:')
        s.roles()
        s('s_cmp_eq_u32 s3, 9\ns_cbranch_scc1 L_s1\ns_cmp_eq_u32 s3, 10\ns_cbranch_scc1 L_s2\ns_cmp_eq_u32 s3, 11\ns_cbranch_scc1 L_s3')
        s.s0(); s.bgather(); s('L_s1:'); s.s1(); s('L_s2:'); s.s2(); s('L_s3:'); s.s3(); s.crole(); s.drole(); s.exit()
        body, n = pad(s.L)
        out = [f'; @launch grid=(256,1,1) block=(768,1,1) lds={LEND}', '.amdgcn_target "amdgcn-amd-amdhsa--gfx950"', '.text',
               f'.globl {KN}', '.p2align 8', f'.type {KN},@function', f'{KN}:']
        out += [l if l.endswith(':') else '    ' + l for l in body]
        out += ['.section .rodata,"a"', '.p2align 6', f'.amdhsa_kernel {KN}', '  .amdhsa_next_free_vgpr 168', '  .amdhsa_next_free_sgpr 96',
                '  .amdhsa_accum_offset 168', '  .amdhsa_group_segment_fixed_size 0', '  .amdhsa_kernarg_size 112', '  .amdhsa_user_sgpr_count 2',
                '  .amdhsa_user_sgpr_kernarg_segment_ptr 1', '  .amdhsa_system_sgpr_workgroup_id_x 1', '  .amdhsa_float_denorm_mode_32 3', '.end_amdhsa_kernel']
        return '\n'.join(out) + '\n', n

if __name__ == '__main__':
    names = []
    for spec in sys.argv[1:]:
        kw = {}
        name, _, rest = spec.partition(':')
        for kv in filter(None, rest.split(',')):
            k, v = kv.split('=')
            kw[k] = int(v) if v.isdigit() else v.replace('+', ' ').replace('_', '')
        t, n = G(**kw).build()
        open(name, 'w').write(t)
        names.append(name)
    print(' '.join(names))
```

```python
import sys, struct
from asmlib import pad
KN = 'adaLN_cond__gqa_block_cached__swiglu_ffn__decode_kernel'

def f2u(x): return struct.unpack('<I', struct.pack('<f', x))[0]
def hx(x): return hex(f2u(x))
LOG2E = 1.4426950408889634
W_E, W_PG, W_MOD, W_XL, W_XC, W_ACT = 0, 0x800, 0x1000, 0x2000, 0x9000, 0xA000
W_X1, W_GL, W_AL, W_YL, W_Y, W_ATT, W_ML, W_MP, W_QP, W_END = 0x10000, 0x20000, 0x28000, 0x30000, 0x58000, 0x80000, 0x180000, 0x1A0000, 0x1E0000, 0x260000
W_STAMP = 512 << 20
LQ, LFLAG, LPRG, LMODE, LQF, LGO, LCNT, LXS, LHS, LO, LH2, LPO, LBIG = 0, 1536, 1544, 1552, 1556, 1560, 1568, 1664, 2304, 2816, 6144, 9216, 58368
LYO = LXS
LACT, LDP = LPO, LPO + 6144
OS = 768 + 64
HS = 1280 + 64
LM, LWQ, LB, LEND = LBIG, LBIG + 20480, LBIG + 51200, LBIG + 100352
P_X, P_K, P_V, P_WQ, P_WO, P_BX, P_G, P_U, P_D, P_C, P_WM, P_OUT, P_DBG, P_WS = range(16, 44, 2)
TAG, S_H, S_J, S_R, S_X, S_IDX, LOC, S_CS = 44, 45, 46, 47, 48, 49, 50, 51
WS = 52; RA = 56; RB = 60
S_ROLE = 15
S_DT = 14
SPIN = 13
SV = 12
ST0 = 80
WSR = f's[{WS}:{WS+3}]'; RAR = f's[{RA}:{RA+3}]'; RBR = f's[{RB}:{RB+3}]'
P = lambda r: f'v[{r}:{r+1}]'
Q4 = lambda r: f'v[{r}:{r+3}]'

class G:
    def __init__(s, **o):
        s.o = dict(F=3, NPF=12, RC=3, endF=5, endN=9, rot=6, wflag='nt', sflag='nt', spin=1 << 22, pslp=8, mlslp=32,
                   qF=63, mF=63, bF=1, cF=1, dF=1, cE=3, dE=3, bE=0, bEF=2, bonus=1, ord='2301', up=1, upF=63, F0=3, N0=0, upe=0, qfirst=1, mfirst=1, shift=0, rown=1, pfy=0, pfa=0, rg=4, dg=1, rmiss=0, otouch=0, eg0=16, st0=112, qlight=0, glight=0, gmap=1, sep=0, dW=9, eg=182, xab=6, oflag='', warm=1, loc=1,
                   bal=1, stat1=130, cstep=12, bdel=25, n1=7, cstep2=6, bdel2=17, c0=6, bslp=24, Flo=2, bend=180,
                   stamps=0, stk='', phst=0, remap=0, diag=0, nox='')
        s.o.update(o); s.L = []; s.uid = 0; s.cur = '?'
    def __call__(s, t):
        for l in t.split('\n'):
            l = l.strip()
            if l: s.L.append(l)
    def lab(s, n): s.uid += 1; return f'L_{n}_{s.uid}'
    def srd(s, d, ptr, size):
        s(f's_mov_b32 s{d}, s{ptr}\ns_mov_b32 s{d+1}, s{ptr+1}\ns_mov_b32 s{d+2}, {size}\ns_mov_b32 s{d+3}, 0x20000')
    def stamp(s, k, lite=False):
        if s.o['stamps'] == 1 or (s.o['stamps'] and (lite or str(k) + s.cur in s.o['stk'])): s(f's_memrealtime s[{ST0+2*k}:{ST0+2*k+1}]')
    def bf16r(s, d, src=None):
        src = d if src is None else src
        s(f'v_cvt_pk_bf16_f32 v{d}, v{src}, v{src}\nv_and_b32 v{d}, 0xffff0000, v{d}')
    def dppop(s, op, v, ctl): s(f'{op}_dpp v{v}, v{v}, v{v} {ctl} row_mask:0xf bank_mask:0xf')
    def red16(s, op, vs, skip1=False, fill=None):
        for ctl in (['quad_perm:[1,0,3,2]'] if not skip1 else []) + ['quad_perm:[2,3,0,1]', 'row_half_mirror', 'row_mirror']:
            if fill:
                for _ in range(2):
                    if fill: s(fill.pop(0))
            for v in vs: s.dppop(op, v, ctl)
    def swapred(s, op, v, t, w, fill=None):
        s(f'v_mov_b32 v{t}, v{v}')
        if fill:
            for _ in range(2):
                if fill: s(fill.pop(0))
        s(f'v_permlane{w}_swap_b32 v{v}, v{t}\n{op} v{v}, v{v}, v{t}')
    def live(s, text):
        if not s.o['warm']: s(text); return
        l = s.lab('lv'); s(f's_cbranch_execz {l}'); s(text); s(f'{l}:')
    def warm(s, entry, ret):
        if not s.o['warm']: return
        for r in range(1, 8): s(f'v_mov_b32 v{r}, 0')
        s(f's_mov_b64 exec, 0\ns_branch {entry}\n{ret}:\ns_mov_b64 exec, -1')
    def warmret(s, ret):
        if s.o['warm']: s(f's_cbranch_execz {ret}')
    def ck_tag(s, groups, t):
        out = []; first = True
        for g in groups:
            l = []
            for r in g:
                l.append(f'v_xor_b32 v{t}, s{TAG}, v{r}' if first else f'v_bitop3_b32 v{t}, v{r}, s{TAG}, v{t} bitop3:0xbe'); first = False
            out.append('\n'.join(l))
        return out, t
    def ck_xor(s, bases, n, t, t2):
        out = []
        for i, b in enumerate(bases):
            l = [f'v_bitop3_b32 v{t2}, v{b}, v{b+1}, v{b+2} bitop3:0x96']
            if n == 3: l.append(f'v_xor_b32 v{t2}, v{t2}, v{b+3}')
            l.append(f'v_xor_b32 v{t}, s{TAG}, v{t2}' if i == 0 else f'v_bitop3_b32 v{t}, v{t2}, s{TAG}, v{t} bitop3:0xbe')
            out.append('\n'.join(l))
        return out, t
    def poll(s, loads, ck, slp=0, warmable=False, nm='?', slpif=None, spin=None, pre=None):
        if nm in s.o['nox']: return
        checks, t = ck
        a = s.lab('poll'); b = s.lab('ok')
        s(f's_mov_b32 s{SPIN}, {spin or s.o["spin"]}')
        c0 = s.lab('chk')
        if pre: s('\n'.join(loads)); s(pre); s(f's_branch {c0}')
        s(f'{a}:')
        (s.live if warmable else s)('\n'.join(loads))
        if pre: s(f'{c0}:')
        for i, c in enumerate(checks): s(f's_waitcnt vmcnt({len(loads) - 1 - i})'); s(c)
        s(f'v_cmp_ne_u32 vcc, 0, v{t}\ns_cbranch_vccz {b}')
        if slpif: c = s.lab('ns'); s(f'{slpif}\ns_cbranch_scc1 {c}\ns_sleep {s.o["mlslp"]}\n{c}:')
        if slp: s(f's_sleep {slp}')
        s(f's_sub_u32 s{SPIN}, s{SPIN}, 1\ns_cbranch_scc0 {a}\n{b}:')
    def gather(s, loads, cks, sm, slp=0, nm='?'):
        if nm in s.o['nox']: return
        n = len(loads); a = s.lab('gat'); b = s.lab('ok')
        s(f's_mov_b32 s{SPIN}, {s.o["spin"]}\ns_mov_b32 s{sm}, {(1 << n) - 1}\n{a}:')
        for k in range(n):
            l = s.lab('sk'); s(f's_bitcmp1_b32 s{sm}, {k}\ns_cbranch_scc0 {l}\n{loads[k]}\n{l}:')
        s(f's_mov_b32 s{sm}, 0\ns_waitcnt vmcnt(0)')
        for k in reversed(range(n)):
            s(cks[k][0][0]); s(f'v_cmp_ne_u32 vcc, 0, v{cks[k][1]}\ns_cmp_lg_u64 vcc, 0\ns_addc_u32 s{sm}, s{sm}, s{sm}')
        s(f's_cmp_eq_u32 s{sm}, 0\ns_cbranch_scc1 {b}')
        if slp: s(f's_sleep {slp}')
        s(f's_sub_u32 s{SPIN}, s{SPIN}, 1\ns_cbranch_scc0 {a}\n{b}:')
    def gstore(s, stores, nm='?'):
        if nm in s.o['nox']: return
        a = s.lab('pl'); b = s.lab('st')
        s(f's_cmp_eq_u32 s{LOC}, 1\ns_cbranch_scc1 {a}')
        for t in stores: s(t + ' sc1')
        s(f's_branch {b}\n{a}:')
        for t in stores: s(t)
        s(f'{b}:')
    def getloc(s, t, spin=True, at=LFLAG):
        a = s.lab('loc'); b = s.lab('locok')
        if spin: s(f's_mov_b32 s{SPIN}, {s.o["spin"] * 8}\n{a}:')
        s(f'v_mov_b32 v{t}, {at}\nds_read_b32 v{t}, v{t}\ns_waitcnt lgkmcnt(0)\nv_readfirstlane_b32 s{LOC}, v{t}\ns_sub_u32 s{LOC}, s{LOC}, s{TAG}')
        if spin: s(f's_cmp_le_u32 s{LOC}, 1\ns_cbranch_scc1 {b}\ns_sleep 1\ns_sub_u32 s{SPIN}, s{SPIN}, 1\ns_cbranch_scc0 {a}\n{b}:')
    def dma(s, n, voff, srd, soff, sstep, lds, F):
        out = []
        for t in range(n):
            st = sstep(t) if callable(sstep) else sstep
            out.append(lds(t) if callable(lds) else f's_mov_b32 m0, {lds + 1024 * t}')
            if F < 60: out.append(f's_waitcnt vmcnt({F - 1})')
            out.append(f'buffer_load_dwordx4 v{voff}, s[{srd}:{srd+3}], s{soff} offen {s.o["wflag"]} lds')
            if t < n - 1: out.append(f's_add_u32 s{soff}, s{soff}, {st}')
        return '\n'.join(out)
    def rows(s, d, t, sh, stride):
        s(f'v_lshrrev_b32 v{d}, {sh}, v0\nv_mul_u32_u24 v{d}, {stride}, v{d}\nv_and_b32 v{t}, {(1 << sh) - 1}, v0\nv_lshl_add_u32 v{d}, v{t}, 4, v{d}')
    def tr_lane(s, d, t, gs, rs):
        s(f'v_lshrrev_b32 v{d}, 4, v0\nv_mul_u32_u24 v{d}, {gs}, v{d}')
        s(f'v_bfe_u32 v{t}, v0, 2, 2\nv_mul_u32_u24 v{t}, {rs}, v{t}\nv_add_u32 v{d}, v{d}, v{t}')
        s(f'v_and_b32 v{t}, 3, v0\nv_lshl_add_u32 v{d}, v{t}, 3, v{d}')
    def a_lane(s, d, t, bs, gs, base):
        s(f'v_and_b32 v{d}, 1, v0\nv_mul_u32_u24 v{d}, {bs}, v{d}\nv_lshrrev_b32 v{t}, 4, v0\nv_mul_u32_u24 v{t}, {gs}, v{t}')
        s(f'v_add_u32 v{d}, v{d}, v{t}')
        if base: s(f'v_add_u32 v{d}, {base}, v{d}')
    def mfma(s, d, a, b, first, k=32):
        n = 4 if k == 32 else 2
        s(f'v_mfma_f32_16x16x{k}_bf16 v[{d}:{d+3}], v[{a}:{a+n-1}], v[{b}:{b+n-1}], ' + ('0' if first else f'v[{d}:{d+3}]'))
    def role(s, bit, label, ifset=True): s(f's_bitcmp1_b32 s{S_ROLE}, {bit}\ns_cbranch_scc{1 if ifset else 0} {label}')
    def end(s): s('s_branch L_exit' if s.o['stamps'] else 's_endpgm')
    def ghead(s, d):
        if s.o['gmap']: s(f's_lshr_b32 s{d}, s2, 7\ns_lshl3_add_u32 s{d}, s{d}, s{S_X}')
        else: s(f's_lshr_b32 s{d}, s{S_H}, 1')
    def tagwait(s): s(f's_waitcnt lgkmcnt(0)\ns_add_u32 s{TAG}, s{TAG}, 0x9e3779b1')

    def entry(s):
        o = s.o
        s(f's_cmp_ge_u32 s2, 256\ns_cbranch_scc1 L_end')
        s.stamp(0, True)
        s('s_load_dwordx16 s[16:31], s[0:1], 0\ns_load_dwordx8 s[32:39], s[0:1], 64\ns_load_dwordx4 s[40:43], s[0:1], 96')
        if o['diag']: s('s_memrealtime s[78:79]')
        s('v_readfirstlane_b32 s3, v0\nv_and_b32 v0, 63, v0')
        if o['remap']: s('s_lshr_b32 s4, s2, 3\ns_and_b32 s4, s4, 7\ns_xor_b32 s2, s2, s4')
        s(f's_and_b32 s{S_X}, s2, 7\ns_lshr_b32 s4, s2, 6\ns_bfe_u32 s{S_J}, s2, 0x30003\ns_lshl2_add_u32 s{S_H}, s{S_X}, s4\ns_lshr_b32 s3, s3, 6')
        s('s_cmp_ge_u32 s3, 8\ns_cbranch_scc1 L_service')

    def roles(s):
        o = s.o
        for k in range(1, 8): s.stamp(k, True)
        s(f's_lshr_b32 s{S_IDX}, s2, 3\ns_lshr_b32 s11, s2, 6')
        lb = s.lab('nonB'); lr = s.lab('roles')
        s(f's_mov_b32 s{S_DT}, 0\ns_mov_b32 s{SV}, s3')
        s(f's_cmp_lt_u32 s{S_J}, 5\ns_cbranch_scc0 {lb}')
        if o['rown']:
            s(f's_and_b32 s9, s11, 1\ns_mul_i32 s{S_CS}, s9, 5\ns_add_u32 s{S_CS}, s{S_CS}, s{S_J}\ns_and_b32 s9, s11, 2\ns_lshl2_add_u32 s{S_CS}, s{S_CS}, s9\ns_and_b32 s9, s3, 1\ns_add_u32 s{S_CS}, s{S_CS}, s9')
        else: s(f's_mul_i32 s{S_CS}, s11, 5\ns_add_u32 s{S_CS}, s{S_CS}, s{S_J}\ns_lshl_b32 s{S_CS}, s{S_CS}, 1\ns_and_b32 s9, s3, 1\ns_add_u32 s{S_CS}, s{S_CS}, s9')
        s(f's_mov_b32 s{S_ROLE}, 1\ns_branch {lr}')
        s(f'{lb}:')
        s(f's_mul_i32 s8, s11, 3\ns_add_u32 s8, s8, s{S_J}\ns_sub_u32 s8, s8, 5')
        s(f's_mul_i32 s{S_CS}, s{S_X}, 6\ns_add_u32 s{S_CS}, s{S_CS}, s8')
        s(f's_add_u32 s9, s8, 10\ns_and_b32 s9, s9, 14\ns_lshl_b32 s10, s9, 2\ns_add_u32 s10, s10, s{S_X}')
        s(f's_lshl_b32 s{S_DT}, s10, 1\ns_and_b32 s9, s8, 1\ns_add_u32 s{S_DT}, s{S_DT}, s9')
        s(f's_cmp_lt_u32 s10, 10\ns_cselect_b32 s{S_ROLE}, 8, 0')
        s(f's_cmp_lt_u32 s8, 6\ns_cselect_b32 s{S_ROLE}, 2, s{S_ROLE}')
        s(f'{lr}:')
        s('s_waitcnt lgkmcnt(0)')
        s(f's_load_dword s{TAG}, s[{P_WS}:{P_WS+1}], 0')
        s.srd(WS, P_WS, 805306368 if o['stamps'] else W_END)

    def stream(s):
        s.cur = 'w'
        o = s.o; F = o['F']; NPF = o['NPF']
        VK, QA, ACC, TS, MX = 1, 4, 16, 2, 3
        RING = 24
        SC = RING
        T1, T2, LS, PPT = RING + 8, RING + 9, RING + 10, RING + 11
        MK = RING + 12
        VV, BP, PP2, T3 = RING + 16, RING + 17, RING + 18, RING + 19
        ML = RING + 20
        RET = 7
        BM, BA, BZ = RING + 24, RING + 25, RING + 26
        A2 = []
        s(f'v_bfe_u32 v{VK}, v0, 1, 3\nv_mul_u32_u24 v{VK}, 384, v{VK}\nv_lshrrev_b32 v2, 4, v0\nv_lshl_add_u32 v{VK}, v2, 5, v{VK}')
        s(f'v_and_b32 v2, 1, v0\nv_lshl_add_u32 v{VK}, v2, 4, v{VK}')
        PD = 16 * 3145728; STEP = 393216; OD = [int(c) for c in str(o['ord']).zfill(4)]
        s(f's_bfe_u32 s7, s2, 0x40003\ns_lshl3_add_u32 s7, s7, s3\ns_mul_i32 s4, s7, 3072'); s.ghead(10)
        s(f's_mul_i32 s5, s10, 3145728\ns_add_u32 s4, s4, s5\ns_add_u32 s4, s4, {OD[0] * PD}\ns_add_u32 s6, s4, 3145728')
        s(f's_mul_i32 s5, s10, {o["rot"]}\ns_and_b32 s5, s5, 7\ns_mul_i32 s5, s5, {STEP}\ns_add_u32 s5, s5, s4')
        s(f's_mov_b32 s{RA+2}, 201326592\ns_mov_b32 s{RA+3}, 0x20000\ns_waitcnt lgkmcnt(0)\ns_mov_b64 s[{RA}:{RA+1}], s[{P_K}:{P_K+1}]')
        NL = 192
        quad = {}; free = list(range(3 * NPF)); vm = []
        done = [0]
        def wait(n):
            if len(vm) - done[0] > n:
                s(f's_waitcnt vmcnt({n})'); done[0] = len(vm) - n
        def issue(u):
            wait((o['endF'] if u >= NL - o['endN'] else o['F0'] if u < o['N0'] else F) - 1)
            if o['bal'] and 3 * NPF + 9 <= u < NL - o['endN']:
                l = s.lab('th'); s(f's_cbranch_vccz {l}\ns_waitcnt vmcnt({o["Flo"] - 1})\n{l}:')
            q = free.pop(0); quad[u] = q; r = RING + 4 * q
            srd, vo = (RAR, VK) if u < 96 else (RBR, VV)
            s(f'buffer_load_dwordx4 {Q4(r)}, v{vo}, {srd}, s5 offen offset:{128 * (u % 3)} {o["sflag"]}')
            vm.append(u)
            if u % 3 == 2 and u < NL - 1:
                s(f's_add_u32 s5, s5, {STEP}\ns_cmp_ge_u32 s5, s6\ns_cselect_b32 s5, s4, s5')
                if u % 24 == 23:
                    t = (u // 24) & 3; dl = OD[(t + 1) & 3] - OD[t]
                    for r in (4, 5, 6): s(f's_{"add" if dl > 0 else "sub"}_u32 s{r}, s{r}, {abs(dl) * PD}')
                if o['phst'] and u % 48 == 47: s.stamp({47: 3, 95: 5, 143: 6}[u], True)
            if u >= 3 * NPF + 3:
                if u >= 3 * NPF + 6: s(f's_waitcnt lgkmcnt(0)\nv_cmp_gt_u32 vcc, {u + 1}, v{BM}')
                s(f'v_mov_b32 v{BM}, {u + 1}\nds_write_b32 v{BA}, v{BM} offset:{LPRG}\nds_read_b32 v{BM}, v{BZ} offset:{LMODE}')
        def ready(u): return u in vm and vm.index(u) < done[0]
        def kpost(g):
            a = ACC + 4 * (g & 1); sc = SC + (g >> 2)
            s(f'v_cndmask_b32_e64 v{TS}, v{a}, v{a+1}, s[8:9]')
            s(f'v_add_f32_dpp v{sc}, v{TS}, v{TS} quad_perm:[1,0,3,2] row_mask:{1 << (g & 3)} bank_mask:0xf')
            if g & 3 == 3:
                s.bf16r(sc); s(f'v_mul_f32 v{sc}, {hx(192 ** -0.5)}, v{sc}'); s.bf16r(sc)
            if g & 7 == 7:
                a = sc - 1; row = f'quad_perm:[0,1,2,3] row_mask:{1 << (g >> 3)} bank_mask:0xf'
                s(f'v_max_f32 v{MX}, v{a}, v{a+1}')
                s.red16('v_max_f32', [MX], skip1=True); s.swapred('v_max_f32', MX, T1, 16); s.swapred('v_max_f32', MX, T1, 32)
                s(f's_mov_b32 s10, {hx(LOG2E)}\nv_mul_f32 v{T1}, s10, v{MX}')
                for k in range(2): s(f'v_fma_f32 v{a+k}, v{a+k}, s10, -v{T1}')
                for k in range(2): s(f'v_exp_f32 v{a+k}, v{a+k}')
                s(f'v_mov_b32_dpp v{ML}, v{MX} {row}\nv_add_f32 v{LS}, v{a}, v{a+1}')
                for k in range(2): s(f'v_cvt_pk_bf16_f32 v{a+k}, v{a+k}, v{a+k}')
                s.red16('v_add_f32', [LS], skip1=True); s.swapred('v_add_f32', LS, T1, 16); s.swapred('v_add_f32', LS, T1, 32)
                s(f'v_mov_b32_dpp v{ML+1}, v{LS} {row}')
        def bperm(g):
            s(f'ds_bpermute_b32 v{PPT if g & 1 == 0 else PP2}, v{BP}, v{SC + (g >> 2)} offset:{64 * (g & 3)}')
        def switch():
            s.stamp(3)
            bperm(0)
            s(f'v_bitop3_b32 v{ML+2}, v{ML}, v{ML+1}, s{TAG} bitop3:0x96\nv_lshlrev_b32 v{ML+3}, 7, v0')
            s(f's_lshr_b32 s10, s{S_H}, 1\ns_lshl_b32 s10, s10, 9\ns_add_u32 s10, s10, s7\ns_lshl_b32 s10, s10, 4\ns_add_u32 s10, s10, {W_ML}')
            s('s_mov_b32 exec_lo, 0x00010001\ns_mov_b32 exec_hi, 0x00010001')
            s.gstore([f'buffer_store_dwordx4 {Q4(ML)}, v{ML+3}, {WSR}, s10 offen'])
            s('s_mov_b64 exec, -1')
            vm.append(None)
            s(f'v_lshrrev_b32 v{T1}, 5, v0\nv_mul_u32_u24 v{T1}, 768, v{T1}\nv_and_b32 v{T2}, 7, v0\nv_lshl_add_u32 v{T1}, v{T2}, 5, v{T1}')
            s(f'v_and_b32 v{T2}, 16, v0\nv_add_u32 v{T1}, v{T1}, v{T2}\ns_mul_i32 s10, s3, 1536\ns_add_u32 s10, s10, {LPO}\nv_add_u32 v{T1}, s10, v{T1}')
        def outp(acc, b):
            s('s_mov_b32 exec_lo, 0x00ff00ff\ns_mov_b32 exec_hi, 0xff00ff00')
            for jj in range(3): s(f'ds_write_b128 v{T1}, {Q4(acc[jj])} offset:{256*jj + 12288*b}')
            s('s_mov_b64 exec, -1')
        def proc(u):
            g, jj = divmod(u, 3)
            if g >= 32 and jj == 0:
                a = ACC + 4 * (g & 1)
                s('s_waitcnt lgkmcnt(0)')
                for k in range(4): s(f'v_and_b32 v{a+k}, v{PPT if g & 1 == 0 else PP2}, v{MK+k}')
                if g < 63: bperm(g - 31)
            wait(len(vm) - 1 - vm.index(u))
            r = RING + 4 * quad[u]
            if g < 32:
                s.mfma(ACC + 4 * (g & 1), QA + 4 * jj, r, jj == 0)
                if jj == 2 and g > 0: kpost(g - 1)
                if u == 5:
                    s(f'v_lshrrev_b32 v{BP}, 3, v0\nv_mul_u32_u24 v{VV}, 384, v{BP}\nv_lshlrev_b32 v{BP}, 3, v{BP}')
                    s(f'v_and_b32 v{T3}, 7, v0\nv_lshl_add_u32 v{VV}, v{T3}, 4, v{VV}')
                    s(f'v_and_b32 v{PP2}, 1, v0\nv_lshlrev_b32 v{PP2}, 4, v{PP2}\nv_mov_b32 v{MK}, 0xffff\nv_lshlrev_b32 v{PP2}, v{PP2}, v{MK}')
                    s(f'v_lshrrev_b32 v{T3}, 1, v{T3}')
                    for k in range(4):
                        s(f'v_cmp_eq_u32 vcc, {k}, v{T3}\nv_cndmask_b32 v{MK+k}, 0, v{PP2}, vcc')
                    s.a_lane(T3, PP2, 16, 32, LQ)
                if u in (23, 47, 71):
                    for k in range(3): s(f'ds_read_b128 {Q4(QA+4*k)}, v{T3} offset:{128*k + 384*OD[(u+1)//24]}')
                    s('s_waitcnt lgkmcnt(0)')
                if u == 6:
                    s(f's_cmp_eq_u32 s3, 3\ns_cselect_b32 s10, 0, 4\nv_mov_b32 v{BA}, s10\nv_mov_b32 v{BZ}, 0')
                if u == 95: kpost(31); switch()
            else:
                if u == 120: A2.extend(RING + 4 * free.pop() for _ in range(3))
                acc = lambda p: A2 if p & 1 else [QA, QA + 4, QA + 8]
                p = (g - 32) >> 3
                s.mfma(acc(p)[jj], ACC + 4 * (g & 1), r, g & 7 == 0)
                if u >= 190:
                    s(f's_mov_b32 exec_lo, 0x00ff00ff\ns_mov_b32 exec_hi, 0xff00ff00\nds_write_b128 v{T1}, {Q4(A2[jj-1])} offset:{256*(jj-1) + 3*12288}')
                    if u == 190: s('s_mov_b64 exec, -1')
                if p and u % 24 == 2:
                    outp(acc(p - 1), p - 1)
                    s(f's_mov_b64 exec, 1\nv_mov_b32 v{T2}, 1\nds_add_u32 v{BZ}, v{T2} offset:{LCNT + 4*(p-1)}\ns_mov_b64 exec, -1')
            if quad[u] >= RET: free.append(quad[u])
        li = 0
        if o['sep']:
            s.roles(); s.tagwait(); s.ldswait(LGO, TS)
        while li < 3 * NPF:
            issue(li); li += 1
            if li == (min(F, o['F0']) if o['N0'] else F):
                if not o['sep']: s.roles()
                s.srd(RB, P_V, 201326592)
                if o['mfirst']: s('s_barrier')
            if li == F + 1:
                s('s_mov_b32 s8, 0xaaaaaaaa\ns_mov_b32 s9, 0xaaaaaaaa'); s.a_lane(TS, MX, 16, 32, LQ)
                if not o['sep']: s.tagwait()
        s.stamp(1, True)
        s('s_barrier')
        s.stamp(2, True)
        for jj in range(3): s(f'ds_read_b128 {Q4(QA+4*jj)}, v{TS} offset:{128*jj + 384*OD[0]}')
        s.getloc(MX, spin=False)
        pi = 0
        while pi < NL:
            if li < NL:
                while not free: proc(pi); pi += 1
                issue(li); li += 1
                n = 0
                while n < o['RC'] and pi < NL and ready(pi): proc(pi); pi += 1; n += 1
            else:
                proc(pi); pi += 1
        s(f'ds_write_b128 v{T1}, {Q4(A2[2])} offset:{512 + 3*12288}\ns_mov_b64 exec, -1')
        s('s_waitcnt lgkmcnt(0)')
        s.stamp(4, True)
        s('s_barrier')
        s.role(3, 'L_D'); s.role(1, 'L_C'); s.role(0, 'L_exit', False)
        s(f'L_B:\ns_cmp_lt_u32 s{SV}, 4\ns_cbranch_scc0 L_exit')
        BW, AW, D = 40, 88, 136
        s.tr_lane(2, 3, 1024, 128)
        s(f'v_bfe_u32 v3, v0, 3, 2\nv_xor_b32 v3, s{SV}, v3\nv_lshl_add_u32 v2, v3, 5, v2\nv_add_u32 v2, {LB}, v2')
        for T in range(12):
            for hi in range(2): s(f'ds_read_b64_tr_b16 {P(BW+4*T+2*hi)}, v2 offset:{4096*T + 512*hi}')
        s(f'v_and_b32 v3, 3, v0\nv_mul_u32_u24 v3, {OS}, v3\nv_and_b32 v4, 48, v0\nv_add_u32 v3, v3, v4\nv_add_u32 v3, {LO}, v3')
        for T in range(6): s(f'ds_read_b128 {Q4(AW+4*T)}, v3 offset:{64*T}')
        s(f'v_lshlrev_b32 v4, 4, v0')
        s(f's_lshr_b32 s10, s{S_H}, 1\ns_mul_i32 s10, s10, 40\ns_and_b32 s11, s{S_H}, 1\ns_mul_i32 s11, s11, 5\ns_add_u32 s11, s11, s{S_J}')
        s(f's_lshl2_add_u32 s10, s11, s10\ns_add_u32 s10, s10, s{SV}\ns_lshl_b32 s10, s10, 8\ns_add_u32 s10, s10, {W_Y}\ns_sub_u32 s11, s10, {W_Y - W_YL}')
        if o['rown']: s(f's_lshl_b32 s9, s{SV}, 7\ns_add_u32 s9, s9, {LYO}\nv_lshl_add_u32 v5, v0, 3, s9')
        s('s_waitcnt lgkmcnt(0)')
        for T in range(6): s.mfma(D, AW + 4 * T, BW + 4 * T, T == 0)
        s.live('s_barrier')
        s.stamp(5)
        for T in range(6, 12): s(f'ds_read_b128 {Q4(AW+4*T)}, v3 offset:{64*T}')
        for T in range(6, 12):
            s(f's_waitcnt lgkmcnt({11-T})'); s.mfma(D, AW + 4 * T, BW + 4 * T, False)
        s.warmret('L_wB')
        s(f's_mov_b64 exec, 0xffff\nv_pk_add_f32 {P(D)}, {P(D)}, {P(D+2)}\nv_bitop3_b32 v{D+2}, v{D}, v{D+1}, s{TAG} bitop3:0x96')
        st = [f'buffer_store_dwordx4 {Q4(D)}, v4, {WSR}, s10 offen sc1', f'buffer_store_dwordx4 {Q4(D)}, v4, {WSR}, s11 offen']
        s('\n'.join(st[::-1] if o['pfy'] else st))
        if o['rown']: s(f'ds_write_b64 v5, {P(D)}\ns_waitcnt lgkmcnt(0)')
        s.stamp(6)
        if o['rg']: s('s_barrier')
        s.end()

    def s0(s):
        s.cur = 'a'
        o = s.o
        lsk = s.lab('noM'); lj = s.lab('Mj'); ln = s.lab('Mn')
        s(f's_lshr_b32 s4, s{S_IDX}, 2\ns_lshl_b32 s4, s4, 3\ns_add_u32 s4, s4, s{S_X}')
        s(f's_cmp_lt_u32 s4, 60\ns_cbranch_scc0 {lsk}')
        s(f's_and_b32 s7, s{S_IDX}, 3')
        s.srd(RA, P_C, 2560); s.srd(RB, P_WM, 640 * 7680)
        s('v_min_u32 v1, 39, v0\nv_cmp_lt_u32 vcc, 19, v1\nv_lshlrev_b32 v1, 4, v1\nv_mov_b32 v3, 960\nv_cndmask_b32 v3, 0, v3, vcc\nv_add_u32 v3, v3, v1')
        s(f's_mul_i32 s5, s7, 320\nbuffer_load_dwordx4 v[8:11], v3, {RAR}, s5 offen')
        s.rows(2, 3, 3, 7680)
        s(f's_mul_i32 s5, s7, {160 * 7680}\ns_lshl_b32 s6, s4, 7\ns_add_u32 s5, s5, s6')
        s(s.dma(20, 2, RB, 5, 8 * 7680, LM, o['mF']))
        if o['mfirst']: s('s_barrier')
        s('s_waitcnt vmcnt(20)')
        s(f's_mov_b32 s6, {hx(-LOG2E)}')
        for k in range(4): s(f'v_lshlrev_b32 v{20+2*k}, 16, v{8+k}\nv_and_b32 v{21+2*k}, 0xffff0000, v{8+k}')
        for k in range(8): s(f'v_mul_f32 v{40+k}, s6, v{20+k}')
        for k in range(8): s(f'v_exp_f32 v{40+k}, v{40+k}')
        for k in range(8): s(f'v_add_f32 v{40+k}, 1.0, v{40+k}')
        for k in range(8): s(f'v_min_f32 v{40+k}, 0x7f000000, v{40+k}')
        for k in range(8): s(f'v_rcp_f32 v{48+k}, v{40+k}')
        for k in range(8): s(f'v_mul_f32 v{56+k}, v{20+k}, v{48+k}')
        for k in range(8): s(f'v_fma_f32 v{20+k}, -v{56+k}, v{40+k}, v{20+k}')
        for k in range(8): s(f'v_fma_f32 v{20+k}, v{20+k}, v{48+k}, v{56+k}')
        for k in range(4): s(f'v_cvt_pk_bf16_f32 v{8+k}, v{20+2*k}, v{21+2*k}')
        s(f'ds_write_b128 v1, v[8:11] offset:{LXS}')
        s.a_lane(4, 5, 320, 16, LXS)
        s.tr_lane(5, 6, 1024, 128); s(f'v_add_u32 v5, {LM}, v5')
        A, B, D = 12, 48, 32
        s.tagwait()
        for T in range(5): s(f'ds_read_b128 {Q4(A+4*T)}, v4 offset:{64*T}')
        l = s.lab('ini')
        s(f's_cmp_eq_u32 s{S_IDX}, 0\ns_cbranch_scc0 {l}\ns_lshl_b32 s5, s{S_X}, 7\ns_add_u32 s5, s5, {W_PG}\ns_add_u32 s6, s{TAG}, 999')
        s(f'v_and_b32 v1, 31, v0\nv_lshlrev_b32 v1, 2, v1\nv_mov_b32 v6, s6\nbuffer_store_dword v6, v1, {WSR}, s5 offen\n{l}:')
        s(f'v_lshlrev_b32 v1, 4, v0\ns_mul_i32 s5, s7, {3840 * 16}\ns_lshl_b32 s6, s4, 10\ns_add_u32 s5, s5, s6\ns_add_u32 s5, s5, {W_MP}')
        s.rows(2, 3, 4, 3840 * 16)
        s(f's_lshl_b32 s4, s4, 2\ns_add_u32 s4, s4, s7\ns_lshl_b32 s6, s4, 8\ns_add_u32 s6, s6, {W_MP}')
        s('s_waitcnt vmcnt(0)')
        s.stamp(1)
        for T in range(5):
            for ct in range(4):
                for hi in range(2): s(f'ds_read_b64_tr_b16 {P(B + 16*T + 4*ct + 2*hi)}, v5 offset:{4096*T + 512*hi + 32*ct}')
            if T:
                s('s_waitcnt lgkmcnt(8)')
                for ct in range(4): s.mfma(D + 4 * ct, A + 4 * (T - 1), B + 16 * (T - 1) + 4 * ct, T == 1)
        s('s_waitcnt lgkmcnt(0)')
        for ct in range(4): s.mfma(D + 4 * ct, A + 16, B + 64 + 4 * ct, False)
        for ct in range(1, 4):
            for b in range(2): s(f'v_mov_b32_dpp v{D+b}, v{D+4*ct+b} quad_perm:[0,1,2,3] row_mask:{1 << ct} bank_mask:0xf')
        s(f'v_bitop3_b32 v{D+2}, v{D}, v{D+1}, s{TAG} bitop3:0x96')
        l2 = s.lab('M2')
        s(f's_cmp_lt_u32 s4, 80\ns_cbranch_scc0 {l2}')
        if 'P' not in o['nox']: s(f'buffer_store_dwordx4 {Q4(D)}, v1, {WSR}, s5 offen sc1')
        s.stamp(2)
        s(f's_branch {ln}\n{l2}:')
        s.getloc(6)
        s.gstore([f'buffer_store_dwordx4 {Q4(D)}, v1, {WSR}, s5 offen'], nm='m')
        s.stamp(2)
        s('s_barrier')
        s.poll([f'buffer_load_dwordx3 v[4:6], v2, {WSR}, s6 offen sc1'], s.ck_xor([4], 2, 8, 9), slp=o['mlslp'], nm='m')
        for w in (32, 16):
            s.swapred('v_add_f32', 4, 8, w); s.swapred('v_add_f32', 5, 9, w)
        s(f'v_cvt_pk_bf16_f32 v4, v4, v5\nv_mov_b32 v5, s{TAG}\nv_lshlrev_b32 v3, 3, v0\ns_lshl_b32 s5, s4, 7\ns_add_u32 s5, s5, {W_MOD}')
        s(f's_mov_b64 exec, 0xffff\nbuffer_store_dwordx2 v[4:5], v3, {WSR}, s5 offen sc1\ns_mov_b64 exec, -1')
        s(f's_branch {lj}\n{lsk}:\n' + ('s_barrier' if o['mfirst'] else '')); s.tagwait(); s(f'{ln}:\ns_barrier'); s.getloc(6, spin=False); s(f'{lj}:')
        s.waitprog(o['st0'], 1)
        s('s_mov_b32 s5, 0\nL_pair:')
        s.stats()
        s.stamp(3)
        l = s.lab('cnt')
        s(f's_lshl_b32 s8, s5, 2\nv_mov_b32 v4, s8\ns_mov_b32 s{SPIN}, {o["spin"]}\n{l}:\ns_sleep {o["pslp"]}\nds_read_b32 v5, v4 offset:{LCNT}\ns_sub_u32 s{SPIN}, s{SPIN}, 1\ns_waitcnt lgkmcnt(0)')
        s(f'v_readfirstlane_b32 s8, v5\ns_cselect_b32 s8, 8, s8\ns_cmp_lt_u32 s8, 8\ns_cbranch_scc1 {l}')
        s('L_T0:')
        s.stamp(4)
        T = 16
        for k in range(24): s(f'ds_read2st64_b32 {P(T+2*k)}, v1 offset0:{2*k} offset1:{2*k+1}')
        for w in range(8):
            if w >= 3: s(f's_waitcnt lgkmcnt({3 * (7 - w)})')
            elif w == 0: s('s_waitcnt lgkmcnt(15)')
            f = f's[{64 + (w & 6)}:{65 + (w & 6)}]'; e = w & 1
            for c in range(3):
                r = T + 6 * w + 2 * c; a = (8, 10, 12)[c]
                s(f'v_pk_mul_f32 {P(a)}, {P(r)}, {f} op_sel:[0,{e}] op_sel_hi:[1,{e}]' if w == 0 else
                  f'v_pk_fma_f32 {P(a)}, {P(r)}, {f}, {P(a)} op_sel:[0,{e},0] op_sel_hi:[1,{e},1]')
        s('v_add_f32 v8, v8, v11\nv_add_f32 v9, v9, v12\nv_add_f32 v10, v10, v13')
        s(f'v_bitop3_b32 v11, v8, v9, v10 bitop3:0x96\nv_xor_b32 v11, s{TAG}, v11')
        s.gstore([f'buffer_store_dwordx4 v[8:11], v2, {WSR}, s4 offen'])
        s.stamp(5)
        l = s.lab('early'); l2 = s.lab('next'); l3 = s.lab('fin')
        s(f's_cmp_eq_u32 s5, 3\ns_cbranch_scc0 {l}')
        s.role(0, 'L_Bg'); s.role(3, 'L_D'); s.role(1, 'L_exit', False)
        s('s_barrier')
        s.end()
        s(f'{l}:')
        s.role(0, l2, False)
        s(f's_mul_i32 s9, s5, 24\ns_add_u32 s9, s9, {120 + o["eg0"]}\ns_min_u32 s9, s9, {o["eg"]}')
        s.waitprog('s9', 12, o['pslp'])
        s.gath(2, o['pslp'])
        s(f'{l2}:\ns_add_u32 s5, s5, 1\ns_cmp_lt_u32 s5, 3\ns_cbranch_scc1 L_pair')
        s.role(0, l3); s.role(3, 'L_exit', False)
        s(f's_barrier\ns_branch L_D\n{l3}:')
        s(f's_add_u32 s6, s6, 16384\ns_add_u32 s7, s6, 4096\nv_lshlrev_b32 v3, 1, v0\nv_add_u32 v3, {LO + 384 + OS * (int(str(o["ord"])[-1]) >> 1)}, v3\ns_waitcnt lgkmcnt(0)\ns_barrier')

    def stats(s):
        s(f'v_lshlrev_b32 v2, 4, v0\ns_lshr_b32 s6, s{S_H}, 1\ns_lshl2_add_u32 s6, s6, s5\ns_lshl_b32 s4, s6, 11\ns_add_u32 s4, s4, {W_ML}')
        s.poll([f'buffer_load_dwordx3 v[{4+4*k}:{6+4*k}], v2, {WSR}, s4 offen offset:{1024*k} sc1' for k in range(2)], s.ck_xor([4, 8], 2, 12, 13), slp=s.o['mlslp'])
        s('v_max_f32 v12, v4, v8')
        s.red16('v_max_f32', [12]); s.swapred('v_max_f32', 12, 13, 16); s.swapred('v_max_f32', 12, 13, 32)
        for r in (4, 8): s(f'v_sub_f32 v{r}, v{r}, v12\nv_mul_f32 v{r}, {hx(LOG2E)}, v{r}\nv_exp_f32 v{r}, v{r}')
        s('v_mul_f32 v5, v5, v4\nv_fmac_f32 v5, v9, v8')
        s.red16('v_add_f32', [5]); s.swapred('v_add_f32', 5, 13, 16); s.swapred('v_add_f32', 5, 13, 32)
        s(f'v_rcp_f32 v5, v5\ns_bitcmp1_b32 s{S_H}, 0\ns_cselect_b64 vcc, -1, 0\nv_cndmask_b32 v4, v4, v8, vcc\nv_mul_f32 v4, v4, v5')
        s(f's_lshl_b32 s4, s{S_J}, 3')
        for w in range(8):
            s(f'v_readlane_b32 s{64+w}, v4, s4')
            if w < 7: s('s_add_u32 s4, s4, 1')
        s(f's_mul_i32 s4, s5, 12288\ns_add_u32 s4, s4, {LPO}\nv_lshl_add_u32 v1, v0, 2, s4')
        s(f's_lshl_b32 s7, s5, 2\ns_lshr_b32 s7, 0x{str(s.o["ord"]).zfill(4)[::-1]}, s7')
        s(f's_bfe_u32 s4, s7, 0x10001\ns_mul_i32 s4, s4, {OS}\ns_and_b32 s7, s7, 1\ns_mul_i32 s7, s7, 384\ns_add_u32 s4, s4, s7\ns_add_u32 s4, s4, {LO}\nv_lshl_add_u32 v3, v0, 1, s4')
        s(f's_lshl_b32 s6, s6, 14\ns_add_u32 s6, s6, {W_ATT}\ns_and_b32 s4, s{S_IDX}, 15\ns_lshl_b32 s4, s4, 10\ns_add_u32 s4, s4, s6\ns_add_u32 s7, s6, 4096')

    def gath(s, nh, slp):
        G = 24
        if nh == 2: s('s_add_u32 s8, s6, 8192\ns_add_u32 s9, s6, 12288')
        if nh == 2 and s.o['glight']:
            s('v_and_b32 v14, 15, v0\nv_lshlrev_b32 v14, 10, v14')
            s.poll([f'buffer_load_dwordx4 {Q4(G)}, v14, {WSR}, s6 offen offset:1008 sc1'], s.ck_xor([G], 3, 12, 13), slp=slp)
        ck, t = s.ck_xor([G + 4 * k for k in range(8 * nh)], 3, 12, 13)
        for k in range(8 * nh):
            a = 16 + 4 * (k >> 3); r = G + 4 * k
            if k & 7: ck[k] += f'\nv_pk_add_f32 {P(a)}, {P(r-4) if k & 7 == 1 else P(a)}, {P(r)}\nv_add_f32 v{a+2}, v{r-2 if k & 7 == 1 else a+2}, v{r+2}'
        s.poll([f'buffer_load_dwordx4 {Q4(G+4*k)}, v2, {WSR}, s{6 + (k >> 2)} offen offset:{1024*(k & 3)} sc1' for k in range(8 * nh)], (ck, t), slp=slp, warmable=(nh == 1))
        for h in range(nh):
            a = 16 + 4 * h; of = 2 * OS * h
            s(f'v_cvt_pk_bf16_f32 v{a}, v{a}, v{a+1}\nv_cvt_pk_bf16_f32 v{a+2}, v{a+2}, v{a+2}')
            s(f'ds_write_b16 v3, v{a} offset:{of}\nds_write_b16_d16_hi v3, v{a} offset:{of+128}\nds_write_b16 v3, v{a+2} offset:{of+256}')

    def bgather(s):
        s.cur = 'g'
        s('L_Bg:')
        s.gath(1, 0)
        s.warmret('L_wBg')
        s('s_waitcnt lgkmcnt(0)')
        s.stamp(6)
        s('s_barrier')
        s.end()

    def s1(s):
        s.cur = 'b'
        o = s.o
        s.srd(RA, P_X, 2560); s.srd(RB, P_WQ, 640 * 12288)
        s('v_and_b32 v1, 31, v0\nv_lshlrev_b32 v1, 3, v1\nv_lshrrev_b32 v2, 5, v0\nv_mul_u32_u24 v2, 1280, v2\nv_add_u32 v1, v1, v2')
        for u in range(5): s(f'buffer_load_dwordx2 {P(10+2*u)}, v1, {RAR}, 0 offen offset:{256*u}')
        s(f'v_and_b32 v7, 15, v0\nv_lshl_add_u32 v2, v7, 1, v2\ns_mul_i32 s4, s{S_J}, 160')
        for u in range(5): s(f'buffer_load_ushort v{160+u}, v2, {RAR}, s4 offen offset:{32*u}')
        s.rows(3, 4, 3, 12288)
        s.ghead(6)
        s(f's_mul_i32 s5, s{S_J}, {80*12288}\ns_and_b32 s7, s{S_H}, 1\ns_lshl4_add_u32 s6, s7, s6\ns_mul_i32 s6, s6, 384\ns_add_u32 s5, s5, s6')
        if o['mfirst']: s('s_barrier')
        s(s.dma(30, 3, RB, 5, lambda t: 128 if t % 3 < 2 else 8 * 12288 - 256, LWQ, o['qF']))
        s.tagwait()
        if o['qfirst']: s(f'v_mov_b32 v4, {LGO}\nv_mov_b32 v5, s{TAG}\nds_write_b32 v4, v5')
        s('s_waitcnt vmcnt(30)')
        X = 20
        for k in range(10): s(f'v_lshlrev_b32 v{X+2*k}, 16, v{10+k}\nv_and_b32 v{X+2*k+1}, 0xffff0000, v{10+k}')
        s(f'v_add_f32 v4, v{X}, v{X+1}')
        for k in range(2, 20): s(f'v_add_f32 v4, v4, v{X+k}')
        s.red16('v_add_f32', [4]); s.swapred('v_add_f32', 4, 5, 16)
        s(f'v_mul_f32 v4, {hx(1/640)}, v4')
        for k in range(20): s(f'v_sub_f32 v{X+k}, v{X+k}, v4')
        s(f'v_mul_f32 v5, v{X}, v{X}')
        for k in range(1, 20): s(f'v_fmac_f32 v5, v{X+k}, v{X+k}')
        s.red16('v_add_f32', [5]); s.swapred('v_add_f32', 5, 6, 16)
        s(f'v_mul_f32 v5, {hx(1/640)}, v5')
        s.bf16r(4); s.bf16r(5)
        s(f'v_add_f32 v5, {hx(1e-5)}, v5'); s.bf16r(5)
        s('v_sqrt_f32 v5, v5'); s.bf16r(5); s('v_rcp_f32 v5, v5')
        for u in range(5):
            r = 160 + u
            s(f'v_lshlrev_b32 v{r}, 16, v{r}\nv_sub_f32 v{r}, v{r}, v4'); s.bf16r(r)
            s(f'v_mul_f32 v{r}, v{r}, v5'); s.bf16r(r)
        s.tr_lane(4, 5, 3072, 128)
        s(f'v_add_u32 v4, {LWQ}, v4')
        s.tr_lane(5, 6, 512, 128)
        s(f'v_lshrrev_b32 v6, 5, v0\nv_mul_u32_u24 v6, 2048, v6\nv_add_u32 v5, v5, v6\nv_add_u32 v5, {LWQ + 8*3072}, v5')
        BW, AC, A = 100, 40, 88
        def rd(ct):
            b = BW + 10 * (ct % 6); off = 1024 * (ct >> 2) + 32 * (ct & 3)
            for T in range(2):
                for hi in range(2): s(f'ds_read_b64_tr_b16 {P(b+4*T+2*hi)}, v4 offset:{off + 12288*T + 512*hi}')
            s(f'ds_read_b64_tr_b16 {P(b+8)}, v5 offset:{off}')
        s.rows(2, 6, 4, 3840 * 16)
        s(f's_mul_i32 s4, s{S_J}, 1280\ns_add_u32 s4, s4, {W_MP}\ns_add_u32 s5, s4, 10240')
        s('s_waitcnt vmcnt(0)')
        s.stamp(1)
        for ct in range(6): rd(ct)
        M = 40
        s.gather([f'buffer_load_dwordx3 v[{M+4*u}:{M+4*u+2}], v2, {WSR}, s{4 + u // 5} offen offset:{256 * (u % 5)} sc1' for u in range(10)],
                 [s.ck_xor([M + 4 * u], 2, 12, 13) for u in range(10)], 8, slp=o['pslp'], nm='P')
        s.stamp(2)
        for u in range(10): s(f'v_permlane32_swap_b32 v{M+4*u}, v{M+4*u+1}')
        for u in range(10): s(f'v_add_f32 v{M+4*u}, v{M+4*u}, v{M+4*u+1}')
        for u in range(10): s(f'v_mov_b32 v{M+4*u+1}, v{M+4*u}')
        for u in range(10): s(f'v_permlane16_swap_b32 v{M+4*u}, v{M+4*u+1}')
        for u in range(10): s(f'v_add_f32 v{M+4*u}, v{M+4*u}, v{M+4*u+1}')
        for u in range(10): s.bf16r(M + 4 * u)
        s(f'v_lshrrev_b32 v2, 5, v0\nv_mul_u32_u24 v2, 192, v2\nv_lshl_add_u32 v2, v7, 1, v2')
        for u in range(5):
            c = M + 20 + 4 * u; r = 160 + u
            s(f'v_add_f32 v{c}, 1.0, v{c}'); s.bf16r(c)
            s(f'v_mul_f32 v{r}, v{r}, v{c}'); s.bf16r(r)
            s(f'v_add_f32 v{r}, v{r}, v{M+4*u}\nv_cvt_pk_bf16_f32 v{r}, v{r}, v{r}\nds_write_b16 v2, v{r} offset:{LHS + 32*u}')
        s.getloc(6)
        s.a_lane(2, 3, 192, 16, LHS); s.a_lane(3, 6, 192, 8, LHS + 128)
        s('s_waitcnt lgkmcnt(0)')
        s(f'ds_read_b128 {Q4(A)}, v2\nds_read_b128 {Q4(A+4)}, v2 offset:64\nds_read_b64 {P(A+8)}, v3')
        for half in range(2):
            s('s_waitcnt lgkmcnt(0)')
            for ct in range(6 * half, 6 * half + 6): s.mfma(AC + 4 * ct, A + 8, BW + 10 * (ct % 6) + 8, True, k=16)
            for T in range(2):
                for ct in range(6 * half, 6 * half + 6):
                    s.mfma(AC + 4 * ct, A + 4 * T, BW + 10 * (ct % 6) + 4 * T, False)
                    if half == 0 and T == 1: rd(ct + 6)
        s(f'v_lshlrev_b32 v2, 4, v0\ns_lshl_b32 s4, s{S_H}, 3\ns_add_u32 s5, s4, s{S_J}\ns_lshl_b32 s5, s5, 11\ns_add_u32 s5, s5, {W_QP}')
        for b in range(2):
            for u in range(4):
                for c in range(3):
                    s(f'v_mov_b32_dpp v{16+4*b+c}, v{AC + 4*(3*u+c) + b} quad_perm:[0,1,2,3] row_mask:{1 << u} bank_mask:0xf')
        for b in range(2):
            t = 16 + 4 * b
            s(f'v_bitop3_b32 v{t+3}, v{t}, v{t+1}, v{t+2} bitop3:0x96\nv_xor_b32 v{t+3}, s{TAG}, v{t+3}')
        s.gstore([f'buffer_store_dwordx4 {Q4(16+4*b)}, v2, {WSR}, s5 offen offset:{1024*b}' for b in range(2)], nm='Q')
        s.stamp(3)
        s(f'v_mov_b32 v3, {LQF}\nv_mov_b32 v4, s{TAG}\nds_write_b32 v3, v4')
        s(f'L_Qg:\ns_bfe_u32 s9, s3, 0x10001\ns_and_b32 s4, s{S_H}, 30\ns_add_u32 s4, s4, s9\ns_lshl_b32 s4, s4, 14\ns_add_u32 s4, s4, {W_QP}\ns_mul_i32 s9, s9, 384')
        for k in range(1, 4): s(f's_add_u32 s{4+k}, s4, {4096*k}')
        Q = 40
        if o['qlight']:
            s('v_and_b32 v3, 7, v0\nv_lshlrev_b32 v3, 11, v3')
            s.poll([f'buffer_load_dwordx4 {Q4(Q)}, v3, {WSR}, s4 offen offset:2032 sc1'], s.ck_xor([Q], 3, 12, 13), slp=o['pslp'])
        def ck2(k):
            c, t = s.ck_xor([Q + 8 * k, Q + 8 * k + 4], 3, 12, 13); return ['\n'.join(c)], t
        s.gather(['\n'.join(f'buffer_load_dwordx4 {Q4(Q+8*k+4*b)}, v2, {WSR}, s{4 + (k >> 1)} offen offset:{2048*(k & 1) + 1024*b} sc1' for b in range(2)) for k in range(8)],
                 [ck2(k) for k in range(8)], 8, slp=o['pslp'], nm='Q')
        s('v_lshrrev_b32 v3, 4, v0\nv_mul_u32_u24 v3, 96, v3\nv_and_b32 v4, 15, v0\nv_lshl_add_u32 v3, v4, 1, v3\nv_add_u32 v3, s9, v3')
        for k in range(1, 8):
            for b in range(2):
                r = Q + 4 * b
                s(f'v_pk_add_f32 {P(r)}, {P(r)}, {P(r+8*k)}\nv_add_f32 v{r+2}, v{r+2}, v{r+8*k+2}')
        for b in range(2):
            r = Q + 4 * b; lq = LQ + 768 * b
            s(f'v_cvt_pk_bf16_f32 v{r}, v{r}, v{r+1}\nv_cvt_pk_bf16_f32 v{r+2}, v{r+2}, v{r+2}')
            s(f'ds_write_b16 v3, v{r} offset:{lq}\nds_write_b16_d16_hi v3, v{r} offset:{lq+32}\nds_write_b16 v3, v{r+2} offset:{lq+64}')
        s('s_waitcnt lgkmcnt(0)')
        s.stamp(4)
        s('s_barrier\ns_cmp_eq_u32 s3, 11\ns_cbranch_scc1 L_s3b')
        lc = s.lab('s1C'); ld = s.lab('s1D'); lw = s.lab('s1W')
        if o['warm']:
            s.role(1, lc); s.role(3, ld); s.role(0, lw, False)
            s(f's_mov_b32 s{SV}, 0'); s.warm('L_B', 'L_wB'); s.warm('L_Bg', 'L_wBg'); s(f's_branch {lw}')
            s(f'{lc}:\ns_mov_b32 s{SV}, 0'); s.warm('L_C', 'L_wC'); s(f's_branch {lw}')
            s(f'{ld}:\ns_mov_b32 s{SV}, 0'); s.warm('L_D', 'L_wD')
            s(f'{lw}:\ns_mov_b32 s{SV}, 9')
        s.balance5()
        s(f's_add_u32 s6, s6, 8192\ns_add_u32 s7, s7, 8192\nv_add_u32 v3, {2 * OS}, v3')
        s('s_barrier\ns_branch L_T0')

    def balance5(s):
        o = s.o; p0 = 3 * o['NPF']
        a = s.lab('bal'); e = s.lab('balE'); c = s.lab('nox'); d = s.lab('nost')
        V = 100
        s(f'v_mov_b32 v{V+1}, 0\ns_mov_b32 s11, 4096\ns_lshl_b32 s72, s{S_X}, 7\ns_add_u32 s72, s72, {W_PG}\ns_mov_b32 s75, {o["stat1"]}')
        s(f's_cmp_lt_u32 s{S_IDX}, {o["n1"]}\ns_cselect_b32 s78, {o["cstep"]}, {o["cstep2"]}\ns_cselect_b32 s79, {o["bdel"]}, {o["bdel2"]}')
        s(f's_cselect_b32 s74, 0, {o["n1"] * (o["cstep"] - o["cstep2"])}\ns_add_u32 s74, s74, {p0 + o["c0"]}')
        s(f's_lshl_b32 s5, s{S_IDX}, 3\ns_add_u32 s5, s5, s{S_X}\ns_mul_i32 s5, s5, s78\ns_lshr_b32 s5, s5, 3\ns_add_u32 s74, s74, s5\ns_add_u32 s79, s79, s{TAG}')
        s(f'v_and_b32 v{V}, 31, v0\nv_lshlrev_b32 v{V}, 2, v{V}')
        s(f's_lshl_b32 s73, s{S_X}, 12\ns_add_u32 s73, s73, {W_GL}\ns_mov_b32 s10, {W_GL}\nv_and_b32 v{V+5}, 7, v0\nv_cmp_eq_u32 s[76:77], s{S_X}, v{V+5}\nv_lshlrev_b32 v{V+5}, 12, v{V+5}\nv_mov_b32 v{V+6}, {p0}')
        s(f'v_xor_b32 v{V+4}, 4096, v{V+5}\nv_cndmask_b32_e64 v{V+5}, v{V+5}, v{V+4}, s[76:77]')
        s(f's_and_b32 s8, s{S_ROLE}, 1\ns_mul_i32 s8, s8, {o["bonus"]}\ns_sub_u32 s8, s{TAG}, s8')
        s(f'{a}:\nbuffer_load_dword v{V+3}, v{V+1}, {WSR}, s72 offen sc1\ns_waitcnt vmcnt(0)\nds_read_b32 v{V+2}, v{V+1} offset:{LPRG}')
        s(f'v_subrev_u32 v{V+3}, s8, v{V+3}\nds_write_b32 v{V+1}, v{V+3} offset:{LMODE}\ns_waitcnt lgkmcnt(0)\nv_readfirstlane_b32 s9, v{V+2}')
        s(f's_cmp_ge_u32 s9, s75\ns_cbranch_scc0 {d}\ns_mov_b32 s75, 999')
        s('s_mov_b32 s5, 3'); s.stats()
        s(f's_branch {a}\n{d}:')
        s(f's_cmp_ge_u32 s9, {o["bend"]}\ns_cbranch_scc1 {e}')
        s(f's_cmp_ge_u32 s9, s74\ns_cbranch_scc0 {c}')
        s(f's_mov_b32 s74, 999\nv_add_u32 v{V+3}, s{TAG}, v{V+2}\nbuffer_load_dword v{V+4}, v{V+5}, {WSR}, s10 offen sc1\nbuffer_store_dword v{V+3}, v{V}, {WSR}, s73 offen sc1\ns_waitcnt vmcnt(1)')
        s(f'v_subrev_u32 v{V+4}, s{TAG}, v{V+4}\nv_cmp_lt_u32 vcc, 192, v{V+4}\nv_cndmask_b32 v{V+4}, v{V+4}, v{V+6}, vcc')
        s(f'v_subrev_u32 v{V+2}, s78, v{V+2}\nv_cndmask_b32_e64 v{V+4}, v{V+4}, v{V+2}, s[76:77]')
        for ctl in ('quad_perm:[1,0,3,2]', 'quad_perm:[2,3,0,1]', 'row_half_mirror'): s.dppop('v_add_u32', V + 4, ctl)
        s(f'v_lshrrev_b32 v{V+4}, 3, v{V+4}\nv_add_u32 v{V+4}, s79, v{V+4}\nbuffer_store_dword v{V+4}, v{V}, {WSR}, s72 offen')
        s(f'{c}:\ns_sleep {o["bslp"]}\ns_sub_u32 s11, s11, 1\ns_cbranch_scc0 {a}')
        s('s_mov_b32 s5, 3'); s.stats()
        s(f'{e}:')

    def bstage(s, t0, t1, F):
        o = s.o; l = s.lab('dma')
        s.srd(RA, P_WO, 6144 * 1280)
        s.swz(1280)
        s.ghead(5)
        s(f's_mul_i32 s5, s5, {192*1280}\ns_and_b32 s4, s{S_H}, 1\ns_mul_i32 s4, s4, 5\ns_add_u32 s4, s4, s{S_J}\ns_lshl_b32 s4, s4, 7')
        s(f's_add_u32 s5, s5, s4\ns_add_u32 s5, s5, {8 * 1280 * t0 + (15*192*1280 if t0 >= 24 else 0)}')
        s(f's_mov_b32 s4, {LB + 1024 * t0}\n{l}:')
        for t in range(2):
            s(f's_mov_b32 m0, s4\ns_waitcnt vmcnt({F - 1})\nbuffer_load_dwordx4 v{3 if t else 1}, {RAR}, s5 offen {o["wflag"]} lds')
            s(f's_add_u32 s5, s5, {8 * 1280}\ns_add_u32 s4, s4, 1024')
        if t0 < 24 < t1: s(f's_cmp_eq_u32 s4, {LB + 24576}\ns_cselect_b32 s6, {15*192*1280}, 0\ns_add_u32 s5, s5, s6')
        s(f's_cmp_lt_u32 s4, {LB + 1024 * t1}\ns_cbranch_scc1 {l}')

    def stage(s, half):
        o = s.o
        ld = s.lab('stD'); lc = s.lab('stC'); le = s.lab('stE')
        def part(n): return (0, n) if half is None else ((0, n // 4 * 2) if half == 0 else (n // 4 * 2, n))
        FF = lambda k: o['upF'] if half is None else o[k]
        s.role(0, ld, False)
        E = 0 if half is None else o['bE']; t0, t1 = part(48 - E)
        s.bstage(E + t0, E + t1, min(FF('bF'), 60))
        s(f's_branch {le}\n{ld}:')
        s.role(3, lc, False)
        W = o['dW']; t0, t1 = part(8 * (12 - W))
        s.srd(RA, P_D, 1536 * 1280); s.rows(1, 2, 2, 1280)
        s(f's_lshl_b32 s4, s{S_DT}, 6\ns_add_u32 s4, s4, {(8 * W + t0) * 16 * 1280}')
        s(s.dma(t1 - t0, 1, RA, 4, 16 * 1280, LBIG + 1024 * (8 * W + t0), FF('dF')))
        s(f's_branch {le}\n{lc}:')
        s.role(1, le, False)
        E = o['cE']; t0, t1 = part(8 * E)
        s.caddr()
        s(f's_add_u32 s5, s5, {(80 - 8 * E + t0) * 8 * 3072}')
        s(s.cdma(t1 - t0, lambda t: f's_mov_b32 m0, {LBIG + 1024 * (80 - 8 * E + t0 + t)}', FF('cF')))
        s(f'{le}:')
        if half is not None: s('s_waitcnt vmcnt(0)')

    def s2(s):
        s.cur = 'r'
        o = s.o
        if o['mfirst']: s('s_barrier')
        s('s_getreg_b32 s4, hwreg(HW_REG_XCC_ID)')
        s(f'v_and_b32 v1, 31, v0\nv_lshlrev_b32 v1, 3, v1\ns_lshl_b32 s5, s{S_X}, 8\ns_add_u32 s5, s5, {W_XC}\ns_lshl3_add_u32 s6, s{S_IDX}, s5')
        s.tagwait()
        s(f'v_mov_b32 v2, s4\nv_mov_b32 v3, s{TAG}\ns_mov_b64 exec, 1')
        if o['xab']: s(f's_add_u32 s7, s6, {W_XL - W_XC}\nbuffer_store_dwordx2 v[2:3], v1, {WSR}, s7 offen')
        if 'X' not in o['nox']: s(f'buffer_store_dwordx2 v[2:3], v1, {WSR}, s6 offen sc1')
        s('s_mov_b64 exec, -1')
        s.idpoll(o['pslp'])
        s(f'v_xor_b32 v4, s4, v4\nv_or_b32 v4, v4, v6\nv_cmp_ne_u32 vcc, 0, v4\ns_cmp_eq_u64 vcc, 0\ns_addc_u32 s4, s{TAG}, 0')
        if not o['loc']: s(f's_mov_b32 s4, s{TAG}')
        s(f'v_mov_b32 v4, s4\nv_mov_b32 v5, {LFLAG}\nds_write_b32 v5, v4\nv_mov_b32 v4, 0\nds_write_b32 v4, v4 offset:{LPRG}\nds_write_b32 v4, v4 offset:{LCNT}\nds_write_b32 v4, v4 offset:{LCNT+4}\nds_write_b32 v4, v4 offset:{LCNT+8}\nv_mov_b32 v5, 999\nds_write_b32 v4, v5 offset:{LMODE}\ns_waitcnt lgkmcnt(0)')
        s.stamp(2)
        if o['bE']:
            l = s.lab('noBe'); s.role(0, l, False); s.bstage(0, o['bE'], o['bEF']); s(f'{l}:')
        s('s_barrier')
        if not o['up']: s.stage(0)
        s.stamp(1)
        s.role(1, 'L_LN0')
        s.role(0, 'L_s23', False)
        s.warm('L_R', 'L_wR')
        s('L_R0:')
        s.waitprog(72, 1)
        s.getloc(1, spin=False)
        s.srd(RA, P_X, 2560)
        s(f'v_and_b32 v1, 15, v0\nv_lshlrev_b32 v2, 1, v1\ns_lshl_b32 s5, s{S_CS}, 5')
        s(f'buffer_load_ushort v4, v2, {RAR}, s5 offen\nbuffer_load_ushort v5, v2, {RAR}, s5 offen offset:1280')
        s(f'v_lshlrev_b32 v2, 3, v1\ns_lshl_b32 s5, s{S_CS}, 7\ns_add_u32 s6, s5, {W_MOD + 1280*8}')
        s.poll([f'buffer_load_dwordx2 v[6:7], v2, {WSR}, s6 offen sc1'], s.ck_tag([[7]], 8), slp=o['mlslp'])
        s('v_lshlrev_b32 v4, 16, v4\nv_lshlrev_b32 v5, 16, v5\nv_and_b32 v7, 0xffff0000, v6\nv_lshlrev_b32 v6, 16, v6')
        s(f's_add_u32 s5, s5, {W_X1}\nv_mov_b32 v9, s{TAG}\ns_lshl_b32 s6, s{S_X}, 13\ns_add_u32 s5, s5, s6')
        s.rows(3, 8, 4, 10240)
        s(f's_lshl_b32 s64, s{S_CS}, 8\ns_add_u32 s64, s64, {W_Y}')
        s(f's_sub_u32 s64, s64, {W_Y - W_YL}\ns_sub_u32 s6, 1, s{LOC}\ns_mul_i32 s6, s6, {W_Y - W_YL}\nv_mov_b32 v12, s6\nv_mov_b32 v13, {W_Y - W_YL}\nv_lshrrev_b32 v14, 5, v0')
        for k in range(4):
            s(f'v_add_u32 v15, {2*k}, v14\nv_cmp_eq_u32 vcc, s{S_X}, v15\nv_cndmask_b32 v15, v13, v12, vcc\nv_add_u32 v15, {40960*k}, v15\nv_add_u32 v{32+k}, v15, v3')
        if o['rown']:
            s(f's_lshr_b32 s4, s{S_H}, 1\nv_lshrrev_b32 v14, 4, v0\ns_bfe_u32 s6, s{S_H}, 0x10001\ns_mul_i32 s6, s6, {-20480 & 0xffffffff}\ns_add_u32 s6, s6, 10240')
            for k in range(4):
                s(f'v_add_u32 v15, {4*k}, v14\nv_cmp_eq_u32 s[{66+2*k}:{67+2*k}], s4, v15\nv_add_u32 v15, s6, v{32+k}\nv_cndmask_b32_e64 v{32+k}, v{32+k}, v15, s[{66+2*k}:{67+2*k}]')
            s(f's_and_b32 s4, s{S_CS}, 3\ns_lshl_b32 s4, s4, 7\ns_add_u32 s4, s4, {LYO}\nv_add_u32 v36, s4, v2')
        touch = '\n'.join(f'buffer_load_dword v{40+k}, v{32+k}, {WSR}, s64 offen sc1' for k in range(4))
        s('s_barrier')
        if o['rg'] == 5: s(touch)
        s('s_barrier')
        if o['rg'] == 4: s(touch)
        if o['rg'] and o['rg'] != 6: s('s_barrier')
        s('L_R:')
        s.stamp(4)
        Y = 16
        ck, t = s.ck_xor([Y + 4 * k for k in range(4)], 2, 12, 13)
        if o['rown']:
            if o['rg'] != 6: s('ds_read_b64 v[38:39], v36')
            ck[0] += '\ns_waitcnt lgkmcnt(0)'
            for k in range(4):
                for e in range(2): ck[k] += f'\nv_cndmask_b32_e64 v{Y+4*k+e}, v{Y+4*k+e}, v{38+e}, s[{66+2*k}:{67+2*k}]'
        for k in range(1, 4): ck[k] += f'\nv_pk_add_f32 v[10:11], {P(Y) if k == 1 else "v[10:11]"}, {P(Y+4*k)}'
        lds_ = [f'buffer_load_dwordx3 v[{Y+4*k}:{Y+4*k+2}], v{32+k}, {WSR}, s64 offen sc1' for k in range(4)]
        if o['rmiss']:
            s.gather(lds_, [s.ck_xor([Y + 4 * k], 2, 12, 13) for k in range(4)], 8)
            s(f'v_pk_add_f32 v[10:11], {P(Y)}, {P(Y+4)}\nv_pk_add_f32 v[10:11], v[10:11], {P(Y+8)}\nv_pk_add_f32 v[10:11], v[10:11], {P(Y+12)}')
        else: s.poll(lds_, (ck, t), warmable=True, pre='s_barrier\nds_read_b64 v[38:39], v36' if o['rg'] == 6 else None)
        s.stamp(5)
        for w in (16, 32):
            s(f'v_mov_b32 v14, v10\nv_mov_b32 v15, v11\nv_permlane{w}_swap_b32 v10, v14\nv_permlane{w}_swap_b32 v11, v15\nv_pk_add_f32 v[10:11], v[10:11], v[14:15]')
        s(f'v_pk_fma_f32 v[10:11], v[10:11], v[6:7], v[4:5]\nv_cvt_pk_bf16_f32 v8, v10, v11')
        s.warmret('L_wR')
        s('s_mov_b64 exec, 0xffff')
        s.gstore([f'buffer_store_dwordx2 v[8:9], v2, {WSR}, s5 offen'])
        s.stamp(6)
        s.end()

    def s3(s):
        s.cur = 'l'
        o = s.o
        if o['mfirst']: s('s_barrier')
        if not o['upe']: s.tagwait()
        if o['up']:
            if o['qfirst']: s.ldswait(LGO, 3)
            s.stage(None)
            if o['upe']: s.tagwait()
            if o['sep']: s(f's_waitcnt vmcnt({o["sep"]})\nv_mov_b32 v3, {LGO}\nv_mov_b32 v4, s{TAG}\nds_write_b32 v3, v4')
        s.ldswait(LQF, 3, o['pslp'])
        s('v_lshlrev_b32 v2, 4, v0\ns_branch L_Qg\nL_s3b:')
        if not o['up']: s.stage(1)
        s.stamp(1)
        s.role(0, 'L_R0')
        s.role(1, 'L_s23', False)
        s.warm('L_LN', 'L_wLN')
        s('L_LN0:')
        s.waitprog(72, 1)
        C1, SB, X = 8, 28, 48
        s(f'v_lshlrev_b32 v1, 4, v0\ns_and_b32 s8, s3, 1\ns_mul_i32 s11, s8, 0x02020000\ns_add_u32 s11, s11, 0x01000c0c')
        s(f's_mov_b32 s4, {W_MOD + 3*5120}\ns_mov_b32 s5, {W_MOD + 3*5120 + 4096}\ns_mov_b32 s6, {W_MOD + 4*5120}\ns_mov_b32 s7, {W_MOD + 4*5120 + 4096}')
        def ld5(base, sa): return [f'buffer_load_dwordx4 {Q4(base+4*u)}, v1, {WSR}, s{sa + (u >> 2)} offen offset:{1024*(u & 3)} sc1' for u in range(5)]
        pick = lambda r: f'v_perm_b32 v{r}, v{r}, v{r}, s11\nv_perm_b32 v{r+1}, v{r+2}, v{r+2}, s11'
        s.poll(ld5(C1, 6) + ld5(SB, 4), s.ck_tag([[C1 + 1 + 4 * k, C1 + 3 + 4 * k] for k in range(10)], 4), slp=o['mlslp'])
        for k in range(10): s(pick(C1 + 4 * k))
        for u in range(5):
            for e in range(2): s(f'v_add_f32 v{C1+4*u+e}, 1.0, v{C1+4*u+e}'); s.bf16r(C1 + 4 * u + e)
        s(f's_lshl_b32 s4, s{S_X}, 13\ns_add_u32 s4, s4, {W_X1}\ns_add_u32 s5, s4, 4096')
        s(f's_mul_i32 s8, s8, {HS}\ns_add_u32 s8, s8, {LH2}\nv_lshl_add_u32 v2, v0, 2, s8')
        s(f's_mov_b32 s10, {hx(1/640)}\nv_mov_b32 v68, {hx(1e-5)}')
        s('s_barrier\ns_barrier\ns_barrier')
        s('L_LN:')
        s.stamp(4)
        ck, t = s.ck_tag([[X + 1 + 4 * u, X + 3 + 4 * u] for u in range(5)], 70)
        for u in range(5):
            r = X + 4 * u
            ck[u] += '\n' + pick(r)
            if u == 0: ck[u] += f'\nv_readlane_b32 s8, v{X}, 0'
            ck[u] += f'\nv_pk_add_f32 {P(r)}, {P(r)}, s[8:9] op_sel_hi:[1,0] neg_lo:[0,1] neg_hi:[0,1]'
            if u == 0: ck[u] += f'\nv_pk_mul_f32 v[6:7], {P(r)}, {P(r)}'
            else: ck[u] += f'\nv_pk_add_f32 v[4:5], {P(X) if u == 1 else "v[4:5]"}, {P(r)}\nv_pk_fma_f32 v[6:7], {P(r)}, {P(r)}, v[6:7]'
        s.poll(ld5(X, 4), (ck, t), warmable=True)
        s.stamp(5)
        fill = [f'v_pk_mul_f32 {P(X+4*u)}, {P(X+4*u)}, {P(C1+4*u)}' for u in range(5)]
        s('v_add_f32 v4, v4, v5\nv_add_f32 v6, v6, v7'); s(fill.pop(0))
        s('v_permlane32_swap_b32 v4, v6\nv_add_f32 v4, v4, v6')
        s.red16('v_add_f32', [4], fill=fill); s.swapred('v_add_f32', 4, 5, 16)
        s('v_mul_f32 v4, s10, v4\nv_mov_b32 v6, v4\nv_permlane32_swap_b32 v4, v6')
        s('v_fma_f32 v6, -v4, v4, v6\nv_max_f32 v6, 0, v6\nv_add_f32 v6, v6, v68\nv_rsq_f32 v6, v6')
        for u in range(5): s(f'v_pk_fma_f32 {P(X+4*u)}, {P(C1+4*u)}, v[4:5], {P(X+4*u)} op_sel_hi:[1,0,1] neg_lo:[0,1,0] neg_hi:[0,1,0]')
        for u in range(5):
            r = X + 4 * u
            s(f'v_pk_fma_f32 {P(r)}, {P(r)}, v[6:7], {P(SB+4*u)} op_sel_hi:[1,0,1]\nv_cvt_pk_bf16_f32 v{r}, v{r}, v{r+1}')
            if u & 1: s(f'ds_write2st64_b32 v2, v{r-4}, v{r} offset0:{u-1} offset1:{u}')
        s(f'ds_write_b32 v2, v{X+16} offset:1024')
        s.warmret('L_wLN')
        s('s_waitcnt lgkmcnt(0)')
        s.stamp(3)
        s('s_barrier')
        s.end()
        s('L_s23:')
        s.role(3, 'L_exit', False)
        s('s_barrier\ns_branch L_D')
        s.end()

    def ldswait(s, at, v, slp=1):
        l = s.lab('lw')
        s(f'v_mov_b32 v{v}, {at}\ns_mov_b32 s{SPIN}, {s.o["spin"]}\n{l}:\ns_sleep {slp}\nds_read_b32 v{v+1}, v{v}\ns_sub_u32 s{SPIN}, s{SPIN}, 1\ns_waitcnt lgkmcnt(0)')
        s(f'v_readfirstlane_b32 s10, v{v+1}\ns_cselect_b32 s10, s{TAG}, s10\ns_cmp_eq_u32 s10, s{TAG}\ns_cbranch_scc0 {l}')
    def waitprog(s, n, v, slp=None):
        l = s.lab('prog')
        s(f'v_mov_b32 v{v}, 0\ns_mov_b32 s{SPIN}, {s.o["spin"]}\n{l}:\ns_sleep {slp or s.o["mlslp"]}\nds_read_b32 v{v+1}, v{v} offset:{LPRG}\ns_sub_u32 s{SPIN}, s{SPIN}, 1\ns_waitcnt lgkmcnt(0)')
        s(f'v_readfirstlane_b32 s4, v{v+1}\ns_cselect_b32 s4, 999, s4\ns_cmp_lt_u32 s4, {n}\ns_cbranch_scc1 {l}')
    def idpoll(s, slp):
        l = s.lab('gotid')
        if s.o['xab']:
            s(f's_add_u32 s7, s5, {W_XL - W_XC}')
            s.poll([f'buffer_load_dwordx2 v[4:5], v1, {WSR}, s7 offen sc1'], s.ck_tag([[5]], 6), slp=slp, spin=s.o['xab'])
            s(f's_cbranch_vccz {l}')
        s.poll([f'buffer_load_dwordx2 v[4:5], v1, {WSR}, s5 offen sc1'], s.ck_tag([[5]], 6), slp=slp)
        s(f'{l}:')

    def caddr(s):
        s(f's_bitcmp1_b32 s{S_CS}, 0\ns_cselect_b64 s[{RA}:{RA+1}], s[{P_U}:{P_U+1}], s[{P_G}:{P_G+1}]\ns_mov_b32 s{RA+2}, {640 * 3072}\ns_mov_b32 s{RA+3}, 0x20000')
        s.swz(3072)
        s(f's_lshr_b32 s5, s{S_CS}, 1\ns_lshl_b32 s5, s5, 7')
    def swz(s, stride):
        s(f'v_lshrrev_b32 v2, 3, v0\nv_mul_u32_u24 v1, {stride}, v2\nv_and_b32 v2, 2, v2\nv_and_b32 v3, 7, v0\nv_xor_b32 v2, v2, v3\nv_xor_b32 v3, 4, v2')
        s('v_lshl_add_u32 v3, v3, 4, v1\nv_lshl_add_u32 v1, v2, 4, v1')
    def cdma(s, n, lds, F):
        out = []
        for t in range(n):
            out.append(lds(t))
            if F < 60: out.append(f's_waitcnt vmcnt({F - 1})')
            out.append(f'buffer_load_dwordx4 v{3 if t & 1 else 1}, {RAR}, s5 offen {s.o["wflag"]} lds')
            if t < n - 1: out.append(f's_add_u32 s5, s5, {8 * 3072}')
        return '\n'.join(out)

    def crole(s):
        s.cur = 'c'
        o = s.o; E = o['cE']; n = 2 * (10 - E)
        s(f'L_C:\ns_cmp_lt_u32 s{SV}, 4\ns_cbranch_scc0 L_exit')
        BW, A, D = 88, 8, 72
        s.caddr()
        s(f's_mul_i32 s4, s{SV}, {n}\ns_mul_i32 s6, s4, {8 * 3072}\ns_add_u32 s5, s5, s6\ns_lshl_b32 s4, s4, 10\ns_add_u32 s4, s4, {LBIG}')
        s.live('s_barrier\n' + s.cdma(n, lambda t: f's_add_u32 m0, s4, {1024 * t}', 63))
        s.tr_lane(2, 3, 1024, 128)
        s(f'v_bfe_u32 v3, v0, 3, 2\nv_xor_b32 v3, s{SV}, v3\nv_lshl_add_u32 v2, v3, 5, v2\nv_add_u32 v2, {LBIG}, v2\nv_add_u32 v5, 40960, v2')
        s.a_lane(3, 4, HS, 16, LH2)
        s(f's_and_b32 s4, s{S_CS}, 1\ns_mul_i32 s6, s4, 12288\ns_lshr_b32 s5, s{S_CS}, 1\ns_lshl2_add_u32 s5, s5, s{SV}\ns_lshl_b32 s5, s5, 7\ns_add_u32 s6, s6, s5\ns_add_u32 s6, s6, {W_ACT}')
        s(f'v_lshlrev_b32 v1, 3, v0\ns_mov_b32 s7, {hx(-LOG2E)}\nv_mov_b32 v77, s{TAG}\ns_add_u32 s8, s6, {W_AL - W_ACT}')
        s('s_waitcnt vmcnt(0)')
        s.stamp(3)
        s.live('s_barrier')
        for T in range(20):
            for hi in range(2): s(f'ds_read_b64_tr_b16 {P(BW + 4*T + 2*hi)}, v{2 if T < 10 else 5} offset:{4096*(T % 10) + 512*hi}')
        s('s_waitcnt lgkmcnt(0)'); s.live('s_barrier')
        s.stamp(5)
        for T in range(15): s(f'ds_read_b128 {Q4(A+4*T)}, v3 offset:{64*T}')
        for T in range(20):
            s(f's_waitcnt lgkmcnt({min(14, 19 - T)})')
            s.mfma(D, A + 4 * (T % 15), BW + 4 * T, T == 0)
            if T < 5: s(f'ds_read_b128 {Q4(A+4*T)}, v3 offset:{64*(T+15)}')
        l = s.lab('up')
        s(f's_cmp_eq_u32 s4, 1\ns_cbranch_scc1 {l}')
        for op in (f'v_mul_f32 v{{t}}, s7, v{{d}}', 'v_exp_f32 v{t}, v{t}', 'v_add_f32 v{t}, 1.0, v{t}', 'v_rcp_f32 v{t}, v{t}', 'v_mul_f32 v{d}, v{d}, v{t}'):
            for b in range(2): s(op.format(t=D + 2 + b, d=D + b))
        s(f'{l}:\nv_cvt_pk_bf16_f32 v76, v{D}, v{D+1}')
        s.warmret('L_wC')
        st = [f'buffer_store_dwordx2 v[76:77], v1, {WSR}, s6 offen sc1', f'buffer_store_dwordx2 v[76:77], v1, {WSR}, s8 offen']
        s('s_mov_b64 exec, 0xffff\n' + '\n'.join(st[::-1] if o['pfa'] else st))
        s.stamp(6)
        s.end()

    def drole(s):
        s.cur = 'd'
        o = s.o
        s('L_D:')
        BW, A, D = 40, 72, 88
        s(f's_lshl_b32 s4, s{SV}, 13\ns_add_u32 s4, s4, {LBIG}')
        s.srd(RA, P_D, 1536 * 1280); s.srd(RB, P_OUT, 2560); s.rows(1, 2, 2, 1280)
        s(f's_mul_i32 s5, s{SV}, {128 * 1280}\ns_lshl_b32 s6, s{S_DT}, 6\ns_add_u32 s5, s5, s6')
        l = s.lab('have')
        s.live(f's_barrier\ns_cmp_ge_u32 s{SV}, {o["dW"]}\ns_cbranch_scc1 {l}\n' + s.dma(8, 1, RA, 5, 16 * 1280, lambda t: f's_add_u32 m0, s4, {1024 * t}', 63) + f'\n{l}:')
        s.tr_lane(2, 3, 512, 64)
        s('v_add_u32 v2, s4, v2\ns_waitcnt vmcnt(0)')
        s.stamp(3)
        for tt in range(2):
            for T in range(4):
                for hi in range(2): s(f'ds_read_b64_tr_b16 {P(BW + 16*tt + 4*T + 2*hi)}, v2 offset:{2048*T + 256*hi + 32*tt}')
        s(f's_lshl_b32 s4, s{SV}, 9\ns_add_u32 s4, s4, {LACT}\nv_lshl_add_u32 v2, v0, 2, s4')
        s.a_lane(3, 4, 256, 16, 0); s('v_add_u32 v3, s4, v3')
        s(f'v_and_b32 v4, 31, v0\nv_mul_u32_u24 v4, 96, v4\ns_lshl_b32 s4, s{SV}, 2\ns_add_u32 s4, s4, {LDP}\nv_add_u32 v4, s4, v4')
        s(f'v_lshlrev_b32 v1, 4, v0\ns_lshl_b32 s5, s{SV}, 10\ns_add_u32 s5, s5, {W_ACT}')
        s('s_add_u32 s6, s5, 12288')
        if True:
            s(f'v_mov_b32 v5, {LFLAG}\nds_read_b32 v6, v5\ns_lshl_b32 s7, s{SV}, 1\ns_mul_i32 s8, s{S_X}, 3\ns_sub_u32 s7, s7, s8\nv_lshrrev_b32 v5, 5, v0\nv_add_u32 v5, s7, v5\nv_cmp_gt_u32 vcc, 3, v5')
            s(f's_waitcnt lgkmcnt(0)\nv_subrev_u32 v6, s{TAG}, v6\nv_mul_u32_u24 v6, {W_AL - W_ACT}, v6\nv_cndmask_b32 v5, 0, v6, vcc\nv_add_u32 v1, v1, v5')
        s(f'v_and_b32 v5, 31, v0\nv_lshlrev_b32 v6, 3, v5\nv_lshrrev_b32 v7, 5, v0')
        lf = s.lab('nofin')
        s(f's_cmp_eq_u32 s{SV}, 0\ns_cbranch_scc0 {lf}')
        s(f's_lshl_b32 s8, s{S_DT}, 8\ns_add_u32 s9, s8, {W_MOD + 5*5120}\ns_add_u32 s8, s8, {W_X1}')
        s(f's_lshl_b32 s10, s{S_X}, 13\ns_add_u32 s8, s8, s10')
        s.poll([f'buffer_load_dwordx2 v[10:11], v6, {WSR}, s9 offen sc1', f'buffer_load_dwordx2 v[8:9], v6, {WSR}, s8 offen sc1'], s.ck_tag([[11], [9]], 12), slp=o['pslp'], warmable=True)
        s('v_lshlrev_b32 v9, 4, v7\nv_lshrrev_b32 v8, v9, v8\nv_lshlrev_b32 v8, 16, v8\nv_lshrrev_b32 v10, v9, v10\nv_lshlrev_b32 v10, 16, v10')
        s(f'{lf}:')
        s(f'v_lshl_add_u32 v6, v5, 1, v7\nv_mul_u32_u24 v6, 48, v6\nv_add_u32 v6, {LDP}, v6')
        s(f'v_mul_u32_u24 v7, 1280, v7\nv_lshl_add_u32 v5, v5, 1, v7\ns_lshl_b32 s8, s{S_DT}, 6')
        if o['otouch']: s(f'buffer_load_dword v30, v5, {RBR}, s8 offen')
        s.live('s_barrier')
        ck, t = s.ck_tag([[17, 19], [21, 23]], 12)
        for k in range(2):
            for r in (16 + 4 * k, 18 + 4 * k): ck[k] += f'\nv_and_b32 v{r+1}, 0xffff0000, v{r}\nv_lshlrev_b32 v{r}, 16, v{r}'
        s.poll([f'buffer_load_dwordx4 {Q4(16+4*k)}, v1, {WSR}, s{5+k} offen sc1' for k in range(2)], (ck, t), warmable=True)
        s.stamp(5)
        s('v_pk_mul_f32 v[16:17], v[16:17], v[20:21]\nv_pk_mul_f32 v[18:19], v[18:19], v[22:23]\nv_cvt_pk_bf16_f32 v16, v16, v18\nv_cvt_pk_bf16_f32 v17, v17, v19')
        s('ds_write2st64_b32 v2, v16, v17 offset0:0 offset1:1\ns_waitcnt lgkmcnt(0)')
        for T in range(4): s(f'ds_read_b128 {Q4(A+4*T)}, v3 offset:{64*T}')
        for T in range(4):
            s(f's_waitcnt lgkmcnt({3-T})')
            for tt in range(2): s.mfma(D + 4 * tt, A + 4 * T, BW + 16 * tt + 4 * T, T == 0)
        for b in range(2): s(f'v_mov_b32_dpp v{D+b}, v{D+4+b} quad_perm:[0,1,2,3] row_mask:0xa bank_mask:0xf')
        s(f'ds_write2_b32 v4, v{D}, v{D+1} offset0:0 offset1:12\ns_waitcnt lgkmcnt(0)'); s.stamp(1); s.live('s_barrier'); s.stamp(2)
        s(f's_cmp_eq_u32 s{SV}, 0\ns_cbranch_scc0 L_exit')
        for k in range(3): s(f'ds_read_b128 {Q4(16+4*k)}, v6 offset:{16*k}')
        s('s_waitcnt lgkmcnt(1)\nv_pk_add_f32 v[16:17], v[16:17], v[18:19]\nv_pk_add_f32 v[20:21], v[20:21], v[22:23]\nv_pk_add_f32 v[16:17], v[16:17], v[20:21]')
        s('s_waitcnt lgkmcnt(0)\nv_pk_add_f32 v[24:25], v[24:25], v[26:27]\nv_pk_add_f32 v[16:17], v[16:17], v[24:25]\nv_add_f32 v16, v16, v17')
        s('v_fma_f32 v16, v16, v10, v8\nv_mov_b32_dpp v17, v16 quad_perm:[1,1,3,3] row_mask:0xf bank_mask:0xf\nv_cvt_pk_bf16_f32 v16, v16, v17')
        s.warmret('L_wD')
        s(f's_mov_b32 exec_lo, 0x55555555\ns_mov_b32 exec_hi, 0x55555555\nbuffer_store_dword v16, v5, {RBR}, s8 offen {o["oflag"]}')
        s.stamp(6)
        s(f's_cmp_eq_u32 s{S_DT}, 0\ns_cbranch_scc0 L_exit')
        s(f's_mov_b64 exec, 1\nv_mov_b32 v17, s{TAG}\nv_mov_b32 v18, 0\nbuffer_store_dword v17, v18, {WSR}, 0 offen {o["oflag"]}')
        if o['diag']:
            s(f'L_diag:\ns_memrealtime s[76:77]\ns_waitcnt lgkmcnt(0)\ns_sub_u32 s76, s76, s78\ns_cmp_lt_u32 s76, {o["diag"]}\ns_cbranch_scc1 L_diag')

    def exit(s):
        s('L_exit:')
        if s.o['stamps']:
            s('s_waitcnt vmcnt(0)')
            s.stamp(7, True)
            if s.o['stamps'] == 3: s(f's_memtime s[{ST0+12}:{ST0+13}]')
            s('s_mov_b64 exec, 1\ns_waitcnt lgkmcnt(0)')
            s(f's_mul_i32 s4, s2, 12\ns_add_u32 s4, s4, s3\ns_lshl_b32 s4, s4, 6\ns_add_u32 s4, s4, {W_STAMP}\nv_mov_b32 v1, 0')
            for k in range(4):
                for e in range(4): s(f'v_mov_b32 v{4+4*k+e}, s{ST0+4*k+e}')
                s(f'buffer_store_dwordx4 {Q4(4+4*k)}, v1, {WSR}, s4 offen offset:{16*k}')
        s('L_end:\ns_endpgm')

    def build(s):
        s.entry(); s.stream()
        for _ in range(s.o['shift']): s('s_endpgm')
        s('L_service:')
        s.roles()
        s('s_cmp_eq_u32 s3, 9\ns_cbranch_scc1 L_s1\ns_cmp_eq_u32 s3, 10\ns_cbranch_scc1 L_s2\ns_cmp_eq_u32 s3, 11\ns_cbranch_scc1 L_s3')
        s.s0(); s.bgather(); s('L_s1:'); s.s1(); s('L_s2:'); s.s2(); s('L_s3:'); s.s3(); s.crole(); s.drole(); s.exit()
        body, n = pad(s.L)
        out = [f'; @launch grid=(256,1,1) block=(768,1,1) lds={LEND}', '.amdgcn_target "amdgcn-amd-amdhsa--gfx950"', '.text',
               f'.globl {KN}', '.p2align 8', f'.type {KN},@function', f'{KN}:']
        out += [l if l.endswith(':') else '    ' + l for l in body]
        out += ['.section .rodata,"a"', '.p2align 6', f'.amdhsa_kernel {KN}', '  .amdhsa_next_free_vgpr 168', '  .amdhsa_next_free_sgpr 96',
                '  .amdhsa_accum_offset 168', '  .amdhsa_group_segment_fixed_size 0', '  .amdhsa_kernarg_size 112', '  .amdhsa_user_sgpr_count 2',
                '  .amdhsa_user_sgpr_kernarg_segment_ptr 1', '  .amdhsa_system_sgpr_workgroup_id_x 1', '  .amdhsa_float_denorm_mode_32 3', '.end_amdhsa_kernel']
        return '\n'.join(out) + '\n', n

if __name__ == '__main__':
    names = []
    for spec in sys.argv[1:]:
        kw = {}
        name, _, rest = spec.partition(':')
        for kv in filter(None, rest.split(',')):
            k, v = kv.split('=')
            kw[k] = int(v) if v.isdigit() else v.replace('+', ' ').replace('_', '')
        t, n = G(**kw).build()
        open(name, 'w').write(t)
        names.append(name)
    print(' '.join(names))
```

```python
import sys, struct
from asmlib import pad
KN = 'adaLN_cond__gqa_block_cached__swiglu_ffn__decode_kernel'

def f2u(x): return struct.unpack('<I', struct.pack('<f', x))[0]
def hx(x): return hex(f2u(x))
LOG2E = 1.4426950408889634
W_E, W_PG, W_MOD, W_XL, W_XC, W_ACT = 0, 0x800, 0x1000, 0x2000, 0x9000, 0xA000
W_X1, W_GL, W_AL, W_YL, W_Y, W_ATT, W_ML, W_MP, W_QP, W_END = 0x10000, 0x20000, 0x28000, 0x30000, 0x58000, 0x80000, 0x180000, 0x1A0000, 0x1E0000, 0x260000
W_STAMP = 512 << 20
LQ, LFLAG, LPRG, LMODE, LQF, LGO, LCNT, LXS, LHS, LO, LH2, LPO, LBIG = 0, 1536, 1544, 1552, 1556, 1560, 1568, 1664, 2304, 2816, 6144, 9216, 58368
LYO = LXS
LACT, LDP = LPO, LPO + 6144
OS = 768 + 64
HS = 1280 + 64
LM, LWQ, LB, LEND = LBIG, LBIG + 20480, LBIG + 51200, LBIG + 100352
P_X, P_K, P_V, P_WQ, P_WO, P_BX, P_G, P_U, P_D, P_C, P_WM, P_OUT, P_DBG, P_WS = range(16, 44, 2)
TAG, S_H, S_J, S_R, S_X, S_IDX, LOC, S_CS = 44, 45, 46, 47, 48, 49, 50, 51
WS = 52; RA = 56; RB = 60
S_ROLE = 15
S_DT = 14
SPIN = 13
SV = 12
ST0 = 80
WSR = f's[{WS}:{WS+3}]'; RAR = f's[{RA}:{RA+3}]'; RBR = f's[{RB}:{RB+3}]'
P = lambda r: f'v[{r}:{r+1}]'
Q4 = lambda r: f'v[{r}:{r+3}]'

class G:
    def __init__(s, **o):
        s.o = dict(F=3, NPF=12, RC=3, endF=5, endN=9, rot=6, wflag='nt', sflag='nt', spin=1 << 22, pslp=8, mlslp=32,
                   qF=63, mF=63, bF=1, cF=1, dF=1, cE=3, dE=3, bE=0, bEF=2, bonus=1, ord='0123', ordk='2301', wst=0, wF=3, up=1, upF=63, F0=3, N0=0, upe=0, qfirst=1, mfirst=1, Fm=3, Flom=2, far=0, emu=0, emin=5, emin2=4, shift=0, rown=1, pfy=0, pfa=0, rg=4, dg=1, rmiss=0, otouch=0, eg0=16, st0=112, qlight=0, glight=0, gmap=1, sep=0, dW=9, eg=182, xab=6, oflag='', warm=1, loc=1,
                   bal=1, stat1=130, cstep=6, bdel=18, n1=14, cstep2=6, bdel2=17, c0=6, bslp=24, Flo=2, bend=180,
                   stamps=0, stk='', phst=0, remap=0, diag=0, nox='')
        s.o.update(o); s.L = []; s.uid = 0; s.cur = '?'
    def __call__(s, t):
        for l in t.split('\n'):
            l = l.strip()
            if l: s.L.append(l)
    def lab(s, n): s.uid += 1; return f'L_{n}_{s.uid}'
    def srd(s, d, ptr, size):
        s(f's_mov_b32 s{d}, s{ptr}\ns_mov_b32 s{d+1}, s{ptr+1}\ns_mov_b32 s{d+2}, {size}\ns_mov_b32 s{d+3}, 0x20000')
    def stamp(s, k, lite=False):
        if s.o['stamps'] == 1 or (s.o['stamps'] and (lite or str(k) + s.cur in s.o['stk'])): s(f's_memrealtime s[{ST0+2*k}:{ST0+2*k+1}]')
    def bf16r(s, d, src=None):
        src = d if src is None else src
        s(f'v_cvt_pk_bf16_f32 v{d}, v{src}, v{src}\nv_and_b32 v{d}, 0xffff0000, v{d}')
    def dppop(s, op, v, ctl): s(f'{op}_dpp v{v}, v{v}, v{v} {ctl} row_mask:0xf bank_mask:0xf')
    def red16(s, op, vs, skip1=False, fill=None):
        for ctl in (['quad_perm:[1,0,3,2]'] if not skip1 else []) + ['quad_perm:[2,3,0,1]', 'row_half_mirror', 'row_mirror']:
            if fill:
                for _ in range(2):
                    if fill: s(fill.pop(0))
            for v in vs: s.dppop(op, v, ctl)
    def swapred(s, op, v, t, w, fill=None):
        s(f'v_mov_b32 v{t}, v{v}')
        if fill:
            for _ in range(2):
                if fill: s(fill.pop(0))
        s(f'v_permlane{w}_swap_b32 v{v}, v{t}\n{op} v{v}, v{v}, v{t}')
    def live(s, text):
        if not s.o['warm']: s(text); return
        l = s.lab('lv'); s(f's_cbranch_execz {l}'); s(text); s(f'{l}:')
    def warm(s, entry, ret):
        if not s.o['warm']: return
        for r in range(1, 8): s(f'v_mov_b32 v{r}, 0')
        s(f's_mov_b64 exec, 0\ns_branch {entry}\n{ret}:\ns_mov_b64 exec, -1')
    def warmret(s, ret):
        if s.o['warm']: s(f's_cbranch_execz {ret}')
    def ck_tag(s, groups, t):
        out = []; first = True
        for g in groups:
            l = []
            for r in g:
                l.append(f'v_xor_b32 v{t}, s{TAG}, v{r}' if first else f'v_bitop3_b32 v{t}, v{r}, s{TAG}, v{t} bitop3:0xbe'); first = False
            out.append('\n'.join(l))
        return out, t
    def ck_xor(s, bases, n, t, t2):
        out = []
        for i, b in enumerate(bases):
            l = [f'v_bitop3_b32 v{t2}, v{b}, v{b+1}, v{b+2} bitop3:0x96']
            if n == 3: l.append(f'v_xor_b32 v{t2}, v{t2}, v{b+3}')
            l.append(f'v_xor_b32 v{t}, s{TAG}, v{t2}' if i == 0 else f'v_bitop3_b32 v{t}, v{t2}, s{TAG}, v{t} bitop3:0xbe')
            out.append('\n'.join(l))
        return out, t
    def poll(s, loads, ck, slp=0, warmable=False, nm='?', slpif=None, spin=None, pre=None):
        if nm in s.o['nox']: return
        checks, t = ck
        a = s.lab('poll'); b = s.lab('ok')
        s(f's_mov_b32 s{SPIN}, {spin or s.o["spin"]}')
        c0 = s.lab('chk')
        if pre: s('\n'.join(loads)); s(pre); s(f's_branch {c0}')
        s(f'{a}:')
        (s.live if warmable else s)('\n'.join(loads))
        if pre: s(f'{c0}:')
        for i, c in enumerate(checks): s(f's_waitcnt vmcnt({len(loads) - 1 - i})'); s(c)
        s(f'v_cmp_ne_u32 vcc, 0, v{t}\ns_cbranch_vccz {b}')
        if slpif: c = s.lab('ns'); s(f'{slpif}\ns_cbranch_scc1 {c}\ns_sleep {s.o["mlslp"]}\n{c}:')
        if slp: s(f's_sleep {slp}')
        s(f's_sub_u32 s{SPIN}, s{SPIN}, 1\ns_cbranch_scc0 {a}\n{b}:')
    def gather(s, loads, cks, sm, slp=0, nm='?'):
        if nm in s.o['nox']: return
        n = len(loads); a = s.lab('gat'); b = s.lab('ok')
        s(f's_mov_b32 s{SPIN}, {s.o["spin"]}\ns_mov_b32 s{sm}, {(1 << n) - 1}\n{a}:')
        for k in range(n):
            l = s.lab('sk'); s(f's_bitcmp1_b32 s{sm}, {k}\ns_cbranch_scc0 {l}\n{loads[k]}\n{l}:')
        s(f's_mov_b32 s{sm}, 0\ns_waitcnt vmcnt(0)')
        for k in reversed(range(n)):
            s(cks[k][0][0]); s(f'v_cmp_ne_u32 vcc, 0, v{cks[k][1]}\ns_cmp_lg_u64 vcc, 0\ns_addc_u32 s{sm}, s{sm}, s{sm}')
        s(f's_cmp_eq_u32 s{sm}, 0\ns_cbranch_scc1 {b}')
        if slp: s(f's_sleep {slp}')
        s(f's_sub_u32 s{SPIN}, s{SPIN}, 1\ns_cbranch_scc0 {a}\n{b}:')
    def gstore(s, stores, nm='?'):
        if nm in s.o['nox']: return
        a = s.lab('pl'); b = s.lab('st')
        s(f's_cmp_eq_u32 s{LOC}, 1\ns_cbranch_scc1 {a}')
        for t in stores: s(t + ' sc1')
        s(f's_branch {b}\n{a}:')
        for t in stores: s(t)
        s(f'{b}:')
    def getloc(s, t, spin=True, at=LFLAG):
        a = s.lab('loc'); b = s.lab('locok')
        if spin: s(f's_mov_b32 s{SPIN}, {s.o["spin"] * 8}\n{a}:')
        s(f'v_mov_b32 v{t}, {at}\nds_read_b32 v{t}, v{t}\ns_waitcnt lgkmcnt(0)\nv_readfirstlane_b32 s{LOC}, v{t}\ns_sub_u32 s{LOC}, s{LOC}, s{TAG}')
        if spin: s(f's_cmp_le_u32 s{LOC}, 1\ns_cbranch_scc1 {b}\ns_sleep 1\ns_sub_u32 s{SPIN}, s{SPIN}, 1\ns_cbranch_scc0 {a}\n{b}:')
    def dma(s, n, voff, srd, soff, sstep, lds, F):
        out = []
        for t in range(n):
            st = sstep(t) if callable(sstep) else sstep
            out.append(lds(t) if callable(lds) else f's_mov_b32 m0, {lds + 1024 * t}')
            if F < 60: out.append(f's_waitcnt vmcnt({F - 1})')
            out.append(f'buffer_load_dwordx4 v{voff}, s[{srd}:{srd+3}], s{soff} offen {s.o["wflag"]} lds')
            if t < n - 1: out.append(f's_add_u32 s{soff}, s{soff}, {st}')
        return '\n'.join(out)
    def rows(s, d, t, sh, stride):
        s(f'v_lshrrev_b32 v{d}, {sh}, v0\nv_mul_u32_u24 v{d}, {stride}, v{d}\nv_and_b32 v{t}, {(1 << sh) - 1}, v0\nv_lshl_add_u32 v{d}, v{t}, 4, v{d}')
    def tr_lane(s, d, t, gs, rs):
        s(f'v_lshrrev_b32 v{d}, 4, v0\nv_mul_u32_u24 v{d}, {gs}, v{d}')
        s(f'v_bfe_u32 v{t}, v0, 2, 2\nv_mul_u32_u24 v{t}, {rs}, v{t}\nv_add_u32 v{d}, v{d}, v{t}')
        s(f'v_and_b32 v{t}, 3, v0\nv_lshl_add_u32 v{d}, v{t}, 3, v{d}')
    def a_lane(s, d, t, bs, gs, base):
        s(f'v_and_b32 v{d}, 1, v0\nv_mul_u32_u24 v{d}, {bs}, v{d}\nv_lshrrev_b32 v{t}, 4, v0\nv_mul_u32_u24 v{t}, {gs}, v{t}')
        s(f'v_add_u32 v{d}, v{d}, v{t}')
        if base: s(f'v_add_u32 v{d}, {base}, v{d}')
    def mfma(s, d, a, b, first, k=32):
        n = 4 if k == 32 else 2
        s(f'v_mfma_f32_16x16x{k}_bf16 v[{d}:{d+3}], v[{a}:{a+n-1}], v[{b}:{b+n-1}], ' + ('0' if first else f'v[{d}:{d+3}]'))
    def role(s, bit, label, ifset=True): s(f's_bitcmp1_b32 s{S_ROLE}, {bit}\ns_cbranch_scc{1 if ifset else 0} {label}')
    def end(s): s('s_branch L_exit' if s.o['stamps'] else 's_endpgm')
    def ghead(s, d):
        if s.o['gmap']: s(f's_lshr_b32 s{d}, s2, 7\ns_lshl3_add_u32 s{d}, s{d}, s{S_X}')
        else: s(f's_lshr_b32 s{d}, s{S_H}, 1')
    def tagwait(s): s(f's_waitcnt lgkmcnt(0)\ns_add_u32 s{TAG}, s{TAG}, 0x9e3779b1')

    def entry(s):
        o = s.o
        s(f's_cmp_ge_u32 s2, 256\ns_cbranch_scc1 L_end')
        s.stamp(0, True)
        s('s_load_dwordx16 s[16:31], s[0:1], 0\ns_load_dwordx8 s[32:39], s[0:1], 64\ns_load_dwordx4 s[40:43], s[0:1], 96')
        if o['diag']: s('s_memrealtime s[78:79]')
        s('v_readfirstlane_b32 s3, v0\nv_and_b32 v0, 63, v0')
        if o['remap']: s('s_lshr_b32 s4, s2, 3\ns_and_b32 s4, s4, 7\ns_xor_b32 s2, s2, s4')
        s(f's_and_b32 s{S_X}, s2, 7\ns_lshr_b32 s4, s2, 6\ns_bfe_u32 s{S_J}, s2, 0x30003\ns_lshl2_add_u32 s{S_H}, s{S_X}, s4\ns_lshr_b32 s3, s3, 6')
        s('s_cmp_ge_u32 s3, 8\ns_cbranch_scc1 L_service')

    def roles(s):
        o = s.o
        for k in range(1, 8): s.stamp(k, True)
        s(f's_lshr_b32 s{S_IDX}, s2, 3\ns_lshr_b32 s11, s2, 6')
        lb = s.lab('nonB'); lr = s.lab('roles')
        s(f's_mov_b32 s{S_DT}, 0\ns_mov_b32 s{SV}, s3')
        s(f's_cmp_lt_u32 s{S_J}, 5\ns_cbranch_scc0 {lb}')
        if o['rown']:
            s(f's_and_b32 s9, s11, 1\ns_mul_i32 s{S_CS}, s9, 5\ns_add_u32 s{S_CS}, s{S_CS}, s{S_J}\ns_and_b32 s9, s11, 2\ns_lshl2_add_u32 s{S_CS}, s{S_CS}, s9\ns_and_b32 s9, s3, 1\ns_add_u32 s{S_CS}, s{S_CS}, s9')
        else: s(f's_mul_i32 s{S_CS}, s11, 5\ns_add_u32 s{S_CS}, s{S_CS}, s{S_J}\ns_lshl_b32 s{S_CS}, s{S_CS}, 1\ns_and_b32 s9, s3, 1\ns_add_u32 s{S_CS}, s{S_CS}, s9')
        s(f's_mov_b32 s{S_ROLE}, 1\ns_branch {lr}')
        s(f'{lb}:')
        s(f's_mul_i32 s8, s11, 3\ns_add_u32 s8, s8, s{S_J}\ns_sub_u32 s8, s8, 5')
        s(f's_mul_i32 s{S_CS}, s{S_X}, 6\ns_add_u32 s{S_CS}, s{S_CS}, s8')
        s(f's_add_u32 s9, s8, 10\ns_and_b32 s9, s9, 14\ns_lshl_b32 s10, s9, 2\ns_add_u32 s10, s10, s{S_X}')
        s(f's_lshl_b32 s{S_DT}, s10, 1\ns_and_b32 s9, s8, 1\ns_add_u32 s{S_DT}, s{S_DT}, s9')
        s(f's_cmp_lt_u32 s10, 10\ns_cselect_b32 s{S_ROLE}, 8, 0')
        s(f's_cmp_lt_u32 s8, 6\ns_cselect_b32 s{S_ROLE}, 2, s{S_ROLE}')
        s(f'{lr}:')
        s('s_waitcnt lgkmcnt(0)')
        s(f's_load_dword s{TAG}, s[{P_WS}:{P_WS+1}], 0')
        s.srd(WS, P_WS, 805306368 if o['stamps'] else W_END)

    def stream(s):
        s.cur = 'w'
        o = s.o; F = o['F']; NPF = o['NPF']
        VK, QA, ACC, TS, MX = 1, 4, 16, 2, 3
        RING = 24
        SC = RING
        T1, T2, LS, PPT = RING + 8, RING + 9, RING + 10, RING + 11
        MK = RING + 12
        VV, BP, PP2, T3 = RING + 16, RING + 17, RING + 18, RING + 19
        ML = RING + 20
        RET = 7
        BM, BA, BZ = RING + 24, RING + 25, RING + 26
        A2 = []
        s(f'v_bfe_u32 v{VK}, v0, 1, 3\nv_mul_u32_u24 v{VK}, 384, v{VK}\nv_lshrrev_b32 v2, 4, v0\nv_lshl_add_u32 v{VK}, v2, 5, v{VK}')
        s(f'v_and_b32 v2, 1, v0\nv_lshl_add_u32 v{VK}, v2, 4, v{VK}')
        PD = 16 * 3145728; STEP = 393216; OV = [int(c) for c in str(o['ord']).zfill(4)]
        OD = [int(c) for c in str(o['ordk'] or o['ord']).zfill(4)] + OV
        s(f's_bfe_u32 s7, s2, 0x40003\ns_lshl3_add_u32 s7, s7, s3\ns_mul_i32 s4, s7, 3072'); s.ghead(10)
        s(f's_mul_i32 s5, s10, 3145728\ns_add_u32 s4, s4, s5\ns_add_u32 s4, s4, {OD[0] * PD}\ns_add_u32 s6, s4, 3145728')
        s(f's_mul_i32 s5, s10, {o["rot"]}\ns_and_b32 s5, s5, 7\ns_mul_i32 s5, s5, {STEP}\ns_add_u32 s5, s5, s4')
        s(f's_mov_b32 s{RA+2}, 201326592\ns_mov_b32 s{RA+3}, 0x20000\ns_waitcnt lgkmcnt(0)\ns_mov_b64 s[{RA}:{RA+1}], s[{P_K}:{P_K+1}]')
        def emu(both=True):
            if o['emu']:
                s(f's_cmp_ge_u32 s4, {43 * 3145728}\ns_cselect_b64 s[{RA}:{RA+1}], s[{P_BX}:{P_BX+1}], s[{P_K}:{P_K+1}]')
                if both: s(f's_cselect_b64 s[{RB}:{RB+1}], s[{P_DBG}:{P_DBG+1}], s[{P_V}:{P_V+1}]')
        emu(False)
        NL = 192
        quad = {}; free = list(range(3 * NPF)); vm = []
        done = [0]
        def wait(n):
            if len(vm) - done[0] > n:
                s(f's_waitcnt vmcnt({n})'); done[0] = len(vm) - n
        def issue(u):
            wait((o['endF'] if u >= NL - o['endN'] else o['F0'] if u < o['N0'] else o['Fm'] if OD[u // 24] == 2 else F) - 1)
            if o['bal'] and 3 * NPF + 9 <= u < NL - o['endN']:
                l = s.lab('th'); s(f's_cbranch_vccz {l}\ns_waitcnt vmcnt({(o["Flom"] if OD[u // 24] == 2 else o["Flo"]) - 1})')
                if o['far']: s(f's_cmp_eq_u64 s[72:73], 0\ns_cbranch_scc1 {l}\ns_waitcnt vmcnt(0)')
                s(f'{l}:')
            q = free.pop(0); quad[u] = q; r = RING + 4 * q
            srd, vo = (RAR, VK) if u < 96 else (RBR, VV)
            s(f'buffer_load_dwordx4 {Q4(r)}, v{vo}, {srd}, s5 offen offset:{128 * (u % 3)} {o["sflag"]}')
            vm.append(u)
            if u % 3 == 2 and u < NL - 1:
                s(f's_add_u32 s5, s5, {STEP}\ns_cmp_ge_u32 s5, s6\ns_cselect_b32 s5, s4, s5')
                if u % 24 == 23:
                    t = u // 24; dl = OD[t + 1] - OD[t]
                    for r in (4, 5, 6): s(f's_{"add" if dl > 0 else "sub"}_u32 s{r}, s{r}, {abs(dl) * PD}')
                    emu()
                if o['phst'] == 1 and u % 48 == 47: s.stamp({47: 3, 95: 5, 143: 6}[u], True)
                if o['phst'] == 2 and u in (95, 119, 143): s.stamp({95: 3, 119: 5, 143: 6}[u], True)
            if u >= 3 * NPF + 3:
                if u >= 3 * NPF + 6:
                    s('s_waitcnt lgkmcnt(0)')
                    if o['far']: s(f'v_cmp_gt_u32 vcc, {u + 1 - o["far"]}, v{BM}\ns_mov_b64 s[72:73], vcc')
                    s(f'v_cmp_gt_u32 vcc, {u + 1}, v{BM}')
                s(f'v_mov_b32 v{BM}, {u + 1}\nds_write_b32 v{BA}, v{BM} offset:{LPRG}\nds_read_b32 v{BM}, v{BZ} offset:{LMODE}')
        def ready(u): return u in vm and vm.index(u) < done[0]
        def kpost(g):
            a = ACC + 4 * (g & 1); sc = SC + (g >> 2)
            s(f'v_cndmask_b32_e64 v{TS}, v{a}, v{a+1}, s[8:9]')
            s(f'v_add_f32_dpp v{sc}, v{TS}, v{TS} quad_perm:[1,0,3,2] row_mask:{1 << (g & 3)} bank_mask:0xf')
            if g & 3 == 3:
                s.bf16r(sc); s(f'v_mul_f32 v{sc}, {hx(192 ** -0.5)}, v{sc}'); s.bf16r(sc)
            if g & 7 == 7:
                a = sc - 1; row = f'quad_perm:[0,1,2,3] row_mask:{1 << OV.index(OD[g >> 3])} bank_mask:0xf'
                s(f'v_max_f32 v{MX}, v{a}, v{a+1}')
                s.red16('v_max_f32', [MX], skip1=True); s.swapred('v_max_f32', MX, T1, 16); s.swapred('v_max_f32', MX, T1, 32)
                s(f's_mov_b32 s10, {hx(LOG2E)}\nv_mul_f32 v{T1}, s10, v{MX}')
                for k in range(2): s(f'v_fma_f32 v{a+k}, v{a+k}, s10, -v{T1}')
                for k in range(2): s(f'v_exp_f32 v{a+k}, v{a+k}')
                s(f'v_mov_b32_dpp v{ML}, v{MX} {row}\nv_add_f32 v{LS}, v{a}, v{a+1}')
                for k in range(2): s(f'v_cvt_pk_bf16_f32 v{a+k}, v{a+k}, v{a+k}')
                s.red16('v_add_f32', [LS], skip1=True); s.swapred('v_add_f32', LS, T1, 16); s.swapred('v_add_f32', LS, T1, 32)
                s(f'v_mov_b32_dpp v{ML+1}, v{LS} {row}')
        def bperm(g):
            s(f'ds_bpermute_b32 v{PPT if g & 1 == 0 else PP2}, v{BP}, v{SC + 2 * OD.index(OV[g >> 3]) + (g >> 2 & 1)} offset:{64 * (g & 3)}')
        def switch():
            s.stamp(3)
            bperm(0)
            s(f'v_bitop3_b32 v{ML+2}, v{ML}, v{ML+1}, s{TAG} bitop3:0x96\nv_lshlrev_b32 v{ML+3}, 7, v0')
            s(f's_lshr_b32 s10, s{S_H}, 1\ns_lshl_b32 s10, s10, 9\ns_add_u32 s10, s10, s7\ns_lshl_b32 s10, s10, 4\ns_add_u32 s10, s10, {W_ML}')
            s('s_mov_b32 exec_lo, 0x00010001\ns_mov_b32 exec_hi, 0x00010001')
            s.gstore([f'buffer_store_dwordx4 {Q4(ML)}, v{ML+3}, {WSR}, s10 offen'])
            s('s_mov_b64 exec, -1')
            vm.append(None)
            s(f'v_lshrrev_b32 v{T1}, 5, v0\nv_mul_u32_u24 v{T1}, 768, v{T1}\nv_and_b32 v{T2}, 7, v0\nv_lshl_add_u32 v{T1}, v{T2}, 5, v{T1}')
            s(f'v_and_b32 v{T2}, 16, v0\nv_add_u32 v{T1}, v{T1}, v{T2}\ns_mul_i32 s10, s3, 1536\ns_add_u32 s10, s10, {LPO}\nv_add_u32 v{T1}, s10, v{T1}')
        def outp(acc, b):
            s('s_mov_b32 exec_lo, 0x00ff00ff\ns_mov_b32 exec_hi, 0xff00ff00')
            for jj in range(3): s(f'ds_write_b128 v{T1}, {Q4(acc[jj])} offset:{256*jj + 12288*b}')
            s('s_mov_b64 exec, -1')
        def proc(u):
            g, jj = divmod(u, 3)
            if g >= 32 and jj == 0:
                a = ACC + 4 * (g & 1)
                s('s_waitcnt lgkmcnt(0)')
                for k in range(4): s(f'v_and_b32 v{a+k}, v{PPT if g & 1 == 0 else PP2}, v{MK+k}')
                if g < 63: bperm(g - 31)
            wait(len(vm) - 1 - vm.index(u))
            r = RING + 4 * quad[u]
            if g < 32:
                s.mfma(ACC + 4 * (g & 1), QA + 4 * jj, r, jj == 0)
                if jj == 2 and g > 0: kpost(g - 1)
                if u == 5:
                    s(f'v_lshrrev_b32 v{BP}, 3, v0\nv_mul_u32_u24 v{VV}, 384, v{BP}\nv_lshlrev_b32 v{BP}, 3, v{BP}')
                    s(f'v_and_b32 v{T3}, 7, v0\nv_lshl_add_u32 v{VV}, v{T3}, 4, v{VV}')
                    s(f'v_and_b32 v{PP2}, 1, v0\nv_lshlrev_b32 v{PP2}, 4, v{PP2}\nv_mov_b32 v{MK}, 0xffff\nv_lshlrev_b32 v{PP2}, v{PP2}, v{MK}')
                    s(f'v_lshrrev_b32 v{T3}, 1, v{T3}')
                    for k in range(4):
                        s(f'v_cmp_eq_u32 vcc, {k}, v{T3}\nv_cndmask_b32 v{MK+k}, 0, v{PP2}, vcc')
                    s.a_lane(T3, PP2, 16, 32, LQ)
                if u in (23, 47, 71):
                    for k in range(3): s(f'ds_read_b128 {Q4(QA+4*k)}, v{T3} offset:{128*k + 384*OD[(u+1)//24]}')
                    s('s_waitcnt lgkmcnt(0)')
                if u == 6:
                    s(f's_cmp_eq_u32 s3, 3\ns_cselect_b32 s10, 0, 4\nv_mov_b32 v{BA}, s10\nv_mov_b32 v{BZ}, 0')
                if u == 95: kpost(31); switch()
            else:
                if u == 120: A2.extend(RING + 4 * free.pop() for _ in range(3))
                acc = lambda p: A2 if p & 1 else [QA, QA + 4, QA + 8]
                p = (g - 32) >> 3
                s.mfma(acc(p)[jj], ACC + 4 * (g & 1), r, g & 7 == 0)
                if u >= 190:
                    s(f's_mov_b32 exec_lo, 0x00ff00ff\ns_mov_b32 exec_hi, 0xff00ff00\nds_write_b128 v{T1}, {Q4(A2[jj-1])} offset:{256*(jj-1) + 3*12288}')
                    if u == 190: s('s_mov_b64 exec, -1')
                if p and u % 24 == 2:
                    outp(acc(p - 1), p - 1)
                    s(f's_mov_b64 exec, 1\nv_mov_b32 v{T2}, 1\nds_add_u32 v{BZ}, v{T2} offset:{LCNT + 4*(p-1)}\ns_mov_b64 exec, -1')
            if quad[u] >= RET: free.append(quad[u])
        li = 0
        if o['wst']:
            s.roles()
            s.wstage()
            vm.extend([None] * F)
        if o['sep']:
            s.roles(); s.tagwait(); s.ldswait(LGO, TS)
        while li < 3 * NPF:
            issue(li); li += 1
            if li == (min(F, o['F0']) if o['N0'] else F):
                if not o['sep'] and not o['wst']: s.roles()
                s.srd(RB, P_V, 201326592)
                if o['mfirst'] and not o['wst']: s('s_barrier')
            if li == F + 1:
                s('s_mov_b32 s8, 0xaaaaaaaa\ns_mov_b32 s9, 0xaaaaaaaa'); s.a_lane(TS, MX, 16, 32, LQ)
                if not o['sep']: s.tagwait()
        s.stamp(1, True)
        s('s_barrier')
        s.stamp(2, True)
        for jj in range(3): s(f'ds_read_b128 {Q4(QA+4*jj)}, v{TS} offset:{128*jj + 384*OD[0]}')
        s.getloc(MX, spin=False)
        pi = 0
        while pi < NL:
            if li < NL:
                while not free: proc(pi); pi += 1
                issue(li); li += 1
                n = 0
                while n < o['RC'] and pi < NL and ready(pi): proc(pi); pi += 1; n += 1
            else:
                proc(pi); pi += 1
        s(f'ds_write_b128 v{T1}, {Q4(A2[2])} offset:{512 + 3*12288}\ns_mov_b64 exec, -1')
        s('s_waitcnt lgkmcnt(0)')
        s.stamp(4, True)
        s('s_barrier')
        s.role(3, 'L_D'); s.role(1, 'L_C'); s.role(0, 'L_exit', False)
        s(f'L_B:\ns_cmp_lt_u32 s{SV}, 4\ns_cbranch_scc0 L_exit')
        BW, AW, D = 40, 88, 136
        s.tr_lane(2, 3, 1024, 128)
        s(f'v_bfe_u32 v3, v0, 3, 2\nv_xor_b32 v3, s{SV}, v3\nv_lshl_add_u32 v2, v3, 5, v2\nv_add_u32 v2, {LB}, v2')
        for T in range(12):
            for hi in range(2): s(f'ds_read_b64_tr_b16 {P(BW+4*T+2*hi)}, v2 offset:{4096*T + 512*hi}')
        s(f'v_and_b32 v3, 3, v0\nv_mul_u32_u24 v3, {OS}, v3\nv_and_b32 v4, 48, v0\nv_add_u32 v3, v3, v4\nv_add_u32 v3, {LO}, v3')
        for T in range(6): s(f'ds_read_b128 {Q4(AW+4*T)}, v3 offset:{64*T}')
        s(f'v_lshlrev_b32 v4, 4, v0')
        s(f's_lshr_b32 s10, s{S_H}, 1\ns_mul_i32 s10, s10, 40\ns_and_b32 s11, s{S_H}, 1\ns_mul_i32 s11, s11, 5\ns_add_u32 s11, s11, s{S_J}')
        s(f's_lshl2_add_u32 s10, s11, s10\ns_add_u32 s10, s10, s{SV}\ns_lshl_b32 s10, s10, 8\ns_add_u32 s10, s10, {W_Y}\ns_sub_u32 s11, s10, {W_Y - W_YL}')
        if o['rown']: s(f's_lshl_b32 s9, s{SV}, 7\ns_add_u32 s9, s9, {LYO}\nv_lshl_add_u32 v5, v0, 3, s9')
        s('s_waitcnt lgkmcnt(0)')
        for T in range(6): s.mfma(D, AW + 4 * T, BW + 4 * T, T == 0)
        s.live('s_barrier')
        s.stamp(5)
        for T in range(6, 12): s(f'ds_read_b128 {Q4(AW+4*T)}, v3 offset:{64*T}')
        for T in range(6, 12):
            s(f's_waitcnt lgkmcnt({11-T})'); s.mfma(D, AW + 4 * T, BW + 4 * T, False)
        s.warmret('L_wB')
        s(f's_mov_b64 exec, 0xffff\nv_pk_add_f32 {P(D)}, {P(D)}, {P(D+2)}\nv_bitop3_b32 v{D+2}, v{D}, v{D+1}, s{TAG} bitop3:0x96')
        st = [f'buffer_store_dwordx4 {Q4(D)}, v4, {WSR}, s10 offen sc1', f'buffer_store_dwordx4 {Q4(D)}, v4, {WSR}, s11 offen']
        s('\n'.join(st[::-1] if o['pfy'] else st))
        if o['rown']: s(f'ds_write_b64 v5, {P(D)}\ns_waitcnt lgkmcnt(0)')
        s.stamp(6)
        if o['rg']: s('s_barrier')
        s.end()

    def s0(s):
        s.cur = 'a'
        o = s.o
        lsk = s.lab('noM'); lj = s.lab('Mj'); ln = s.lab('Mn')
        s(f's_lshr_b32 s4, s{S_IDX}, 2\ns_lshl_b32 s4, s4, 3\ns_add_u32 s4, s4, s{S_X}')
        s(f's_cmp_lt_u32 s4, 60\ns_cbranch_scc0 {lsk}')
        s(f's_and_b32 s7, s{S_IDX}, 3')
        s.srd(RA, P_C, 2560); s.srd(RB, P_WM, 640 * 7680)
        s('v_min_u32 v1, 39, v0\nv_cmp_lt_u32 vcc, 19, v1\nv_lshlrev_b32 v1, 4, v1\nv_mov_b32 v3, 960\nv_cndmask_b32 v3, 0, v3, vcc\nv_add_u32 v3, v3, v1')
        s(f's_mul_i32 s5, s7, 320\nbuffer_load_dwordx4 v[8:11], v3, {RAR}, s5 offen')
        s.rows(2, 3, 3, 7680)
        s(f's_mul_i32 s5, s7, {160 * 7680}\ns_lshl_b32 s6, s4, 7\ns_add_u32 s5, s5, s6')
        s(s.dma(20, 2, RB, 5, 8 * 7680, LM, o['mF']))
        if o['mfirst']: s('s_barrier')
        s('s_waitcnt vmcnt(20)')
        s(f's_mov_b32 s6, {hx(-LOG2E)}')
        for k in range(4): s(f'v_lshlrev_b32 v{20+2*k}, 16, v{8+k}\nv_and_b32 v{21+2*k}, 0xffff0000, v{8+k}')
        for k in range(8): s(f'v_mul_f32 v{40+k}, s6, v{20+k}')
        for k in range(8): s(f'v_exp_f32 v{40+k}, v{40+k}')
        for k in range(8): s(f'v_add_f32 v{40+k}, 1.0, v{40+k}')
        for k in range(8): s(f'v_min_f32 v{40+k}, 0x7f000000, v{40+k}')
        for k in range(8): s(f'v_rcp_f32 v{48+k}, v{40+k}')
        for k in range(8): s(f'v_mul_f32 v{56+k}, v{20+k}, v{48+k}')
        for k in range(8): s(f'v_fma_f32 v{20+k}, -v{56+k}, v{40+k}, v{20+k}')
        for k in range(8): s(f'v_fma_f32 v{20+k}, v{20+k}, v{48+k}, v{56+k}')
        for k in range(4): s(f'v_cvt_pk_bf16_f32 v{8+k}, v{20+2*k}, v{21+2*k}')
        s(f'ds_write_b128 v1, v[8:11] offset:{LXS}')
        s.a_lane(4, 5, 320, 16, LXS)
        s.tr_lane(5, 6, 1024, 128); s(f'v_add_u32 v5, {LM}, v5')
        A, B, D = 12, 48, 32
        s.tagwait()
        for T in range(5): s(f'ds_read_b128 {Q4(A+4*T)}, v4 offset:{64*T}')
        l = s.lab('ini')
        s(f's_cmp_eq_u32 s{S_IDX}, 0\ns_cbranch_scc0 {l}\ns_lshl_b32 s5, s{S_X}, 7\ns_add_u32 s5, s5, {W_PG}\ns_add_u32 s6, s{TAG}, 999')
        s(f'v_and_b32 v1, 31, v0\nv_lshlrev_b32 v1, 2, v1\nv_mov_b32 v6, s6\nbuffer_store_dword v6, v1, {WSR}, s5 offen\n{l}:')
        s(f'v_lshlrev_b32 v1, 4, v0\ns_mul_i32 s5, s7, {3840 * 16}\ns_lshl_b32 s6, s4, 10\ns_add_u32 s5, s5, s6\ns_add_u32 s5, s5, {W_MP}')
        s.rows(2, 3, 4, 3840 * 16)
        s(f's_lshl_b32 s4, s4, 2\ns_add_u32 s4, s4, s7\ns_lshl_b32 s6, s4, 8\ns_add_u32 s6, s6, {W_MP}')
        s('s_waitcnt vmcnt(0)')
        s.stamp(1)
        for T in range(5):
            for ct in range(4):
                for hi in range(2): s(f'ds_read_b64_tr_b16 {P(B + 16*T + 4*ct + 2*hi)}, v5 offset:{4096*T + 512*hi + 32*ct}')
            if T:
                s('s_waitcnt lgkmcnt(8)')
                for ct in range(4): s.mfma(D + 4 * ct, A + 4 * (T - 1), B + 16 * (T - 1) + 4 * ct, T == 1)
        s('s_waitcnt lgkmcnt(0)')
        for ct in range(4): s.mfma(D + 4 * ct, A + 16, B + 64 + 4 * ct, False)
        for ct in range(1, 4):
            for b in range(2): s(f'v_mov_b32_dpp v{D+b}, v{D+4*ct+b} quad_perm:[0,1,2,3] row_mask:{1 << ct} bank_mask:0xf')
        s(f'v_bitop3_b32 v{D+2}, v{D}, v{D+1}, s{TAG} bitop3:0x96')
        l2 = s.lab('M2')
        s(f's_cmp_lt_u32 s4, 80\ns_cbranch_scc0 {l2}')
        if 'P' not in o['nox']: s(f'buffer_store_dwordx4 {Q4(D)}, v1, {WSR}, s5 offen sc1')
        s.stamp(2)
        s(f's_branch {ln}\n{l2}:')
        s.getloc(6)
        s.gstore([f'buffer_store_dwordx4 {Q4(D)}, v1, {WSR}, s5 offen'], nm='m')
        s.stamp(2)
        s('s_barrier')
        s.poll([f'buffer_load_dwordx3 v[4:6], v2, {WSR}, s6 offen sc1'], s.ck_xor([4], 2, 8, 9), slp=o['mlslp'], nm='m')
        for w in (32, 16):
            s.swapred('v_add_f32', 4, 8, w); s.swapred('v_add_f32', 5, 9, w)
        s(f'v_cvt_pk_bf16_f32 v4, v4, v5\nv_mov_b32 v5, s{TAG}\nv_lshlrev_b32 v3, 3, v0\ns_lshl_b32 s5, s4, 7\ns_add_u32 s5, s5, {W_MOD}')
        s(f's_mov_b64 exec, 0xffff\nbuffer_store_dwordx2 v[4:5], v3, {WSR}, s5 offen sc1\ns_mov_b64 exec, -1')
        s(f's_branch {lj}\n{lsk}:\n' + ('s_barrier' if o['mfirst'] else '')); s.tagwait(); s(f'{ln}:\ns_barrier'); s.getloc(6, spin=False); s(f'{lj}:')
        s.waitprog(o['st0'], 1)
        s('s_mov_b32 s5, 0\nL_pair:')
        s.stats()
        s.stamp(3)
        l = s.lab('cnt')
        s(f's_lshl_b32 s8, s5, 2\nv_mov_b32 v4, s8\ns_mov_b32 s{SPIN}, {o["spin"]}\n{l}:\ns_sleep {o["pslp"]}\nds_read_b32 v5, v4 offset:{LCNT}\ns_sub_u32 s{SPIN}, s{SPIN}, 1\ns_waitcnt lgkmcnt(0)')
        s(f'v_readfirstlane_b32 s8, v5\ns_cselect_b32 s8, 8, s8\ns_cmp_lt_u32 s8, 8\ns_cbranch_scc1 {l}')
        s('L_T0:')
        s.stamp(4)
        T = 16
        for k in range(24): s(f'ds_read2st64_b32 {P(T+2*k)}, v1 offset0:{2*k} offset1:{2*k+1}')
        for w in range(8):
            if w >= 3: s(f's_waitcnt lgkmcnt({3 * (7 - w)})')
            elif w == 0: s('s_waitcnt lgkmcnt(15)')
            f = f's[{64 + (w & 6)}:{65 + (w & 6)}]'; e = w & 1
            for c in range(3):
                r = T + 6 * w + 2 * c; a = (8, 10, 12)[c]
                s(f'v_pk_mul_f32 {P(a)}, {P(r)}, {f} op_sel:[0,{e}] op_sel_hi:[1,{e}]' if w == 0 else
                  f'v_pk_fma_f32 {P(a)}, {P(r)}, {f}, {P(a)} op_sel:[0,{e},0] op_sel_hi:[1,{e},1]')
        s('v_add_f32 v8, v8, v11\nv_add_f32 v9, v9, v12\nv_add_f32 v10, v10, v13')
        s(f'v_bitop3_b32 v11, v8, v9, v10 bitop3:0x96\nv_xor_b32 v11, s{TAG}, v11')
        s.gstore([f'buffer_store_dwordx4 v[8:11], v2, {WSR}, s4 offen'])
        s.stamp(5)
        l = s.lab('early'); l2 = s.lab('next'); l3 = s.lab('fin')
        s(f's_cmp_eq_u32 s5, 3\ns_cbranch_scc0 {l}')
        s.role(0, 'L_Bg'); s.role(3, 'L_D'); s.role(1, 'L_exit', False)
        s('s_barrier')
        s.end()
        s(f'{l}:')
        s.role(0, l2, False)
        s(f's_mul_i32 s9, s5, 24\ns_add_u32 s9, s9, {120 + o["eg0"]}\ns_min_u32 s9, s9, {o["eg"]}')
        s.waitprog('s9', 12, o['pslp'])
        s.gath(2, o['pslp'])
        s(f'{l2}:\ns_add_u32 s5, s5, 1\ns_cmp_lt_u32 s5, 3\ns_cbranch_scc1 L_pair')
        s.role(0, l3); s.role(3, 'L_exit', False)
        s(f's_barrier\ns_branch L_D\n{l3}:')
        s(f's_add_u32 s6, s6, 16384\ns_add_u32 s7, s6, 4096\nv_lshlrev_b32 v3, 1, v0\nv_add_u32 v3, {LO + 384 + OS * (int(str(o["ord"])[-1]) >> 1)}, v3\ns_waitcnt lgkmcnt(0)\ns_barrier')

    def stats(s):
        s(f'v_lshlrev_b32 v2, 4, v0\ns_lshr_b32 s6, s{S_H}, 1\ns_lshl2_add_u32 s6, s6, s5\ns_lshl_b32 s4, s6, 11\ns_add_u32 s4, s4, {W_ML}')
        s.poll([f'buffer_load_dwordx3 v[{4+4*k}:{6+4*k}], v2, {WSR}, s4 offen offset:{1024*k} sc1' for k in range(2)], s.ck_xor([4, 8], 2, 12, 13), slp=s.o['mlslp'])
        s('v_max_f32 v12, v4, v8')
        s.red16('v_max_f32', [12]); s.swapred('v_max_f32', 12, 13, 16); s.swapred('v_max_f32', 12, 13, 32)
        for r in (4, 8): s(f'v_sub_f32 v{r}, v{r}, v12\nv_mul_f32 v{r}, {hx(LOG2E)}, v{r}\nv_exp_f32 v{r}, v{r}')
        s('v_mul_f32 v5, v5, v4\nv_fmac_f32 v5, v9, v8')
        s.red16('v_add_f32', [5]); s.swapred('v_add_f32', 5, 13, 16); s.swapred('v_add_f32', 5, 13, 32)
        s(f'v_rcp_f32 v5, v5\ns_bitcmp1_b32 s{S_H}, 0\ns_cselect_b64 vcc, -1, 0\nv_cndmask_b32 v4, v4, v8, vcc\nv_mul_f32 v4, v4, v5')
        s(f's_lshl_b32 s4, s{S_J}, 3')
        for w in range(8):
            s(f'v_readlane_b32 s{64+w}, v4, s4')
            if w < 7: s('s_add_u32 s4, s4, 1')
        s(f's_mul_i32 s4, s5, 12288\ns_add_u32 s4, s4, {LPO}\nv_lshl_add_u32 v1, v0, 2, s4')
        s(f's_lshl_b32 s7, s5, 2\ns_lshr_b32 s7, 0x{str(s.o["ord"]).zfill(4)[::-1]}, s7')
        s(f's_bfe_u32 s4, s7, 0x10001\ns_mul_i32 s4, s4, {OS}\ns_and_b32 s7, s7, 1\ns_mul_i32 s7, s7, 384\ns_add_u32 s4, s4, s7\ns_add_u32 s4, s4, {LO}\nv_lshl_add_u32 v3, v0, 1, s4')
        s(f's_lshl_b32 s6, s6, 14\ns_add_u32 s6, s6, {W_ATT}\ns_and_b32 s4, s{S_IDX}, 15\ns_lshl_b32 s4, s4, 10\ns_add_u32 s4, s4, s6\ns_add_u32 s7, s6, 4096')

    def gath(s, nh, slp):
        G = 24
        if nh == 2: s('s_add_u32 s8, s6, 8192\ns_add_u32 s9, s6, 12288')
        if nh == 2 and s.o['glight']:
            s('v_and_b32 v14, 15, v0\nv_lshlrev_b32 v14, 10, v14')
            s.poll([f'buffer_load_dwordx4 {Q4(G)}, v14, {WSR}, s6 offen offset:1008 sc1'], s.ck_xor([G], 3, 12, 13), slp=slp)
        ck, t = s.ck_xor([G + 4 * k for k in range(8 * nh)], 3, 12, 13)
        for k in range(8 * nh):
            a = 16 + 4 * (k >> 3); r = G + 4 * k
            if k & 7: ck[k] += f'\nv_pk_add_f32 {P(a)}, {P(r-4) if k & 7 == 1 else P(a)}, {P(r)}\nv_add_f32 v{a+2}, v{r-2 if k & 7 == 1 else a+2}, v{r+2}'
        s.poll([f'buffer_load_dwordx4 {Q4(G+4*k)}, v2, {WSR}, s{6 + (k >> 2)} offen offset:{1024*(k & 3)} sc1' for k in range(8 * nh)], (ck, t), slp=slp, warmable=(nh == 1))
        for h in range(nh):
            a = 16 + 4 * h; of = 2 * OS * h
            s(f'v_cvt_pk_bf16_f32 v{a}, v{a}, v{a+1}\nv_cvt_pk_bf16_f32 v{a+2}, v{a+2}, v{a+2}')
            s(f'ds_write_b16 v3, v{a} offset:{of}\nds_write_b16_d16_hi v3, v{a} offset:{of+128}\nds_write_b16 v3, v{a+2} offset:{of+256}')

    def bgather(s):
        s.cur = 'g'
        s('L_Bg:')
        s.gath(1, 0)
        s.warmret('L_wBg')
        s('s_waitcnt lgkmcnt(0)')
        s.stamp(6)
        s('s_barrier')
        s.end()

    def s1(s):
        s.cur = 'b'
        o = s.o
        s.srd(RA, P_X, 2560); s.srd(RB, P_WQ, 640 * 12288)
        s('v_and_b32 v1, 31, v0\nv_lshlrev_b32 v1, 3, v1\nv_lshrrev_b32 v2, 5, v0\nv_mul_u32_u24 v2, 1280, v2\nv_add_u32 v1, v1, v2')
        for u in range(5): s(f'buffer_load_dwordx2 {P(10+2*u)}, v1, {RAR}, 0 offen offset:{256*u}')
        s(f'v_and_b32 v7, 15, v0\nv_lshl_add_u32 v2, v7, 1, v2\ns_mul_i32 s4, s{S_J}, 160')
        for u in range(5): s(f'buffer_load_ushort v{160+u}, v2, {RAR}, s4 offen offset:{32*u}')
        s.rows(3, 4, 3, 12288)
        s.ghead(6)
        s(f's_mul_i32 s5, s{S_J}, {80*12288}\ns_and_b32 s7, s{S_H}, 1\ns_lshl4_add_u32 s6, s7, s6\ns_mul_i32 s6, s6, 384\ns_add_u32 s5, s5, s6')
        if o['mfirst']: s('s_barrier')
        s(s.dma(30, 3, RB, 5, lambda t: 128 if t % 3 < 2 else 8 * 12288 - 256, LWQ, o['qF']))
        s.tagwait()
        if o['qfirst']: s(f'v_mov_b32 v4, {LGO}\nv_mov_b32 v5, s{TAG}\nds_write_b32 v4, v5')
        s('s_waitcnt vmcnt(30)')
        X = 20
        for k in range(10): s(f'v_lshlrev_b32 v{X+2*k}, 16, v{10+k}\nv_and_b32 v{X+2*k+1}, 0xffff0000, v{10+k}')
        s(f'v_add_f32 v4, v{X}, v{X+1}')
        for k in range(2, 20): s(f'v_add_f32 v4, v4, v{X+k}')
        s.red16('v_add_f32', [4]); s.swapred('v_add_f32', 4, 5, 16)
        s(f'v_mul_f32 v4, {hx(1/640)}, v4')
        for k in range(20): s(f'v_sub_f32 v{X+k}, v{X+k}, v4')
        s(f'v_mul_f32 v5, v{X}, v{X}')
        for k in range(1, 20): s(f'v_fmac_f32 v5, v{X+k}, v{X+k}')
        s.red16('v_add_f32', [5]); s.swapred('v_add_f32', 5, 6, 16)
        s(f'v_mul_f32 v5, {hx(1/640)}, v5')
        s.bf16r(4); s.bf16r(5)
        s(f'v_add_f32 v5, {hx(1e-5)}, v5'); s.bf16r(5)
        s('v_sqrt_f32 v5, v5'); s.bf16r(5); s('v_rcp_f32 v5, v5')
        for u in range(5):
            r = 160 + u
            s(f'v_lshlrev_b32 v{r}, 16, v{r}\nv_sub_f32 v{r}, v{r}, v4'); s.bf16r(r)
            s(f'v_mul_f32 v{r}, v{r}, v5'); s.bf16r(r)
        s.tr_lane(4, 5, 3072, 128)
        s(f'v_add_u32 v4, {LWQ}, v4')
        s.tr_lane(5, 6, 512, 128)
        s(f'v_lshrrev_b32 v6, 5, v0\nv_mul_u32_u24 v6, 2048, v6\nv_add_u32 v5, v5, v6\nv_add_u32 v5, {LWQ + 8*3072}, v5')
        BW, AC, A = 100, 40, 88
        def rd(ct):
            b = BW + 10 * (ct % 6); off = 1024 * (ct >> 2) + 32 * (ct & 3)
            for T in range(2):
                for hi in range(2): s(f'ds_read_b64_tr_b16 {P(b+4*T+2*hi)}, v4 offset:{off + 12288*T + 512*hi}')
            s(f'ds_read_b64_tr_b16 {P(b+8)}, v5 offset:{off}')
        s.rows(2, 6, 4, 3840 * 16)
        s(f's_mul_i32 s4, s{S_J}, 1280\ns_add_u32 s4, s4, {W_MP}\ns_add_u32 s5, s4, 10240')
        s('s_waitcnt vmcnt(0)')
        s.stamp(1)
        for ct in range(6): rd(ct)
        M = 40
        s.gather([f'buffer_load_dwordx3 v[{M+4*u}:{M+4*u+2}], v2, {WSR}, s{4 + u // 5} offen offset:{256 * (u % 5)} sc1' for u in range(10)],
                 [s.ck_xor([M + 4 * u], 2, 12, 13) for u in range(10)], 8, slp=o['pslp'], nm='P')
        s.stamp(2)
        for u in range(10): s(f'v_permlane32_swap_b32 v{M+4*u}, v{M+4*u+1}')
        for u in range(10): s(f'v_add_f32 v{M+4*u}, v{M+4*u}, v{M+4*u+1}')
        for u in range(10): s(f'v_mov_b32 v{M+4*u+1}, v{M+4*u}')
        for u in range(10): s(f'v_permlane16_swap_b32 v{M+4*u}, v{M+4*u+1}')
        for u in range(10): s(f'v_add_f32 v{M+4*u}, v{M+4*u}, v{M+4*u+1}')
        for u in range(10): s.bf16r(M + 4 * u)
        s(f'v_lshrrev_b32 v2, 5, v0\nv_mul_u32_u24 v2, 192, v2\nv_lshl_add_u32 v2, v7, 1, v2')
        for u in range(5):
            c = M + 20 + 4 * u; r = 160 + u
            s(f'v_add_f32 v{c}, 1.0, v{c}'); s.bf16r(c)
            s(f'v_mul_f32 v{r}, v{r}, v{c}'); s.bf16r(r)
            s(f'v_add_f32 v{r}, v{r}, v{M+4*u}\nv_cvt_pk_bf16_f32 v{r}, v{r}, v{r}\nds_write_b16 v2, v{r} offset:{LHS + 32*u}')
        s.getloc(6)
        s.a_lane(2, 3, 192, 16, LHS); s.a_lane(3, 6, 192, 8, LHS + 128)
        s('s_waitcnt lgkmcnt(0)')
        s(f'ds_read_b128 {Q4(A)}, v2\nds_read_b128 {Q4(A+4)}, v2 offset:64\nds_read_b64 {P(A+8)}, v3')
        for half in range(2):
            s('s_waitcnt lgkmcnt(0)')
            for ct in range(6 * half, 6 * half + 6): s.mfma(AC + 4 * ct, A + 8, BW + 10 * (ct % 6) + 8, True, k=16)
            for T in range(2):
                for ct in range(6 * half, 6 * half + 6):
                    s.mfma(AC + 4 * ct, A + 4 * T, BW + 10 * (ct % 6) + 4 * T, False)
                    if half == 0 and T == 1: rd(ct + 6)
        s(f'v_lshlrev_b32 v2, 4, v0\ns_lshl_b32 s4, s{S_H}, 3\ns_add_u32 s5, s4, s{S_J}\ns_lshl_b32 s5, s5, 11\ns_add_u32 s5, s5, {W_QP}')
        for b in range(2):
            for u in range(4):
                for c in range(3):
                    s(f'v_mov_b32_dpp v{16+4*b+c}, v{AC + 4*(3*u+c) + b} quad_perm:[0,1,2,3] row_mask:{1 << u} bank_mask:0xf')
        for b in range(2):
            t = 16 + 4 * b
            s(f'v_bitop3_b32 v{t+3}, v{t}, v{t+1}, v{t+2} bitop3:0x96\nv_xor_b32 v{t+3}, s{TAG}, v{t+3}')
        s.gstore([f'buffer_store_dwordx4 {Q4(16+4*b)}, v2, {WSR}, s5 offen offset:{1024*b}' for b in range(2)], nm='Q')
        s.stamp(3)
        s(f'v_mov_b32 v3, {LQF}\nv_mov_b32 v4, s{TAG}\nds_write_b32 v3, v4')
        s(f'L_Qg:\ns_bfe_u32 s9, s3, 0x10001\ns_and_b32 s4, s{S_H}, 30\ns_add_u32 s4, s4, s9\ns_lshl_b32 s4, s4, 14\ns_add_u32 s4, s4, {W_QP}\ns_mul_i32 s9, s9, 384')
        for k in range(1, 4): s(f's_add_u32 s{4+k}, s4, {4096*k}')
        Q = 40
        if o['qlight']:
            s('v_and_b32 v3, 7, v0\nv_lshlrev_b32 v3, 11, v3')
            s.poll([f'buffer_load_dwordx4 {Q4(Q)}, v3, {WSR}, s4 offen offset:2032 sc1'], s.ck_xor([Q], 3, 12, 13), slp=o['pslp'])
        def ck2(k):
            c, t = s.ck_xor([Q + 8 * k, Q + 8 * k + 4], 3, 12, 13); return ['\n'.join(c)], t
        s.gather(['\n'.join(f'buffer_load_dwordx4 {Q4(Q+8*k+4*b)}, v2, {WSR}, s{4 + (k >> 1)} offen offset:{2048*(k & 1) + 1024*b} sc1' for b in range(2)) for k in range(8)],
                 [ck2(k) for k in range(8)], 8, slp=o['pslp'], nm='Q')
        s('v_lshrrev_b32 v3, 4, v0\nv_mul_u32_u24 v3, 96, v3\nv_and_b32 v4, 15, v0\nv_lshl_add_u32 v3, v4, 1, v3\nv_add_u32 v3, s9, v3')
        for k in range(1, 8):
            for b in range(2):
                r = Q + 4 * b
                s(f'v_pk_add_f32 {P(r)}, {P(r)}, {P(r+8*k)}\nv_add_f32 v{r+2}, v{r+2}, v{r+8*k+2}')
        for b in range(2):
            r = Q + 4 * b; lq = LQ + 768 * b
            s(f'v_cvt_pk_bf16_f32 v{r}, v{r}, v{r+1}\nv_cvt_pk_bf16_f32 v{r+2}, v{r+2}, v{r+2}')
            s(f'ds_write_b16 v3, v{r} offset:{lq}\nds_write_b16_d16_hi v3, v{r} offset:{lq+32}\nds_write_b16 v3, v{r+2} offset:{lq+64}')
        s('s_waitcnt lgkmcnt(0)')
        s.stamp(4)
        s('s_barrier\ns_cmp_eq_u32 s3, 11\ns_cbranch_scc1 L_s3b')
        lc = s.lab('s1C'); ld = s.lab('s1D'); lw = s.lab('s1W')
        if o['warm']:
            s.role(1, lc); s.role(3, ld); s.role(0, lw, False)
            s(f's_mov_b32 s{SV}, 0'); s.warm('L_B', 'L_wB'); s.warm('L_Bg', 'L_wBg'); s(f's_branch {lw}')
            s(f'{lc}:\ns_mov_b32 s{SV}, 0'); s.warm('L_C', 'L_wC'); s(f's_branch {lw}')
            s(f'{ld}:\ns_mov_b32 s{SV}, 0'); s.warm('L_D', 'L_wD')
            s(f'{lw}:\ns_mov_b32 s{SV}, 9')
        s.balance5()
        s(f's_add_u32 s6, s6, 8192\ns_add_u32 s7, s7, 8192\nv_add_u32 v3, {2 * OS}, v3')
        s('s_barrier\ns_branch L_T0')

    def balance5(s):
        o = s.o; p0 = 3 * o['NPF']
        a = s.lab('bal'); e = s.lab('balE'); c = s.lab('nox'); d = s.lab('nost')
        V = 100
        s(f'v_mov_b32 v{V+1}, 0\ns_mov_b32 s11, 4096\ns_lshl_b32 s72, s{S_X}, 7\ns_add_u32 s72, s72, {W_PG}\ns_mov_b32 s75, {o["stat1"]}')
        s(f's_cmp_lt_u32 s{S_IDX}, {o["n1"]}\ns_cselect_b32 s78, {o["cstep"]}, {o["cstep2"]}\ns_cselect_b32 s79, {o["bdel"]}, {o["bdel2"]}')
        s(f's_cselect_b32 s74, 0, {o["n1"] * (o["cstep"] - o["cstep2"])}\ns_add_u32 s74, s74, {p0 + o["c0"]}')
        s(f's_lshl_b32 s5, s{S_IDX}, 3\ns_add_u32 s5, s5, s{S_X}\ns_mul_i32 s5, s5, s78\ns_lshr_b32 s5, s5, 3\ns_add_u32 s74, s74, s5\ns_add_u32 s79, s79, s{TAG}')
        s(f'v_and_b32 v{V}, 31, v0\nv_lshlrev_b32 v{V}, 2, v{V}')
        s(f's_lshl_b32 s73, s{S_X}, 12\ns_add_u32 s73, s73, {W_GL}\ns_mov_b32 s10, {W_GL}\nv_and_b32 v{V+5}, 7, v0\nv_cmp_eq_u32 s[76:77], s{S_X}, v{V+5}\nv_lshlrev_b32 v{V+5}, 12, v{V+5}\nv_mov_b32 v{V+6}, {p0}')
        s(f'v_xor_b32 v{V+4}, 4096, v{V+5}\nv_cndmask_b32_e64 v{V+5}, v{V+5}, v{V+4}, s[76:77]')
        s(f's_and_b32 s8, s{S_ROLE}, 1\ns_mul_i32 s8, s8, {o["bonus"]}\ns_sub_u32 s8, s{TAG}, s8')
        s(f'{a}:\nbuffer_load_dword v{V+3}, v{V+1}, {WSR}, s72 offen sc1\ns_waitcnt vmcnt(0)\nds_read_b32 v{V+2}, v{V+1} offset:{LPRG}')
        s(f'v_subrev_u32 v{V+3}, s8, v{V+3}\nds_write_b32 v{V+1}, v{V+3} offset:{LMODE}\ns_waitcnt lgkmcnt(0)\nv_readfirstlane_b32 s9, v{V+2}')
        s(f's_cmp_ge_u32 s9, s75\ns_cbranch_scc0 {d}\ns_mov_b32 s75, 999')
        s('s_mov_b32 s5, 3'); s.stats()
        s(f's_branch {a}\n{d}:')
        s(f's_cmp_ge_u32 s9, {o["bend"]}\ns_cbranch_scc1 {e}')
        s(f's_cmp_ge_u32 s9, s74\ns_cbranch_scc0 {c}')
        s(f's_mov_b32 s74, 999\nv_add_u32 v{V+3}, s{TAG}, v{V+2}\nbuffer_load_dword v{V+4}, v{V+5}, {WSR}, s10 offen sc1\nbuffer_store_dword v{V+3}, v{V}, {WSR}, s73 offen sc1\ns_waitcnt vmcnt(1)')
        s(f'v_subrev_u32 v{V+4}, s{TAG}, v{V+4}\nv_cmp_lt_u32 vcc, 192, v{V+4}\nv_cndmask_b32 v{V+4}, v{V+4}, v{V+6}, vcc')
        s(f'v_subrev_u32 v{V+2}, s78, v{V+2}\nv_cndmask_b32_e64 v{V+4}, v{V+4}, v{V+2}, s[76:77]')
        s(f's_cmp_lt_u32 s{S_IDX}, {o["n1"]}\ns_cselect_b32 s9, {min(o["emin"], 64)}, {min(o["emin2"], 64)}\nv_add_u32 v{V+7}, s9, v{V+4}')
        for ctl in ('quad_perm:[1,0,3,2]', 'quad_perm:[2,3,0,1]', 'row_half_mirror'): s.dppop('v_add_u32', V + 4, ctl); s.dppop('v_min_u32', V + 7, ctl)
        s(f'v_lshrrev_b32 v{V+4}, 3, v{V+4}\nv_min_u32 v{V+4}, v{V+4}, v{V+7}\nv_add_u32 v{V+4}, s79, v{V+4}\nbuffer_store_dword v{V+4}, v{V}, {WSR}, s72 offen')
        s(f'{c}:\ns_sleep {o["bslp"]}\ns_sub_u32 s11, s11, 1\ns_cbranch_scc0 {a}')
        s('s_mov_b32 s5, 3'); s.stats()
        s(f'{e}:')

    def bstage(s, t0, t1, F):
        o = s.o; l = s.lab('dma')
        s.srd(RA, P_WO, 6144 * 1280)
        s.swz(1280)
        s.ghead(5)
        s(f's_mul_i32 s5, s5, {192*1280}\ns_and_b32 s4, s{S_H}, 1\ns_mul_i32 s4, s4, 5\ns_add_u32 s4, s4, s{S_J}\ns_lshl_b32 s4, s4, 7')
        s(f's_add_u32 s5, s5, s4\ns_add_u32 s5, s5, {8 * 1280 * t0 + (15*192*1280 if t0 >= 24 else 0)}')
        s(f's_mov_b32 s4, {LB + 1024 * t0}\n{l}:')
        for t in range(2):
            s(f's_mov_b32 m0, s4\ns_waitcnt vmcnt({F - 1})\nbuffer_load_dwordx4 v{3 if t else 1}, {RAR}, s5 offen {o["wflag"]} lds')
            s(f's_add_u32 s5, s5, {8 * 1280}\ns_add_u32 s4, s4, 1024')
        if t0 < 24 < t1: s(f's_cmp_eq_u32 s4, {LB + 24576}\ns_cselect_b32 s6, {15*192*1280}, 0\ns_add_u32 s5, s5, s6')
        s(f's_cmp_lt_u32 s4, {LB + 1024 * t1}\ns_cbranch_scc1 {l}')

    def wstage(s):
        o = s.o; F = o['wF']
        ld = s.lab('wD'); lc = s.lab('wC'); le = s.lab('wE'); li = s.lab('wI')
        def loads(n, step, par):
            for t in range(n):
                s(f's_mov_b32 m0, s11')
                if t >= F: s(f's_waitcnt vmcnt({F - 1})')
                s(f'buffer_load_dwordx4 v{4 + (t & par)}, {RBR}, s10 offen {o["wflag"]} lds\ns_add_u32 s10, s10, {step}\ns_add_u32 s11, s11, 1024')
                if t == min(n, F) - 1 and o['mfirst']: s('s_barrier')
        def swz(stride):
            s(f'v_lshrrev_b32 v6, 3, v0\nv_mul_u32_u24 v4, {stride}, v6\nv_and_b32 v6, 2, v6\nv_and_b32 v5, 7, v0\nv_xor_b32 v6, v6, v5\nv_xor_b32 v5, 4, v6')
            s('v_lshl_add_u32 v5, v5, 4, v4\nv_lshl_add_u32 v4, v6, 4, v4')
        s.role(0, ld, False)
        s.srd(RB, P_WO, 6144 * 1280); swz(1280); s.ghead(10)
        s(f's_lshr_b32 s9, s3, 2\ns_mul_i32 s9, s9, 15\ns_add_u32 s10, s10, s9\ns_mul_i32 s10, s10, {192*1280}\ns_mul_i32 s9, s3, {48*1280}\ns_add_u32 s10, s10, s9')
        s(f's_lshr_b32 s9, s{S_CS}, 2\ns_lshl_b32 s9, s9, 7\ns_add_u32 s10, s10, s9\ns_mul_i32 s11, s3, 6144\ns_add_u32 s11, s11, {LB}')
        loads(6, 8 * 1280, 1)
        s(f's_branch {le}\n{ld}:')
        s.role(3, lc, False)
        n = 12 - o['dW']
        s.srd(RB, P_D, 1536 * 1280); s.rows(4, 5, 2, 1280)
        s(f's_mul_i32 s11, s3, {n}\ns_add_u32 s11, s11, {8 * o["dW"]}\ns_mul_i32 s10, s11, {16 * 1280}\ns_lshl_b32 s9, s{S_DT}, 6\ns_add_u32 s10, s10, s9\ns_lshl_b32 s11, s11, 10\ns_add_u32 s11, s11, {LBIG}')
        loads(n, 16 * 1280, 0)
        s(f's_branch {le}\n{lc}:')
        s.role(1, li, False)
        n = o['cE']
        s(f's_bitcmp1_b32 s{S_CS}, 0\ns_cselect_b64 s[{RB}:{RB+1}], s[{P_U}:{P_U+1}], s[{P_G}:{P_G+1}]\ns_mov_b32 s{RB+2}, {640 * 3072}\ns_mov_b32 s{RB+3}, 0x20000')
        swz(3072)
        s(f's_bitcmp1_b32 s3, 0\ns_cselect_b64 vcc, -1, 0\nv_cndmask_b32 v4, v4, v5, vcc')
        s(f's_add_u32 s11, s3, {80 - 8 * n}\ns_mul_i32 s10, s11, {8 * 3072}\ns_lshr_b32 s9, s{S_CS}, 1\ns_lshl_b32 s9, s9, 7\ns_add_u32 s10, s10, s9\ns_lshl_b32 s11, s11, 10\ns_add_u32 s11, s11, {LBIG}')
        for t in range(n):
            s(f's_mov_b32 m0, s11\nbuffer_load_dwordx4 v4, {RBR}, s10 offen {o["wflag"]} lds\ns_add_u32 s10, s10, {64 * 3072}\ns_add_u32 s11, s11, 8192')
        s(f'{li}:')
        if o['mfirst']: s('s_barrier')
        s(f'{le}:')

    def stage(s, half):
        o = s.o
        ld = s.lab('stD'); lc = s.lab('stC'); le = s.lab('stE')
        def part(n): return (0, n) if half is None else ((0, n // 4 * 2) if half == 0 else (n // 4 * 2, n))
        FF = lambda k: o['upF'] if half is None else o[k]
        s.role(0, ld, False)
        E = 0 if half is None else o['bE']; t0, t1 = part(48 - E)
        s.bstage(E + t0, E + t1, min(FF('bF'), 60))
        s(f's_branch {le}\n{ld}:')
        s.role(3, lc, False)
        W = o['dW']; t0, t1 = part(8 * (12 - W))
        s.srd(RA, P_D, 1536 * 1280); s.rows(1, 2, 2, 1280)
        s(f's_lshl_b32 s4, s{S_DT}, 6\ns_add_u32 s4, s4, {(8 * W + t0) * 16 * 1280}')
        s(s.dma(t1 - t0, 1, RA, 4, 16 * 1280, LBIG + 1024 * (8 * W + t0), FF('dF')))
        s(f's_branch {le}\n{lc}:')
        s.role(1, le, False)
        E = o['cE']; t0, t1 = part(8 * E)
        s.caddr()
        s(f's_add_u32 s5, s5, {(80 - 8 * E + t0) * 8 * 3072}')
        s(s.cdma(t1 - t0, lambda t: f's_mov_b32 m0, {LBIG + 1024 * (80 - 8 * E + t0 + t)}', FF('cF')))
        s(f'{le}:')
        if half is not None: s('s_waitcnt vmcnt(0)')

    def s2(s):
        s.cur = 'r'
        o = s.o
        if o['mfirst']: s('s_barrier')
        s('s_getreg_b32 s4, hwreg(HW_REG_XCC_ID)')
        s(f'v_and_b32 v1, 31, v0\nv_lshlrev_b32 v1, 3, v1\ns_lshl_b32 s5, s{S_X}, 8\ns_add_u32 s5, s5, {W_XC}\ns_lshl3_add_u32 s6, s{S_IDX}, s5')
        s.tagwait()
        s(f'v_mov_b32 v2, s4\nv_mov_b32 v3, s{TAG}\ns_mov_b64 exec, 1')
        if o['xab']: s(f's_add_u32 s7, s6, {W_XL - W_XC}\nbuffer_store_dwordx2 v[2:3], v1, {WSR}, s7 offen')
        if 'X' not in o['nox']: s(f'buffer_store_dwordx2 v[2:3], v1, {WSR}, s6 offen sc1')
        s('s_mov_b64 exec, -1')
        s.idpoll(o['pslp'])
        s(f'v_xor_b32 v4, s4, v4\nv_or_b32 v4, v4, v6\nv_cmp_ne_u32 vcc, 0, v4\ns_cmp_eq_u64 vcc, 0\ns_addc_u32 s4, s{TAG}, 0')
        if not o['loc']: s(f's_mov_b32 s4, s{TAG}')
        s(f'v_mov_b32 v4, s4\nv_mov_b32 v5, {LFLAG}\nds_write_b32 v5, v4\nv_mov_b32 v4, 0\nds_write_b32 v4, v4 offset:{LPRG}\nds_write_b32 v4, v4 offset:{LCNT}\nds_write_b32 v4, v4 offset:{LCNT+4}\nds_write_b32 v4, v4 offset:{LCNT+8}\nv_mov_b32 v5, 999\nds_write_b32 v4, v5 offset:{LMODE}\ns_waitcnt lgkmcnt(0)')
        s.stamp(2)
        if o['bE']:
            l = s.lab('noBe'); s.role(0, l, False); s.bstage(0, o['bE'], o['bEF']); s(f'{l}:')
        s('s_barrier')
        if not o['up']: s.stage(0)
        s.stamp(1)
        s.role(1, 'L_LN0')
        s.role(0, 'L_s23', False)
        s.warm('L_R', 'L_wR')
        s('L_R0:')
        s.waitprog(72, 1)
        s.getloc(1, spin=False)
        s.srd(RA, P_X, 2560)
        s(f'v_and_b32 v1, 15, v0\nv_lshlrev_b32 v2, 1, v1\ns_lshl_b32 s5, s{S_CS}, 5')
        s(f'buffer_load_ushort v4, v2, {RAR}, s5 offen\nbuffer_load_ushort v5, v2, {RAR}, s5 offen offset:1280')
        s(f'v_lshlrev_b32 v2, 3, v1\ns_lshl_b32 s5, s{S_CS}, 7\ns_add_u32 s6, s5, {W_MOD + 1280*8}')
        s.poll([f'buffer_load_dwordx2 v[6:7], v2, {WSR}, s6 offen sc1'], s.ck_tag([[7]], 8), slp=o['mlslp'])
        s('v_lshlrev_b32 v4, 16, v4\nv_lshlrev_b32 v5, 16, v5\nv_and_b32 v7, 0xffff0000, v6\nv_lshlrev_b32 v6, 16, v6')
        s(f's_add_u32 s5, s5, {W_X1}\nv_mov_b32 v9, s{TAG}\ns_lshl_b32 s6, s{S_X}, 13\ns_add_u32 s5, s5, s6')
        s.rows(3, 8, 4, 10240)
        s(f's_lshl_b32 s64, s{S_CS}, 8\ns_add_u32 s64, s64, {W_Y}')
        s(f's_sub_u32 s64, s64, {W_Y - W_YL}\ns_sub_u32 s6, 1, s{LOC}\ns_mul_i32 s6, s6, {W_Y - W_YL}\nv_mov_b32 v12, s6\nv_mov_b32 v13, {W_Y - W_YL}\nv_lshrrev_b32 v14, 5, v0')
        for k in range(4):
            s(f'v_add_u32 v15, {2*k}, v14\nv_cmp_eq_u32 vcc, s{S_X}, v15\nv_cndmask_b32 v15, v13, v12, vcc\nv_add_u32 v15, {40960*k}, v15\nv_add_u32 v{32+k}, v15, v3')
        if o['rown']:
            s(f's_lshr_b32 s4, s{S_H}, 1\nv_lshrrev_b32 v14, 4, v0\ns_bfe_u32 s6, s{S_H}, 0x10001\ns_mul_i32 s6, s6, {-20480 & 0xffffffff}\ns_add_u32 s6, s6, 10240')
            for k in range(4):
                s(f'v_add_u32 v15, {4*k}, v14\nv_cmp_eq_u32 s[{66+2*k}:{67+2*k}], s4, v15\nv_add_u32 v15, s6, v{32+k}\nv_cndmask_b32_e64 v{32+k}, v{32+k}, v15, s[{66+2*k}:{67+2*k}]')
            s(f's_and_b32 s4, s{S_CS}, 3\ns_lshl_b32 s4, s4, 7\ns_add_u32 s4, s4, {LYO}\nv_add_u32 v36, s4, v2')
        touch = '\n'.join(f'buffer_load_dword v{40+k}, v{32+k}, {WSR}, s64 offen sc1' for k in range(4))
        s('s_barrier')
        if o['rg'] == 5: s(touch)
        s('s_barrier')
        if o['rg'] == 4: s(touch)
        if o['rg'] and o['rg'] != 6: s('s_barrier')
        s('L_R:')
        s.stamp(4)
        Y = 16
        ck, t = s.ck_xor([Y + 4 * k for k in range(4)], 2, 12, 13)
        if o['rown']:
            if o['rg'] != 6: s('ds_read_b64 v[38:39], v36')
            ck[0] += '\ns_waitcnt lgkmcnt(0)'
            for k in range(4):
                for e in range(2): ck[k] += f'\nv_cndmask_b32_e64 v{Y+4*k+e}, v{Y+4*k+e}, v{38+e}, s[{66+2*k}:{67+2*k}]'
        for k in range(1, 4): ck[k] += f'\nv_pk_add_f32 v[10:11], {P(Y) if k == 1 else "v[10:11]"}, {P(Y+4*k)}'
        lds_ = [f'buffer_load_dwordx3 v[{Y+4*k}:{Y+4*k+2}], v{32+k}, {WSR}, s64 offen sc1' for k in range(4)]
        if o['rmiss']:
            s.gather(lds_, [s.ck_xor([Y + 4 * k], 2, 12, 13) for k in range(4)], 8)
            s(f'v_pk_add_f32 v[10:11], {P(Y)}, {P(Y+4)}\nv_pk_add_f32 v[10:11], v[10:11], {P(Y+8)}\nv_pk_add_f32 v[10:11], v[10:11], {P(Y+12)}')
        else: s.poll(lds_, (ck, t), warmable=True, pre='s_barrier\nds_read_b64 v[38:39], v36' if o['rg'] == 6 else None)
        s.stamp(5)
        for w in (16, 32):
            s(f'v_mov_b32 v14, v10\nv_mov_b32 v15, v11\nv_permlane{w}_swap_b32 v10, v14\nv_permlane{w}_swap_b32 v11, v15\nv_pk_add_f32 v[10:11], v[10:11], v[14:15]')
        s(f'v_pk_fma_f32 v[10:11], v[10:11], v[6:7], v[4:5]\nv_cvt_pk_bf16_f32 v8, v10, v11')
        s.warmret('L_wR')
        s('s_mov_b64 exec, 0xffff')
        s.gstore([f'buffer_store_dwordx2 v[8:9], v2, {WSR}, s5 offen'])
        s.stamp(6)
        s.end()

    def s3(s):
        s.cur = 'l'
        o = s.o
        if o['mfirst']: s('s_barrier')
        if not o['upe']: s.tagwait()
        if o['up'] and not o['wst']:
            if o['qfirst']: s.ldswait(LGO, 3)
            s.stage(None)
            if o['upe']: s.tagwait()
            if o['sep']: s(f's_waitcnt vmcnt({o["sep"]})\nv_mov_b32 v3, {LGO}\nv_mov_b32 v4, s{TAG}\nds_write_b32 v3, v4')
        s.ldswait(LQF, 3, o['pslp'])
        s('v_lshlrev_b32 v2, 4, v0\ns_branch L_Qg\nL_s3b:')
        if not o['up']: s.stage(1)
        s.stamp(1)
        s.role(0, 'L_R0')
        s.role(1, 'L_s23', False)
        s.warm('L_LN', 'L_wLN')
        s('L_LN0:')
        s.waitprog(72, 1)
        C1, SB, X = 8, 28, 48
        s(f'v_lshlrev_b32 v1, 4, v0\ns_and_b32 s8, s3, 1\ns_mul_i32 s11, s8, 0x02020000\ns_add_u32 s11, s11, 0x01000c0c')
        s(f's_mov_b32 s4, {W_MOD + 3*5120}\ns_mov_b32 s5, {W_MOD + 3*5120 + 4096}\ns_mov_b32 s6, {W_MOD + 4*5120}\ns_mov_b32 s7, {W_MOD + 4*5120 + 4096}')
        def ld5(base, sa): return [f'buffer_load_dwordx4 {Q4(base+4*u)}, v1, {WSR}, s{sa + (u >> 2)} offen offset:{1024*(u & 3)} sc1' for u in range(5)]
        pick = lambda r: f'v_perm_b32 v{r}, v{r}, v{r}, s11\nv_perm_b32 v{r+1}, v{r+2}, v{r+2}, s11'
        s.poll(ld5(C1, 6) + ld5(SB, 4), s.ck_tag([[C1 + 1 + 4 * k, C1 + 3 + 4 * k] for k in range(10)], 4), slp=o['mlslp'])
        for k in range(10): s(pick(C1 + 4 * k))
        for u in range(5):
            for e in range(2): s(f'v_add_f32 v{C1+4*u+e}, 1.0, v{C1+4*u+e}'); s.bf16r(C1 + 4 * u + e)
        s(f's_lshl_b32 s4, s{S_X}, 13\ns_add_u32 s4, s4, {W_X1}\ns_add_u32 s5, s4, 4096')
        s(f's_mul_i32 s8, s8, {HS}\ns_add_u32 s8, s8, {LH2}\nv_lshl_add_u32 v2, v0, 2, s8')
        s(f's_mov_b32 s10, {hx(1/640)}\nv_mov_b32 v68, {hx(1e-5)}')
        s('s_barrier\ns_barrier\ns_barrier')
        s('L_LN:')
        s.stamp(4)
        ck, t = s.ck_tag([[X + 1 + 4 * u, X + 3 + 4 * u] for u in range(5)], 70)
        for u in range(5):
            r = X + 4 * u
            ck[u] += '\n' + pick(r)
            if u == 0: ck[u] += f'\nv_readlane_b32 s8, v{X}, 0'
            ck[u] += f'\nv_pk_add_f32 {P(r)}, {P(r)}, s[8:9] op_sel_hi:[1,0] neg_lo:[0,1] neg_hi:[0,1]'
            if u == 0: ck[u] += f'\nv_pk_mul_f32 v[6:7], {P(r)}, {P(r)}'
            else: ck[u] += f'\nv_pk_add_f32 v[4:5], {P(X) if u == 1 else "v[4:5]"}, {P(r)}\nv_pk_fma_f32 v[6:7], {P(r)}, {P(r)}, v[6:7]'
        s.poll(ld5(X, 4), (ck, t), warmable=True)
        s.stamp(5)
        fill = [f'v_pk_mul_f32 {P(X+4*u)}, {P(X+4*u)}, {P(C1+4*u)}' for u in range(5)]
        s('v_add_f32 v4, v4, v5\nv_add_f32 v6, v6, v7'); s(fill.pop(0))
        s('v_permlane32_swap_b32 v4, v6\nv_add_f32 v4, v4, v6')
        s.red16('v_add_f32', [4], fill=fill); s.swapred('v_add_f32', 4, 5, 16)
        s('v_mul_f32 v4, s10, v4\nv_mov_b32 v6, v4\nv_permlane32_swap_b32 v4, v6')
        s('v_fma_f32 v6, -v4, v4, v6\nv_max_f32 v6, 0, v6\nv_add_f32 v6, v6, v68\nv_rsq_f32 v6, v6')
        for u in range(5): s(f'v_pk_fma_f32 {P(X+4*u)}, {P(C1+4*u)}, v[4:5], {P(X+4*u)} op_sel_hi:[1,0,1] neg_lo:[0,1,0] neg_hi:[0,1,0]')
        for u in range(5):
            r = X + 4 * u
            s(f'v_pk_fma_f32 {P(r)}, {P(r)}, v[6:7], {P(SB+4*u)} op_sel_hi:[1,0,1]\nv_cvt_pk_bf16_f32 v{r}, v{r}, v{r+1}')
            if u & 1: s(f'ds_write2st64_b32 v2, v{r-4}, v{r} offset0:{u-1} offset1:{u}')
        s(f'ds_write_b32 v2, v{X+16} offset:1024')
        s.warmret('L_wLN')
        s('s_waitcnt lgkmcnt(0)')
        s.stamp(3)
        s('s_barrier')
        s.end()
        s('L_s23:')
        s.role(3, 'L_exit', False)
        s('s_barrier\ns_branch L_D')
        s.end()

    def ldswait(s, at, v, slp=1):
        l = s.lab('lw')
        s(f'v_mov_b32 v{v}, {at}\ns_mov_b32 s{SPIN}, {s.o["spin"]}\n{l}:\ns_sleep {slp}\nds_read_b32 v{v+1}, v{v}\ns_sub_u32 s{SPIN}, s{SPIN}, 1\ns_waitcnt lgkmcnt(0)')
        s(f'v_readfirstlane_b32 s10, v{v+1}\ns_cselect_b32 s10, s{TAG}, s10\ns_cmp_eq_u32 s10, s{TAG}\ns_cbranch_scc0 {l}')
    def waitprog(s, n, v, slp=None):
        l = s.lab('prog')
        s(f'v_mov_b32 v{v}, 0\ns_mov_b32 s{SPIN}, {s.o["spin"]}\n{l}:\ns_sleep {slp or s.o["mlslp"]}\nds_read_b32 v{v+1}, v{v} offset:{LPRG}\ns_sub_u32 s{SPIN}, s{SPIN}, 1\ns_waitcnt lgkmcnt(0)')
        s(f'v_readfirstlane_b32 s4, v{v+1}\ns_cselect_b32 s4, 999, s4\ns_cmp_lt_u32 s4, {n}\ns_cbranch_scc1 {l}')
    def idpoll(s, slp):
        l = s.lab('gotid')
        if s.o['xab']:
            s(f's_add_u32 s7, s5, {W_XL - W_XC}')
            s.poll([f'buffer_load_dwordx2 v[4:5], v1, {WSR}, s7 offen sc1'], s.ck_tag([[5]], 6), slp=slp, spin=s.o['xab'])
            s(f's_cbranch_vccz {l}')
        s.poll([f'buffer_load_dwordx2 v[4:5], v1, {WSR}, s5 offen sc1'], s.ck_tag([[5]], 6), slp=slp)
        s(f'{l}:')

    def caddr(s):
        s(f's_bitcmp1_b32 s{S_CS}, 0\ns_cselect_b64 s[{RA}:{RA+1}], s[{P_U}:{P_U+1}], s[{P_G}:{P_G+1}]\ns_mov_b32 s{RA+2}, {640 * 3072}\ns_mov_b32 s{RA+3}, 0x20000')
        s.swz(3072)
        s(f's_lshr_b32 s5, s{S_CS}, 1\ns_lshl_b32 s5, s5, 7')
    def swz(s, stride):
        s(f'v_lshrrev_b32 v2, 3, v0\nv_mul_u32_u24 v1, {stride}, v2\nv_and_b32 v2, 2, v2\nv_and_b32 v3, 7, v0\nv_xor_b32 v2, v2, v3\nv_xor_b32 v3, 4, v2')
        s('v_lshl_add_u32 v3, v3, 4, v1\nv_lshl_add_u32 v1, v2, 4, v1')
    def cdma(s, n, lds, F):
        out = []
        for t in range(n):
            out.append(lds(t))
            if F < 60: out.append(f's_waitcnt vmcnt({F - 1})')
            out.append(f'buffer_load_dwordx4 v{3 if t & 1 else 1}, {RAR}, s5 offen {s.o["wflag"]} lds')
            if t < n - 1: out.append(f's_add_u32 s5, s5, {8 * 3072}')
        return '\n'.join(out)

    def crole(s):
        s.cur = 'c'
        o = s.o; E = o['cE']; n = 2 * (10 - E)
        s(f'L_C:\ns_cmp_lt_u32 s{SV}, 4\ns_cbranch_scc0 L_exit')
        BW, A, D = 88, 8, 72
        s.caddr()
        s(f's_mul_i32 s4, s{SV}, {n}\ns_mul_i32 s6, s4, {8 * 3072}\ns_add_u32 s5, s5, s6\ns_lshl_b32 s4, s4, 10\ns_add_u32 s4, s4, {LBIG}')
        s.live('s_barrier\n' + s.cdma(n, lambda t: f's_add_u32 m0, s4, {1024 * t}', 63))
        s.tr_lane(2, 3, 1024, 128)
        s(f'v_bfe_u32 v3, v0, 3, 2\nv_xor_b32 v3, s{SV}, v3\nv_lshl_add_u32 v2, v3, 5, v2\nv_add_u32 v2, {LBIG}, v2\nv_add_u32 v5, 40960, v2')
        s.a_lane(3, 4, HS, 16, LH2)
        s(f's_and_b32 s4, s{S_CS}, 1\ns_mul_i32 s6, s4, 12288\ns_lshr_b32 s5, s{S_CS}, 1\ns_lshl2_add_u32 s5, s5, s{SV}\ns_lshl_b32 s5, s5, 7\ns_add_u32 s6, s6, s5\ns_add_u32 s6, s6, {W_ACT}')
        s(f'v_lshlrev_b32 v1, 3, v0\ns_mov_b32 s7, {hx(-LOG2E)}\nv_mov_b32 v77, s{TAG}\ns_add_u32 s8, s6, {W_AL - W_ACT}')
        s('s_waitcnt vmcnt(0)')
        s.stamp(3)
        s.live('s_barrier')
        for T in range(20):
            for hi in range(2): s(f'ds_read_b64_tr_b16 {P(BW + 4*T + 2*hi)}, v{2 if T < 10 else 5} offset:{4096*(T % 10) + 512*hi}')
        s('s_waitcnt lgkmcnt(0)'); s.live('s_barrier')
        s.stamp(5)
        for T in range(15): s(f'ds_read_b128 {Q4(A+4*T)}, v3 offset:{64*T}')
        for T in range(20):
            s(f's_waitcnt lgkmcnt({min(14, 19 - T)})')
            s.mfma(D, A + 4 * (T % 15), BW + 4 * T, T == 0)
            if T < 5: s(f'ds_read_b128 {Q4(A+4*T)}, v3 offset:{64*(T+15)}')
        l = s.lab('up')
        s(f's_cmp_eq_u32 s4, 1\ns_cbranch_scc1 {l}')
        for op in (f'v_mul_f32 v{{t}}, s7, v{{d}}', 'v_exp_f32 v{t}, v{t}', 'v_add_f32 v{t}, 1.0, v{t}', 'v_rcp_f32 v{t}, v{t}', 'v_mul_f32 v{d}, v{d}, v{t}'):
            for b in range(2): s(op.format(t=D + 2 + b, d=D + b))
        s(f'{l}:\nv_cvt_pk_bf16_f32 v76, v{D}, v{D+1}')
        s.warmret('L_wC')
        st = [f'buffer_store_dwordx2 v[76:77], v1, {WSR}, s6 offen sc1', f'buffer_store_dwordx2 v[76:77], v1, {WSR}, s8 offen']
        s('s_mov_b64 exec, 0xffff\n' + '\n'.join(st[::-1] if o['pfa'] else st))
        s.stamp(6)
        s.end()

    def drole(s):
        s.cur = 'd'
        o = s.o
        s('L_D:')
        BW, A, D = 40, 72, 88
        s(f's_lshl_b32 s4, s{SV}, 13\ns_add_u32 s4, s4, {LBIG}')
        s.srd(RA, P_D, 1536 * 1280); s.srd(RB, P_OUT, 2560); s.rows(1, 2, 2, 1280)
        s(f's_mul_i32 s5, s{SV}, {128 * 1280}\ns_lshl_b32 s6, s{S_DT}, 6\ns_add_u32 s5, s5, s6')
        l = s.lab('have')
        s.live(f's_barrier\ns_cmp_ge_u32 s{SV}, {o["dW"]}\ns_cbranch_scc1 {l}\n' + s.dma(8, 1, RA, 5, 16 * 1280, lambda t: f's_add_u32 m0, s4, {1024 * t}', 63) + f'\n{l}:')
        s.tr_lane(2, 3, 512, 64)
        s('v_add_u32 v2, s4, v2\ns_waitcnt vmcnt(0)')
        s.stamp(3)
        for tt in range(2):
            for T in range(4):
                for hi in range(2): s(f'ds_read_b64_tr_b16 {P(BW + 16*tt + 4*T + 2*hi)}, v2 offset:{2048*T + 256*hi + 32*tt}')
        s(f's_lshl_b32 s4, s{SV}, 9\ns_add_u32 s4, s4, {LACT}\nv_lshl_add_u32 v2, v0, 2, s4')
        s.a_lane(3, 4, 256, 16, 0); s('v_add_u32 v3, s4, v3')
        s(f'v_and_b32 v4, 31, v0\nv_mul_u32_u24 v4, 96, v4\ns_lshl_b32 s4, s{SV}, 2\ns_add_u32 s4, s4, {LDP}\nv_add_u32 v4, s4, v4')
        s(f'v_lshlrev_b32 v1, 4, v0\ns_lshl_b32 s5, s{SV}, 10\ns_add_u32 s5, s5, {W_ACT}')
        s('s_add_u32 s6, s5, 12288')
        if True:
            s(f'v_mov_b32 v5, {LFLAG}\nds_read_b32 v6, v5\ns_lshl_b32 s7, s{SV}, 1\ns_mul_i32 s8, s{S_X}, 3\ns_sub_u32 s7, s7, s8\nv_lshrrev_b32 v5, 5, v0\nv_add_u32 v5, s7, v5\nv_cmp_gt_u32 vcc, 3, v5')
            s(f's_waitcnt lgkmcnt(0)\nv_subrev_u32 v6, s{TAG}, v6\nv_mul_u32_u24 v6, {W_AL - W_ACT}, v6\nv_cndmask_b32 v5, 0, v6, vcc\nv_add_u32 v1, v1, v5')
        s(f'v_and_b32 v5, 31, v0\nv_lshlrev_b32 v6, 3, v5\nv_lshrrev_b32 v7, 5, v0')
        lf = s.lab('nofin')
        s(f's_cmp_eq_u32 s{SV}, 0\ns_cbranch_scc0 {lf}')
        s(f's_lshl_b32 s8, s{S_DT}, 8\ns_add_u32 s9, s8, {W_MOD + 5*5120}\ns_add_u32 s8, s8, {W_X1}')
        s(f's_lshl_b32 s10, s{S_X}, 13\ns_add_u32 s8, s8, s10')
        s.poll([f'buffer_load_dwordx2 v[10:11], v6, {WSR}, s9 offen sc1', f'buffer_load_dwordx2 v[8:9], v6, {WSR}, s8 offen sc1'], s.ck_tag([[11], [9]], 12), slp=o['pslp'], warmable=True)
        s('v_lshlrev_b32 v9, 4, v7\nv_lshrrev_b32 v8, v9, v8\nv_lshlrev_b32 v8, 16, v8\nv_lshrrev_b32 v10, v9, v10\nv_lshlrev_b32 v10, 16, v10')
        s(f'{lf}:')
        s(f'v_lshl_add_u32 v6, v5, 1, v7\nv_mul_u32_u24 v6, 48, v6\nv_add_u32 v6, {LDP}, v6')
        s(f'v_mul_u32_u24 v7, 1280, v7\nv_lshl_add_u32 v5, v5, 1, v7\ns_lshl_b32 s8, s{S_DT}, 6')
        if o['otouch']: s(f'buffer_load_dword v30, v5, {RBR}, s8 offen')
        s.live('s_barrier')
        ck, t = s.ck_tag([[17, 19], [21, 23]], 12)
        for k in range(2):
            for r in (16 + 4 * k, 18 + 4 * k): ck[k] += f'\nv_and_b32 v{r+1}, 0xffff0000, v{r}\nv_lshlrev_b32 v{r}, 16, v{r}'
        s.poll([f'buffer_load_dwordx4 {Q4(16+4*k)}, v1, {WSR}, s{5+k} offen sc1' for k in range(2)], (ck, t), warmable=True)
        s.stamp(5)
        s('v_pk_mul_f32 v[16:17], v[16:17], v[20:21]\nv_pk_mul_f32 v[18:19], v[18:19], v[22:23]\nv_cvt_pk_bf16_f32 v16, v16, v18\nv_cvt_pk_bf16_f32 v17, v17, v19')
        s('ds_write2st64_b32 v2, v16, v17 offset0:0 offset1:1\ns_waitcnt lgkmcnt(0)')
        for T in range(4): s(f'ds_read_b128 {Q4(A+4*T)}, v3 offset:{64*T}')
        for T in range(4):
            s(f's_waitcnt lgkmcnt({3-T})')
            for tt in range(2): s.mfma(D + 4 * tt, A + 4 * T, BW + 16 * tt + 4 * T, T == 0)
        for b in range(2): s(f'v_mov_b32_dpp v{D+b}, v{D+4+b} quad_perm:[0,1,2,3] row_mask:0xa bank_mask:0xf')
        s(f'ds_write2_b32 v4, v{D}, v{D+1} offset0:0 offset1:12\ns_waitcnt lgkmcnt(0)'); s.stamp(1); s.live('s_barrier'); s.stamp(2)
        s(f's_cmp_eq_u32 s{SV}, 0\ns_cbranch_scc0 L_exit')
        for k in range(3): s(f'ds_read_b128 {Q4(16+4*k)}, v6 offset:{16*k}')
        s('s_waitcnt lgkmcnt(1)\nv_pk_add_f32 v[16:17], v[16:17], v[18:19]\nv_pk_add_f32 v[20:21], v[20:21], v[22:23]\nv_pk_add_f32 v[16:17], v[16:17], v[20:21]')
        s('s_waitcnt lgkmcnt(0)\nv_pk_add_f32 v[24:25], v[24:25], v[26:27]\nv_pk_add_f32 v[16:17], v[16:17], v[24:25]\nv_add_f32 v16, v16, v17')
        s('v_fma_f32 v16, v16, v10, v8\nv_mov_b32_dpp v17, v16 quad_perm:[1,1,3,3] row_mask:0xf bank_mask:0xf\nv_cvt_pk_bf16_f32 v16, v16, v17')
        s.warmret('L_wD')
        s(f's_mov_b32 exec_lo, 0x55555555\ns_mov_b32 exec_hi, 0x55555555\nbuffer_store_dword v16, v5, {RBR}, s8 offen {o["oflag"]}')
        s.stamp(6)
        s(f's_cmp_eq_u32 s{S_DT}, 0\ns_cbranch_scc0 L_exit')
        s(f's_mov_b64 exec, 1\nv_mov_b32 v17, s{TAG}\nv_mov_b32 v18, 0\nbuffer_store_dword v17, v18, {WSR}, 0 offen {o["oflag"]}')
        if o['diag']:
            s(f'L_diag:\ns_memrealtime s[76:77]\ns_waitcnt lgkmcnt(0)\ns_sub_u32 s76, s76, s78\ns_cmp_lt_u32 s76, {o["diag"]}\ns_cbranch_scc1 L_diag')

    def exit(s):
        s('L_exit:')
        if s.o['stamps']:
            s('s_waitcnt vmcnt(0)')
            s.stamp(7, True)
            if s.o['stamps'] == 3: s(f's_memtime s[{ST0+12}:{ST0+13}]')
            s('s_mov_b64 exec, 1\ns_waitcnt lgkmcnt(0)')
            s(f's_mul_i32 s4, s2, 12\ns_add_u32 s4, s4, s3\ns_lshl_b32 s4, s4, 6\ns_add_u32 s4, s4, {W_STAMP}\nv_mov_b32 v1, 0')
            for k in range(4):
                for e in range(4): s(f'v_mov_b32 v{4+4*k+e}, s{ST0+4*k+e}')
                s(f'buffer_store_dwordx4 {Q4(4+4*k)}, v1, {WSR}, s4 offen offset:{16*k}')
        s('L_end:\ns_endpgm')

    def build(s):
        s.entry(); s.stream()
        for _ in range(s.o['shift']): s('s_endpgm')
        s('L_service:')
        s.roles()
        s('s_cmp_eq_u32 s3, 9\ns_cbranch_scc1 L_s1\ns_cmp_eq_u32 s3, 10\ns_cbranch_scc1 L_s2\ns_cmp_eq_u32 s3, 11\ns_cbranch_scc1 L_s3')
        s.s0(); s.bgather(); s('L_s1:'); s.s1(); s('L_s2:'); s.s2(); s('L_s3:'); s.s3(); s.crole(); s.drole(); s.exit()
        body, n = pad(s.L)
        out = [f'; @launch grid=(256,1,1) block=(768,1,1) lds={LEND}', '.amdgcn_target "amdgcn-amd-amdhsa--gfx950"', '.text',
               f'.globl {KN}', '.p2align 8', f'.type {KN},@function', f'{KN}:']
        out += [l if l.endswith(':') else '    ' + l for l in body]
        out += ['.section .rodata,"a"', '.p2align 6', f'.amdhsa_kernel {KN}', '  .amdhsa_next_free_vgpr 168', '  .amdhsa_next_free_sgpr 96',
                '  .amdhsa_accum_offset 168', '  .amdhsa_group_segment_fixed_size 0', '  .amdhsa_kernarg_size 112', '  .amdhsa_user_sgpr_count 2',
                '  .amdhsa_user_sgpr_kernarg_segment_ptr 1', '  .amdhsa_system_sgpr_workgroup_id_x 1', '  .amdhsa_float_denorm_mode_32 3', '.end_amdhsa_kernel']
        return '\n'.join(out) + '\n', n

if __name__ == '__main__':
    names = []
    for spec in sys.argv[1:]:
        kw = {}
        name, _, rest = spec.partition(':')
        for kv in filter(None, rest.split(',')):
            k, v = kv.split('=')
            kw[k] = int(v) if v.isdigit() else v.replace('+', ' ').replace('_', '')
        t, n = G(**kw).build()
        open(name, 'w').write(t)
        names.append(name)
    print(' '.join(names))
```

```python
import sys, struct
from asmlib import pad
KN = 'adaLN_cond__gqa_block_cached__swiglu_ffn__decode_kernel'

def f2u(x): return struct.unpack('<I', struct.pack('<f', x))[0]
def hx(x): return hex(f2u(x))
LOG2E = 1.4426950408889634
W_E, W_PG, W_MOD, W_XL, W_XC, W_ACT = 0, 0x800, 0x1000, 0x2000, 0x9000, 0xA000
W_X1, W_GL, W_AL, W_YL, W_Y, W_ATT, W_ML, W_MP, W_QP, W_END = 0x10000, 0x20000, 0x28000, 0x30000, 0x58000, 0x80000, 0x180000, 0x1A0000, 0x1E0000, 0x260000
W_STAMP = 512 << 20
LQ, LFLAG, LPRG, LMODE, LQF, LGO, LCNT, LXS, LHS, LO, LH2, LPO, LBIG = 0, 1536, 1544, 1552, 1556, 1560, 1568, 1664, 2304, 2816, 6144, 9216, 58368
LYO = LXS
LACT, LDP = LPO, LPO + 6144
OS = 768 + 64
HS = 1280 + 64
LM, LWQ, LB, LEND = LBIG, LBIG + 20480, LBIG + 51200, LBIG + 100352
P_X, P_K, P_V, P_WQ, P_WO, P_BX, P_G, P_U, P_D, P_C, P_WM, P_OUT, P_DBG, P_WS = range(16, 44, 2)
TAG, S_H, S_J, S_R, S_X, S_IDX, LOC, S_CS = 44, 45, 46, 47, 48, 49, 50, 51
WS = 52; RA = 56; RB = 60
S_ROLE = 15
S_DT = 14
SPIN = 13
SV = 12
ST0 = 80
WSR = f's[{WS}:{WS+3}]'; RAR = f's[{RA}:{RA+3}]'; RBR = f's[{RB}:{RB+3}]'
P = lambda r: f'v[{r}:{r+1}]'
Q4 = lambda r: f'v[{r}:{r+3}]'


HEADER = """; Kernarg layout for this problem (112 bytes, ptrs only, base s[0:1]):
;
"""

class G:
    def __init__(s, **o):
        s.o = dict(F=3, NPF=12, RC=3, endF=5, endN=9, rot=6, wflag='nt', sflag='nt', spin=1 << 22, pslp=8, mlslp=32,
                   qF=63, mF=63, bF=1, cF=1, dF=1, cE=3, dE=3, bE=0, bEF=2, bonus=1, ord='0123', ordk='2301', wst=0, wF=3, up=1, upF=63, F0=3, N0=0, upe=0, qfirst=1, mfirst=1, Fm=3, Flom=2, far=0, emu=0, emin=6, emin2=3, shift=0, rown=1, pfy=0, pfa=0, rg=4, dg=1, rmiss=0, otouch=0, eg0=16, st0=112, qlight=0, glight=0, gmap=1, sep=0, dW=9, eg=182, xab=6, oflag='', warm=1, loc=1,
                   bal=1, stat1=130, cstep=8, bdel=21, n1=11, cstep2=6, bdel2=18, c0=6, bslp=24, Flo=2, bend=180,
                   stamps=0, stk='', phst=0, remap=0, diag=0, nox='')
        s.o.update(o); s.L = []; s.uid = 0; s.cur = '?'
    def __call__(s, t):
        for l in t.split('\n'):
            l = l.strip()
            if l: s.L.append(l)
    def lab(s, n): s.uid += 1; return f'L_{n}_{s.uid}'
    def srd(s, d, ptr, size):
        s(f's_mov_b32 s{d}, s{ptr}\ns_mov_b32 s{d+1}, s{ptr+1}\ns_mov_b32 s{d+2}, {size}\ns_mov_b32 s{d+3}, 0x20000')
    def stamp(s, k, lite=False):
        if s.o['stamps'] == 1 or (s.o['stamps'] and (lite or str(k) + s.cur in s.o['stk'])): s(f's_memrealtime s[{ST0+2*k}:{ST0+2*k+1}]')
    def bf16r(s, d, src=None):
        src = d if src is None else src
        s(f'v_cvt_pk_bf16_f32 v{d}, v{src}, v{src}\nv_and_b32 v{d}, 0xffff0000, v{d}')
    def dppop(s, op, v, ctl): s(f'{op}_dpp v{v}, v{v}, v{v} {ctl} row_mask:0xf bank_mask:0xf')
    def red16(s, op, vs, skip1=False, fill=None):
        for ctl in (['quad_perm:[1,0,3,2]'] if not skip1 else []) + ['quad_perm:[2,3,0,1]', 'row_half_mirror', 'row_mirror']:
            if fill:
                for _ in range(2):
                    if fill: s(fill.pop(0))
            for v in vs: s.dppop(op, v, ctl)
    def swapred(s, op, v, t, w, fill=None):
        s(f'v_mov_b32 v{t}, v{v}')
        if fill:
            for _ in range(2):
                if fill: s(fill.pop(0))
        s(f'v_permlane{w}_swap_b32 v{v}, v{t}\n{op} v{v}, v{v}, v{t}')
    def live(s, text):
        if not s.o['warm']: s(text); return
        l = s.lab('lv'); s(f's_cbranch_execz {l}'); s(text); s(f'{l}:')
    def warm(s, entry, ret):
        if not s.o['warm']: return
        for r in range(1, 8): s(f'v_mov_b32 v{r}, 0')
        s(f's_mov_b64 exec, 0\ns_branch {entry}\n{ret}:\ns_mov_b64 exec, -1')
    def warmret(s, ret):
        if s.o['warm']: s(f's_cbranch_execz {ret}')
    def ck_tag(s, groups, t):
        out = []; first = True
        for g in groups:
            l = []
            for r in g:
                l.append(f'v_xor_b32 v{t}, s{TAG}, v{r}' if first else f'v_bitop3_b32 v{t}, v{r}, s{TAG}, v{t} bitop3:0xbe'); first = False
            out.append('\n'.join(l))
        return out, t
    def ck_xor(s, bases, n, t, t2):
        out = []
        for i, b in enumerate(bases):
            l = [f'v_bitop3_b32 v{t2}, v{b}, v{b+1}, v{b+2} bitop3:0x96']
            if n == 3: l.append(f'v_xor_b32 v{t2}, v{t2}, v{b+3}')
            l.append(f'v_xor_b32 v{t}, s{TAG}, v{t2}' if i == 0 else f'v_bitop3_b32 v{t}, v{t2}, s{TAG}, v{t} bitop3:0xbe')
            out.append('\n'.join(l))
        return out, t
    def poll(s, loads, ck, slp=0, warmable=False, nm='?', slpif=None, spin=None, pre=None):
        if nm in s.o['nox']: return
        checks, t = ck
        a = s.lab('poll'); b = s.lab('ok')
        s(f's_mov_b32 s{SPIN}, {spin or s.o["spin"]}')
        c0 = s.lab('chk')
        if pre: s('\n'.join(loads)); s(pre); s(f's_branch {c0}')
        s(f'{a}:')
        (s.live if warmable else s)('\n'.join(loads))
        if pre: s(f'{c0}:')
        for i, c in enumerate(checks): s(f's_waitcnt vmcnt({len(loads) - 1 - i})'); s(c)
        s(f'v_cmp_ne_u32 vcc, 0, v{t}\ns_cbranch_vccz {b}')
        if slpif: c = s.lab('ns'); s(f'{slpif}\ns_cbranch_scc1 {c}\ns_sleep {s.o["mlslp"]}\n{c}:')
        if slp: s(f's_sleep {slp}')
        s(f's_sub_u32 s{SPIN}, s{SPIN}, 1\ns_cbranch_scc0 {a}\n{b}:')
    def gather(s, loads, cks, sm, slp=0, nm='?'):
        if nm in s.o['nox']: return
        n = len(loads); a = s.lab('gat'); b = s.lab('ok')
        s(f's_mov_b32 s{SPIN}, {s.o["spin"]}\ns_mov_b32 s{sm}, {(1 << n) - 1}\n{a}:')
        for k in range(n):
            l = s.lab('sk'); s(f's_bitcmp1_b32 s{sm}, {k}\ns_cbranch_scc0 {l}\n{loads[k]}\n{l}:')
        s(f's_mov_b32 s{sm}, 0\ns_waitcnt vmcnt(0)')
        for k in reversed(range(n)):
            s(cks[k][0][0]); s(f'v_cmp_ne_u32 vcc, 0, v{cks[k][1]}\ns_cmp_lg_u64 vcc, 0\ns_addc_u32 s{sm}, s{sm}, s{sm}')
        s(f's_cmp_eq_u32 s{sm}, 0\ns_cbranch_scc1 {b}')
        if slp: s(f's_sleep {slp}')
        s(f's_sub_u32 s{SPIN}, s{SPIN}, 1\ns_cbranch_scc0 {a}\n{b}:')
    def gstore(s, stores, nm='?'):
        if nm in s.o['nox']: return
        a = s.lab('pl'); b = s.lab('st')
        s(f's_cmp_eq_u32 s{LOC}, 1\ns_cbranch_scc1 {a}')
        for t in stores: s(t + ' sc1')
        s(f's_branch {b}\n{a}:')
        for t in stores: s(t)
        s(f'{b}:')
    def getloc(s, t, spin=True, at=LFLAG):
        a = s.lab('loc'); b = s.lab('locok')
        if spin: s(f's_mov_b32 s{SPIN}, {s.o["spin"] * 8}\n{a}:')
        s(f'v_mov_b32 v{t}, {at}\nds_read_b32 v{t}, v{t}\ns_waitcnt lgkmcnt(0)\nv_readfirstlane_b32 s{LOC}, v{t}\ns_sub_u32 s{LOC}, s{LOC}, s{TAG}')
        if spin: s(f's_cmp_le_u32 s{LOC}, 1\ns_cbranch_scc1 {b}\ns_sleep 1\ns_sub_u32 s{SPIN}, s{SPIN}, 1\ns_cbranch_scc0 {a}\n{b}:')
    def dma(s, n, voff, srd, soff, sstep, lds, F):
        out = []
        for t in range(n):
            st = sstep(t) if callable(sstep) else sstep
            out.append(lds(t) if callable(lds) else f's_mov_b32 m0, {lds + 1024 * t}')
            if F < 60: out.append(f's_waitcnt vmcnt({F - 1})')
            out.append(f'buffer_load_dwordx4 v{voff}, s[{srd}:{srd+3}], s{soff} offen {s.o["wflag"]} lds')
            if t < n - 1: out.append(f's_add_u32 s{soff}, s{soff}, {st}')
        return '\n'.join(out)
    def rows(s, d, t, sh, stride):
        s(f'v_lshrrev_b32 v{d}, {sh}, v0\nv_mul_u32_u24 v{d}, {stride}, v{d}\nv_and_b32 v{t}, {(1 << sh) - 1}, v0\nv_lshl_add_u32 v{d}, v{t}, 4, v{d}')
    def tr_lane(s, d, t, gs, rs):
        s(f'v_lshrrev_b32 v{d}, 4, v0\nv_mul_u32_u24 v{d}, {gs}, v{d}')
        s(f'v_bfe_u32 v{t}, v0, 2, 2\nv_mul_u32_u24 v{t}, {rs}, v{t}\nv_add_u32 v{d}, v{d}, v{t}')
        s(f'v_and_b32 v{t}, 3, v0\nv_lshl_add_u32 v{d}, v{t}, 3, v{d}')
    def a_lane(s, d, t, bs, gs, base):
        s(f'v_and_b32 v{d}, 1, v0\nv_mul_u32_u24 v{d}, {bs}, v{d}\nv_lshrrev_b32 v{t}, 4, v0\nv_mul_u32_u24 v{t}, {gs}, v{t}')
        s(f'v_add_u32 v{d}, v{d}, v{t}')
        if base: s(f'v_add_u32 v{d}, {base}, v{d}')
    def mfma(s, d, a, b, first, k=32):
        n = 4 if k == 32 else 2
        s(f'v_mfma_f32_16x16x{k}_bf16 v[{d}:{d+3}], v[{a}:{a+n-1}], v[{b}:{b+n-1}], ' + ('0' if first else f'v[{d}:{d+3}]'))
    def role(s, bit, label, ifset=True): s(f's_bitcmp1_b32 s{S_ROLE}, {bit}\ns_cbranch_scc{1 if ifset else 0} {label}')
    def end(s): s('s_branch L_exit' if s.o['stamps'] else 's_endpgm')
    def ghead(s, d):
        if s.o['gmap']: s(f's_lshr_b32 s{d}, s2, 7\ns_lshl3_add_u32 s{d}, s{d}, s{S_X}')
        else: s(f's_lshr_b32 s{d}, s{S_H}, 1')
    def tagwait(s): s(f's_waitcnt lgkmcnt(0)\ns_add_u32 s{TAG}, s{TAG}, 0x9e3779b1')

    def entry(s):
        o = s.o
        s(f's_cmp_ge_u32 s2, 256\ns_cbranch_scc1 L_end')
        s.stamp(0, True)
        s('s_load_dwordx16 s[16:31], s[0:1], 0\ns_load_dwordx8 s[32:39], s[0:1], 64\ns_load_dwordx4 s[40:43], s[0:1], 96')
        if o['diag']: s('s_memrealtime s[78:79]')
        s('v_readfirstlane_b32 s3, v0\nv_and_b32 v0, 63, v0')
        if o['remap']: s('s_lshr_b32 s4, s2, 3\ns_and_b32 s4, s4, 7\ns_xor_b32 s2, s2, s4')
        s(f's_and_b32 s{S_X}, s2, 7\ns_lshr_b32 s4, s2, 6\ns_bfe_u32 s{S_J}, s2, 0x30003\ns_lshl2_add_u32 s{S_H}, s{S_X}, s4\ns_lshr_b32 s3, s3, 6')
        s('s_cmp_ge_u32 s3, 8\ns_cbranch_scc1 L_service')

    def roles(s):
        o = s.o
        for k in range(1, 8): s.stamp(k, True)
        s(f's_lshr_b32 s{S_IDX}, s2, 3\ns_lshr_b32 s11, s2, 6')
        lb = s.lab('nonB'); lr = s.lab('roles')
        s(f's_mov_b32 s{S_DT}, 0\ns_mov_b32 s{SV}, s3')
        s(f's_cmp_lt_u32 s{S_J}, 5\ns_cbranch_scc0 {lb}')
        if o['rown']:
            s(f's_and_b32 s9, s11, 1\ns_mul_i32 s{S_CS}, s9, 5\ns_add_u32 s{S_CS}, s{S_CS}, s{S_J}\ns_and_b32 s9, s11, 2\ns_lshl2_add_u32 s{S_CS}, s{S_CS}, s9\ns_and_b32 s9, s3, 1\ns_add_u32 s{S_CS}, s{S_CS}, s9')
        else: s(f's_mul_i32 s{S_CS}, s11, 5\ns_add_u32 s{S_CS}, s{S_CS}, s{S_J}\ns_lshl_b32 s{S_CS}, s{S_CS}, 1\ns_and_b32 s9, s3, 1\ns_add_u32 s{S_CS}, s{S_CS}, s9')
        s(f's_mov_b32 s{S_ROLE}, 1\ns_branch {lr}')
        s(f'{lb}:')
        s(f's_mul_i32 s8, s11, 3\ns_add_u32 s8, s8, s{S_J}\ns_sub_u32 s8, s8, 5')
        s(f's_mul_i32 s{S_CS}, s{S_X}, 6\ns_add_u32 s{S_CS}, s{S_CS}, s8')
        s(f's_add_u32 s9, s8, 10\ns_and_b32 s9, s9, 14\ns_lshl_b32 s10, s9, 2\ns_add_u32 s10, s10, s{S_X}')
        s(f's_lshl_b32 s{S_DT}, s10, 1\ns_and_b32 s9, s8, 1\ns_add_u32 s{S_DT}, s{S_DT}, s9')
        s(f's_cmp_lt_u32 s10, 10\ns_cselect_b32 s{S_ROLE}, 8, 0')
        s(f's_cmp_lt_u32 s8, 6\ns_cselect_b32 s{S_ROLE}, 2, s{S_ROLE}')
        s(f'{lr}:')
        s('s_waitcnt lgkmcnt(0)')
        s(f's_load_dword s{TAG}, s[{P_WS}:{P_WS+1}], 0')
        s.srd(WS, P_WS, 805306368 if o['stamps'] else W_END)

    def stream(s):
        s.cur = 'w'
        o = s.o; F = o['F']; NPF = o['NPF']
        VK, QA, ACC, TS, MX = 1, 4, 16, 2, 3
        RING = 24
        SC = RING
        T1, T2, LS, PPT = RING + 8, RING + 9, RING + 10, RING + 11
        MK = RING + 12
        VV, BP, PP2, T3 = RING + 16, RING + 17, RING + 18, RING + 19
        ML = RING + 20
        RET = 7
        BM, BA, BZ = RING + 24, RING + 25, RING + 26
        A2 = []
        s(f'v_bfe_u32 v{VK}, v0, 1, 3\nv_mul_u32_u24 v{VK}, 384, v{VK}\nv_lshrrev_b32 v2, 4, v0\nv_lshl_add_u32 v{VK}, v2, 5, v{VK}')
        s(f'v_and_b32 v2, 1, v0\nv_lshl_add_u32 v{VK}, v2, 4, v{VK}')
        PD = 16 * 3145728; STEP = 393216; OV = [int(c) for c in str(o['ord']).zfill(4)]
        OD = [int(c) for c in str(o['ordk'] or o['ord']).zfill(4)] + OV
        s(f's_bfe_u32 s7, s2, 0x40003\ns_lshl3_add_u32 s7, s7, s3\ns_mul_i32 s4, s7, 3072'); s.ghead(10)
        s(f's_mul_i32 s5, s10, 3145728\ns_add_u32 s4, s4, s5\ns_add_u32 s4, s4, {OD[0] * PD}\ns_add_u32 s6, s4, 3145728')
        s(f's_mul_i32 s5, s10, {o["rot"]}\ns_and_b32 s5, s5, 7\ns_mul_i32 s5, s5, {STEP}\ns_add_u32 s5, s5, s4')
        s(f's_mov_b32 s{RA+2}, 201326592\ns_mov_b32 s{RA+3}, 0x20000\ns_waitcnt lgkmcnt(0)\ns_mov_b64 s[{RA}:{RA+1}], s[{P_K}:{P_K+1}]')
        def emu(both=True):
            if o['emu']:
                s(f's_cmp_ge_u32 s4, {43 * 3145728}\ns_cselect_b64 s[{RA}:{RA+1}], s[{P_BX}:{P_BX+1}], s[{P_K}:{P_K+1}]')
                if both: s(f's_cselect_b64 s[{RB}:{RB+1}], s[{P_DBG}:{P_DBG+1}], s[{P_V}:{P_V+1}]')
        emu(False)
        NL = 192
        quad = {}; free = list(range(3 * NPF)); vm = []
        done = [0]
        def wait(n):
            if len(vm) - done[0] > n:
                s(f's_waitcnt vmcnt({n})'); done[0] = len(vm) - n
        def issue(u):
            wait((o['endF'] if u >= NL - o['endN'] else o['F0'] if u < o['N0'] else o['Fm'] if OD[u // 24] == 2 else F) - 1)
            if o['bal'] and 3 * NPF + 9 <= u < NL - o['endN']:
                l = s.lab('th'); s(f's_cbranch_vccz {l}\ns_waitcnt vmcnt({(o["Flom"] if OD[u // 24] == 2 else o["Flo"]) - 1})')
                if o['far']: s(f's_cmp_eq_u64 s[72:73], 0\ns_cbranch_scc1 {l}\ns_waitcnt vmcnt(0)')
                s(f'{l}:')
            q = free.pop(0); quad[u] = q; r = RING + 4 * q
            srd, vo = (RAR, VK) if u < 96 else (RBR, VV)
            s(f'buffer_load_dwordx4 {Q4(r)}, v{vo}, {srd}, s5 offen offset:{128 * (u % 3)} {o["sflag"]}')
            vm.append(u)
            if u % 3 == 2 and u < NL - 1:
                s(f's_add_u32 s5, s5, {STEP}\ns_cmp_ge_u32 s5, s6\ns_cselect_b32 s5, s4, s5')
                if u % 24 == 23:
                    t = u // 24; dl = OD[t + 1] - OD[t]
                    for r in (4, 5, 6): s(f's_{"add" if dl > 0 else "sub"}_u32 s{r}, s{r}, {abs(dl) * PD}')
                    emu()
                if o['phst'] == 1 and u % 48 == 47: s.stamp({47: 3, 95: 5, 143: 6}[u], True)
                if o['phst'] == 2 and u in (95, 119, 143): s.stamp({95: 3, 119: 5, 143: 6}[u], True)
            if u >= 3 * NPF + 3:
                if u >= 3 * NPF + 6:
                    s('s_waitcnt lgkmcnt(0)')
                    if o['far']: s(f'v_cmp_gt_u32 vcc, {u + 1 - o["far"]}, v{BM}\ns_mov_b64 s[72:73], vcc')
                    s(f'v_cmp_gt_u32 vcc, {u + 1}, v{BM}')
                s(f'v_mov_b32 v{BM}, {u + 1}\nds_write_b32 v{BA}, v{BM} offset:{LPRG}\nds_read_b32 v{BM}, v{BZ} offset:{LMODE}')
        def ready(u): return u in vm and vm.index(u) < done[0]
        def kpost(g):
            a = ACC + 4 * (g & 1); sc = SC + (g >> 2)
            s(f'v_cndmask_b32_e64 v{TS}, v{a}, v{a+1}, s[8:9]')
            s(f'v_add_f32_dpp v{sc}, v{TS}, v{TS} quad_perm:[1,0,3,2] row_mask:{1 << (g & 3)} bank_mask:0xf')
            if g & 3 == 3:
                s.bf16r(sc); s(f'v_mul_f32 v{sc}, {hx(192 ** -0.5)}, v{sc}'); s.bf16r(sc)
            if g & 7 == 7:
                a = sc - 1; row = f'quad_perm:[0,1,2,3] row_mask:{1 << OV.index(OD[g >> 3])} bank_mask:0xf'
                s(f'v_max_f32 v{MX}, v{a}, v{a+1}')
                s.red16('v_max_f32', [MX], skip1=True); s.swapred('v_max_f32', MX, T1, 16); s.swapred('v_max_f32', MX, T1, 32)
                s(f's_mov_b32 s10, {hx(LOG2E)}\nv_mul_f32 v{T1}, s10, v{MX}')
                for k in range(2): s(f'v_fma_f32 v{a+k}, v{a+k}, s10, -v{T1}')
                for k in range(2): s(f'v_exp_f32 v{a+k}, v{a+k}')
                s(f'v_mov_b32_dpp v{ML}, v{MX} {row}\nv_add_f32 v{LS}, v{a}, v{a+1}')
                for k in range(2): s(f'v_cvt_pk_bf16_f32 v{a+k}, v{a+k}, v{a+k}')
                s.red16('v_add_f32', [LS], skip1=True); s.swapred('v_add_f32', LS, T1, 16); s.swapred('v_add_f32', LS, T1, 32)
                s(f'v_mov_b32_dpp v{ML+1}, v{LS} {row}')
        def bperm(g):
            s(f'ds_bpermute_b32 v{PPT if g & 1 == 0 else PP2}, v{BP}, v{SC + 2 * OD.index(OV[g >> 3]) + (g >> 2 & 1)} offset:{64 * (g & 3)}')
        def switch():
            s.stamp(3)
            bperm(0)
            s(f'v_bitop3_b32 v{ML+2}, v{ML}, v{ML+1}, s{TAG} bitop3:0x96\nv_lshlrev_b32 v{ML+3}, 7, v0')
            s(f's_lshr_b32 s10, s{S_H}, 1\ns_lshl_b32 s10, s10, 9\ns_add_u32 s10, s10, s7\ns_lshl_b32 s10, s10, 4\ns_add_u32 s10, s10, {W_ML}')
            s('s_mov_b32 exec_lo, 0x00010001\ns_mov_b32 exec_hi, 0x00010001')
            s.gstore([f'buffer_store_dwordx4 {Q4(ML)}, v{ML+3}, {WSR}, s10 offen'])
            s('s_mov_b64 exec, -1')
            vm.append(None)
            s(f'v_lshrrev_b32 v{T1}, 5, v0\nv_mul_u32_u24 v{T1}, 768, v{T1}\nv_and_b32 v{T2}, 7, v0\nv_lshl_add_u32 v{T1}, v{T2}, 5, v{T1}')
            s(f'v_and_b32 v{T2}, 16, v0\nv_add_u32 v{T1}, v{T1}, v{T2}\ns_mul_i32 s10, s3, 1536\ns_add_u32 s10, s10, {LPO}\nv_add_u32 v{T1}, s10, v{T1}')
        def outp(acc, b):
            s('s_mov_b32 exec_lo, 0x00ff00ff\ns_mov_b32 exec_hi, 0xff00ff00')
            for jj in range(3): s(f'ds_write_b128 v{T1}, {Q4(acc[jj])} offset:{256*jj + 12288*b}')
            s('s_mov_b64 exec, -1')
        def proc(u):
            g, jj = divmod(u, 3)
            if g >= 32 and jj == 0:
                a = ACC + 4 * (g & 1)
                s('s_waitcnt lgkmcnt(0)')
                for k in range(4): s(f'v_and_b32 v{a+k}, v{PPT if g & 1 == 0 else PP2}, v{MK+k}')
                if g < 63: bperm(g - 31)
            wait(len(vm) - 1 - vm.index(u))
            r = RING + 4 * quad[u]
            if g < 32:
                s.mfma(ACC + 4 * (g & 1), QA + 4 * jj, r, jj == 0)
                if jj == 2 and g > 0: kpost(g - 1)
                if u == 5:
                    s(f'v_lshrrev_b32 v{BP}, 3, v0\nv_mul_u32_u24 v{VV}, 384, v{BP}\nv_lshlrev_b32 v{BP}, 3, v{BP}')
                    s(f'v_and_b32 v{T3}, 7, v0\nv_lshl_add_u32 v{VV}, v{T3}, 4, v{VV}')
                    s(f'v_and_b32 v{PP2}, 1, v0\nv_lshlrev_b32 v{PP2}, 4, v{PP2}\nv_mov_b32 v{MK}, 0xffff\nv_lshlrev_b32 v{PP2}, v{PP2}, v{MK}')
                    s(f'v_lshrrev_b32 v{T3}, 1, v{T3}')
                    for k in range(4):
                        s(f'v_cmp_eq_u32 vcc, {k}, v{T3}\nv_cndmask_b32 v{MK+k}, 0, v{PP2}, vcc')
                    s.a_lane(T3, PP2, 16, 32, LQ)
                if u in (23, 47, 71):
                    for k in range(3): s(f'ds_read_b128 {Q4(QA+4*k)}, v{T3} offset:{128*k + 384*OD[(u+1)//24]}')
                    s('s_waitcnt lgkmcnt(0)')
                if u == 6:
                    s(f's_cmp_eq_u32 s3, 3\ns_cselect_b32 s10, 0, 4\nv_mov_b32 v{BA}, s10\nv_mov_b32 v{BZ}, 0')
                if u == 95: kpost(31); switch()
            else:
                if u == 120: A2.extend(RING + 4 * free.pop() for _ in range(3))
                acc = lambda p: A2 if p & 1 else [QA, QA + 4, QA + 8]
                p = (g - 32) >> 3
                s.mfma(acc(p)[jj], ACC + 4 * (g & 1), r, g & 7 == 0)
                if u >= 190:
                    s(f's_mov_b32 exec_lo, 0x00ff00ff\ns_mov_b32 exec_hi, 0xff00ff00\nds_write_b128 v{T1}, {Q4(A2[jj-1])} offset:{256*(jj-1) + 3*12288}')
                    if u == 190: s('s_mov_b64 exec, -1')
                if p and u % 24 == 2:
                    outp(acc(p - 1), p - 1)
                    s(f's_mov_b64 exec, 1\nv_mov_b32 v{T2}, 1\nds_add_u32 v{BZ}, v{T2} offset:{LCNT + 4*(p-1)}\ns_mov_b64 exec, -1')
            if quad[u] >= RET: free.append(quad[u])
        li = 0
        if o['wst']:
            s.roles()
            s.wstage()
            vm.extend([None] * F)
        if o['sep']:
            s.roles(); s.tagwait(); s.ldswait(LGO, TS)
        while li < 3 * NPF:
            issue(li); li += 1
            if li == (min(F, o['F0']) if o['N0'] else F):
                if not o['sep'] and not o['wst']: s.roles()
                s.srd(RB, P_V, 201326592)
                if o['mfirst'] and not o['wst']: s('s_barrier')
            if li == F + 1:
                s('s_mov_b32 s8, 0xaaaaaaaa\ns_mov_b32 s9, 0xaaaaaaaa'); s.a_lane(TS, MX, 16, 32, LQ)
                if not o['sep']: s.tagwait()
        s.stamp(1, True)
        s('s_barrier')
        s.stamp(2, True)
        for jj in range(3): s(f'ds_read_b128 {Q4(QA+4*jj)}, v{TS} offset:{128*jj + 384*OD[0]}')
        s.getloc(MX, spin=False)
        pi = 0
        while pi < NL:
            if li < NL:
                while not free: proc(pi); pi += 1
                issue(li); li += 1
                n = 0
                while n < o['RC'] and pi < NL and ready(pi): proc(pi); pi += 1; n += 1
            else:
                proc(pi); pi += 1
        s(f'ds_write_b128 v{T1}, {Q4(A2[2])} offset:{512 + 3*12288}\ns_mov_b64 exec, -1')
        s('s_waitcnt lgkmcnt(0)')
        s.stamp(4, True)
        s('s_barrier')
        s.role(3, 'L_D'); s.role(1, 'L_C'); s.role(0, 'L_exit', False)
        s(f'L_B:\ns_cmp_lt_u32 s{SV}, 4\ns_cbranch_scc0 L_exit')
        BW, AW, D = 40, 88, 136
        s.tr_lane(2, 3, 1024, 128)
        s(f'v_bfe_u32 v3, v0, 3, 2\nv_xor_b32 v3, s{SV}, v3\nv_lshl_add_u32 v2, v3, 5, v2\nv_add_u32 v2, {LB}, v2')
        for T in range(12):
            for hi in range(2): s(f'ds_read_b64_tr_b16 {P(BW+4*T+2*hi)}, v2 offset:{4096*T + 512*hi}')
        s(f'v_and_b32 v3, 3, v0\nv_mul_u32_u24 v3, {OS}, v3\nv_and_b32 v4, 48, v0\nv_add_u32 v3, v3, v4\nv_add_u32 v3, {LO}, v3')
        for T in range(6): s(f'ds_read_b128 {Q4(AW+4*T)}, v3 offset:{64*T}')
        s(f'v_lshlrev_b32 v4, 4, v0')
        s(f's_lshr_b32 s10, s{S_H}, 1\ns_mul_i32 s10, s10, 40\ns_and_b32 s11, s{S_H}, 1\ns_mul_i32 s11, s11, 5\ns_add_u32 s11, s11, s{S_J}')
        s(f's_lshl2_add_u32 s10, s11, s10\ns_add_u32 s10, s10, s{SV}\ns_lshl_b32 s10, s10, 8\ns_add_u32 s10, s10, {W_Y}\ns_sub_u32 s11, s10, {W_Y - W_YL}')
        if o['rown']: s(f's_lshl_b32 s9, s{SV}, 7\ns_add_u32 s9, s9, {LYO}\nv_lshl_add_u32 v5, v0, 3, s9')
        s('s_waitcnt lgkmcnt(0)')
        for T in range(6): s.mfma(D, AW + 4 * T, BW + 4 * T, T == 0)
        s.live('s_barrier')
        s.stamp(5)
        for T in range(6, 12): s(f'ds_read_b128 {Q4(AW+4*T)}, v3 offset:{64*T}')
        for T in range(6, 12):
            s(f's_waitcnt lgkmcnt({11-T})'); s.mfma(D, AW + 4 * T, BW + 4 * T, False)
        s.warmret('L_wB')
        s(f's_mov_b64 exec, 0xffff\nv_pk_add_f32 {P(D)}, {P(D)}, {P(D+2)}\nv_bitop3_b32 v{D+2}, v{D}, v{D+1}, s{TAG} bitop3:0x96')
        st = [f'buffer_store_dwordx4 {Q4(D)}, v4, {WSR}, s10 offen sc1', f'buffer_store_dwordx4 {Q4(D)}, v4, {WSR}, s11 offen']
        s('\n'.join(st[::-1] if o['pfy'] else st))
        if o['rown']: s(f'ds_write_b64 v5, {P(D)}\ns_waitcnt lgkmcnt(0)')
        s.stamp(6)
        if o['rg']: s('s_barrier')
        s.end()

    def s0(s):
        s.cur = 'a'
        o = s.o
        lsk = s.lab('noM'); lj = s.lab('Mj'); ln = s.lab('Mn')
        s(f's_lshr_b32 s4, s{S_IDX}, 2\ns_lshl_b32 s4, s4, 3\ns_add_u32 s4, s4, s{S_X}')
        s(f's_cmp_lt_u32 s4, 60\ns_cbranch_scc0 {lsk}')
        s(f's_and_b32 s7, s{S_IDX}, 3')
        s.srd(RA, P_C, 2560); s.srd(RB, P_WM, 640 * 7680)
        s('v_min_u32 v1, 39, v0\nv_cmp_lt_u32 vcc, 19, v1\nv_lshlrev_b32 v1, 4, v1\nv_mov_b32 v3, 960\nv_cndmask_b32 v3, 0, v3, vcc\nv_add_u32 v3, v3, v1')
        s(f's_mul_i32 s5, s7, 320\nbuffer_load_dwordx4 v[8:11], v3, {RAR}, s5 offen')
        s.rows(2, 3, 3, 7680)
        s(f's_mul_i32 s5, s7, {160 * 7680}\ns_lshl_b32 s6, s4, 7\ns_add_u32 s5, s5, s6')
        s(s.dma(20, 2, RB, 5, 8 * 7680, LM, o['mF']))
        if o['mfirst']: s('s_barrier')
        s('s_waitcnt vmcnt(20)')
        s(f's_mov_b32 s6, {hx(-LOG2E)}')
        for k in range(4): s(f'v_lshlrev_b32 v{20+2*k}, 16, v{8+k}\nv_and_b32 v{21+2*k}, 0xffff0000, v{8+k}')
        for k in range(8): s(f'v_mul_f32 v{40+k}, s6, v{20+k}')
        for k in range(8): s(f'v_exp_f32 v{40+k}, v{40+k}')
        for k in range(8): s(f'v_add_f32 v{40+k}, 1.0, v{40+k}')
        for k in range(8): s(f'v_min_f32 v{40+k}, 0x7f000000, v{40+k}')
        for k in range(8): s(f'v_rcp_f32 v{48+k}, v{40+k}')
        for k in range(8): s(f'v_mul_f32 v{56+k}, v{20+k}, v{48+k}')
        for k in range(8): s(f'v_fma_f32 v{20+k}, -v{56+k}, v{40+k}, v{20+k}')
        for k in range(8): s(f'v_fma_f32 v{20+k}, v{20+k}, v{48+k}, v{56+k}')
        for k in range(4): s(f'v_cvt_pk_bf16_f32 v{8+k}, v{20+2*k}, v{21+2*k}')
        s(f'ds_write_b128 v1, v[8:11] offset:{LXS}')
        s.a_lane(4, 5, 320, 16, LXS)
        s.tr_lane(5, 6, 1024, 128); s(f'v_add_u32 v5, {LM}, v5')
        A, B, D = 12, 48, 32
        s.tagwait()
        for T in range(5): s(f'ds_read_b128 {Q4(A+4*T)}, v4 offset:{64*T}')
        l = s.lab('ini')
        s(f's_cmp_eq_u32 s{S_IDX}, 0\ns_cbranch_scc0 {l}\ns_lshl_b32 s5, s{S_X}, 7\ns_add_u32 s5, s5, {W_PG}\ns_add_u32 s6, s{TAG}, 999')
        s(f'v_and_b32 v1, 31, v0\nv_lshlrev_b32 v1, 2, v1\nv_mov_b32 v6, s6\nbuffer_store_dword v6, v1, {WSR}, s5 offen\n{l}:')
        s(f'v_lshlrev_b32 v1, 4, v0\ns_mul_i32 s5, s7, {3840 * 16}\ns_lshl_b32 s6, s4, 10\ns_add_u32 s5, s5, s6\ns_add_u32 s5, s5, {W_MP}')
        s.rows(2, 3, 4, 3840 * 16)
        s(f's_lshl_b32 s4, s4, 2\ns_add_u32 s4, s4, s7\ns_lshl_b32 s6, s4, 8\ns_add_u32 s6, s6, {W_MP}')
        s('s_waitcnt vmcnt(0)')
        s.stamp(1)
        for T in range(5):
            for ct in range(4):
                for hi in range(2): s(f'ds_read_b64_tr_b16 {P(B + 16*T + 4*ct + 2*hi)}, v5 offset:{4096*T + 512*hi + 32*ct}')
            if T:
                s('s_waitcnt lgkmcnt(8)')
                for ct in range(4): s.mfma(D + 4 * ct, A + 4 * (T - 1), B + 16 * (T - 1) + 4 * ct, T == 1)
        s('s_waitcnt lgkmcnt(0)')
        for ct in range(4): s.mfma(D + 4 * ct, A + 16, B + 64 + 4 * ct, False)
        for ct in range(1, 4):
            for b in range(2): s(f'v_mov_b32_dpp v{D+b}, v{D+4*ct+b} quad_perm:[0,1,2,3] row_mask:{1 << ct} bank_mask:0xf')
        s(f'v_bitop3_b32 v{D+2}, v{D}, v{D+1}, s{TAG} bitop3:0x96')
        l2 = s.lab('M2')
        s(f's_cmp_lt_u32 s4, 80\ns_cbranch_scc0 {l2}')
        if 'P' not in o['nox']: s(f'buffer_store_dwordx4 {Q4(D)}, v1, {WSR}, s5 offen sc1')
        s.stamp(2)
        s(f's_branch {ln}\n{l2}:')
        s.getloc(6)
        s.gstore([f'buffer_store_dwordx4 {Q4(D)}, v1, {WSR}, s5 offen'], nm='m')
        s.stamp(2)
        s('s_barrier')
        s.poll([f'buffer_load_dwordx3 v[4:6], v2, {WSR}, s6 offen sc1'], s.ck_xor([4], 2, 8, 9), slp=o['mlslp'], nm='m')
        for w in (32, 16):
            s.swapred('v_add_f32', 4, 8, w); s.swapred('v_add_f32', 5, 9, w)
        s(f'v_cvt_pk_bf16_f32 v4, v4, v5\nv_mov_b32 v5, s{TAG}\nv_lshlrev_b32 v3, 3, v0\ns_lshl_b32 s5, s4, 7\ns_add_u32 s5, s5, {W_MOD}')
        s(f's_mov_b64 exec, 0xffff\nbuffer_store_dwordx2 v[4:5], v3, {WSR}, s5 offen sc1\ns_mov_b64 exec, -1')
        s(f's_branch {lj}\n{lsk}:\n' + ('s_barrier' if o['mfirst'] else '')); s.tagwait(); s(f'{ln}:\ns_barrier'); s.getloc(6, spin=False); s(f'{lj}:')
        s.waitprog(o['st0'], 1)
        s('s_mov_b32 s5, 0\nL_pair:')
        s.stats()
        s.stamp(3)
        l = s.lab('cnt')
        s(f's_lshl_b32 s8, s5, 2\nv_mov_b32 v4, s8\ns_mov_b32 s{SPIN}, {o["spin"]}\n{l}:\ns_sleep {o["pslp"]}\nds_read_b32 v5, v4 offset:{LCNT}\ns_sub_u32 s{SPIN}, s{SPIN}, 1\ns_waitcnt lgkmcnt(0)')
        s(f'v_readfirstlane_b32 s8, v5\ns_cselect_b32 s8, 8, s8\ns_cmp_lt_u32 s8, 8\ns_cbranch_scc1 {l}')
        s('L_T0:')
        s.stamp(4)
        T = 16
        for k in range(24): s(f'ds_read2st64_b32 {P(T+2*k)}, v1 offset0:{2*k} offset1:{2*k+1}')
        for w in range(8):
            if w >= 3: s(f's_waitcnt lgkmcnt({3 * (7 - w)})')
            elif w == 0: s('s_waitcnt lgkmcnt(15)')
            f = f's[{64 + (w & 6)}:{65 + (w & 6)}]'; e = w & 1
            for c in range(3):
                r = T + 6 * w + 2 * c; a = (8, 10, 12)[c]
                s(f'v_pk_mul_f32 {P(a)}, {P(r)}, {f} op_sel:[0,{e}] op_sel_hi:[1,{e}]' if w == 0 else
                  f'v_pk_fma_f32 {P(a)}, {P(r)}, {f}, {P(a)} op_sel:[0,{e},0] op_sel_hi:[1,{e},1]')
        s('v_add_f32 v8, v8, v11\nv_add_f32 v9, v9, v12\nv_add_f32 v10, v10, v13')
        s(f'v_bitop3_b32 v11, v8, v9, v10 bitop3:0x96\nv_xor_b32 v11, s{TAG}, v11')
        s.gstore([f'buffer_store_dwordx4 v[8:11], v2, {WSR}, s4 offen'])
        s.stamp(5)
        l = s.lab('early'); l2 = s.lab('next'); l3 = s.lab('fin')
        s(f's_cmp_eq_u32 s5, 3\ns_cbranch_scc0 {l}')
        s.role(0, 'L_Bg'); s.role(3, 'L_D'); s.role(1, 'L_exit', False)
        s('s_barrier')
        s.end()
        s(f'{l}:')
        s.role(0, l2, False)
        s(f's_mul_i32 s9, s5, 24\ns_add_u32 s9, s9, {120 + o["eg0"]}\ns_min_u32 s9, s9, {o["eg"]}')
        s.waitprog('s9', 12, o['pslp'])
        s.gath(2, o['pslp'])
        s(f'{l2}:\ns_add_u32 s5, s5, 1\ns_cmp_lt_u32 s5, 3\ns_cbranch_scc1 L_pair')
        s.role(0, l3); s.role(3, 'L_exit', False)
        s(f's_barrier\ns_branch L_D\n{l3}:')
        s(f's_add_u32 s6, s6, 16384\ns_add_u32 s7, s6, 4096\nv_lshlrev_b32 v3, 1, v0\nv_add_u32 v3, {LO + 384 + OS * (int(str(o["ord"])[-1]) >> 1)}, v3\ns_waitcnt lgkmcnt(0)\ns_barrier')

    def stats(s):
        s(f'v_lshlrev_b32 v2, 4, v0\ns_lshr_b32 s6, s{S_H}, 1\ns_lshl2_add_u32 s6, s6, s5\ns_lshl_b32 s4, s6, 11\ns_add_u32 s4, s4, {W_ML}')
        s.poll([f'buffer_load_dwordx3 v[{4+4*k}:{6+4*k}], v2, {WSR}, s4 offen offset:{1024*k} sc1' for k in range(2)], s.ck_xor([4, 8], 2, 12, 13), slp=s.o['mlslp'])
        s('v_max_f32 v12, v4, v8')
        s.red16('v_max_f32', [12]); s.swapred('v_max_f32', 12, 13, 16); s.swapred('v_max_f32', 12, 13, 32)
        for r in (4, 8): s(f'v_sub_f32 v{r}, v{r}, v12\nv_mul_f32 v{r}, {hx(LOG2E)}, v{r}\nv_exp_f32 v{r}, v{r}')
        s('v_mul_f32 v5, v5, v4\nv_fmac_f32 v5, v9, v8')
        s.red16('v_add_f32', [5]); s.swapred('v_add_f32', 5, 13, 16); s.swapred('v_add_f32', 5, 13, 32)
        s(f'v_rcp_f32 v5, v5\ns_bitcmp1_b32 s{S_H}, 0\ns_cselect_b64 vcc, -1, 0\nv_cndmask_b32 v4, v4, v8, vcc\nv_mul_f32 v4, v4, v5')
        s(f's_lshl_b32 s4, s{S_J}, 3')
        for w in range(8):
            s(f'v_readlane_b32 s{64+w}, v4, s4')
            if w < 7: s('s_add_u32 s4, s4, 1')
        s(f's_mul_i32 s4, s5, 12288\ns_add_u32 s4, s4, {LPO}\nv_lshl_add_u32 v1, v0, 2, s4')
        s(f's_lshl_b32 s7, s5, 2\ns_lshr_b32 s7, 0x{str(s.o["ord"]).zfill(4)[::-1]}, s7')
        s(f's_bfe_u32 s4, s7, 0x10001\ns_mul_i32 s4, s4, {OS}\ns_and_b32 s7, s7, 1\ns_mul_i32 s7, s7, 384\ns_add_u32 s4, s4, s7\ns_add_u32 s4, s4, {LO}\nv_lshl_add_u32 v3, v0, 1, s4')
        s(f's_lshl_b32 s6, s6, 14\ns_add_u32 s6, s6, {W_ATT}\ns_and_b32 s4, s{S_IDX}, 15\ns_lshl_b32 s4, s4, 10\ns_add_u32 s4, s4, s6\ns_add_u32 s7, s6, 4096')

    def gath(s, nh, slp):
        G = 24
        if nh == 2: s('s_add_u32 s8, s6, 8192\ns_add_u32 s9, s6, 12288')
        if nh == 2 and s.o['glight']:
            s('v_and_b32 v14, 15, v0\nv_lshlrev_b32 v14, 10, v14')
            s.poll([f'buffer_load_dwordx4 {Q4(G)}, v14, {WSR}, s6 offen offset:1008 sc1'], s.ck_xor([G], 3, 12, 13), slp=slp)
        ck, t = s.ck_xor([G + 4 * k for k in range(8 * nh)], 3, 12, 13)
        for k in range(8 * nh):
            a = 16 + 4 * (k >> 3); r = G + 4 * k
            if k & 7: ck[k] += f'\nv_pk_add_f32 {P(a)}, {P(r-4) if k & 7 == 1 else P(a)}, {P(r)}\nv_add_f32 v{a+2}, v{r-2 if k & 7 == 1 else a+2}, v{r+2}'
        s.poll([f'buffer_load_dwordx4 {Q4(G+4*k)}, v2, {WSR}, s{6 + (k >> 2)} offen offset:{1024*(k & 3)} sc1' for k in range(8 * nh)], (ck, t), slp=slp, warmable=(nh == 1))
        for h in range(nh):
            a = 16 + 4 * h; of = 2 * OS * h
            s(f'v_cvt_pk_bf16_f32 v{a}, v{a}, v{a+1}\nv_cvt_pk_bf16_f32 v{a+2}, v{a+2}, v{a+2}')
            s(f'ds_write_b16 v3, v{a} offset:{of}\nds_write_b16_d16_hi v3, v{a} offset:{of+128}\nds_write_b16 v3, v{a+2} offset:{of+256}')

    def bgather(s):
        s.cur = 'g'
        s('L_Bg:')
        s.gath(1, 0)
        s.warmret('L_wBg')
        s('s_waitcnt lgkmcnt(0)')
        s.stamp(6)
        s('s_barrier')
        s.end()

    def s1(s):
        s.cur = 'b'
        o = s.o
        s.srd(RA, P_X, 2560); s.srd(RB, P_WQ, 640 * 12288)
        s('v_and_b32 v1, 31, v0\nv_lshlrev_b32 v1, 3, v1\nv_lshrrev_b32 v2, 5, v0\nv_mul_u32_u24 v2, 1280, v2\nv_add_u32 v1, v1, v2')
        for u in range(5): s(f'buffer_load_dwordx2 {P(10+2*u)}, v1, {RAR}, 0 offen offset:{256*u}')
        s(f'v_and_b32 v7, 15, v0\nv_lshl_add_u32 v2, v7, 1, v2\ns_mul_i32 s4, s{S_J}, 160')
        for u in range(5): s(f'buffer_load_ushort v{160+u}, v2, {RAR}, s4 offen offset:{32*u}')
        s.rows(3, 4, 3, 12288)
        s.ghead(6)
        s(f's_mul_i32 s5, s{S_J}, {80*12288}\ns_and_b32 s7, s{S_H}, 1\ns_lshl4_add_u32 s6, s7, s6\ns_mul_i32 s6, s6, 384\ns_add_u32 s5, s5, s6')
        if o['mfirst']: s('s_barrier')
        s(s.dma(30, 3, RB, 5, lambda t: 128 if t % 3 < 2 else 8 * 12288 - 256, LWQ, o['qF']))
        s.tagwait()
        if o['qfirst']: s(f'v_mov_b32 v4, {LGO}\nv_mov_b32 v5, s{TAG}\nds_write_b32 v4, v5')
        s('s_waitcnt vmcnt(30)')
        X = 20
        for k in range(10): s(f'v_lshlrev_b32 v{X+2*k}, 16, v{10+k}\nv_and_b32 v{X+2*k+1}, 0xffff0000, v{10+k}')
        s(f'v_add_f32 v4, v{X}, v{X+1}')
        for k in range(2, 20): s(f'v_add_f32 v4, v4, v{X+k}')
        s.red16('v_add_f32', [4]); s.swapred('v_add_f32', 4, 5, 16)
        s(f'v_mul_f32 v4, {hx(1/640)}, v4')
        for k in range(20): s(f'v_sub_f32 v{X+k}, v{X+k}, v4')
        s(f'v_mul_f32 v5, v{X}, v{X}')
        for k in range(1, 20): s(f'v_fmac_f32 v5, v{X+k}, v{X+k}')
        s.red16('v_add_f32', [5]); s.swapred('v_add_f32', 5, 6, 16)
        s(f'v_mul_f32 v5, {hx(1/640)}, v5')
        s.bf16r(4); s.bf16r(5)
        s(f'v_add_f32 v5, {hx(1e-5)}, v5'); s.bf16r(5)
        s('v_sqrt_f32 v5, v5'); s.bf16r(5); s('v_rcp_f32 v5, v5')
        for u in range(5):
            r = 160 + u
            s(f'v_lshlrev_b32 v{r}, 16, v{r}\nv_sub_f32 v{r}, v{r}, v4'); s.bf16r(r)
            s(f'v_mul_f32 v{r}, v{r}, v5'); s.bf16r(r)
        s.tr_lane(4, 5, 3072, 128)
        s(f'v_add_u32 v4, {LWQ}, v4')
        s.tr_lane(5, 6, 512, 128)
        s(f'v_lshrrev_b32 v6, 5, v0\nv_mul_u32_u24 v6, 2048, v6\nv_add_u32 v5, v5, v6\nv_add_u32 v5, {LWQ + 8*3072}, v5')
        BW, AC, A = 100, 40, 88
        def rd(ct):
            b = BW + 10 * (ct % 6); off = 1024 * (ct >> 2) + 32 * (ct & 3)
            for T in range(2):
                for hi in range(2): s(f'ds_read_b64_tr_b16 {P(b+4*T+2*hi)}, v4 offset:{off + 12288*T + 512*hi}')
            s(f'ds_read_b64_tr_b16 {P(b+8)}, v5 offset:{off}')
        s.rows(2, 6, 4, 3840 * 16)
        s(f's_mul_i32 s4, s{S_J}, 1280\ns_add_u32 s4, s4, {W_MP}\ns_add_u32 s5, s4, 10240')
        s('s_waitcnt vmcnt(0)')
        s.stamp(1)
        for ct in range(6): rd(ct)
        M = 40
        s.gather([f'buffer_load_dwordx3 v[{M+4*u}:{M+4*u+2}], v2, {WSR}, s{4 + u // 5} offen offset:{256 * (u % 5)} sc1' for u in range(10)],
                 [s.ck_xor([M + 4 * u], 2, 12, 13) for u in range(10)], 8, slp=o['pslp'], nm='P')
        s.stamp(2)
        for u in range(10): s(f'v_permlane32_swap_b32 v{M+4*u}, v{M+4*u+1}')
        for u in range(10): s(f'v_add_f32 v{M+4*u}, v{M+4*u}, v{M+4*u+1}')
        for u in range(10): s(f'v_mov_b32 v{M+4*u+1}, v{M+4*u}')
        for u in range(10): s(f'v_permlane16_swap_b32 v{M+4*u}, v{M+4*u+1}')
        for u in range(10): s(f'v_add_f32 v{M+4*u}, v{M+4*u}, v{M+4*u+1}')
        for u in range(10): s.bf16r(M + 4 * u)
        s(f'v_lshrrev_b32 v2, 5, v0\nv_mul_u32_u24 v2, 192, v2\nv_lshl_add_u32 v2, v7, 1, v2')
        for u in range(5):
            c = M + 20 + 4 * u; r = 160 + u
            s(f'v_add_f32 v{c}, 1.0, v{c}'); s.bf16r(c)
            s(f'v_mul_f32 v{r}, v{r}, v{c}'); s.bf16r(r)
            s(f'v_add_f32 v{r}, v{r}, v{M+4*u}\nv_cvt_pk_bf16_f32 v{r}, v{r}, v{r}\nds_write_b16 v2, v{r} offset:{LHS + 32*u}')
        s.getloc(6)
        s.a_lane(2, 3, 192, 16, LHS); s.a_lane(3, 6, 192, 8, LHS + 128)
        s('s_waitcnt lgkmcnt(0)')
        s(f'ds_read_b128 {Q4(A)}, v2\nds_read_b128 {Q4(A+4)}, v2 offset:64\nds_read_b64 {P(A+8)}, v3')
        for half in range(2):
            s('s_waitcnt lgkmcnt(0)')
            for ct in range(6 * half, 6 * half + 6): s.mfma(AC + 4 * ct, A + 8, BW + 10 * (ct % 6) + 8, True, k=16)
            for T in range(2):
                for ct in range(6 * half, 6 * half + 6):
                    s.mfma(AC + 4 * ct, A + 4 * T, BW + 10 * (ct % 6) + 4 * T, False)
                    if half == 0 and T == 1: rd(ct + 6)
        s(f'v_lshlrev_b32 v2, 4, v0\ns_lshl_b32 s4, s{S_H}, 3\ns_add_u32 s5, s4, s{S_J}\ns_lshl_b32 s5, s5, 11\ns_add_u32 s5, s5, {W_QP}')
        for b in range(2):
            for u in range(4):
                for c in range(3):
                    s(f'v_mov_b32_dpp v{16+4*b+c}, v{AC + 4*(3*u+c) + b} quad_perm:[0,1,2,3] row_mask:{1 << u} bank_mask:0xf')
        for b in range(2):
            t = 16 + 4 * b
            s(f'v_bitop3_b32 v{t+3}, v{t}, v{t+1}, v{t+2} bitop3:0x96\nv_xor_b32 v{t+3}, s{TAG}, v{t+3}')
        s.gstore([f'buffer_store_dwordx4 {Q4(16+4*b)}, v2, {WSR}, s5 offen offset:{1024*b}' for b in range(2)], nm='Q')
        s.stamp(3)
        s(f'v_mov_b32 v3, {LQF}\nv_mov_b32 v4, s{TAG}\nds_write_b32 v3, v4')
        s(f'L_Qg:\ns_bfe_u32 s9, s3, 0x10001\ns_and_b32 s4, s{S_H}, 30\ns_add_u32 s4, s4, s9\ns_lshl_b32 s4, s4, 14\ns_add_u32 s4, s4, {W_QP}\ns_mul_i32 s9, s9, 384')
        for k in range(1, 4): s(f's_add_u32 s{4+k}, s4, {4096*k}')
        Q = 40
        if o['qlight']:
            s('v_and_b32 v3, 7, v0\nv_lshlrev_b32 v3, 11, v3')
            s.poll([f'buffer_load_dwordx4 {Q4(Q)}, v3, {WSR}, s4 offen offset:2032 sc1'], s.ck_xor([Q], 3, 12, 13), slp=o['pslp'])
        def ck2(k):
            c, t = s.ck_xor([Q + 8 * k, Q + 8 * k + 4], 3, 12, 13); return ['\n'.join(c)], t
        s.gather(['\n'.join(f'buffer_load_dwordx4 {Q4(Q+8*k+4*b)}, v2, {WSR}, s{4 + (k >> 1)} offen offset:{2048*(k & 1) + 1024*b} sc1' for b in range(2)) for k in range(8)],
                 [ck2(k) for k in range(8)], 8, slp=o['pslp'], nm='Q')
        s('v_lshrrev_b32 v3, 4, v0\nv_mul_u32_u24 v3, 96, v3\nv_and_b32 v4, 15, v0\nv_lshl_add_u32 v3, v4, 1, v3\nv_add_u32 v3, s9, v3')
        for k in range(1, 8):
            for b in range(2):
                r = Q + 4 * b
                s(f'v_pk_add_f32 {P(r)}, {P(r)}, {P(r+8*k)}\nv_add_f32 v{r+2}, v{r+2}, v{r+8*k+2}')
        for b in range(2):
            r = Q + 4 * b; lq = LQ + 768 * b
            s(f'v_cvt_pk_bf16_f32 v{r}, v{r}, v{r+1}\nv_cvt_pk_bf16_f32 v{r+2}, v{r+2}, v{r+2}')
            s(f'ds_write_b16 v3, v{r} offset:{lq}\nds_write_b16_d16_hi v3, v{r} offset:{lq+32}\nds_write_b16 v3, v{r+2} offset:{lq+64}')
        s('s_waitcnt lgkmcnt(0)')
        s.stamp(4)
        s('s_barrier\ns_cmp_eq_u32 s3, 11\ns_cbranch_scc1 L_s3b')
        lc = s.lab('s1C'); ld = s.lab('s1D'); lw = s.lab('s1W')
        if o['warm']:
            s.role(1, lc); s.role(3, ld); s.role(0, lw, False)
            s(f's_mov_b32 s{SV}, 0'); s.warm('L_B', 'L_wB'); s.warm('L_Bg', 'L_wBg'); s(f's_branch {lw}')
            s(f'{lc}:\ns_mov_b32 s{SV}, 0'); s.warm('L_C', 'L_wC'); s(f's_branch {lw}')
            s(f'{ld}:\ns_mov_b32 s{SV}, 0'); s.warm('L_D', 'L_wD')
            s(f'{lw}:\ns_mov_b32 s{SV}, 9')
        s.balance5()
        s(f's_add_u32 s6, s6, 8192\ns_add_u32 s7, s7, 8192\nv_add_u32 v3, {2 * OS}, v3')
        s('s_barrier\ns_branch L_T0')

    def balance5(s):
        o = s.o; p0 = 3 * o['NPF']
        a = s.lab('bal'); e = s.lab('balE'); c = s.lab('nox'); d = s.lab('nost')
        V = 100
        s(f'v_mov_b32 v{V+1}, 0\ns_mov_b32 s11, 4096\ns_lshl_b32 s72, s{S_X}, 7\ns_add_u32 s72, s72, {W_PG}\ns_mov_b32 s75, {o["stat1"]}')
        s(f's_cmp_lt_u32 s{S_IDX}, {o["n1"]}\ns_cselect_b32 s78, {o["cstep"]}, {o["cstep2"]}\ns_cselect_b32 s79, {o["bdel"]}, {o["bdel2"]}')
        s(f's_cselect_b32 s74, 0, {o["n1"] * (o["cstep"] - o["cstep2"])}\ns_add_u32 s74, s74, {p0 + o["c0"]}')
        s(f's_lshl_b32 s5, s{S_IDX}, 3\ns_add_u32 s5, s5, s{S_X}\ns_mul_i32 s5, s5, s78\ns_lshr_b32 s5, s5, 3\ns_add_u32 s74, s74, s5\ns_add_u32 s79, s79, s{TAG}')
        s(f'v_and_b32 v{V}, 31, v0\nv_lshlrev_b32 v{V}, 2, v{V}')
        s(f's_lshl_b32 s73, s{S_X}, 12\ns_add_u32 s73, s73, {W_GL}\ns_mov_b32 s10, {W_GL}\nv_and_b32 v{V+5}, 7, v0\nv_cmp_eq_u32 s[76:77], s{S_X}, v{V+5}\nv_lshlrev_b32 v{V+5}, 12, v{V+5}\nv_mov_b32 v{V+6}, {p0}')
        s(f'v_xor_b32 v{V+4}, 4096, v{V+5}\nv_cndmask_b32_e64 v{V+5}, v{V+5}, v{V+4}, s[76:77]')
        s(f's_and_b32 s8, s{S_ROLE}, 1\ns_mul_i32 s8, s8, {o["bonus"]}\ns_sub_u32 s8, s{TAG}, s8')
        s(f'{a}:\nbuffer_load_dword v{V+3}, v{V+1}, {WSR}, s72 offen sc1\ns_waitcnt vmcnt(0)\nds_read_b32 v{V+2}, v{V+1} offset:{LPRG}')
        s(f'v_subrev_u32 v{V+3}, s8, v{V+3}\nds_write_b32 v{V+1}, v{V+3} offset:{LMODE}\ns_waitcnt lgkmcnt(0)\nv_readfirstlane_b32 s9, v{V+2}')
        s(f's_cmp_ge_u32 s9, s75\ns_cbranch_scc0 {d}\ns_mov_b32 s75, 999')
        s('s_mov_b32 s5, 3'); s.stats()
        s(f's_branch {a}\n{d}:')
        s(f's_cmp_ge_u32 s9, {o["bend"]}\ns_cbranch_scc1 {e}')
        s(f's_cmp_ge_u32 s9, s74\ns_cbranch_scc0 {c}')
        s(f's_mov_b32 s74, 999\nv_add_u32 v{V+3}, s{TAG}, v{V+2}\nbuffer_load_dword v{V+4}, v{V+5}, {WSR}, s10 offen sc1\nbuffer_store_dword v{V+3}, v{V}, {WSR}, s73 offen sc1\ns_waitcnt vmcnt(1)')
        s(f'v_subrev_u32 v{V+4}, s{TAG}, v{V+4}\nv_cmp_lt_u32 vcc, 192, v{V+4}\nv_cndmask_b32 v{V+4}, v{V+4}, v{V+6}, vcc')
        s(f'v_subrev_u32 v{V+2}, s78, v{V+2}\nv_cndmask_b32_e64 v{V+4}, v{V+4}, v{V+2}, s[76:77]')
        s(f's_cmp_lt_u32 s{S_IDX}, {o["n1"]}\ns_cselect_b32 s9, {min(o["emin"], 64)}, {min(o["emin2"], 64)}\nv_add_u32 v{V+7}, s9, v{V+4}')
        for ctl in ('quad_perm:[1,0,3,2]', 'quad_perm:[2,3,0,1]', 'row_half_mirror'): s.dppop('v_add_u32', V + 4, ctl); s.dppop('v_min_u32', V + 7, ctl)
        s(f'v_lshrrev_b32 v{V+4}, 3, v{V+4}\nv_min_u32 v{V+4}, v{V+4}, v{V+7}\nv_add_u32 v{V+4}, s79, v{V+4}\nbuffer_store_dword v{V+4}, v{V}, {WSR}, s72 offen')
        s(f'{c}:\ns_sleep {o["bslp"]}\ns_sub_u32 s11, s11, 1\ns_cbranch_scc0 {a}')
        s('s_mov_b32 s5, 3'); s.stats()
        s(f'{e}:')

    def bstage(s, t0, t1, F):
        o = s.o; l = s.lab('dma')
        s.srd(RA, P_WO, 6144 * 1280)
        s.swz(1280)
        s.ghead(5)
        s(f's_mul_i32 s5, s5, {192*1280}\ns_and_b32 s4, s{S_H}, 1\ns_mul_i32 s4, s4, 5\ns_add_u32 s4, s4, s{S_J}\ns_lshl_b32 s4, s4, 7')
        s(f's_add_u32 s5, s5, s4\ns_add_u32 s5, s5, {8 * 1280 * t0 + (15*192*1280 if t0 >= 24 else 0)}')
        s(f's_mov_b32 s4, {LB + 1024 * t0}\n{l}:')
        for t in range(2):
            s(f's_mov_b32 m0, s4\ns_waitcnt vmcnt({F - 1})\nbuffer_load_dwordx4 v{3 if t else 1}, {RAR}, s5 offen {o["wflag"]} lds')
            s(f's_add_u32 s5, s5, {8 * 1280}\ns_add_u32 s4, s4, 1024')
        if t0 < 24 < t1: s(f's_cmp_eq_u32 s4, {LB + 24576}\ns_cselect_b32 s6, {15*192*1280}, 0\ns_add_u32 s5, s5, s6')
        s(f's_cmp_lt_u32 s4, {LB + 1024 * t1}\ns_cbranch_scc1 {l}')

    def wstage(s):
        o = s.o; F = o['wF']
        ld = s.lab('wD'); lc = s.lab('wC'); le = s.lab('wE'); li = s.lab('wI')
        def loads(n, step, par):
            for t in range(n):
                s(f's_mov_b32 m0, s11')
                if t >= F: s(f's_waitcnt vmcnt({F - 1})')
                s(f'buffer_load_dwordx4 v{4 + (t & par)}, {RBR}, s10 offen {o["wflag"]} lds\ns_add_u32 s10, s10, {step}\ns_add_u32 s11, s11, 1024')
                if t == min(n, F) - 1 and o['mfirst']: s('s_barrier')
        def swz(stride):
            s(f'v_lshrrev_b32 v6, 3, v0\nv_mul_u32_u24 v4, {stride}, v6\nv_and_b32 v6, 2, v6\nv_and_b32 v5, 7, v0\nv_xor_b32 v6, v6, v5\nv_xor_b32 v5, 4, v6')
            s('v_lshl_add_u32 v5, v5, 4, v4\nv_lshl_add_u32 v4, v6, 4, v4')
        s.role(0, ld, False)
        s.srd(RB, P_WO, 6144 * 1280); swz(1280); s.ghead(10)
        s(f's_lshr_b32 s9, s3, 2\ns_mul_i32 s9, s9, 15\ns_add_u32 s10, s10, s9\ns_mul_i32 s10, s10, {192*1280}\ns_mul_i32 s9, s3, {48*1280}\ns_add_u32 s10, s10, s9')
        s(f's_lshr_b32 s9, s{S_CS}, 2\ns_lshl_b32 s9, s9, 7\ns_add_u32 s10, s10, s9\ns_mul_i32 s11, s3, 6144\ns_add_u32 s11, s11, {LB}')
        loads(6, 8 * 1280, 1)
        s(f's_branch {le}\n{ld}:')
        s.role(3, lc, False)
        n = 12 - o['dW']
        s.srd(RB, P_D, 1536 * 1280); s.rows(4, 5, 2, 1280)
        s(f's_mul_i32 s11, s3, {n}\ns_add_u32 s11, s11, {8 * o["dW"]}\ns_mul_i32 s10, s11, {16 * 1280}\ns_lshl_b32 s9, s{S_DT}, 6\ns_add_u32 s10, s10, s9\ns_lshl_b32 s11, s11, 10\ns_add_u32 s11, s11, {LBIG}')
        loads(n, 16 * 1280, 0)
        s(f's_branch {le}\n{lc}:')
        s.role(1, li, False)
        n = o['cE']
        s(f's_bitcmp1_b32 s{S_CS}, 0\ns_cselect_b64 s[{RB}:{RB+1}], s[{P_U}:{P_U+1}], s[{P_G}:{P_G+1}]\ns_mov_b32 s{RB+2}, {640 * 3072}\ns_mov_b32 s{RB+3}, 0x20000')
        swz(3072)
        s(f's_bitcmp1_b32 s3, 0\ns_cselect_b64 vcc, -1, 0\nv_cndmask_b32 v4, v4, v5, vcc')
        s(f's_add_u32 s11, s3, {80 - 8 * n}\ns_mul_i32 s10, s11, {8 * 3072}\ns_lshr_b32 s9, s{S_CS}, 1\ns_lshl_b32 s9, s9, 7\ns_add_u32 s10, s10, s9\ns_lshl_b32 s11, s11, 10\ns_add_u32 s11, s11, {LBIG}')
        for t in range(n):
            s(f's_mov_b32 m0, s11\nbuffer_load_dwordx4 v4, {RBR}, s10 offen {o["wflag"]} lds\ns_add_u32 s10, s10, {64 * 3072}\ns_add_u32 s11, s11, 8192')
        s(f'{li}:')
        if o['mfirst']: s('s_barrier')
        s(f'{le}:')

    def stage(s, half):
        o = s.o
        ld = s.lab('stD'); lc = s.lab('stC'); le = s.lab('stE')
        def part(n): return (0, n) if half is None else ((0, n // 4 * 2) if half == 0 else (n // 4 * 2, n))
        FF = lambda k: o['upF'] if half is None else o[k]
        s.role(0, ld, False)
        E = 0 if half is None else o['bE']; t0, t1 = part(48 - E)
        s.bstage(E + t0, E + t1, min(FF('bF'), 60))
        s(f's_branch {le}\n{ld}:')
        s.role(3, lc, False)
        W = o['dW']; t0, t1 = part(8 * (12 - W))
        s.srd(RA, P_D, 1536 * 1280); s.rows(1, 2, 2, 1280)
        s(f's_lshl_b32 s4, s{S_DT}, 6\ns_add_u32 s4, s4, {(8 * W + t0) * 16 * 1280}')
        s(s.dma(t1 - t0, 1, RA, 4, 16 * 1280, LBIG + 1024 * (8 * W + t0), FF('dF')))
        s(f's_branch {le}\n{lc}:')
        s.role(1, le, False)
        E = o['cE']; t0, t1 = part(8 * E)
        s.caddr()
        s(f's_add_u32 s5, s5, {(80 - 8 * E + t0) * 8 * 3072}')
        s(s.cdma(t1 - t0, lambda t: f's_mov_b32 m0, {LBIG + 1024 * (80 - 8 * E + t0 + t)}', FF('cF')))
        s(f'{le}:')
        if half is not None: s('s_waitcnt vmcnt(0)')

    def s2(s):
        s.cur = 'r'
        o = s.o
        if o['mfirst']: s('s_barrier')
        s('s_getreg_b32 s4, hwreg(HW_REG_XCC_ID)')
        s(f'v_and_b32 v1, 31, v0\nv_lshlrev_b32 v1, 3, v1\ns_lshl_b32 s5, s{S_X}, 8\ns_add_u32 s5, s5, {W_XC}\ns_lshl3_add_u32 s6, s{S_IDX}, s5')
        s.tagwait()
        s(f'v_mov_b32 v2, s4\nv_mov_b32 v3, s{TAG}\ns_mov_b64 exec, 1')
        if o['xab']: s(f's_add_u32 s7, s6, {W_XL - W_XC}\nbuffer_store_dwordx2 v[2:3], v1, {WSR}, s7 offen')
        if 'X' not in o['nox']: s(f'buffer_store_dwordx2 v[2:3], v1, {WSR}, s6 offen sc1')
        s('s_mov_b64 exec, -1')
        s.idpoll(o['pslp'])
        s(f'v_xor_b32 v4, s4, v4\nv_or_b32 v4, v4, v6\nv_cmp_ne_u32 vcc, 0, v4\ns_cmp_eq_u64 vcc, 0\ns_addc_u32 s4, s{TAG}, 0')
        if not o['loc']: s(f's_mov_b32 s4, s{TAG}')
        s(f'v_mov_b32 v4, s4\nv_mov_b32 v5, {LFLAG}\nds_write_b32 v5, v4\nv_mov_b32 v4, 0\nds_write_b32 v4, v4 offset:{LPRG}\nds_write_b32 v4, v4 offset:{LCNT}\nds_write_b32 v4, v4 offset:{LCNT+4}\nds_write_b32 v4, v4 offset:{LCNT+8}\nv_mov_b32 v5, 999\nds_write_b32 v4, v5 offset:{LMODE}\ns_waitcnt lgkmcnt(0)')
        s.stamp(2)
        if o['bE']:
            l = s.lab('noBe'); s.role(0, l, False); s.bstage(0, o['bE'], o['bEF']); s(f'{l}:')
        s('s_barrier')
        if not o['up']: s.stage(0)
        s.stamp(1)
        s.role(1, 'L_LN0')
        s.role(0, 'L_s23', False)
        s.warm('L_R', 'L_wR')
        s('L_R0:')
        s.waitprog(72, 1)
        s.getloc(1, spin=False)
        s.srd(RA, P_X, 2560)
        s(f'v_and_b32 v1, 15, v0\nv_lshlrev_b32 v2, 1, v1\ns_lshl_b32 s5, s{S_CS}, 5')
        s(f'buffer_load_ushort v4, v2, {RAR}, s5 offen\nbuffer_load_ushort v5, v2, {RAR}, s5 offen offset:1280')
        s(f'v_lshlrev_b32 v2, 3, v1\ns_lshl_b32 s5, s{S_CS}, 7\ns_add_u32 s6, s5, {W_MOD + 1280*8}')
        s.poll([f'buffer_load_dwordx2 v[6:7], v2, {WSR}, s6 offen sc1'], s.ck_tag([[7]], 8), slp=o['mlslp'])
        s('v_lshlrev_b32 v4, 16, v4\nv_lshlrev_b32 v5, 16, v5\nv_and_b32 v7, 0xffff0000, v6\nv_lshlrev_b32 v6, 16, v6')
        s(f's_add_u32 s5, s5, {W_X1}\nv_mov_b32 v9, s{TAG}\ns_lshl_b32 s6, s{S_X}, 13\ns_add_u32 s5, s5, s6')
        s.rows(3, 8, 4, 10240)
        s(f's_lshl_b32 s64, s{S_CS}, 8\ns_add_u32 s64, s64, {W_Y}')
        s(f's_sub_u32 s64, s64, {W_Y - W_YL}\ns_sub_u32 s6, 1, s{LOC}\ns_mul_i32 s6, s6, {W_Y - W_YL}\nv_mov_b32 v12, s6\nv_mov_b32 v13, {W_Y - W_YL}\nv_lshrrev_b32 v14, 5, v0')
        for k in range(4):
            s(f'v_add_u32 v15, {2*k}, v14\nv_cmp_eq_u32 vcc, s{S_X}, v15\nv_cndmask_b32 v15, v13, v12, vcc\nv_add_u32 v15, {40960*k}, v15\nv_add_u32 v{32+k}, v15, v3')
        if o['rown']:
            s(f's_lshr_b32 s4, s{S_H}, 1\nv_lshrrev_b32 v14, 4, v0\ns_bfe_u32 s6, s{S_H}, 0x10001\ns_mul_i32 s6, s6, {-20480 & 0xffffffff}\ns_add_u32 s6, s6, 10240')
            for k in range(4):
                s(f'v_add_u32 v15, {4*k}, v14\nv_cmp_eq_u32 s[{66+2*k}:{67+2*k}], s4, v15\nv_add_u32 v15, s6, v{32+k}\nv_cndmask_b32_e64 v{32+k}, v{32+k}, v15, s[{66+2*k}:{67+2*k}]')
            s(f's_and_b32 s4, s{S_CS}, 3\ns_lshl_b32 s4, s4, 7\ns_add_u32 s4, s4, {LYO}\nv_add_u32 v36, s4, v2')
        touch = '\n'.join(f'buffer_load_dword v{40+k}, v{32+k}, {WSR}, s64 offen sc1' for k in range(4))
        s('s_barrier')
        if o['rg'] == 5: s(touch)
        s('s_barrier')
        if o['rg'] == 4: s(touch)
        if o['rg'] and o['rg'] != 6: s('s_barrier')
        s('L_R:')
        s.stamp(4)
        Y = 16
        ck, t = s.ck_xor([Y + 4 * k for k in range(4)], 2, 12, 13)
        if o['rown']:
            if o['rg'] != 6: s('ds_read_b64 v[38:39], v36')
            ck[0] += '\ns_waitcnt lgkmcnt(0)'
            for k in range(4):
                for e in range(2): ck[k] += f'\nv_cndmask_b32_e64 v{Y+4*k+e}, v{Y+4*k+e}, v{38+e}, s[{66+2*k}:{67+2*k}]'
        for k in range(1, 4): ck[k] += f'\nv_pk_add_f32 v[10:11], {P(Y) if k == 1 else "v[10:11]"}, {P(Y+4*k)}'
        lds_ = [f'buffer_load_dwordx3 v[{Y+4*k}:{Y+4*k+2}], v{32+k}, {WSR}, s64 offen sc1' for k in range(4)]
        if o['rmiss']:
            s.gather(lds_, [s.ck_xor([Y + 4 * k], 2, 12, 13) for k in range(4)], 8)
            s(f'v_pk_add_f32 v[10:11], {P(Y)}, {P(Y+4)}\nv_pk_add_f32 v[10:11], v[10:11], {P(Y+8)}\nv_pk_add_f32 v[10:11], v[10:11], {P(Y+12)}')
        else: s.poll(lds_, (ck, t), warmable=True, pre='s_barrier\nds_read_b64 v[38:39], v36' if o['rg'] == 6 else None)
        s.stamp(5)
        for w in (16, 32):
            s(f'v_mov_b32 v14, v10\nv_mov_b32 v15, v11\nv_permlane{w}_swap_b32 v10, v14\nv_permlane{w}_swap_b32 v11, v15\nv_pk_add_f32 v[10:11], v[10:11], v[14:15]')
        s(f'v_pk_fma_f32 v[10:11], v[10:11], v[6:7], v[4:5]\nv_cvt_pk_bf16_f32 v8, v10, v11')
        s.warmret('L_wR')
        s('s_mov_b64 exec, 0xffff')
        s.gstore([f'buffer_store_dwordx2 v[8:9], v2, {WSR}, s5 offen'])
        s.stamp(6)
        s.end()

    def s3(s):
        s.cur = 'l'
        o = s.o
        if o['mfirst']: s('s_barrier')
        if not o['upe']: s.tagwait()
        if o['up'] and not o['wst']:
            if o['qfirst']: s.ldswait(LGO, 3)
            s.stage(None)
            if o['upe']: s.tagwait()
            if o['sep']: s(f's_waitcnt vmcnt({o["sep"]})\nv_mov_b32 v3, {LGO}\nv_mov_b32 v4, s{TAG}\nds_write_b32 v3, v4')
        s.ldswait(LQF, 3, o['pslp'])
        s('v_lshlrev_b32 v2, 4, v0\ns_branch L_Qg\nL_s3b:')
        if not o['up']: s.stage(1)
        s.stamp(1)
        s.role(0, 'L_R0')
        s.role(1, 'L_s23', False)
        s.warm('L_LN', 'L_wLN')
        s('L_LN0:')
        s.waitprog(72, 1)
        C1, SB, X = 8, 28, 48
        s(f'v_lshlrev_b32 v1, 4, v0\ns_and_b32 s8, s3, 1\ns_mul_i32 s11, s8, 0x02020000\ns_add_u32 s11, s11, 0x01000c0c')
        s(f's_mov_b32 s4, {W_MOD + 3*5120}\ns_mov_b32 s5, {W_MOD + 3*5120 + 4096}\ns_mov_b32 s6, {W_MOD + 4*5120}\ns_mov_b32 s7, {W_MOD + 4*5120 + 4096}')
        def ld5(base, sa): return [f'buffer_load_dwordx4 {Q4(base+4*u)}, v1, {WSR}, s{sa + (u >> 2)} offen offset:{1024*(u & 3)} sc1' for u in range(5)]
        pick = lambda r: f'v_perm_b32 v{r}, v{r}, v{r}, s11\nv_perm_b32 v{r+1}, v{r+2}, v{r+2}, s11'
        s.poll(ld5(C1, 6) + ld5(SB, 4), s.ck_tag([[C1 + 1 + 4 * k, C1 + 3 + 4 * k] for k in range(10)], 4), slp=o['mlslp'])
        for k in range(10): s(pick(C1 + 4 * k))
        for u in range(5):
            for e in range(2): s(f'v_add_f32 v{C1+4*u+e}, 1.0, v{C1+4*u+e}'); s.bf16r(C1 + 4 * u + e)
        s(f's_lshl_b32 s4, s{S_X}, 13\ns_add_u32 s4, s4, {W_X1}\ns_add_u32 s5, s4, 4096')
        s(f's_mul_i32 s8, s8, {HS}\ns_add_u32 s8, s8, {LH2}\nv_lshl_add_u32 v2, v0, 2, s8')
        s(f's_mov_b32 s10, {hx(1/640)}\nv_mov_b32 v68, {hx(1e-5)}')
        s('s_barrier\ns_barrier\ns_barrier')
        s('L_LN:')
        s.stamp(4)
        ck, t = s.ck_tag([[X + 1 + 4 * u, X + 3 + 4 * u] for u in range(5)], 70)
        for u in range(5):
            r = X + 4 * u
            ck[u] += '\n' + pick(r)
            if u == 0: ck[u] += f'\nv_readlane_b32 s8, v{X}, 0'
            ck[u] += f'\nv_pk_add_f32 {P(r)}, {P(r)}, s[8:9] op_sel_hi:[1,0] neg_lo:[0,1] neg_hi:[0,1]'
            if u == 0: ck[u] += f'\nv_pk_mul_f32 v[6:7], {P(r)}, {P(r)}'
            else: ck[u] += f'\nv_pk_add_f32 v[4:5], {P(X) if u == 1 else "v[4:5]"}, {P(r)}\nv_pk_fma_f32 v[6:7], {P(r)}, {P(r)}, v[6:7]'
        s.poll(ld5(X, 4), (ck, t), warmable=True)
        s.stamp(5)
        fill = [f'v_pk_mul_f32 {P(X+4*u)}, {P(X+4*u)}, {P(C1+4*u)}' for u in range(5)]
        s('v_add_f32 v4, v4, v5\nv_add_f32 v6, v6, v7'); s(fill.pop(0))
        s('v_permlane32_swap_b32 v4, v6\nv_add_f32 v4, v4, v6')
        s.red16('v_add_f32', [4], fill=fill); s.swapred('v_add_f32', 4, 5, 16)
        s('v_mul_f32 v4, s10, v4\nv_mov_b32 v6, v4\nv_permlane32_swap_b32 v4, v6')
        s('v_fma_f32 v6, -v4, v4, v6\nv_max_f32 v6, 0, v6\nv_add_f32 v6, v6, v68\nv_rsq_f32 v6, v6')
        for u in range(5): s(f'v_pk_fma_f32 {P(X+4*u)}, {P(C1+4*u)}, v[4:5], {P(X+4*u)} op_sel_hi:[1,0,1] neg_lo:[0,1,0] neg_hi:[0,1,0]')
        for u in range(5):
            r = X + 4 * u
            s(f'v_pk_fma_f32 {P(r)}, {P(r)}, v[6:7], {P(SB+4*u)} op_sel_hi:[1,0,1]\nv_cvt_pk_bf16_f32 v{r}, v{r}, v{r+1}')
            if u & 1: s(f'ds_write2st64_b32 v2, v{r-4}, v{r} offset0:{u-1} offset1:{u}')
        s(f'ds_write_b32 v2, v{X+16} offset:1024')
        s.warmret('L_wLN')
        s('s_waitcnt lgkmcnt(0)')
        s.stamp(3)
        s('s_barrier')
        s.end()
        s('L_s23:')
        s.role(3, 'L_exit', False)
        s('s_barrier\ns_branch L_D')
        s.end()

    def ldswait(s, at, v, slp=1):
        l = s.lab('lw')
        s(f'v_mov_b32 v{v}, {at}\ns_mov_b32 s{SPIN}, {s.o["spin"]}\n{l}:\ns_sleep {slp}\nds_read_b32 v{v+1}, v{v}\ns_sub_u32 s{SPIN}, s{SPIN}, 1\ns_waitcnt lgkmcnt(0)')
        s(f'v_readfirstlane_b32 s10, v{v+1}\ns_cselect_b32 s10, s{TAG}, s10\ns_cmp_eq_u32 s10, s{TAG}\ns_cbranch_scc0 {l}')
    def waitprog(s, n, v, slp=None):
        l = s.lab('prog')
        s(f'v_mov_b32 v{v}, 0\ns_mov_b32 s{SPIN}, {s.o["spin"]}\n{l}:\ns_sleep {slp or s.o["mlslp"]}\nds_read_b32 v{v+1}, v{v} offset:{LPRG}\ns_sub_u32 s{SPIN}, s{SPIN}, 1\ns_waitcnt lgkmcnt(0)')
        s(f'v_readfirstlane_b32 s4, v{v+1}\ns_cselect_b32 s4, 999, s4\ns_cmp_lt_u32 s4, {n}\ns_cbranch_scc1 {l}')
    def idpoll(s, slp):
        l = s.lab('gotid')
        if s.o['xab']:
            s(f's_add_u32 s7, s5, {W_XL - W_XC}')
            s.poll([f'buffer_load_dwordx2 v[4:5], v1, {WSR}, s7 offen sc1'], s.ck_tag([[5]], 6), slp=slp, spin=s.o['xab'])
            s(f's_cbranch_vccz {l}')
        s.poll([f'buffer_load_dwordx2 v[4:5], v1, {WSR}, s5 offen sc1'], s.ck_tag([[5]], 6), slp=slp)
        s(f'{l}:')

    def caddr(s):
        s(f's_bitcmp1_b32 s{S_CS}, 0\ns_cselect_b64 s[{RA}:{RA+1}], s[{P_U}:{P_U+1}], s[{P_G}:{P_G+1}]\ns_mov_b32 s{RA+2}, {640 * 3072}\ns_mov_b32 s{RA+3}, 0x20000')
        s.swz(3072)
        s(f's_lshr_b32 s5, s{S_CS}, 1\ns_lshl_b32 s5, s5, 7')
    def swz(s, stride):
        s(f'v_lshrrev_b32 v2, 3, v0\nv_mul_u32_u24 v1, {stride}, v2\nv_and_b32 v2, 2, v2\nv_and_b32 v3, 7, v0\nv_xor_b32 v2, v2, v3\nv_xor_b32 v3, 4, v2')
        s('v_lshl_add_u32 v3, v3, 4, v1\nv_lshl_add_u32 v1, v2, 4, v1')
    def cdma(s, n, lds, F):
        out = []
        for t in range(n):
            out.append(lds(t))
            if F < 60: out.append(f's_waitcnt vmcnt({F - 1})')
            out.append(f'buffer_load_dwordx4 v{3 if t & 1 else 1}, {RAR}, s5 offen {s.o["wflag"]} lds')
            if t < n - 1: out.append(f's_add_u32 s5, s5, {8 * 3072}')
        return '\n'.join(out)

    def crole(s):
        s.cur = 'c'
        o = s.o; E = o['cE']; n = 2 * (10 - E)
        s(f'L_C:\ns_cmp_lt_u32 s{SV}, 4\ns_cbranch_scc0 L_exit')
        BW, A, D = 88, 8, 72
        s.caddr()
        s(f's_mul_i32 s4, s{SV}, {n}\ns_mul_i32 s6, s4, {8 * 3072}\ns_add_u32 s5, s5, s6\ns_lshl_b32 s4, s4, 10\ns_add_u32 s4, s4, {LBIG}')
        s.live('s_barrier\n' + s.cdma(n, lambda t: f's_add_u32 m0, s4, {1024 * t}', 63))
        s.tr_lane(2, 3, 1024, 128)
        s(f'v_bfe_u32 v3, v0, 3, 2\nv_xor_b32 v3, s{SV}, v3\nv_lshl_add_u32 v2, v3, 5, v2\nv_add_u32 v2, {LBIG}, v2\nv_add_u32 v5, 40960, v2')
        s.a_lane(3, 4, HS, 16, LH2)
        s(f's_and_b32 s4, s{S_CS}, 1\ns_mul_i32 s6, s4, 12288\ns_lshr_b32 s5, s{S_CS}, 1\ns_lshl2_add_u32 s5, s5, s{SV}\ns_lshl_b32 s5, s5, 7\ns_add_u32 s6, s6, s5\ns_add_u32 s6, s6, {W_ACT}')
        s(f'v_lshlrev_b32 v1, 3, v0\ns_mov_b32 s7, {hx(-LOG2E)}\nv_mov_b32 v77, s{TAG}\ns_add_u32 s8, s6, {W_AL - W_ACT}')
        s('s_waitcnt vmcnt(0)')
        s.stamp(3)
        s.live('s_barrier')
        for T in range(20):
            for hi in range(2): s(f'ds_read_b64_tr_b16 {P(BW + 4*T + 2*hi)}, v{2 if T < 10 else 5} offset:{4096*(T % 10) + 512*hi}')
        s('s_waitcnt lgkmcnt(0)'); s.live('s_barrier')
        s.stamp(5)
        for T in range(15): s(f'ds_read_b128 {Q4(A+4*T)}, v3 offset:{64*T}')
        for T in range(20):
            s(f's_waitcnt lgkmcnt({min(14, 19 - T)})')
            s.mfma(D, A + 4 * (T % 15), BW + 4 * T, T == 0)
            if T < 5: s(f'ds_read_b128 {Q4(A+4*T)}, v3 offset:{64*(T+15)}')
        l = s.lab('up')
        s(f's_cmp_eq_u32 s4, 1\ns_cbranch_scc1 {l}')
        for op in (f'v_mul_f32 v{{t}}, s7, v{{d}}', 'v_exp_f32 v{t}, v{t}', 'v_add_f32 v{t}, 1.0, v{t}', 'v_rcp_f32 v{t}, v{t}', 'v_mul_f32 v{d}, v{d}, v{t}'):
            for b in range(2): s(op.format(t=D + 2 + b, d=D + b))
        s(f'{l}:\nv_cvt_pk_bf16_f32 v76, v{D}, v{D+1}')
        s.warmret('L_wC')
        st = [f'buffer_store_dwordx2 v[76:77], v1, {WSR}, s6 offen sc1', f'buffer_store_dwordx2 v[76:77], v1, {WSR}, s8 offen']
        s('s_mov_b64 exec, 0xffff\n' + '\n'.join(st[::-1] if o['pfa'] else st))
        s.stamp(6)
        s.end()

    def drole(s):
        s.cur = 'd'
        o = s.o
        s('L_D:')
        BW, A, D = 40, 72, 88
        s(f's_lshl_b32 s4, s{SV}, 13\ns_add_u32 s4, s4, {LBIG}')
        s.srd(RA, P_D, 1536 * 1280); s.srd(RB, P_OUT, 2560); s.rows(1, 2, 2, 1280)
        s(f's_mul_i32 s5, s{SV}, {128 * 1280}\ns_lshl_b32 s6, s{S_DT}, 6\ns_add_u32 s5, s5, s6')
        l = s.lab('have')
        s.live(f's_barrier\ns_cmp_ge_u32 s{SV}, {o["dW"]}\ns_cbranch_scc1 {l}\n' + s.dma(8, 1, RA, 5, 16 * 1280, lambda t: f's_add_u32 m0, s4, {1024 * t}', 63) + f'\n{l}:')
        s.tr_lane(2, 3, 512, 64)
        s('v_add_u32 v2, s4, v2\ns_waitcnt vmcnt(0)')
        s.stamp(3)
        for tt in range(2):
            for T in range(4):
                for hi in range(2): s(f'ds_read_b64_tr_b16 {P(BW + 16*tt + 4*T + 2*hi)}, v2 offset:{2048*T + 256*hi + 32*tt}')
        s(f's_lshl_b32 s4, s{SV}, 9\ns_add_u32 s4, s4, {LACT}\nv_lshl_add_u32 v2, v0, 2, s4')
        s.a_lane(3, 4, 256, 16, 0); s('v_add_u32 v3, s4, v3')
        s(f'v_and_b32 v4, 31, v0\nv_mul_u32_u24 v4, 96, v4\ns_lshl_b32 s4, s{SV}, 2\ns_add_u32 s4, s4, {LDP}\nv_add_u32 v4, s4, v4')
        s(f'v_lshlrev_b32 v1, 4, v0\ns_lshl_b32 s5, s{SV}, 10\ns_add_u32 s5, s5, {W_ACT}')
        s('s_add_u32 s6, s5, 12288')
        if True:
            s(f'v_mov_b32 v5, {LFLAG}\nds_read_b32 v6, v5\ns_lshl_b32 s7, s{SV}, 1\ns_mul_i32 s8, s{S_X}, 3\ns_sub_u32 s7, s7, s8\nv_lshrrev_b32 v5, 5, v0\nv_add_u32 v5, s7, v5\nv_cmp_gt_u32 vcc, 3, v5')
            s(f's_waitcnt lgkmcnt(0)\nv_subrev_u32 v6, s{TAG}, v6\nv_mul_u32_u24 v6, {W_AL - W_ACT}, v6\nv_cndmask_b32 v5, 0, v6, vcc\nv_add_u32 v1, v1, v5')
        s(f'v_and_b32 v5, 31, v0\nv_lshlrev_b32 v6, 3, v5\nv_lshrrev_b32 v7, 5, v0')
        lf = s.lab('nofin')
        s(f's_cmp_eq_u32 s{SV}, 0\ns_cbranch_scc0 {lf}')
        s(f's_lshl_b32 s8, s{S_DT}, 8\ns_add_u32 s9, s8, {W_MOD + 5*5120}\ns_add_u32 s8, s8, {W_X1}')
        s(f's_lshl_b32 s10, s{S_X}, 13\ns_add_u32 s8, s8, s10')
        s.poll([f'buffer_load_dwordx2 v[10:11], v6, {WSR}, s9 offen sc1', f'buffer_load_dwordx2 v[8:9], v6, {WSR}, s8 offen sc1'], s.ck_tag([[11], [9]], 12), slp=o['pslp'], warmable=True)
        s('v_lshlrev_b32 v9, 4, v7\nv_lshrrev_b32 v8, v9, v8\nv_lshlrev_b32 v8, 16, v8\nv_lshrrev_b32 v10, v9, v10\nv_lshlrev_b32 v10, 16, v10')
        s(f'{lf}:')
        s(f'v_lshl_add_u32 v6, v5, 1, v7\nv_mul_u32_u24 v6, 48, v6\nv_add_u32 v6, {LDP}, v6')
        s(f'v_mul_u32_u24 v7, 1280, v7\nv_lshl_add_u32 v5, v5, 1, v7\ns_lshl_b32 s8, s{S_DT}, 6')
        if o['otouch']: s(f'buffer_load_dword v30, v5, {RBR}, s8 offen')
        s.live('s_barrier')
        ck, t = s.ck_tag([[17, 19], [21, 23]], 12)
        for k in range(2):
            for r in (16 + 4 * k, 18 + 4 * k): ck[k] += f'\nv_and_b32 v{r+1}, 0xffff0000, v{r}\nv_lshlrev_b32 v{r}, 16, v{r}'
        s.poll([f'buffer_load_dwordx4 {Q4(16+4*k)}, v1, {WSR}, s{5+k} offen sc1' for k in range(2)], (ck, t), warmable=True)
        s.stamp(5)
        s('v_pk_mul_f32 v[16:17], v[16:17], v[20:21]\nv_pk_mul_f32 v[18:19], v[18:19], v[22:23]\nv_cvt_pk_bf16_f32 v16, v16, v18\nv_cvt_pk_bf16_f32 v17, v17, v19')
        s('ds_write2st64_b32 v2, v16, v17 offset0:0 offset1:1\ns_waitcnt lgkmcnt(0)')
        for T in range(4): s(f'ds_read_b128 {Q4(A+4*T)}, v3 offset:{64*T}')
        for T in range(4):
            s(f's_waitcnt lgkmcnt({3-T})')
            for tt in range(2): s.mfma(D + 4 * tt, A + 4 * T, BW + 16 * tt + 4 * T, T == 0)
        for b in range(2): s(f'v_mov_b32_dpp v{D+b}, v{D+4+b} quad_perm:[0,1,2,3] row_mask:0xa bank_mask:0xf')
        s(f'ds_write2_b32 v4, v{D}, v{D+1} offset0:0 offset1:12\ns_waitcnt lgkmcnt(0)'); s.stamp(1); s.live('s_barrier'); s.stamp(2)
        s(f's_cmp_eq_u32 s{SV}, 0\ns_cbranch_scc0 L_exit')
        for k in range(3): s(f'ds_read_b128 {Q4(16+4*k)}, v6 offset:{16*k}')
        s('s_waitcnt lgkmcnt(1)\nv_pk_add_f32 v[16:17], v[16:17], v[18:19]\nv_pk_add_f32 v[20:21], v[20:21], v[22:23]\nv_pk_add_f32 v[16:17], v[16:17], v[20:21]')
        s('s_waitcnt lgkmcnt(0)\nv_pk_add_f32 v[24:25], v[24:25], v[26:27]\nv_pk_add_f32 v[16:17], v[16:17], v[24:25]\nv_add_f32 v16, v16, v17')
        s('v_fma_f32 v16, v16, v10, v8\nv_mov_b32_dpp v17, v16 quad_perm:[1,1,3,3] row_mask:0xf bank_mask:0xf\nv_cvt_pk_bf16_f32 v16, v16, v17')
        s.warmret('L_wD')
        s(f's_mov_b32 exec_lo, 0x55555555\ns_mov_b32 exec_hi, 0x55555555\nbuffer_store_dword v16, v5, {RBR}, s8 offen {o["oflag"]}')
        s.stamp(6)
        s(f's_cmp_eq_u32 s{S_DT}, 0\ns_cbranch_scc0 L_exit')
        s(f's_mov_b64 exec, 1\nv_mov_b32 v17, s{TAG}\nv_mov_b32 v18, 0\nbuffer_store_dword v17, v18, {WSR}, 0 offen {o["oflag"]}')
        if o['diag']:
            s(f'L_diag:\ns_memrealtime s[76:77]\ns_waitcnt lgkmcnt(0)\ns_sub_u32 s76, s76, s78\ns_cmp_lt_u32 s76, {o["diag"]}\ns_cbranch_scc1 L_diag')

    def exit(s):
        s('L_exit:')
        if s.o['stamps']:
            s('s_waitcnt vmcnt(0)')
            s.stamp(7, True)
            if s.o['stamps'] == 3: s(f's_memtime s[{ST0+12}:{ST0+13}]')
            s('s_mov_b64 exec, 1\ns_waitcnt lgkmcnt(0)')
            s(f's_mul_i32 s4, s2, 12\ns_add_u32 s4, s4, s3\ns_lshl_b32 s4, s4, 6\ns_add_u32 s4, s4, {W_STAMP}\nv_mov_b32 v1, 0')
            for k in range(4):
                for e in range(4): s(f'v_mov_b32 v{4+4*k+e}, s{ST0+4*k+e}')
                s(f'buffer_store_dwordx4 {Q4(4+4*k)}, v1, {WSR}, s4 offen offset:{16*k}')
        s('L_end:\ns_endpgm')

    def build(s):
        s.entry(); s.stream()
        for _ in range(s.o['shift']): s('s_endpgm')
        s('L_service:')
        s.roles()
        s('s_cmp_eq_u32 s3, 9\ns_cbranch_scc1 L_s1\ns_cmp_eq_u32 s3, 10\ns_cbranch_scc1 L_s2\ns_cmp_eq_u32 s3, 11\ns_cbranch_scc1 L_s3')
        s.s0(); s.bgather(); s('L_s1:'); s.s1(); s('L_s2:'); s.s2(); s('L_s3:'); s.s3(); s.crole(); s.drole(); s.exit()
        body, n = pad(s.L)
        out = [HEADER.rstrip(), f'; @launch grid=(256,1,1) block=(768,1,1) lds={LEND}', '.amdgcn_target "amdgcn-amd-amdhsa--gfx950"', '.text',
               f'.globl {KN}', '.p2align 8', f'.type {KN},@function', f'{KN}:']
        out += [l if l.endswith(':') or l.startswith(';') else '    ' + l for l in body]
        out += ['.section .rodata,"a"', '.p2align 6', f'.amdhsa_kernel {KN}', '  .amdhsa_next_free_vgpr 168', '  .amdhsa_next_free_sgpr 96',
                '  .amdhsa_accum_offset 168', '  .amdhsa_group_segment_fixed_size 0', '  .amdhsa_kernarg_size 112', '  .amdhsa_user_sgpr_count 2',
                '  .amdhsa_user_sgpr_kernarg_segment_ptr 1', '  .amdhsa_system_sgpr_workgroup_id_x 1', '  .amdhsa_float_denorm_mode_32 3', '.end_amdhsa_kernel']
        return '\n'.join(out) + '\n', n

if __name__ == '__main__':
    names = []
    for spec in sys.argv[1:]:
        kw = {}
        name, _, rest = spec.partition(':')
        for kv in filter(None, rest.split(',')):
            k, v = kv.split('=')
            kw[k] = int(v) if v.isdigit() else v.replace('+', ' ').replace('_', '')
        t, n = G(**kw).build()
        open(name, 'w').write(t)
        names.append(name)
    print(' '.join(names))
```

```python
import sys, struct
from asmlib import pad
KN = 'adaLN_cond__gqa_block_cached__swiglu_ffn__decode_kernel'

def f2u(x): return struct.unpack('<I', struct.pack('<f', x))[0]
def hx(x): return hex(f2u(x))
LOG2E = 1.4426950408889634
W_E, W_PG, W_MOD, W_XL, W_XC, W_ACT = 0, 0x800, 0x1000, 0x2000, 0x9000, 0xA000
W_X1, W_GL, W_AL, W_YL, W_Y, W_ATT, W_ML, W_MP, W_QP, W_END = 0x10000, 0x20000, 0x28000, 0x30000, 0x58000, 0x80000, 0x180000, 0x1A0000, 0x1E0000, 0x260000
W_STAMP = 512 << 20
LQ, LFLAG, LPRG, LMODE, LQF, LGO, LCNT, LXS, LHS, LO, LH2, LPO, LBIG = 0, 1536, 1544, 1552, 1556, 1560, 1568, 1664, 2304, 2816, 6144, 9216, 58368
LYO = LXS
LACT, LDP = LPO, LPO + 6144
OS = 768 + 64
HS = 1280 + 64
LM, LWQ, LB, LEND = LBIG, LBIG + 20480, LBIG + 51200, LBIG + 100352
P_X, P_K, P_V, P_WQ, P_WO, P_BX, P_G, P_U, P_D, P_C, P_WM, P_OUT, P_DBG, P_WS = range(16, 44, 2)
TAG, S_H, S_J, S_R, S_X, S_IDX, LOC, S_CS = 44, 45, 46, 47, 48, 49, 50, 51
WS = 52; RA = 56; RB = 60
S_ROLE = 15
S_DT = 14
SPIN = 13
SV = 12
ST0 = 80
WSR = f's[{WS}:{WS+3}]'; RAR = f's[{RA}:{RA+3}]'; RBR = f's[{RB}:{RB+3}]'
P = lambda r: f'v[{r}:{r+1}]'
Q4 = lambda r: f'v[{r}:{r+3}]'


HEADER = """; Kernarg layout for this problem (112 bytes, ptrs only, base s[0:1]):
;
"""

class G:
    def __init__(s, **o):
        s.o = dict(F=3, NPF=12, RC=3, endF=5, endN=9, rot=6, wflag='nt', sflag='nt', spin=1 << 22, pslp=8, mlslp=32,
                   qF=63, mF=63, bF=1, cF=1, dF=1, cE=3, dE=3, bE=0, bEF=2, bonus=1, ord='0123', ordk='2301', wst=0, wF=3, up=1, upF=63, F0=3, N0=0, upe=0, qfirst=1, mfirst=1, Fm=3, Flom=2, far=0, emu=0, emin=6, emin2=3, shift=0, rown=1, pfy=0, pfa=0, rg=4, dg=1, rmiss=0, otouch=0, eg0=16, st0=112, qlight=0, glight=0, gmap=1, sep=0, dW=9, eg=182, xab=6, oflag='', warm=1, loc=1,
                   bal=1, stat1=130, cstep=8, bdel=21, n1=11, cstep2=6, bdel2=18, c0=6, bslp=24, Flo=2, bend=180,
                   stamps=0, stk='', phst=0, remap=0, diag=0, nox='')
        s.o.update(o); s.L = []; s.uid = 0; s.cur = '?'
    def __call__(s, t):
        for l in t.split('\n'):
            l = l.strip()
            if l: s.L.append(l)
    def lab(s, n): s.uid += 1; return f'L_{n}_{s.uid}'
    def srd(s, d, ptr, size):
        s(f's_mov_b32 s{d}, s{ptr}\ns_mov_b32 s{d+1}, s{ptr+1}\ns_mov_b32 s{d+2}, {size}\ns_mov_b32 s{d+3}, 0x20000')
    def stamp(s, k, lite=False):
        if s.o['stamps'] == 1 or (s.o['stamps'] and (lite or str(k) + s.cur in s.o['stk'])): s(f's_memrealtime s[{ST0+2*k}:{ST0+2*k+1}]')
    def bf16r(s, d, src=None):
        src = d if src is None else src
        s(f'v_cvt_pk_bf16_f32 v{d}, v{src}, v{src}\nv_and_b32 v{d}, 0xffff0000, v{d}')
    def dppop(s, op, v, ctl): s(f'{op}_dpp v{v}, v{v}, v{v} {ctl} row_mask:0xf bank_mask:0xf')
    def red16(s, op, vs, skip1=False, fill=None):
        for ctl in (['quad_perm:[1,0,3,2]'] if not skip1 else []) + ['quad_perm:[2,3,0,1]', 'row_half_mirror', 'row_mirror']:
            if fill:
                for _ in range(2):
                    if fill: s(fill.pop(0))
            for v in vs: s.dppop(op, v, ctl)
    def swapred(s, op, v, t, w, fill=None):
        s(f'v_mov_b32 v{t}, v{v}')
        if fill:
            for _ in range(2):
                if fill: s(fill.pop(0))
        s(f'v_permlane{w}_swap_b32 v{v}, v{t}\n{op} v{v}, v{v}, v{t}')
    def live(s, text):
        if not s.o['warm']: s(text); return
        l = s.lab('lv'); s(f's_cbranch_execz {l}'); s(text); s(f'{l}:')
    def warm(s, entry, ret):
        if not s.o['warm']: return
        for r in range(1, 8): s(f'v_mov_b32 v{r}, 0')
        s(f's_mov_b64 exec, 0\ns_branch {entry}\n{ret}:\ns_mov_b64 exec, -1')
    def warmret(s, ret):
        if s.o['warm']: s(f's_cbranch_execz {ret}')
    def ck_tag(s, groups, t):
        out = []; first = True
        for g in groups:
            l = []
            for r in g:
                l.append(f'v_xor_b32 v{t}, s{TAG}, v{r}' if first else f'v_bitop3_b32 v{t}, v{r}, s{TAG}, v{t} bitop3:0xbe'); first = False
            out.append('\n'.join(l))
        return out, t
    def ck_xor(s, bases, n, t, t2):
        out = []
        for i, b in enumerate(bases):
            l = [f'v_bitop3_b32 v{t2}, v{b}, v{b+1}, v{b+2} bitop3:0x96']
            if n == 3: l.append(f'v_xor_b32 v{t2}, v{t2}, v{b+3}')
            l.append(f'v_xor_b32 v{t}, s{TAG}, v{t2}' if i == 0 else f'v_bitop3_b32 v{t}, v{t2}, s{TAG}, v{t} bitop3:0xbe')
            out.append('\n'.join(l))
        return out, t
    def poll(s, loads, ck, slp=0, warmable=False, nm='?', slpif=None, spin=None, pre=None):
        if nm in s.o['nox']: return
        checks, t = ck
        a = s.lab('poll'); b = s.lab('ok')
        s(f's_mov_b32 s{SPIN}, {spin or s.o["spin"]}')
        c0 = s.lab('chk')
        if pre: s('\n'.join(loads)); s(pre); s(f's_branch {c0}')
        s(f'{a}:')
        (s.live if warmable else s)('\n'.join(loads))
        if pre: s(f'{c0}:')
        for i, c in enumerate(checks): s(f's_waitcnt vmcnt({len(loads) - 1 - i})'); s(c)
        s(f'v_cmp_ne_u32 vcc, 0, v{t}\ns_cbranch_vccz {b}')
        if slpif: c = s.lab('ns'); s(f'{slpif}\ns_cbranch_scc1 {c}\ns_sleep {s.o["mlslp"]}\n{c}:')
        if slp: s(f's_sleep {slp}')
        s(f's_sub_u32 s{SPIN}, s{SPIN}, 1\ns_cbranch_scc0 {a}\n{b}:')
    def gather(s, loads, cks, sm, slp=0, nm='?'):
        if nm in s.o['nox']: return
        n = len(loads); a = s.lab('gat'); b = s.lab('ok')
        s(f's_mov_b32 s{SPIN}, {s.o["spin"]}\ns_mov_b32 s{sm}, {(1 << n) - 1}\n{a}:')
        for k in range(n):
            l = s.lab('sk'); s(f's_bitcmp1_b32 s{sm}, {k}\ns_cbranch_scc0 {l}\n{loads[k]}\n{l}:')
        s(f's_mov_b32 s{sm}, 0\ns_waitcnt vmcnt(0)')
        for k in reversed(range(n)):
            s(cks[k][0][0]); s(f'v_cmp_ne_u32 vcc, 0, v{cks[k][1]}\ns_cmp_lg_u64 vcc, 0\ns_addc_u32 s{sm}, s{sm}, s{sm}')
        s(f's_cmp_eq_u32 s{sm}, 0\ns_cbranch_scc1 {b}')
        if slp: s(f's_sleep {slp}')
        s(f's_sub_u32 s{SPIN}, s{SPIN}, 1\ns_cbranch_scc0 {a}\n{b}:')
    def gstore(s, stores, nm='?'):
        if nm in s.o['nox']: return
        a = s.lab('pl'); b = s.lab('st')
        s(f's_cmp_eq_u32 s{LOC}, 1\ns_cbranch_scc1 {a}')
        for t in stores: s(t + ' sc1')
        s(f's_branch {b}\n{a}:')
        for t in stores: s(t)
        s(f'{b}:')
    def getloc(s, t, spin=True, at=LFLAG):
        a = s.lab('loc'); b = s.lab('locok')
        if spin: s(f's_mov_b32 s{SPIN}, {s.o["spin"] * 8}\n{a}:')
        s(f'v_mov_b32 v{t}, {at}\nds_read_b32 v{t}, v{t}\ns_waitcnt lgkmcnt(0)\nv_readfirstlane_b32 s{LOC}, v{t}\ns_sub_u32 s{LOC}, s{LOC}, 1')
        if spin: s(f's_cmp_le_u32 s{LOC}, 1\ns_cbranch_scc1 {b}\ns_sleep 1\ns_sub_u32 s{SPIN}, s{SPIN}, 1\ns_cbranch_scc0 {a}\n{b}:')
    def dma(s, n, voff, srd, soff, sstep, lds, F):
        out = []
        for t in range(n):
            st = sstep(t) if callable(sstep) else sstep
            out.append(lds(t) if callable(lds) else f's_mov_b32 m0, {lds + 1024 * t}')
            if F < 60: out.append(f's_waitcnt vmcnt({F - 1})')
            out.append(f'buffer_load_dwordx4 v{voff}, s[{srd}:{srd+3}], s{soff} offen {s.o["wflag"]} lds')
            if t < n - 1: out.append(f's_add_u32 s{soff}, s{soff}, {st}')
        return '\n'.join(out)
    def rows(s, d, t, sh, stride):
        s(f'v_lshrrev_b32 v{d}, {sh}, v0\nv_mul_u32_u24 v{d}, {stride}, v{d}\nv_and_b32 v{t}, {(1 << sh) - 1}, v0\nv_lshl_add_u32 v{d}, v{t}, 4, v{d}')
    def tr_lane(s, d, t, gs, rs):
        s(f'v_lshrrev_b32 v{d}, 4, v0\nv_mul_u32_u24 v{d}, {gs}, v{d}')
        s(f'v_bfe_u32 v{t}, v0, 2, 2\nv_mul_u32_u24 v{t}, {rs}, v{t}\nv_add_u32 v{d}, v{d}, v{t}')
        s(f'v_and_b32 v{t}, 3, v0\nv_lshl_add_u32 v{d}, v{t}, 3, v{d}')
    def a_lane(s, d, t, bs, gs, base):
        s(f'v_and_b32 v{d}, 1, v0\nv_mul_u32_u24 v{d}, {bs}, v{d}\nv_lshrrev_b32 v{t}, 4, v0\nv_mul_u32_u24 v{t}, {gs}, v{t}')
        s(f'v_add_u32 v{d}, v{d}, v{t}')
        if base: s(f'v_add_u32 v{d}, {base}, v{d}')
    def mfma(s, d, a, b, first, k=32):
        n = 4 if k == 32 else 2
        s(f'v_mfma_f32_16x16x{k}_bf16 v[{d}:{d+3}], v[{a}:{a+n-1}], v[{b}:{b+n-1}], ' + ('0' if first else f'v[{d}:{d+3}]'))
    def role(s, bit, label, ifset=True): s(f's_bitcmp1_b32 s{S_ROLE}, {bit}\ns_cbranch_scc{1 if ifset else 0} {label}')
    def end(s): s('s_branch L_exit' if s.o['stamps'] else 's_endpgm')
    def ghead(s, d):
        if s.o['gmap']: s(f's_lshr_b32 s{d}, s2, 7\ns_lshl3_add_u32 s{d}, s{d}, s{S_X}')
        else: s(f's_lshr_b32 s{d}, s{S_H}, 1')
    def tagwait(s): s(f's_waitcnt lgkmcnt(0)\ns_add_u32 s{TAG}, s{TAG}, 0x9e3779b1')

    def entry(s):
        o = s.o
        s(f's_cmp_ge_u32 s2, 256\ns_cbranch_scc1 L_end')
        s.stamp(0, True)
        s('s_load_dwordx16 s[16:31], s[0:1], 0\ns_load_dwordx8 s[32:39], s[0:1], 64\ns_load_dwordx4 s[40:43], s[0:1], 96')
        if o['diag']: s('s_memrealtime s[78:79]')
        s('v_readfirstlane_b32 s3, v0\nv_and_b32 v0, 63, v0')
        if o['remap']: s('s_lshr_b32 s4, s2, 3\ns_and_b32 s4, s4, 7\ns_xor_b32 s2, s2, s4')
        s(f's_and_b32 s{S_X}, s2, 7\ns_lshr_b32 s4, s2, 6\ns_bfe_u32 s{S_J}, s2, 0x30003\ns_lshl2_add_u32 s{S_H}, s{S_X}, s4\ns_lshr_b32 s3, s3, 6')
        s('s_cmp_ge_u32 s3, 8\ns_cbranch_scc1 L_service')

    def roles(s):
        o = s.o
        for k in range(1, 8): s.stamp(k, True)
        s(f's_lshr_b32 s{S_IDX}, s2, 3\ns_lshr_b32 s11, s2, 6')
        lb = s.lab('nonB'); lr = s.lab('roles')
        s(f's_mov_b32 s{S_DT}, 0\ns_mov_b32 s{SV}, s3')
        s(f's_cmp_lt_u32 s{S_J}, 5\ns_cbranch_scc0 {lb}')
        if o['rown']:
            s(f's_and_b32 s9, s11, 1\ns_mul_i32 s{S_CS}, s9, 5\ns_add_u32 s{S_CS}, s{S_CS}, s{S_J}\ns_and_b32 s9, s11, 2\ns_lshl2_add_u32 s{S_CS}, s{S_CS}, s9\ns_and_b32 s9, s3, 1\ns_add_u32 s{S_CS}, s{S_CS}, s9')
        else: s(f's_mul_i32 s{S_CS}, s11, 5\ns_add_u32 s{S_CS}, s{S_CS}, s{S_J}\ns_lshl_b32 s{S_CS}, s{S_CS}, 1\ns_and_b32 s9, s3, 1\ns_add_u32 s{S_CS}, s{S_CS}, s9')
        s(f's_mov_b32 s{S_ROLE}, 1\ns_branch {lr}')
        s(f'{lb}:')
        s(f's_mul_i32 s8, s11, 3\ns_add_u32 s8, s8, s{S_J}\ns_sub_u32 s8, s8, 5')
        s(f's_mul_i32 s{S_CS}, s{S_X}, 6\ns_add_u32 s{S_CS}, s{S_CS}, s8')
        s(f's_add_u32 s9, s8, 10\ns_and_b32 s9, s9, 14\ns_lshl_b32 s10, s9, 2\ns_add_u32 s10, s10, s{S_X}')
        s(f's_lshl_b32 s{S_DT}, s10, 1\ns_and_b32 s9, s8, 1\ns_add_u32 s{S_DT}, s{S_DT}, s9')
        s(f's_cmp_lt_u32 s10, 10\ns_cselect_b32 s{S_ROLE}, 8, 0')
        s(f's_cmp_lt_u32 s8, 6\ns_cselect_b32 s{S_ROLE}, 2, s{S_ROLE}')
        s(f'{lr}:')
        s('s_waitcnt lgkmcnt(0)')
        s(f's_load_dword s{TAG}, s[{P_WS}:{P_WS+1}], 0')
        s.srd(WS, P_WS, 805306368 if o['stamps'] else W_END)

    def stream(s):
        s.cur = 'w'
        o = s.o; F = o['F']; NPF = o['NPF']
        VK, QA, ACC, TS, MX = 1, 4, 16, 2, 3
        RING = 24
        SC = RING
        T1, T2, LS, PPT = RING + 8, RING + 9, RING + 10, RING + 11
        MK = RING + 12
        VV, BP, PP2, T3 = RING + 16, RING + 17, RING + 18, RING + 19
        ML = RING + 20
        RET = 7
        BM, BA, BZ = RING + 24, RING + 25, RING + 26
        A2 = []
        s(f'v_bfe_u32 v{VK}, v0, 1, 3\nv_mul_u32_u24 v{VK}, 384, v{VK}\nv_lshrrev_b32 v2, 4, v0\nv_lshl_add_u32 v{VK}, v2, 5, v{VK}')
        s(f'v_and_b32 v2, 1, v0\nv_lshl_add_u32 v{VK}, v2, 4, v{VK}')
        PD = 16 * 3145728; STEP = 393216; OV = [int(c) for c in str(o['ord']).zfill(4)]
        OD = [int(c) for c in str(o['ordk'] or o['ord']).zfill(4)] + OV
        s(f's_bfe_u32 s7, s2, 0x40003\ns_lshl3_add_u32 s7, s7, s3\ns_mul_i32 s4, s7, 3072'); s.ghead(10)
        s(f's_mul_i32 s5, s10, 3145728\ns_add_u32 s4, s4, s5\ns_add_u32 s4, s4, {OD[0] * PD}\ns_add_u32 s6, s4, 3145728')
        s(f's_mul_i32 s5, s10, {o["rot"]}\ns_and_b32 s5, s5, 7\ns_mul_i32 s5, s5, {STEP}\ns_add_u32 s5, s5, s4')
        s(f's_mov_b32 s{RA+2}, 201326592\ns_mov_b32 s{RA+3}, 0x20000\ns_waitcnt lgkmcnt(0)\ns_mov_b64 s[{RA}:{RA+1}], s[{P_K}:{P_K+1}]')
        def emu(both=True):
            if o['emu']:
                s(f's_cmp_ge_u32 s4, {43 * 3145728}\ns_cselect_b64 s[{RA}:{RA+1}], s[{P_BX}:{P_BX+1}], s[{P_K}:{P_K+1}]')
                if both: s(f's_cselect_b64 s[{RB}:{RB+1}], s[{P_DBG}:{P_DBG+1}], s[{P_V}:{P_V+1}]')
        emu(False)
        NL = 192
        quad = {}; free = list(range(3 * NPF)); vm = []
        done = [0]
        def wait(n):
            if len(vm) - done[0] > n:
                s(f's_waitcnt vmcnt({n})'); done[0] = len(vm) - n
        def issue(u):
            wait((o['endF'] if u >= NL - o['endN'] else o['F0'] if u < o['N0'] else o['Fm'] if OD[u // 24] == 2 else F) - 1)
            if o['bal'] and 3 * NPF + 9 <= u < NL - o['endN']:
                l = s.lab('th'); s(f's_cbranch_vccz {l}\ns_waitcnt vmcnt({(o["Flom"] if OD[u // 24] == 2 else o["Flo"]) - 1})')
                if o['far']: s(f's_cmp_eq_u64 s[72:73], 0\ns_cbranch_scc1 {l}\ns_waitcnt vmcnt(0)')
                s(f'{l}:')
            q = free.pop(0); quad[u] = q; r = RING + 4 * q
            srd, vo = (RAR, VK) if u < 96 else (RBR, VV)
            s(f'buffer_load_dwordx4 {Q4(r)}, v{vo}, {srd}, s5 offen offset:{128 * (u % 3)} {o["sflag"]}')
            vm.append(u)
            if u % 3 == 2 and u < NL - 1:
                s(f's_add_u32 s5, s5, {STEP}\ns_cmp_ge_u32 s5, s6\ns_cselect_b32 s5, s4, s5')
                if u % 24 == 23:
                    t = u // 24; dl = OD[t + 1] - OD[t]
                    for r in (4, 5, 6): s(f's_{"add" if dl > 0 else "sub"}_u32 s{r}, s{r}, {abs(dl) * PD}')
                    emu()
                if o['phst'] == 1 and u % 48 == 47: s.stamp({47: 3, 95: 5, 143: 6}[u], True)
                if o['phst'] == 2 and u in (95, 119, 143): s.stamp({95: 3, 119: 5, 143: 6}[u], True)
            if u >= 3 * NPF + 3:
                if u >= 3 * NPF + 6:
                    s('s_waitcnt lgkmcnt(0)')
                    if o['far']: s(f'v_cmp_gt_u32 vcc, {u + 1 - o["far"]}, v{BM}\ns_mov_b64 s[72:73], vcc')
                    s(f'v_cmp_gt_u32 vcc, {u + 1}, v{BM}')
                s(f'v_mov_b32 v{BM}, {u + 1}\nds_write_b32 v{BA}, v{BM} offset:{LPRG}\nds_read_b32 v{BM}, v{BZ} offset:{LMODE}')
        def ready(u): return u in vm and vm.index(u) < done[0]
        def kpost(g):
            a = ACC + 4 * (g & 1); sc = SC + (g >> 2)
            s(f'v_cndmask_b32_e64 v{TS}, v{a}, v{a+1}, s[8:9]')
            s(f'v_add_f32_dpp v{sc}, v{TS}, v{TS} quad_perm:[1,0,3,2] row_mask:{1 << (g & 3)} bank_mask:0xf')
            if g & 3 == 3:
                s.bf16r(sc); s(f'v_mul_f32 v{sc}, {hx(192 ** -0.5)}, v{sc}'); s.bf16r(sc)
            if g & 7 == 7:
                a = sc - 1; row = f'quad_perm:[0,1,2,3] row_mask:{1 << OV.index(OD[g >> 3])} bank_mask:0xf'
                s(f'v_max_f32 v{MX}, v{a}, v{a+1}')
                s.red16('v_max_f32', [MX], skip1=True); s.swapred('v_max_f32', MX, T1, 16); s.swapred('v_max_f32', MX, T1, 32)
                s(f's_mov_b32 s10, {hx(LOG2E)}\nv_mul_f32 v{T1}, s10, v{MX}')
                for k in range(2): s(f'v_fma_f32 v{a+k}, v{a+k}, s10, -v{T1}')
                for k in range(2): s(f'v_exp_f32 v{a+k}, v{a+k}')
                s(f'v_mov_b32_dpp v{ML}, v{MX} {row}\nv_add_f32 v{LS}, v{a}, v{a+1}')
                for k in range(2): s(f'v_cvt_pk_bf16_f32 v{a+k}, v{a+k}, v{a+k}')
                s.red16('v_add_f32', [LS], skip1=True); s.swapred('v_add_f32', LS, T1, 16); s.swapred('v_add_f32', LS, T1, 32)
                s(f'v_mov_b32_dpp v{ML+1}, v{LS} {row}')
        def bperm(g):
            s(f'ds_bpermute_b32 v{PPT if g & 1 == 0 else PP2}, v{BP}, v{SC + 2 * OD.index(OV[g >> 3]) + (g >> 2 & 1)} offset:{64 * (g & 3)}')
        def switch():
            s.stamp(3)
            bperm(0)
            s(f'v_bitop3_b32 v{ML+2}, v{ML}, v{ML+1}, s{TAG} bitop3:0x96\nv_lshlrev_b32 v{ML+3}, 7, v0')
            s(f's_lshr_b32 s10, s{S_H}, 1\ns_lshl_b32 s10, s10, 9\ns_add_u32 s10, s10, s7\ns_lshl_b32 s10, s10, 4\ns_add_u32 s10, s10, {W_ML}')
            s('s_mov_b32 exec_lo, 0x00010001\ns_mov_b32 exec_hi, 0x00010001')
            s.gstore([f'buffer_store_dwordx4 {Q4(ML)}, v{ML+3}, {WSR}, s10 offen'])
            s('s_mov_b64 exec, -1')
            vm.append(None)
            s(f'v_lshrrev_b32 v{T1}, 5, v0\nv_mul_u32_u24 v{T1}, 768, v{T1}\nv_and_b32 v{T2}, 7, v0\nv_lshl_add_u32 v{T1}, v{T2}, 5, v{T1}')
            s(f'v_and_b32 v{T2}, 16, v0\nv_add_u32 v{T1}, v{T1}, v{T2}\ns_mul_i32 s10, s3, 1536\ns_add_u32 s10, s10, {LPO}\nv_add_u32 v{T1}, s10, v{T1}')
        def outp(acc, b):
            s('s_mov_b32 exec_lo, 0x00ff00ff\ns_mov_b32 exec_hi, 0xff00ff00')
            for jj in range(3): s(f'ds_write_b128 v{T1}, {Q4(acc[jj])} offset:{256*jj + 12288*b}')
            s('s_mov_b64 exec, -1')
        def proc(u):
            g, jj = divmod(u, 3)
            if g >= 32 and jj == 0:
                a = ACC + 4 * (g & 1)
                s('s_waitcnt lgkmcnt(0)')
                for k in range(4): s(f'v_and_b32 v{a+k}, v{PPT if g & 1 == 0 else PP2}, v{MK+k}')
                if g < 63: bperm(g - 31)
            wait(len(vm) - 1 - vm.index(u))
            r = RING + 4 * quad[u]
            if g < 32:
                s.mfma(ACC + 4 * (g & 1), QA + 4 * jj, r, jj == 0)
                if jj == 2 and g > 0: kpost(g - 1)
                if u == 5:
                    s(f'v_lshrrev_b32 v{BP}, 3, v0\nv_mul_u32_u24 v{VV}, 384, v{BP}\nv_lshlrev_b32 v{BP}, 3, v{BP}')
                    s(f'v_and_b32 v{T3}, 7, v0\nv_lshl_add_u32 v{VV}, v{T3}, 4, v{VV}')
                    s(f'v_and_b32 v{PP2}, 1, v0\nv_lshlrev_b32 v{PP2}, 4, v{PP2}\nv_mov_b32 v{MK}, 0xffff\nv_lshlrev_b32 v{PP2}, v{PP2}, v{MK}')
                    s(f'v_lshrrev_b32 v{T3}, 1, v{T3}')
                    for k in range(4):
                        s(f'v_cmp_eq_u32 vcc, {k}, v{T3}\nv_cndmask_b32 v{MK+k}, 0, v{PP2}, vcc')
                    s.a_lane(T3, PP2, 16, 32, LQ)
                if u in (23, 47, 71):
                    for k in range(3): s(f'ds_read_b128 {Q4(QA+4*k)}, v{T3} offset:{128*k + 384*OD[(u+1)//24]}')
                    s('s_waitcnt lgkmcnt(0)')
                if u == 6:
                    s(f's_cmp_eq_u32 s3, 3\ns_cselect_b32 s10, 0, 4\nv_mov_b32 v{BA}, s10\nv_mov_b32 v{BZ}, 0')
                if u == 95: kpost(31); switch()
            else:
                if u == 120: A2.extend(RING + 4 * free.pop() for _ in range(3))
                acc = lambda p: A2 if p & 1 else [QA, QA + 4, QA + 8]
                p = (g - 32) >> 3
                s.mfma(acc(p)[jj], ACC + 4 * (g & 1), r, g & 7 == 0)
                if u >= 190:
                    s(f's_mov_b32 exec_lo, 0x00ff00ff\ns_mov_b32 exec_hi, 0xff00ff00\nds_write_b128 v{T1}, {Q4(A2[jj-1])} offset:{256*(jj-1) + 3*12288}')
                    if u == 190: s('s_mov_b64 exec, -1')
                if p and u % 24 == 2:
                    outp(acc(p - 1), p - 1)
                    s(f's_mov_b64 exec, 1\nv_mov_b32 v{T2}, 1\nds_add_u32 v{BZ}, v{T2} offset:{LCNT + 4*(p-1)}\ns_mov_b64 exec, -1')
            if quad[u] >= RET: free.append(quad[u])
        li = 0
        if o['wst']:
            s.roles()
            s.wstage()
            vm.extend([None] * F)
        if o['sep']:
            s.roles(); s.tagwait(); s.ldswait(LGO, TS)
        while li < 3 * NPF:
            issue(li); li += 1
            if li == (min(F, o['F0']) if o['N0'] else F):
                if not o['sep'] and not o['wst']: s.roles()
                s.srd(RB, P_V, 201326592)
                if o['mfirst'] and not o['wst']: s('s_barrier')
            if li == F + 1:
                s('s_mov_b32 s8, 0xaaaaaaaa\ns_mov_b32 s9, 0xaaaaaaaa'); s.a_lane(TS, MX, 16, 32, LQ)
                if not o['sep']: s.tagwait()
        s.stamp(1, True)
        s('s_barrier')
        s.stamp(2, True)
        for jj in range(3): s(f'ds_read_b128 {Q4(QA+4*jj)}, v{TS} offset:{128*jj + 384*OD[0]}')
        s.getloc(MX, spin=False)
        pi = 0
        while pi < NL:
            if li < NL:
                while not free: proc(pi); pi += 1
                issue(li); li += 1
                n = 0
                while n < o['RC'] and pi < NL and ready(pi): proc(pi); pi += 1; n += 1
            else:
                proc(pi); pi += 1
        s(f'ds_write_b128 v{T1}, {Q4(A2[2])} offset:{512 + 3*12288}\ns_mov_b64 exec, -1')
        s('s_waitcnt lgkmcnt(0)')
        s.stamp(4, True)
        s('s_barrier')
        s.role(3, 'L_D'); s.role(1, 'L_C'); s.role(0, 'L_exit', False)
        s(f'L_B:\ns_cmp_lt_u32 s{SV}, 4\ns_cbranch_scc0 L_exit')
        BW, AW, D = 40, 88, 136
        s.tr_lane(2, 3, 1024, 128)
        s(f'v_bfe_u32 v3, v0, 3, 2\nv_xor_b32 v3, s{SV}, v3\nv_lshl_add_u32 v2, v3, 5, v2\nv_add_u32 v2, {LB}, v2')
        for T in range(12):
            for hi in range(2): s(f'ds_read_b64_tr_b16 {P(BW+4*T+2*hi)}, v2 offset:{4096*T + 512*hi}')
        s(f'v_and_b32 v3, 3, v0\nv_mul_u32_u24 v3, {OS}, v3\nv_and_b32 v4, 48, v0\nv_add_u32 v3, v3, v4\nv_add_u32 v3, {LO}, v3')
        for T in range(6): s(f'ds_read_b128 {Q4(AW+4*T)}, v3 offset:{64*T}')
        s(f'v_lshlrev_b32 v4, 4, v0')
        s(f's_lshr_b32 s10, s{S_H}, 1\ns_mul_i32 s10, s10, 40\ns_and_b32 s11, s{S_H}, 1\ns_mul_i32 s11, s11, 5\ns_add_u32 s11, s11, s{S_J}')
        s(f's_lshl2_add_u32 s10, s11, s10\ns_add_u32 s10, s10, s{SV}\ns_lshl_b32 s10, s10, 8\ns_add_u32 s10, s10, {W_Y}\ns_sub_u32 s11, s10, {W_Y - W_YL}')
        if o['rown']: s(f's_lshl_b32 s9, s{SV}, 7\ns_add_u32 s9, s9, {LYO}\nv_lshl_add_u32 v5, v0, 3, s9')
        s('s_waitcnt lgkmcnt(0)')
        for T in range(6): s.mfma(D, AW + 4 * T, BW + 4 * T, T == 0)
        s.live('s_barrier')
        s.stamp(5)
        for T in range(6, 12): s(f'ds_read_b128 {Q4(AW+4*T)}, v3 offset:{64*T}')
        for T in range(6, 12):
            s(f's_waitcnt lgkmcnt({11-T})'); s.mfma(D, AW + 4 * T, BW + 4 * T, False)
        s.warmret('L_wB')
        s(f's_mov_b64 exec, 0xffff\nv_pk_add_f32 {P(D)}, {P(D)}, {P(D+2)}\nv_bitop3_b32 v{D+2}, v{D}, v{D+1}, s{TAG} bitop3:0x96')
        st = [f'buffer_store_dwordx4 {Q4(D)}, v4, {WSR}, s10 offen sc1', f'buffer_store_dwordx4 {Q4(D)}, v4, {WSR}, s11 offen']
        s('\n'.join(st[::-1] if o['pfy'] else st))
        if o['rown']: s(f'ds_write_b64 v5, {P(D)}\ns_waitcnt lgkmcnt(0)')
        s.stamp(6)
        if o['rg']: s('s_barrier')
        s.end()

    def s0(s):
        s.cur = 'a'
        o = s.o
        lsk = s.lab('noM'); lj = s.lab('Mj'); ln = s.lab('Mn')
        s(f's_lshr_b32 s4, s{S_IDX}, 2\ns_lshl_b32 s4, s4, 3\ns_add_u32 s4, s4, s{S_X}')
        s(f's_cmp_lt_u32 s4, 60\ns_cbranch_scc0 {lsk}')
        s(f's_and_b32 s7, s{S_IDX}, 3')
        s.srd(RA, P_C, 2560); s.srd(RB, P_WM, 640 * 7680)
        s('v_min_u32 v1, 39, v0\nv_cmp_lt_u32 vcc, 19, v1\nv_lshlrev_b32 v1, 4, v1\nv_mov_b32 v3, 960\nv_cndmask_b32 v3, 0, v3, vcc\nv_add_u32 v3, v3, v1')
        s(f's_mul_i32 s5, s7, 320\nbuffer_load_dwordx4 v[8:11], v3, {RAR}, s5 offen')
        s.rows(2, 3, 3, 7680)
        s(f's_mul_i32 s5, s7, {160 * 7680}\ns_lshl_b32 s6, s4, 7\ns_add_u32 s5, s5, s6')
        s(s.dma(20, 2, RB, 5, 8 * 7680, LM, o['mF']))
        if o['mfirst']: s('s_barrier')
        s('s_waitcnt vmcnt(20)')
        s(f's_mov_b32 s6, {hx(-LOG2E)}')
        for k in range(4): s(f'v_lshlrev_b32 v{20+2*k}, 16, v{8+k}\nv_and_b32 v{21+2*k}, 0xffff0000, v{8+k}')
        for k in range(8): s(f'v_mul_f32 v{40+k}, s6, v{20+k}')
        for k in range(8): s(f'v_exp_f32 v{40+k}, v{40+k}')
        for k in range(8): s(f'v_add_f32 v{40+k}, 1.0, v{40+k}')
        for k in range(8): s(f'v_min_f32 v{40+k}, 0x7f000000, v{40+k}')
        for k in range(8): s(f'v_rcp_f32 v{48+k}, v{40+k}')
        for k in range(8): s(f'v_mul_f32 v{56+k}, v{20+k}, v{48+k}')
        for k in range(8): s(f'v_fma_f32 v{20+k}, -v{56+k}, v{40+k}, v{20+k}')
        for k in range(8): s(f'v_fma_f32 v{20+k}, v{20+k}, v{48+k}, v{56+k}')
        for k in range(4): s(f'v_cvt_pk_bf16_f32 v{8+k}, v{20+2*k}, v{21+2*k}')
        s(f'ds_write_b128 v1, v[8:11] offset:{LXS}')
        s.a_lane(4, 5, 320, 16, LXS)
        s.tr_lane(5, 6, 1024, 128); s(f'v_add_u32 v5, {LM}, v5')
        A, B, D = 12, 48, 32
        s.tagwait()
        for T in range(5): s(f'ds_read_b128 {Q4(A+4*T)}, v4 offset:{64*T}')
        l = s.lab('ini')
        s(f's_cmp_eq_u32 s{S_IDX}, 0\ns_cbranch_scc0 {l}\ns_lshl_b32 s5, s{S_X}, 7\ns_add_u32 s5, s5, {W_PG}\ns_add_u32 s6, s{TAG}, 999')
        s(f'v_and_b32 v1, 31, v0\nv_lshlrev_b32 v1, 2, v1\nv_mov_b32 v6, s6\nbuffer_store_dword v6, v1, {WSR}, s5 offen\n{l}:')
        s(f'v_lshlrev_b32 v1, 4, v0\ns_mul_i32 s5, s7, {3840 * 16}\ns_lshl_b32 s6, s4, 10\ns_add_u32 s5, s5, s6\ns_add_u32 s5, s5, {W_MP}')
        s.rows(2, 3, 4, 3840 * 16)
        s(f's_lshl_b32 s4, s4, 2\ns_add_u32 s4, s4, s7\ns_lshl_b32 s6, s4, 8\ns_add_u32 s6, s6, {W_MP}')
        s('s_waitcnt vmcnt(0)')
        s.stamp(1)
        for T in range(5):
            for ct in range(4):
                for hi in range(2): s(f'ds_read_b64_tr_b16 {P(B + 16*T + 4*ct + 2*hi)}, v5 offset:{4096*T + 512*hi + 32*ct}')
            if T:
                s('s_waitcnt lgkmcnt(8)')
                for ct in range(4): s.mfma(D + 4 * ct, A + 4 * (T - 1), B + 16 * (T - 1) + 4 * ct, T == 1)
        s('s_waitcnt lgkmcnt(0)')
        for ct in range(4): s.mfma(D + 4 * ct, A + 16, B + 64 + 4 * ct, False)
        for ct in range(1, 4):
            for b in range(2): s(f'v_mov_b32_dpp v{D+b}, v{D+4*ct+b} quad_perm:[0,1,2,3] row_mask:{1 << ct} bank_mask:0xf')
        s(f'v_bitop3_b32 v{D+2}, v{D}, v{D+1}, s{TAG} bitop3:0x96')
        l2 = s.lab('M2')
        s(f's_cmp_lt_u32 s4, 80\ns_cbranch_scc0 {l2}')
        if 'P' not in o['nox']: s(f'buffer_store_dwordx4 {Q4(D)}, v1, {WSR}, s5 offen sc1')
        s.stamp(2)
        s(f's_branch {ln}\n{l2}:')
        s.getloc(6)
        s.gstore([f'buffer_store_dwordx4 {Q4(D)}, v1, {WSR}, s5 offen'], nm='m')
        s.stamp(2)
        s('s_barrier')
        s.poll([f'buffer_load_dwordx3 v[4:6], v2, {WSR}, s6 offen sc1'], s.ck_xor([4], 2, 8, 9), slp=o['mlslp'], nm='m')
        for w in (32, 16):
            s.swapred('v_add_f32', 4, 8, w); s.swapred('v_add_f32', 5, 9, w)
        s(f'v_cvt_pk_bf16_f32 v4, v4, v5\nv_mov_b32 v5, s{TAG}\nv_lshlrev_b32 v3, 3, v0\ns_lshl_b32 s5, s4, 7\ns_add_u32 s5, s5, {W_MOD}')
        s(f's_mov_b64 exec, 0xffff\nbuffer_store_dwordx2 v[4:5], v3, {WSR}, s5 offen sc1\ns_mov_b64 exec, -1')
        s(f's_branch {lj}\n{lsk}:\n' + ('s_barrier' if o['mfirst'] else '')); s.tagwait(); s(f'{ln}:\ns_barrier'); s.getloc(6, spin=False); s(f'{lj}:')
        s.waitprog(o['st0'], 1)
        s('s_mov_b32 s5, 0\nL_pair:')
        s.stats()
        s.stamp(3)
        l = s.lab('cnt')
        s(f's_lshl_b32 s8, s5, 2\nv_mov_b32 v4, s8\ns_mov_b32 s{SPIN}, {o["spin"]}\n{l}:\ns_sleep {o["pslp"]}\nds_read_b32 v5, v4 offset:{LCNT}\ns_sub_u32 s{SPIN}, s{SPIN}, 1\ns_waitcnt lgkmcnt(0)')
        s(f'v_readfirstlane_b32 s8, v5\ns_cselect_b32 s8, 8, s8\ns_cmp_lt_u32 s8, 8\ns_cbranch_scc1 {l}')
        s('L_T0:')
        s.stamp(4)
        T = 16
        for k in range(24): s(f'ds_read2st64_b32 {P(T+2*k)}, v1 offset0:{2*k} offset1:{2*k+1}')
        for w in range(8):
            if w >= 3: s(f's_waitcnt lgkmcnt({3 * (7 - w)})')
            elif w == 0: s('s_waitcnt lgkmcnt(15)')
            f = f's[{64 + (w & 6)}:{65 + (w & 6)}]'; e = w & 1
            for c in range(3):
                r = T + 6 * w + 2 * c; a = (8, 10, 12)[c]
                s(f'v_pk_mul_f32 {P(a)}, {P(r)}, {f} op_sel:[0,{e}] op_sel_hi:[1,{e}]' if w == 0 else
                  f'v_pk_fma_f32 {P(a)}, {P(r)}, {f}, {P(a)} op_sel:[0,{e},0] op_sel_hi:[1,{e},1]')
        s('v_add_f32 v8, v8, v11\nv_add_f32 v9, v9, v12\nv_add_f32 v10, v10, v13')
        s(f'v_bitop3_b32 v11, v8, v9, v10 bitop3:0x96\nv_xor_b32 v11, s{TAG}, v11')
        s.gstore([f'buffer_store_dwordx4 v[8:11], v2, {WSR}, s4 offen'])
        s.stamp(5)
        l = s.lab('early'); l2 = s.lab('next'); l3 = s.lab('fin')
        s(f's_cmp_eq_u32 s5, 3\ns_cbranch_scc0 {l}')
        s.role(0, 'L_Bg'); s.role(3, 'L_D'); s.role(1, 'L_exit', False)
        s('s_barrier')
        s.end()
        s(f'{l}:')
        s.role(0, l2, False)
        s(f's_mul_i32 s9, s5, 24\ns_add_u32 s9, s9, {120 + o["eg0"]}\ns_min_u32 s9, s9, {o["eg"]}')
        s.waitprog('s9', 12, o['pslp'])
        s.gath(2, o['pslp'])
        s(f'{l2}:\ns_add_u32 s5, s5, 1\ns_cmp_lt_u32 s5, 3\ns_cbranch_scc1 L_pair')
        s.role(0, l3); s.role(3, 'L_exit', False)
        s(f's_barrier\ns_branch L_D\n{l3}:')
        s(f's_add_u32 s6, s6, 16384\ns_add_u32 s7, s6, 4096\nv_lshlrev_b32 v3, 1, v0\nv_add_u32 v3, {LO + 384 + OS * (int(str(o["ord"])[-1]) >> 1)}, v3\ns_waitcnt lgkmcnt(0)\ns_barrier')

    def stats(s):
        s(f'v_lshlrev_b32 v2, 4, v0\ns_lshr_b32 s6, s{S_H}, 1\ns_lshl2_add_u32 s6, s6, s5\ns_lshl_b32 s4, s6, 11\ns_add_u32 s4, s4, {W_ML}')
        s.poll([f'buffer_load_dwordx3 v[{4+4*k}:{6+4*k}], v2, {WSR}, s4 offen offset:{1024*k} sc1' for k in range(2)], s.ck_xor([4, 8], 2, 12, 13), slp=s.o['mlslp'])
        s('v_max_f32 v12, v4, v8')
        s.red16('v_max_f32', [12]); s.swapred('v_max_f32', 12, 13, 16); s.swapred('v_max_f32', 12, 13, 32)
        for r in (4, 8): s(f'v_sub_f32 v{r}, v{r}, v12\nv_mul_f32 v{r}, {hx(LOG2E)}, v{r}\nv_exp_f32 v{r}, v{r}')
        s('v_mul_f32 v5, v5, v4\nv_fmac_f32 v5, v9, v8')
        s.red16('v_add_f32', [5]); s.swapred('v_add_f32', 5, 13, 16); s.swapred('v_add_f32', 5, 13, 32)
        s(f'v_rcp_f32 v5, v5\ns_bitcmp1_b32 s{S_H}, 0\ns_cselect_b64 vcc, -1, 0\nv_cndmask_b32 v4, v4, v8, vcc\nv_mul_f32 v4, v4, v5')
        s(f's_lshl_b32 s4, s{S_J}, 3')
        for w in range(8):
            s(f'v_readlane_b32 s{64+w}, v4, s4')
            if w < 7: s('s_add_u32 s4, s4, 1')
        s(f's_mul_i32 s4, s5, 12288\ns_add_u32 s4, s4, {LPO}\nv_lshl_add_u32 v1, v0, 2, s4')
        s(f's_lshl_b32 s7, s5, 2\ns_lshr_b32 s7, 0x{str(s.o["ord"]).zfill(4)[::-1]}, s7')
        s(f's_bfe_u32 s4, s7, 0x10001\ns_mul_i32 s4, s4, {OS}\ns_and_b32 s7, s7, 1\ns_mul_i32 s7, s7, 384\ns_add_u32 s4, s4, s7\ns_add_u32 s4, s4, {LO}\nv_lshl_add_u32 v3, v0, 1, s4')
        s(f's_lshl_b32 s6, s6, 14\ns_add_u32 s6, s6, {W_ATT}\ns_and_b32 s4, s{S_IDX}, 15\ns_lshl_b32 s4, s4, 10\ns_add_u32 s4, s4, s6\ns_add_u32 s7, s6, 4096')

    def gath(s, nh, slp):
        G = 24
        if nh == 2: s('s_add_u32 s8, s6, 8192\ns_add_u32 s9, s6, 12288')
        if nh == 2 and s.o['glight']:
            s('v_and_b32 v14, 15, v0\nv_lshlrev_b32 v14, 10, v14')
            s.poll([f'buffer_load_dwordx4 {Q4(G)}, v14, {WSR}, s6 offen offset:1008 sc1'], s.ck_xor([G], 3, 12, 13), slp=slp)
        ck, t = s.ck_xor([G + 4 * k for k in range(8 * nh)], 3, 12, 13)
        for k in range(8 * nh):
            a = 16 + 4 * (k >> 3); r = G + 4 * k
            if k & 7: ck[k] += f'\nv_pk_add_f32 {P(a)}, {P(r-4) if k & 7 == 1 else P(a)}, {P(r)}\nv_add_f32 v{a+2}, v{r-2 if k & 7 == 1 else a+2}, v{r+2}'
        s.poll([f'buffer_load_dwordx4 {Q4(G+4*k)}, v2, {WSR}, s{6 + (k >> 2)} offen offset:{1024*(k & 3)} sc1' for k in range(8 * nh)], (ck, t), slp=slp, warmable=(nh == 1))
        for h in range(nh):
            a = 16 + 4 * h; of = 2 * OS * h
            s(f'v_cvt_pk_bf16_f32 v{a}, v{a}, v{a+1}\nv_cvt_pk_bf16_f32 v{a+2}, v{a+2}, v{a+2}')
            s(f'ds_write_b16 v3, v{a} offset:{of}\nds_write_b16_d16_hi v3, v{a} offset:{of+128}\nds_write_b16 v3, v{a+2} offset:{of+256}')

    def bgather(s):
        s.cur = 'g'
        s('L_Bg:')
        s.gath(1, 0)
        s.warmret('L_wBg')
        s('s_waitcnt lgkmcnt(0)')
        s.stamp(6)
        s('s_barrier')
        s.end()

    def s1(s):
        s.cur = 'b'
        o = s.o
        s.srd(RA, P_X, 2560); s.srd(RB, P_WQ, 640 * 12288)
        s('v_and_b32 v1, 31, v0\nv_lshlrev_b32 v1, 3, v1\nv_lshrrev_b32 v2, 5, v0\nv_mul_u32_u24 v2, 1280, v2\nv_add_u32 v1, v1, v2')
        for u in range(5): s(f'buffer_load_dwordx2 {P(10+2*u)}, v1, {RAR}, 0 offen offset:{256*u}')
        s(f'v_and_b32 v7, 15, v0\nv_lshl_add_u32 v2, v7, 1, v2\ns_mul_i32 s4, s{S_J}, 160')
        for u in range(5): s(f'buffer_load_ushort v{160+u}, v2, {RAR}, s4 offen offset:{32*u}')
        s.rows(3, 4, 3, 12288)
        s.ghead(6)
        s(f's_mul_i32 s5, s{S_J}, {80*12288}\ns_and_b32 s7, s{S_H}, 1\ns_lshl4_add_u32 s6, s7, s6\ns_mul_i32 s6, s6, 384\ns_add_u32 s5, s5, s6')
        if o['mfirst']: s('s_barrier')
        s(s.dma(30, 3, RB, 5, lambda t: 128 if t % 3 < 2 else 8 * 12288 - 256, LWQ, o['qF']))
        if o['qfirst']: s(f'v_mov_b32 v4, {LGO}\nv_mov_b32 v5, 1\nds_write_b32 v4, v5')
        s.tagwait()
        s('s_waitcnt vmcnt(30)')
        X = 20
        for k in range(10): s(f'v_lshlrev_b32 v{X+2*k}, 16, v{10+k}\nv_and_b32 v{X+2*k+1}, 0xffff0000, v{10+k}')
        s(f'v_add_f32 v4, v{X}, v{X+1}')
        for k in range(2, 20): s(f'v_add_f32 v4, v4, v{X+k}')
        s.red16('v_add_f32', [4]); s.swapred('v_add_f32', 4, 5, 16)
        s(f'v_mul_f32 v4, {hx(1/640)}, v4')
        for k in range(20): s(f'v_sub_f32 v{X+k}, v{X+k}, v4')
        s(f'v_mul_f32 v5, v{X}, v{X}')
        for k in range(1, 20): s(f'v_fmac_f32 v5, v{X+k}, v{X+k}')
        s.red16('v_add_f32', [5]); s.swapred('v_add_f32', 5, 6, 16)
        s(f'v_mul_f32 v5, {hx(1/640)}, v5')
        s.bf16r(4); s.bf16r(5)
        s(f'v_add_f32 v5, {hx(1e-5)}, v5'); s.bf16r(5)
        s('v_sqrt_f32 v5, v5'); s.bf16r(5); s('v_rcp_f32 v5, v5')
        for u in range(5):
            r = 160 + u
            s(f'v_lshlrev_b32 v{r}, 16, v{r}\nv_sub_f32 v{r}, v{r}, v4'); s.bf16r(r)
            s(f'v_mul_f32 v{r}, v{r}, v5'); s.bf16r(r)
        s.tr_lane(4, 5, 3072, 128)
        s(f'v_add_u32 v4, {LWQ}, v4')
        s.tr_lane(5, 6, 512, 128)
        s(f'v_lshrrev_b32 v6, 5, v0\nv_mul_u32_u24 v6, 2048, v6\nv_add_u32 v5, v5, v6\nv_add_u32 v5, {LWQ + 8*3072}, v5')
        BW, AC, A = 100, 40, 88
        def rd(ct):
            b = BW + 10 * (ct % 6); off = 1024 * (ct >> 2) + 32 * (ct & 3)
            for T in range(2):
                for hi in range(2): s(f'ds_read_b64_tr_b16 {P(b+4*T+2*hi)}, v4 offset:{off + 12288*T + 512*hi}')
            s(f'ds_read_b64_tr_b16 {P(b+8)}, v5 offset:{off}')
        s.rows(2, 6, 4, 3840 * 16)
        s(f's_mul_i32 s4, s{S_J}, 1280\ns_add_u32 s4, s4, {W_MP}\ns_add_u32 s5, s4, 10240')
        s('s_waitcnt vmcnt(0)')
        s.stamp(1)
        for ct in range(6): rd(ct)
        M = 40
        s.gather([f'buffer_load_dwordx3 v[{M+4*u}:{M+4*u+2}], v2, {WSR}, s{4 + u // 5} offen offset:{256 * (u % 5)} sc1' for u in range(10)],
                 [s.ck_xor([M + 4 * u], 2, 12, 13) for u in range(10)], 8, slp=o['pslp'], nm='P')
        s.stamp(2)
        for u in range(10): s(f'v_permlane32_swap_b32 v{M+4*u}, v{M+4*u+1}')
        for u in range(10): s(f'v_add_f32 v{M+4*u}, v{M+4*u}, v{M+4*u+1}')
        for u in range(10): s(f'v_mov_b32 v{M+4*u+1}, v{M+4*u}')
        for u in range(10): s(f'v_permlane16_swap_b32 v{M+4*u}, v{M+4*u+1}')
        for u in range(10): s(f'v_add_f32 v{M+4*u}, v{M+4*u}, v{M+4*u+1}')
        for u in range(10): s.bf16r(M + 4 * u)
        s(f'v_lshrrev_b32 v2, 5, v0\nv_mul_u32_u24 v2, 192, v2\nv_lshl_add_u32 v2, v7, 1, v2')
        for u in range(5):
            c = M + 20 + 4 * u; r = 160 + u
            s(f'v_add_f32 v{c}, 1.0, v{c}'); s.bf16r(c)
            s(f'v_mul_f32 v{r}, v{r}, v{c}'); s.bf16r(r)
            s(f'v_add_f32 v{r}, v{r}, v{M+4*u}\nv_cvt_pk_bf16_f32 v{r}, v{r}, v{r}\nds_write_b16 v2, v{r} offset:{LHS + 32*u}')
        s.getloc(6)
        s.a_lane(2, 3, 192, 16, LHS); s.a_lane(3, 6, 192, 8, LHS + 128)
        s('s_waitcnt lgkmcnt(0)')
        s(f'ds_read_b128 {Q4(A)}, v2\nds_read_b128 {Q4(A+4)}, v2 offset:64\nds_read_b64 {P(A+8)}, v3')
        for half in range(2):
            s('s_waitcnt lgkmcnt(0)')
            for ct in range(6 * half, 6 * half + 6): s.mfma(AC + 4 * ct, A + 8, BW + 10 * (ct % 6) + 8, True, k=16)
            for T in range(2):
                for ct in range(6 * half, 6 * half + 6):
                    s.mfma(AC + 4 * ct, A + 4 * T, BW + 10 * (ct % 6) + 4 * T, False)
                    if half == 0 and T == 1: rd(ct + 6)
        s(f'v_lshlrev_b32 v2, 4, v0\ns_lshl_b32 s4, s{S_H}, 3\ns_add_u32 s5, s4, s{S_J}\ns_lshl_b32 s5, s5, 11\ns_add_u32 s5, s5, {W_QP}')
        for b in range(2):
            for u in range(4):
                for c in range(3):
                    s(f'v_mov_b32_dpp v{16+4*b+c}, v{AC + 4*(3*u+c) + b} quad_perm:[0,1,2,3] row_mask:{1 << u} bank_mask:0xf')
        for b in range(2):
            t = 16 + 4 * b
            s(f'v_bitop3_b32 v{t+3}, v{t}, v{t+1}, v{t+2} bitop3:0x96\nv_xor_b32 v{t+3}, s{TAG}, v{t+3}')
        s.gstore([f'buffer_store_dwordx4 {Q4(16+4*b)}, v2, {WSR}, s5 offen offset:{1024*b}' for b in range(2)], nm='Q')
        s.stamp(3)
        s(f'v_mov_b32 v3, {LQF}\nv_mov_b32 v4, 1\nds_write_b32 v3, v4')
        s(f'L_Qg:\ns_bfe_u32 s9, s3, 0x10001\ns_and_b32 s4, s{S_H}, 30\ns_add_u32 s4, s4, s9\ns_lshl_b32 s4, s4, 14\ns_add_u32 s4, s4, {W_QP}\ns_mul_i32 s9, s9, 384')
        for k in range(1, 4): s(f's_add_u32 s{4+k}, s4, {4096*k}')
        Q = 40
        if o['qlight']:
            s('v_and_b32 v3, 7, v0\nv_lshlrev_b32 v3, 11, v3')
            s.poll([f'buffer_load_dwordx4 {Q4(Q)}, v3, {WSR}, s4 offen offset:2032 sc1'], s.ck_xor([Q], 3, 12, 13), slp=o['pslp'])
        def ck2(k):
            c, t = s.ck_xor([Q + 8 * k, Q + 8 * k + 4], 3, 12, 13); return ['\n'.join(c)], t
        s.gather(['\n'.join(f'buffer_load_dwordx4 {Q4(Q+8*k+4*b)}, v2, {WSR}, s{4 + (k >> 1)} offen offset:{2048*(k & 1) + 1024*b} sc1' for b in range(2)) for k in range(8)],
                 [ck2(k) for k in range(8)], 8, slp=o['pslp'], nm='Q')
        s('v_lshrrev_b32 v3, 4, v0\nv_mul_u32_u24 v3, 96, v3\nv_and_b32 v4, 15, v0\nv_lshl_add_u32 v3, v4, 1, v3\nv_add_u32 v3, s9, v3')
        for k in range(1, 8):
            for b in range(2):
                r = Q + 4 * b
                s(f'v_pk_add_f32 {P(r)}, {P(r)}, {P(r+8*k)}\nv_add_f32 v{r+2}, v{r+2}, v{r+8*k+2}')
        for b in range(2):
            r = Q + 4 * b; lq = LQ + 768 * b
            s(f'v_cvt_pk_bf16_f32 v{r}, v{r}, v{r+1}\nv_cvt_pk_bf16_f32 v{r+2}, v{r+2}, v{r+2}')
            s(f'ds_write_b16 v3, v{r} offset:{lq}\nds_write_b16_d16_hi v3, v{r} offset:{lq+32}\nds_write_b16 v3, v{r+2} offset:{lq+64}')
        s('s_waitcnt lgkmcnt(0)')
        s.stamp(4)
        s('s_barrier\ns_cmp_eq_u32 s3, 11\ns_cbranch_scc1 L_s3b')
        lc = s.lab('s1C'); ld = s.lab('s1D'); lw = s.lab('s1W')
        if o['warm']:
            s.role(1, lc); s.role(3, ld); s.role(0, lw, False)
            s(f's_mov_b32 s{SV}, 0'); s.warm('L_B', 'L_wB'); s.warm('L_Bg', 'L_wBg'); s(f's_branch {lw}')
            s(f'{lc}:\ns_mov_b32 s{SV}, 0'); s.warm('L_C', 'L_wC'); s(f's_branch {lw}')
            s(f'{ld}:\ns_mov_b32 s{SV}, 0'); s.warm('L_D', 'L_wD')
            s(f'{lw}:\ns_mov_b32 s{SV}, 9')
        s.balance5()
        s(f's_add_u32 s6, s6, 8192\ns_add_u32 s7, s7, 8192\nv_add_u32 v3, {2 * OS}, v3')
        s('s_barrier\ns_branch L_T0')

    def balance5(s):
        o = s.o; p0 = 3 * o['NPF']
        a = s.lab('bal'); e = s.lab('balE'); c = s.lab('nox'); d = s.lab('nost')
        V = 100
        s(f'v_mov_b32 v{V+1}, 0\ns_mov_b32 s11, 4096\ns_lshl_b32 s72, s{S_X}, 7\ns_add_u32 s72, s72, {W_PG}\ns_mov_b32 s75, {o["stat1"]}')
        s(f's_cmp_lt_u32 s{S_IDX}, {o["n1"]}\ns_cselect_b32 s78, {o["cstep"]}, {o["cstep2"]}\ns_cselect_b32 s79, {o["bdel"]}, {o["bdel2"]}')
        s(f's_cselect_b32 s74, 0, {o["n1"] * (o["cstep"] - o["cstep2"])}\ns_add_u32 s74, s74, {p0 + o["c0"]}')
        s(f's_lshl_b32 s5, s{S_IDX}, 3\ns_add_u32 s5, s5, s{S_X}\ns_mul_i32 s5, s5, s78\ns_lshr_b32 s5, s5, 3\ns_add_u32 s74, s74, s5\ns_add_u32 s79, s79, s{TAG}')
        s(f'v_and_b32 v{V}, 31, v0\nv_lshlrev_b32 v{V}, 2, v{V}')
        s(f's_lshl_b32 s73, s{S_X}, 12\ns_add_u32 s73, s73, {W_GL}\ns_mov_b32 s10, {W_GL}\nv_and_b32 v{V+5}, 7, v0\nv_cmp_eq_u32 s[76:77], s{S_X}, v{V+5}\nv_lshlrev_b32 v{V+5}, 12, v{V+5}\nv_mov_b32 v{V+6}, {p0}')
        s(f'v_xor_b32 v{V+4}, 4096, v{V+5}\nv_cndmask_b32_e64 v{V+5}, v{V+5}, v{V+4}, s[76:77]')
        s(f's_and_b32 s8, s{S_ROLE}, 1\ns_mul_i32 s8, s8, {o["bonus"]}\ns_sub_u32 s8, s{TAG}, s8')
        s(f'{a}:\nbuffer_load_dword v{V+3}, v{V+1}, {WSR}, s72 offen sc1\ns_waitcnt vmcnt(0)\nds_read_b32 v{V+2}, v{V+1} offset:{LPRG}')
        s(f'v_subrev_u32 v{V+3}, s8, v{V+3}\nds_write_b32 v{V+1}, v{V+3} offset:{LMODE}\ns_waitcnt lgkmcnt(0)\nv_readfirstlane_b32 s9, v{V+2}')
        s(f's_cmp_ge_u32 s9, s75\ns_cbranch_scc0 {d}\ns_mov_b32 s75, 999')
        s('s_mov_b32 s5, 3'); s.stats()
        s(f's_branch {a}\n{d}:')
        s(f's_cmp_ge_u32 s9, {o["bend"]}\ns_cbranch_scc1 {e}')
        s(f's_cmp_ge_u32 s9, s74\ns_cbranch_scc0 {c}')
        s(f's_mov_b32 s74, 999\nv_add_u32 v{V+3}, s{TAG}, v{V+2}\nbuffer_load_dword v{V+4}, v{V+5}, {WSR}, s10 offen sc1\nbuffer_store_dword v{V+3}, v{V}, {WSR}, s73 offen sc1\ns_waitcnt vmcnt(1)')
        s(f'v_subrev_u32 v{V+4}, s{TAG}, v{V+4}\nv_cmp_lt_u32 vcc, 192, v{V+4}\nv_cndmask_b32 v{V+4}, v{V+4}, v{V+6}, vcc')
        s(f'v_subrev_u32 v{V+2}, s78, v{V+2}\nv_cndmask_b32_e64 v{V+4}, v{V+4}, v{V+2}, s[76:77]')
        s(f's_cmp_lt_u32 s{S_IDX}, {o["n1"]}\ns_cselect_b32 s9, {min(o["emin"], 64)}, {min(o["emin2"], 64)}\nv_add_u32 v{V+7}, s9, v{V+4}')
        for ctl in ('quad_perm:[1,0,3,2]', 'quad_perm:[2,3,0,1]', 'row_half_mirror'): s.dppop('v_add_u32', V + 4, ctl); s.dppop('v_min_u32', V + 7, ctl)
        s(f'v_lshrrev_b32 v{V+4}, 3, v{V+4}\nv_min_u32 v{V+4}, v{V+4}, v{V+7}\nv_add_u32 v{V+4}, s79, v{V+4}\nbuffer_store_dword v{V+4}, v{V}, {WSR}, s72 offen')
        s(f'{c}:\ns_sleep {o["bslp"]}\ns_sub_u32 s11, s11, 1\ns_cbranch_scc0 {a}')
        s('s_mov_b32 s5, 3'); s.stats()
        s(f'{e}:')

    def bstage(s, t0, t1, F):
        o = s.o; l = s.lab('dma')
        s.srd(RA, P_WO, 6144 * 1280)
        s.swz(1280)
        s.ghead(5)
        s(f's_mul_i32 s5, s5, {192*1280}\ns_and_b32 s4, s{S_H}, 1\ns_mul_i32 s4, s4, 5\ns_add_u32 s4, s4, s{S_J}\ns_lshl_b32 s4, s4, 7')
        s(f's_add_u32 s5, s5, s4\ns_add_u32 s5, s5, {8 * 1280 * t0 + (15*192*1280 if t0 >= 24 else 0)}')
        s(f's_mov_b32 s4, {LB + 1024 * t0}\n{l}:')
        for t in range(2):
            s(f's_mov_b32 m0, s4\ns_waitcnt vmcnt({F - 1})\nbuffer_load_dwordx4 v{3 if t else 1}, {RAR}, s5 offen {o["wflag"]} lds')
            s(f's_add_u32 s5, s5, {8 * 1280}\ns_add_u32 s4, s4, 1024')
        if t0 < 24 < t1: s(f's_cmp_eq_u32 s4, {LB + 24576}\ns_cselect_b32 s6, {15*192*1280}, 0\ns_add_u32 s5, s5, s6')
        s(f's_cmp_lt_u32 s4, {LB + 1024 * t1}\ns_cbranch_scc1 {l}')

    def wstage(s):
        o = s.o; F = o['wF']
        ld = s.lab('wD'); lc = s.lab('wC'); le = s.lab('wE'); li = s.lab('wI')
        def loads(n, step, par):
            for t in range(n):
                s(f's_mov_b32 m0, s11')
                if t >= F: s(f's_waitcnt vmcnt({F - 1})')
                s(f'buffer_load_dwordx4 v{4 + (t & par)}, {RBR}, s10 offen {o["wflag"]} lds\ns_add_u32 s10, s10, {step}\ns_add_u32 s11, s11, 1024')
                if t == min(n, F) - 1 and o['mfirst']: s('s_barrier')
        def swz(stride):
            s(f'v_lshrrev_b32 v6, 3, v0\nv_mul_u32_u24 v4, {stride}, v6\nv_and_b32 v6, 2, v6\nv_and_b32 v5, 7, v0\nv_xor_b32 v6, v6, v5\nv_xor_b32 v5, 4, v6')
            s('v_lshl_add_u32 v5, v5, 4, v4\nv_lshl_add_u32 v4, v6, 4, v4')
        s.role(0, ld, False)
        s.srd(RB, P_WO, 6144 * 1280); swz(1280); s.ghead(10)
        s(f's_lshr_b32 s9, s3, 2\ns_mul_i32 s9, s9, 15\ns_add_u32 s10, s10, s9\ns_mul_i32 s10, s10, {192*1280}\ns_mul_i32 s9, s3, {48*1280}\ns_add_u32 s10, s10, s9')
        s(f's_lshr_b32 s9, s{S_CS}, 2\ns_lshl_b32 s9, s9, 7\ns_add_u32 s10, s10, s9\ns_mul_i32 s11, s3, 6144\ns_add_u32 s11, s11, {LB}')
        loads(6, 8 * 1280, 1)
        s(f's_branch {le}\n{ld}:')
        s.role(3, lc, False)
        n = 12 - o['dW']
        s.srd(RB, P_D, 1536 * 1280); s.rows(4, 5, 2, 1280)
        s(f's_mul_i32 s11, s3, {n}\ns_add_u32 s11, s11, {8 * o["dW"]}\ns_mul_i32 s10, s11, {16 * 1280}\ns_lshl_b32 s9, s{S_DT}, 6\ns_add_u32 s10, s10, s9\ns_lshl_b32 s11, s11, 10\ns_add_u32 s11, s11, {LBIG}')
        loads(n, 16 * 1280, 0)
        s(f's_branch {le}\n{lc}:')
        s.role(1, li, False)
        n = o['cE']
        s(f's_bitcmp1_b32 s{S_CS}, 0\ns_cselect_b64 s[{RB}:{RB+1}], s[{P_U}:{P_U+1}], s[{P_G}:{P_G+1}]\ns_mov_b32 s{RB+2}, {640 * 3072}\ns_mov_b32 s{RB+3}, 0x20000')
        swz(3072)
        s(f's_bitcmp1_b32 s3, 0\ns_cselect_b64 vcc, -1, 0\nv_cndmask_b32 v4, v4, v5, vcc')
        s(f's_add_u32 s11, s3, {80 - 8 * n}\ns_mul_i32 s10, s11, {8 * 3072}\ns_lshr_b32 s9, s{S_CS}, 1\ns_lshl_b32 s9, s9, 7\ns_add_u32 s10, s10, s9\ns_lshl_b32 s11, s11, 10\ns_add_u32 s11, s11, {LBIG}')
        for t in range(n):
            s(f's_mov_b32 m0, s11\nbuffer_load_dwordx4 v4, {RBR}, s10 offen {o["wflag"]} lds\ns_add_u32 s10, s10, {64 * 3072}\ns_add_u32 s11, s11, 8192')
        s(f'{li}:')
        if o['mfirst']: s('s_barrier')
        s(f'{le}:')

    def stage(s, half):
        o = s.o
        ld = s.lab('stD'); lc = s.lab('stC'); le = s.lab('stE')
        def part(n): return (0, n) if half is None else ((0, n // 4 * 2) if half == 0 else (n // 4 * 2, n))
        FF = lambda k: o['upF'] if half is None else o[k]
        s.role(0, ld, False)
        E = 0 if half is None else o['bE']; t0, t1 = part(48 - E)
        s.bstage(E + t0, E + t1, min(FF('bF'), 60))
        s(f's_branch {le}\n{ld}:')
        s.role(3, lc, False)
        W = o['dW']; t0, t1 = part(8 * (12 - W))
        s.srd(RA, P_D, 1536 * 1280); s.rows(1, 2, 2, 1280)
        s(f's_lshl_b32 s4, s{S_DT}, 6\ns_add_u32 s4, s4, {(8 * W + t0) * 16 * 1280}')
        s(s.dma(t1 - t0, 1, RA, 4, 16 * 1280, LBIG + 1024 * (8 * W + t0), FF('dF')))
        s(f's_branch {le}\n{lc}:')
        s.role(1, le, False)
        E = o['cE']; t0, t1 = part(8 * E)
        s.caddr()
        s(f's_add_u32 s5, s5, {(80 - 8 * E + t0) * 8 * 3072}')
        s(s.cdma(t1 - t0, lambda t: f's_mov_b32 m0, {LBIG + 1024 * (80 - 8 * E + t0 + t)}', FF('cF')))
        s(f'{le}:')
        if half is not None: s('s_waitcnt vmcnt(0)')

    def s2(s):
        s.cur = 'r'
        o = s.o
        assert o['mfirst']
        s('s_barrier')
        s('s_getreg_b32 s4, hwreg(HW_REG_XCC_ID)')
        s(f'v_and_b32 v1, 31, v0\nv_lshlrev_b32 v1, 3, v1\ns_lshl_b32 s5, s{S_X}, 8\ns_add_u32 s5, s5, {W_XC}\ns_lshl3_add_u32 s6, s{S_IDX}, s5')
        s.tagwait()
        s(f'v_mov_b32 v2, s4\nv_mov_b32 v3, s{TAG}\ns_mov_b64 exec, 1')
        if o['xab']: s(f's_add_u32 s7, s6, {W_XL - W_XC}\nbuffer_store_dwordx2 v[2:3], v1, {WSR}, s7 offen')
        if 'X' not in o['nox']: s(f'buffer_store_dwordx2 v[2:3], v1, {WSR}, s6 offen sc1')
        s('s_mov_b64 exec, -1')
        s.idpoll(o['pslp'])
        s(f'v_xor_b32 v4, s4, v4\nv_or_b32 v4, v4, v6\nv_cmp_ne_u32 vcc, 0, v4\ns_cmp_eq_u64 vcc, 0\ns_cselect_b32 s4, 2, 1')
        if not o['loc']: s(f's_mov_b32 s4, 1')
        s(f'v_mov_b32 v4, s4\nv_mov_b32 v5, {LFLAG}\nds_write_b32 v5, v4\ns_waitcnt lgkmcnt(0)')
        s.stamp(2)
        if o['bE']:
            l = s.lab('noBe'); s.role(0, l, False); s.bstage(0, o['bE'], o['bEF']); s(f'{l}:')
        s('s_barrier')
        if not o['up']: s.stage(0)
        s.stamp(1)
        s.role(1, 'L_LN0')
        s.role(0, 'L_s23', False)
        s.warm('L_R', 'L_wR')
        s('L_R0:')
        s.waitprog(72, 1)
        s.getloc(1, spin=False)
        s.srd(RA, P_X, 2560)
        s(f'v_and_b32 v1, 15, v0\nv_lshlrev_b32 v2, 1, v1\ns_lshl_b32 s5, s{S_CS}, 5')
        s(f'buffer_load_ushort v4, v2, {RAR}, s5 offen\nbuffer_load_ushort v5, v2, {RAR}, s5 offen offset:1280')
        s(f'v_lshlrev_b32 v2, 3, v1\ns_lshl_b32 s5, s{S_CS}, 7\ns_add_u32 s6, s5, {W_MOD + 1280*8}')
        s.poll([f'buffer_load_dwordx2 v[6:7], v2, {WSR}, s6 offen sc1'], s.ck_tag([[7]], 8), slp=o['mlslp'])
        s('v_lshlrev_b32 v4, 16, v4\nv_lshlrev_b32 v5, 16, v5\nv_and_b32 v7, 0xffff0000, v6\nv_lshlrev_b32 v6, 16, v6')
        s(f's_add_u32 s5, s5, {W_X1}\nv_mov_b32 v9, s{TAG}\ns_lshl_b32 s6, s{S_X}, 13\ns_add_u32 s5, s5, s6')
        s.rows(3, 8, 4, 10240)
        s(f's_lshl_b32 s64, s{S_CS}, 8\ns_add_u32 s64, s64, {W_Y}')
        s(f's_sub_u32 s64, s64, {W_Y - W_YL}\ns_sub_u32 s6, 1, s{LOC}\ns_mul_i32 s6, s6, {W_Y - W_YL}\nv_mov_b32 v12, s6\nv_mov_b32 v13, {W_Y - W_YL}\nv_lshrrev_b32 v14, 5, v0')
        for k in range(4):
            s(f'v_add_u32 v15, {2*k}, v14\nv_cmp_eq_u32 vcc, s{S_X}, v15\nv_cndmask_b32 v15, v13, v12, vcc\nv_add_u32 v15, {40960*k}, v15\nv_add_u32 v{32+k}, v15, v3')
        if o['rown']:
            s(f's_lshr_b32 s4, s{S_H}, 1\nv_lshrrev_b32 v14, 4, v0\ns_bfe_u32 s6, s{S_H}, 0x10001\ns_mul_i32 s6, s6, {-20480 & 0xffffffff}\ns_add_u32 s6, s6, 10240')
            for k in range(4):
                s(f'v_add_u32 v15, {4*k}, v14\nv_cmp_eq_u32 s[{66+2*k}:{67+2*k}], s4, v15\nv_add_u32 v15, s6, v{32+k}\nv_cndmask_b32_e64 v{32+k}, v{32+k}, v15, s[{66+2*k}:{67+2*k}]')
            s(f's_and_b32 s4, s{S_CS}, 3\ns_lshl_b32 s4, s4, 7\ns_add_u32 s4, s4, {LYO}\nv_add_u32 v36, s4, v2')
        touch = '\n'.join(f'buffer_load_dword v{40+k}, v{32+k}, {WSR}, s64 offen sc1' for k in range(4))
        s('s_barrier')
        if o['rg'] == 5: s(touch)
        s('s_barrier')
        if o['rg'] == 4: s(touch)
        if o['rg'] and o['rg'] != 6: s('s_barrier')
        s('L_R:')
        s.stamp(4)
        Y = 16
        ck, t = s.ck_xor([Y + 4 * k for k in range(4)], 2, 12, 13)
        if o['rown']:
            if o['rg'] != 6: s('ds_read_b64 v[38:39], v36')
            ck[0] += '\ns_waitcnt lgkmcnt(0)'
            for k in range(4):
                for e in range(2): ck[k] += f'\nv_cndmask_b32_e64 v{Y+4*k+e}, v{Y+4*k+e}, v{38+e}, s[{66+2*k}:{67+2*k}]'
        for k in range(1, 4): ck[k] += f'\nv_pk_add_f32 v[10:11], {P(Y) if k == 1 else "v[10:11]"}, {P(Y+4*k)}'
        lds_ = [f'buffer_load_dwordx3 v[{Y+4*k}:{Y+4*k+2}], v{32+k}, {WSR}, s64 offen sc1' for k in range(4)]
        if o['rmiss']:
            s.gather(lds_, [s.ck_xor([Y + 4 * k], 2, 12, 13) for k in range(4)], 8)
            s(f'v_pk_add_f32 v[10:11], {P(Y)}, {P(Y+4)}\nv_pk_add_f32 v[10:11], v[10:11], {P(Y+8)}\nv_pk_add_f32 v[10:11], v[10:11], {P(Y+12)}')
        else: s.poll(lds_, (ck, t), warmable=True, pre='s_barrier\nds_read_b64 v[38:39], v36' if o['rg'] == 6 else None)
        s.stamp(5)
        for w in (16, 32):
            s(f'v_mov_b32 v14, v10\nv_mov_b32 v15, v11\nv_permlane{w}_swap_b32 v10, v14\nv_permlane{w}_swap_b32 v11, v15\nv_pk_add_f32 v[10:11], v[10:11], v[14:15]')
        s(f'v_pk_fma_f32 v[10:11], v[10:11], v[6:7], v[4:5]\nv_cvt_pk_bf16_f32 v8, v10, v11')
        s.warmret('L_wR')
        s('s_mov_b64 exec, 0xffff')
        s.gstore([f'buffer_store_dwordx2 v[8:9], v2, {WSR}, s5 offen'])
        s.stamp(6)
        s.end()

    def s3(s):
        s.cur = 'l'
        o = s.o
        if o['mfirst']: s('s_barrier')
        if not o['upe']: s.tagwait()
        if o['up'] and not o['wst']:
            if o['qfirst']: s.ldswait(LGO, 3)
            s.stage(None)
            if o['upe']: s.tagwait()
            if o['sep']: s(f's_waitcnt vmcnt({o["sep"]})\nv_mov_b32 v3, {LGO}\nv_mov_b32 v4, s{TAG}\nds_write_b32 v3, v4')
        s.ldswait(LQF, 3, o['pslp'])
        s('v_lshlrev_b32 v2, 4, v0\ns_branch L_Qg\nL_s3b:')
        if not o['up']: s.stage(1)
        s.stamp(1)
        s.role(0, 'L_R0')
        s.role(1, 'L_s23', False)
        s.warm('L_LN', 'L_wLN')
        s('L_LN0:')
        s.waitprog(72, 1)
        C1, SB, X = 8, 28, 48
        s(f'v_lshlrev_b32 v1, 4, v0\ns_and_b32 s8, s3, 1\ns_mul_i32 s11, s8, 0x02020000\ns_add_u32 s11, s11, 0x01000c0c')
        s(f's_mov_b32 s4, {W_MOD + 3*5120}\ns_mov_b32 s5, {W_MOD + 3*5120 + 4096}\ns_mov_b32 s6, {W_MOD + 4*5120}\ns_mov_b32 s7, {W_MOD + 4*5120 + 4096}')
        def ld5(base, sa): return [f'buffer_load_dwordx4 {Q4(base+4*u)}, v1, {WSR}, s{sa + (u >> 2)} offen offset:{1024*(u & 3)} sc1' for u in range(5)]
        pick = lambda r: f'v_perm_b32 v{r}, v{r}, v{r}, s11\nv_perm_b32 v{r+1}, v{r+2}, v{r+2}, s11'
        s.poll(ld5(C1, 6) + ld5(SB, 4), s.ck_tag([[C1 + 1 + 4 * k, C1 + 3 + 4 * k] for k in range(10)], 4), slp=o['mlslp'])
        for k in range(10): s(pick(C1 + 4 * k))
        for u in range(5):
            for e in range(2): s(f'v_add_f32 v{C1+4*u+e}, 1.0, v{C1+4*u+e}'); s.bf16r(C1 + 4 * u + e)
        s(f's_lshl_b32 s4, s{S_X}, 13\ns_add_u32 s4, s4, {W_X1}\ns_add_u32 s5, s4, 4096')
        s(f's_mul_i32 s8, s8, {HS}\ns_add_u32 s8, s8, {LH2}\nv_lshl_add_u32 v2, v0, 2, s8')
        s(f's_mov_b32 s10, {hx(1/640)}\nv_mov_b32 v68, {hx(1e-5)}')
        s('s_barrier\ns_barrier\ns_barrier')
        s('L_LN:')
        s.stamp(4)
        ck, t = s.ck_tag([[X + 1 + 4 * u, X + 3 + 4 * u] for u in range(5)], 70)
        for u in range(5):
            r = X + 4 * u
            ck[u] += '\n' + pick(r)
            if u == 0: ck[u] += f'\nv_readlane_b32 s8, v{X}, 0'
            ck[u] += f'\nv_pk_add_f32 {P(r)}, {P(r)}, s[8:9] op_sel_hi:[1,0] neg_lo:[0,1] neg_hi:[0,1]'
            if u == 0: ck[u] += f'\nv_pk_mul_f32 v[6:7], {P(r)}, {P(r)}'
            else: ck[u] += f'\nv_pk_add_f32 v[4:5], {P(X) if u == 1 else "v[4:5]"}, {P(r)}\nv_pk_fma_f32 v[6:7], {P(r)}, {P(r)}, v[6:7]'
        s.poll(ld5(X, 4), (ck, t), warmable=True)
        s.stamp(5)
        fill = [f'v_pk_mul_f32 {P(X+4*u)}, {P(X+4*u)}, {P(C1+4*u)}' for u in range(5)]
        s('v_add_f32 v4, v4, v5\nv_add_f32 v6, v6, v7'); s(fill.pop(0))
        s('v_permlane32_swap_b32 v4, v6\nv_add_f32 v4, v4, v6')
        s.red16('v_add_f32', [4], fill=fill); s.swapred('v_add_f32', 4, 5, 16)
        s('v_mul_f32 v4, s10, v4\nv_mov_b32 v6, v4\nv_permlane32_swap_b32 v4, v6')
        s('v_fma_f32 v6, -v4, v4, v6\nv_max_f32 v6, 0, v6\nv_add_f32 v6, v6, v68\nv_rsq_f32 v6, v6')
        for u in range(5): s(f'v_pk_fma_f32 {P(X+4*u)}, {P(C1+4*u)}, v[4:5], {P(X+4*u)} op_sel_hi:[1,0,1] neg_lo:[0,1,0] neg_hi:[0,1,0]')
        for u in range(5):
            r = X + 4 * u
            s(f'v_pk_fma_f32 {P(r)}, {P(r)}, v[6:7], {P(SB+4*u)} op_sel_hi:[1,0,1]\nv_cvt_pk_bf16_f32 v{r}, v{r}, v{r+1}')
            if u & 1: s(f'ds_write2st64_b32 v2, v{r-4}, v{r} offset0:{u-1} offset1:{u}')
        s(f'ds_write_b32 v2, v{X+16} offset:1024')
        s.warmret('L_wLN')
        s('s_waitcnt lgkmcnt(0)')
        s.stamp(3)
        s('s_barrier')
        s.end()
        s('L_s23:')
        s.role(3, 'L_exit', False)
        s('s_barrier\ns_branch L_D')
        s.end()

    def ldswait(s, at, v, slp=1):
        l = s.lab('lw')
        s(f'v_mov_b32 v{v}, {at}\ns_mov_b32 s{SPIN}, {s.o["spin"]}\n{l}:\ns_sleep {slp}\nds_read_b32 v{v+1}, v{v}\ns_sub_u32 s{SPIN}, s{SPIN}, 1\ns_waitcnt lgkmcnt(0)')
        s(f'v_readfirstlane_b32 s10, v{v+1}\ns_cselect_b32 s10, 1, s10\ns_cmp_eq_u32 s10, 1\ns_cbranch_scc0 {l}')
    def waitprog(s, n, v, slp=None):
        l = s.lab('prog')
        s(f'v_mov_b32 v{v}, 0\ns_mov_b32 s{SPIN}, {s.o["spin"]}\n{l}:\ns_sleep {slp or s.o["mlslp"]}\nds_read_b32 v{v+1}, v{v} offset:{LPRG}\ns_sub_u32 s{SPIN}, s{SPIN}, 1\ns_waitcnt lgkmcnt(0)')
        s(f'v_readfirstlane_b32 s4, v{v+1}\ns_cselect_b32 s4, 999, s4\ns_cmp_lt_u32 s4, {n}\ns_cbranch_scc1 {l}')
    def idpoll(s, slp):
        l = s.lab('gotid')
        if s.o['xab']:
            s(f's_add_u32 s7, s5, {W_XL - W_XC}')
            s.poll([f'buffer_load_dwordx2 v[4:5], v1, {WSR}, s7 offen sc1'], s.ck_tag([[5]], 6), slp=slp, spin=s.o['xab'])
            s(f's_cbranch_vccz {l}')
        s.poll([f'buffer_load_dwordx2 v[4:5], v1, {WSR}, s5 offen sc1'], s.ck_tag([[5]], 6), slp=slp)
        s(f'{l}:')

    def caddr(s):
        s(f's_bitcmp1_b32 s{S_CS}, 0\ns_cselect_b64 s[{RA}:{RA+1}], s[{P_U}:{P_U+1}], s[{P_G}:{P_G+1}]\ns_mov_b32 s{RA+2}, {640 * 3072}\ns_mov_b32 s{RA+3}, 0x20000')
        s.swz(3072)
        s(f's_lshr_b32 s5, s{S_CS}, 1\ns_lshl_b32 s5, s5, 7')
    def swz(s, stride):
        s(f'v_lshrrev_b32 v2, 3, v0\nv_mul_u32_u24 v1, {stride}, v2\nv_and_b32 v2, 2, v2\nv_and_b32 v3, 7, v0\nv_xor_b32 v2, v2, v3\nv_xor_b32 v3, 4, v2')
        s('v_lshl_add_u32 v3, v3, 4, v1\nv_lshl_add_u32 v1, v2, 4, v1')
    def cdma(s, n, lds, F):
        out = []
        for t in range(n):
            out.append(lds(t))
            if F < 60: out.append(f's_waitcnt vmcnt({F - 1})')
            out.append(f'buffer_load_dwordx4 v{3 if t & 1 else 1}, {RAR}, s5 offen {s.o["wflag"]} lds')
            if t < n - 1: out.append(f's_add_u32 s5, s5, {8 * 3072}')
        return '\n'.join(out)

    def crole(s):
        s.cur = 'c'
        o = s.o; E = o['cE']; n = 2 * (10 - E)
        s(f'L_C:\ns_cmp_lt_u32 s{SV}, 4\ns_cbranch_scc0 L_exit')
        BW, A, D = 88, 8, 72
        s.caddr()
        s(f's_mul_i32 s4, s{SV}, {n}\ns_mul_i32 s6, s4, {8 * 3072}\ns_add_u32 s5, s5, s6\ns_lshl_b32 s4, s4, 10\ns_add_u32 s4, s4, {LBIG}')
        s.live('s_barrier\n' + s.cdma(n, lambda t: f's_add_u32 m0, s4, {1024 * t}', 63))
        s.tr_lane(2, 3, 1024, 128)
        s(f'v_bfe_u32 v3, v0, 3, 2\nv_xor_b32 v3, s{SV}, v3\nv_lshl_add_u32 v2, v3, 5, v2\nv_add_u32 v2, {LBIG}, v2\nv_add_u32 v5, 40960, v2')
        s.a_lane(3, 4, HS, 16, LH2)
        s(f's_and_b32 s4, s{S_CS}, 1\ns_mul_i32 s6, s4, 12288\ns_lshr_b32 s5, s{S_CS}, 1\ns_lshl2_add_u32 s5, s5, s{SV}\ns_lshl_b32 s5, s5, 7\ns_add_u32 s6, s6, s5\ns_add_u32 s6, s6, {W_ACT}')
        s(f'v_lshlrev_b32 v1, 3, v0\ns_mov_b32 s7, {hx(-LOG2E)}\nv_mov_b32 v77, s{TAG}\ns_add_u32 s8, s6, {W_AL - W_ACT}')
        s('s_waitcnt vmcnt(0)')
        s.stamp(3)
        s.live('s_barrier')
        for T in range(20):
            for hi in range(2): s(f'ds_read_b64_tr_b16 {P(BW + 4*T + 2*hi)}, v{2 if T < 10 else 5} offset:{4096*(T % 10) + 512*hi}')
        s('s_waitcnt lgkmcnt(0)'); s.live('s_barrier')
        s.stamp(5)
        for T in range(15): s(f'ds_read_b128 {Q4(A+4*T)}, v3 offset:{64*T}')
        for T in range(20):
            s(f's_waitcnt lgkmcnt({min(14, 19 - T)})')
            s.mfma(D, A + 4 * (T % 15), BW + 4 * T, T == 0)
            if T < 5: s(f'ds_read_b128 {Q4(A+4*T)}, v3 offset:{64*(T+15)}')
        l = s.lab('up')
        s(f's_cmp_eq_u32 s4, 1\ns_cbranch_scc1 {l}')
        for op in (f'v_mul_f32 v{{t}}, s7, v{{d}}', 'v_exp_f32 v{t}, v{t}', 'v_add_f32 v{t}, 1.0, v{t}', 'v_rcp_f32 v{t}, v{t}', 'v_mul_f32 v{d}, v{d}, v{t}'):
            for b in range(2): s(op.format(t=D + 2 + b, d=D + b))
        s(f'{l}:\nv_cvt_pk_bf16_f32 v76, v{D}, v{D+1}')
        s.warmret('L_wC')
        st = [f'buffer_store_dwordx2 v[76:77], v1, {WSR}, s6 offen sc1', f'buffer_store_dwordx2 v[76:77], v1, {WSR}, s8 offen']
        s('s_mov_b64 exec, 0xffff\n' + '\n'.join(st[::-1] if o['pfa'] else st))
        s.stamp(6)
        s.end()

    def drole(s):
        s.cur = 'd'
        o = s.o
        s('L_D:')
        BW, A, D = 40, 72, 88
        s(f's_lshl_b32 s4, s{SV}, 13\ns_add_u32 s4, s4, {LBIG}')
        s.srd(RA, P_D, 1536 * 1280); s.srd(RB, P_OUT, 2560); s.rows(1, 2, 2, 1280)
        s(f's_mul_i32 s5, s{SV}, {128 * 1280}\ns_lshl_b32 s6, s{S_DT}, 6\ns_add_u32 s5, s5, s6')
        l = s.lab('have')
        s.live(f's_barrier\ns_cmp_ge_u32 s{SV}, {o["dW"]}\ns_cbranch_scc1 {l}\n' + s.dma(8, 1, RA, 5, 16 * 1280, lambda t: f's_add_u32 m0, s4, {1024 * t}', 63) + f'\n{l}:')
        s.tr_lane(2, 3, 512, 64)
        s('v_add_u32 v2, s4, v2\ns_waitcnt vmcnt(0)')
        s.stamp(3)
        for tt in range(2):
            for T in range(4):
                for hi in range(2): s(f'ds_read_b64_tr_b16 {P(BW + 16*tt + 4*T + 2*hi)}, v2 offset:{2048*T + 256*hi + 32*tt}')
        s(f's_lshl_b32 s4, s{SV}, 9\ns_add_u32 s4, s4, {LACT}\nv_lshl_add_u32 v2, v0, 2, s4')
        s.a_lane(3, 4, 256, 16, 0); s('v_add_u32 v3, s4, v3')
        s(f'v_and_b32 v4, 31, v0\nv_mul_u32_u24 v4, 96, v4\ns_lshl_b32 s4, s{SV}, 2\ns_add_u32 s4, s4, {LDP}\nv_add_u32 v4, s4, v4')
        s(f'v_lshlrev_b32 v1, 4, v0\ns_lshl_b32 s5, s{SV}, 10\ns_add_u32 s5, s5, {W_ACT}')
        s('s_add_u32 s6, s5, 12288')
        if True:
            s(f'v_mov_b32 v5, {LFLAG}\nds_read_b32 v6, v5\ns_lshl_b32 s7, s{SV}, 1\ns_mul_i32 s8, s{S_X}, 3\ns_sub_u32 s7, s7, s8\nv_lshrrev_b32 v5, 5, v0\nv_add_u32 v5, s7, v5\nv_cmp_gt_u32 vcc, 3, v5')
            s(f's_waitcnt lgkmcnt(0)\nv_subrev_u32 v6, 1, v6\nv_mul_u32_u24 v6, {W_AL - W_ACT}, v6\nv_cndmask_b32 v5, 0, v6, vcc\nv_add_u32 v1, v1, v5')
        s(f'v_and_b32 v5, 31, v0\nv_lshlrev_b32 v6, 3, v5\nv_lshrrev_b32 v7, 5, v0')
        lf = s.lab('nofin')
        s(f's_cmp_eq_u32 s{SV}, 0\ns_cbranch_scc0 {lf}')
        s(f's_lshl_b32 s8, s{S_DT}, 8\ns_add_u32 s9, s8, {W_MOD + 5*5120}\ns_add_u32 s8, s8, {W_X1}')
        s(f's_lshl_b32 s10, s{S_X}, 13\ns_add_u32 s8, s8, s10')
        s.poll([f'buffer_load_dwordx2 v[10:11], v6, {WSR}, s9 offen sc1', f'buffer_load_dwordx2 v[8:9], v6, {WSR}, s8 offen sc1'], s.ck_tag([[11], [9]], 12), slp=o['pslp'], warmable=True)
        s('v_lshlrev_b32 v9, 4, v7\nv_lshrrev_b32 v8, v9, v8\nv_lshlrev_b32 v8, 16, v8\nv_lshrrev_b32 v10, v9, v10\nv_lshlrev_b32 v10, 16, v10')
        s(f'{lf}:')
        s(f'v_lshl_add_u32 v6, v5, 1, v7\nv_mul_u32_u24 v6, 48, v6\nv_add_u32 v6, {LDP}, v6')
        s(f'v_mul_u32_u24 v7, 1280, v7\nv_lshl_add_u32 v5, v5, 1, v7\ns_lshl_b32 s8, s{S_DT}, 6')
        if o['otouch']: s(f'buffer_load_dword v30, v5, {RBR}, s8 offen')
        s.live('s_barrier')
        ck, t = s.ck_tag([[17, 19], [21, 23]], 12)
        for k in range(2):
            for r in (16 + 4 * k, 18 + 4 * k): ck[k] += f'\nv_and_b32 v{r+1}, 0xffff0000, v{r}\nv_lshlrev_b32 v{r}, 16, v{r}'
        s.poll([f'buffer_load_dwordx4 {Q4(16+4*k)}, v1, {WSR}, s{5+k} offen sc1' for k in range(2)], (ck, t), warmable=True)
        s.stamp(5)
        s('v_pk_mul_f32 v[16:17], v[16:17], v[20:21]\nv_pk_mul_f32 v[18:19], v[18:19], v[22:23]\nv_cvt_pk_bf16_f32 v16, v16, v18\nv_cvt_pk_bf16_f32 v17, v17, v19')
        s('ds_write2st64_b32 v2, v16, v17 offset0:0 offset1:1\ns_waitcnt lgkmcnt(0)')
        for T in range(4): s(f'ds_read_b128 {Q4(A+4*T)}, v3 offset:{64*T}')
        for T in range(4):
            s(f's_waitcnt lgkmcnt({3-T})')
            for tt in range(2): s.mfma(D + 4 * tt, A + 4 * T, BW + 16 * tt + 4 * T, T == 0)
        for b in range(2): s(f'v_mov_b32_dpp v{D+b}, v{D+4+b} quad_perm:[0,1,2,3] row_mask:0xa bank_mask:0xf')
        s(f'ds_write2_b32 v4, v{D}, v{D+1} offset0:0 offset1:12\ns_waitcnt lgkmcnt(0)'); s.stamp(1); s.live('s_barrier'); s.stamp(2)
        s(f's_cmp_eq_u32 s{SV}, 0\ns_cbranch_scc0 L_exit')
        for k in range(3): s(f'ds_read_b128 {Q4(16+4*k)}, v6 offset:{16*k}')
        s('s_waitcnt lgkmcnt(1)\nv_pk_add_f32 v[16:17], v[16:17], v[18:19]\nv_pk_add_f32 v[20:21], v[20:21], v[22:23]\nv_pk_add_f32 v[16:17], v[16:17], v[20:21]')
        s('s_waitcnt lgkmcnt(0)\nv_pk_add_f32 v[24:25], v[24:25], v[26:27]\nv_pk_add_f32 v[16:17], v[16:17], v[24:25]\nv_add_f32 v16, v16, v17')
        s('v_fma_f32 v16, v16, v10, v8\nv_mov_b32_dpp v17, v16 quad_perm:[1,1,3,3] row_mask:0xf bank_mask:0xf\nv_cvt_pk_bf16_f32 v16, v16, v17')
        s.warmret('L_wD')
        s(f's_mov_b32 exec_lo, 0x55555555\ns_mov_b32 exec_hi, 0x55555555\nbuffer_store_dword v16, v5, {RBR}, s8 offen {o["oflag"]}')
        s.stamp(6)
        s(f's_cmp_eq_u32 s{S_DT}, 0\ns_cbranch_scc0 L_exit')
        s(f's_mov_b64 exec, 1\nv_mov_b32 v17, s{TAG}\nv_mov_b32 v18, 0\nbuffer_store_dword v17, v18, {WSR}, 0 offen {o["oflag"]}')
        if o['diag']:
            s(f'L_diag:\ns_memrealtime s[76:77]\ns_waitcnt lgkmcnt(0)\ns_sub_u32 s76, s76, s78\ns_cmp_lt_u32 s76, {o["diag"]}\ns_cbranch_scc1 L_diag')

    def exit(s):
        s('L_exit:')
        if s.o['stamps']:
            s('s_waitcnt vmcnt(0)')
            s.stamp(7, True)
            if s.o['stamps'] == 3: s(f's_memtime s[{ST0+12}:{ST0+13}]')
            s('s_mov_b64 exec, 1\ns_waitcnt lgkmcnt(0)')
            s(f's_mul_i32 s4, s2, 12\ns_add_u32 s4, s4, s3\ns_lshl_b32 s4, s4, 6\ns_add_u32 s4, s4, {W_STAMP}\nv_mov_b32 v1, 0')
            for k in range(4):
                for e in range(4): s(f'v_mov_b32 v{4+4*k+e}, s{ST0+4*k+e}')
                s(f'buffer_store_dwordx4 {Q4(4+4*k)}, v1, {WSR}, s4 offen offset:{16*k}')
        s('L_end:\ns_endpgm')

    def build(s):
        s.entry(); s.stream()
        for _ in range(s.o['shift']): s('s_endpgm')
        s('L_service:')
        s('; ---- the flags, counters and hints in LDS start out clear (complete at the wait for the arguments, before the first barrier)')
        s(f'v_and_b32 v1, 15, v0\nv_cmp_eq_u32 vcc, {(LMODE - LFLAG) // 4}, v1\nv_mov_b32 v2, 999\nv_lshlrev_b32 v1, 2, v1\nv_cndmask_b32 v2, 0, v2, vcc\nds_write_b32 v1, v2 offset:{LFLAG}')
        s.roles()
        s('s_cmp_eq_u32 s3, 9\ns_cbranch_scc1 L_s1\ns_cmp_eq_u32 s3, 10\ns_cbranch_scc1 L_s2\ns_cmp_eq_u32 s3, 11\ns_cbranch_scc1 L_s3')
        s.s0(); s.bgather(); s('L_s1:'); s.s1(); s('L_s2:'); s.s2(); s('L_s3:'); s.s3(); s.crole(); s.drole(); s.exit()
        body, n = pad(s.L)
        out = [HEADER.rstrip(), f'; @launch grid=(256,1,1) block=(768,1,1) lds={LEND}', '.amdgcn_target "amdgcn-amd-amdhsa--gfx950"', '.text',
               f'.globl {KN}', '.p2align 8', f'.type {KN},@function', f'{KN}:']
        out += [l if l.endswith(':') or l.startswith(';') else '    ' + l for l in body]
        out += ['.section .rodata,"a"', '.p2align 6', f'.amdhsa_kernel {KN}', '  .amdhsa_next_free_vgpr 168', '  .amdhsa_next_free_sgpr 96',
                '  .amdhsa_accum_offset 168', '  .amdhsa_group_segment_fixed_size 0', '  .amdhsa_kernarg_size 112', '  .amdhsa_user_sgpr_count 2',
                '  .amdhsa_user_sgpr_kernarg_segment_ptr 1', '  .amdhsa_system_sgpr_workgroup_id_x 1', '  .amdhsa_float_denorm_mode_32 3', '.end_amdhsa_kernel']
        return '\n'.join(out) + '\n', n

if __name__ == '__main__':
    names = []
    for spec in sys.argv[1:]:
        kw = {}
        name, _, rest = spec.partition(':')
        for kv in filter(None, rest.split(',')):
            k, v = kv.split('=')
            kw[k] = int(v) if v.isdigit() else v.replace('+', ' ').replace('_', '')
        t, n = G(**kw).build()
        open(name, 'w').write(t)
        names.append(name)
    print(' '.join(names))
```

```python
import sys, struct
from asmlib import pad
KN = 'adaLN_cond__gqa_block_cached__swiglu_ffn__decode_kernel'

def f2u(x): return struct.unpack('<I', struct.pack('<f', x))[0]
def hx(x): return hex(f2u(x))
LOG2E = 1.4426950408889634
W_E, W_PG, W_MOD, W_XL, W_XC, W_ACT = 0, 0x800, 0x1000, 0x2000, 0x9000, 0xA000
W_X1, W_GL, W_AL, W_YL, W_Y, W_ATT, W_ML, W_MP, W_QP, W_END = 0x10000, 0x20000, 0x28000, 0x30000, 0x58000, 0x80000, 0x180000, 0x1A0000, 0x1E0000, 0x260000
W_STAMP = 512 << 20
LQ, LFLAG, LPRG, LMODE, LQF, LGO, LCNT, LXS, LHS, LO, LH2, LPO, LBIG = 0, 1536, 1544, 1552, 1556, 1560, 1568, 1664, 2304, 2816, 6144, 9216, 58368
LYO = LXS
LACT, LDP = LPO, LPO + 6144
OS = 768 + 64
HS = 1280 + 64
LM, LWQ, LB, LEND = LBIG, LBIG + 20480, LBIG + 51200, LBIG + 100352
P_X, P_K, P_V, P_WQ, P_WO, P_BX, P_G, P_U, P_D, P_C, P_WM, P_OUT, P_DBG, P_WS = range(16, 44, 2)
TAG, S_H, S_J, S_R, S_X, S_IDX, LOC, S_CS = 44, 45, 46, 47, 48, 49, 50, 51
WS = 52; RA = 56; RB = 60
S_ROLE = 15
S_DT = 14
SPIN = 13
SV = 12
ST0 = 80
WSR = f's[{WS}:{WS+3}]'; RAR = f's[{RA}:{RA+3}]'; RBR = f's[{RB}:{RB+3}]'
P = lambda r: f'v[{r}:{r+1}]'
Q4 = lambda r: f'v[{r}:{r+3}]'


HEADER = """; Kernarg layout for this problem (112 bytes, ptrs only, base s[0:1]):
;
"""

class G:
    def __init__(s, **o):
        s.o = dict(F=3, NPF=12, RC=3, endF=5, endN=6, rot=6, wflag='nt', sflag='nt', spin=1 << 22, pslp=8, mlslp=32,
                   qF=63, mF=63, bF=1, cF=1, dF=1, cE=3, dE=3, bE=0, bEF=2, bonus=1, ord='0123', ordk='2301', wst=0, wF=3, up=1, upF=63, F0=3, N0=0, upe=0, qfirst=1, mfirst=1, fw=11, dslp=8, agate=0, adel=0, prio=0, bD=24, btrig=192, ball=8, bfl=1, cL=0, dL=0, Fm=3, Flom=2, far=0, emu=0, emin=6, emin2=3, shift=0, rown=1, pfy=0, pfa=0, rg=4, dg=1, rmiss=0, otouch=0, eg0=16, st0=112, qlight=0, glight=0, gmap=1, sep=0, dW=9, eg=182, xab=6, oflag='', warm=1, loc=1,
                   bal=1, stat1=130, cstep=8, bdel=20, n1=11, cstep2=6, bdel2=17, c0=6, bslp=12, Flo=2, bend=183,
                   stamps=0, stk='', phst=0, remap=0, diag=0, nox='')
        s.o.update(o); s.L = []; s.uid = 0; s.cur = '?'
    def __call__(s, t):
        for l in t.split('\n'):
            l = l.strip()
            if l: s.L.append(l)
    def lab(s, n): s.uid += 1; return f'L_{n}_{s.uid}'
    def srd(s, d, ptr, size):
        s(f's_mov_b32 s{d}, s{ptr}\ns_mov_b32 s{d+1}, s{ptr+1}\ns_mov_b32 s{d+2}, {size}\ns_mov_b32 s{d+3}, 0x20000')
    def stamp(s, k, lite=False):
        if s.o['stamps'] == 4 and k not in (0, 7): return
        if s.o['stamps'] == 1 or (s.o['stamps'] and (lite or str(k) + s.cur in s.o['stk'])): s(f's_memrealtime s[{ST0+2*k}:{ST0+2*k+1}]')
    def bf16r(s, d, src=None):
        src = d if src is None else src
        s(f'v_cvt_pk_bf16_f32 v{d}, v{src}, v{src}\nv_and_b32 v{d}, 0xffff0000, v{d}')
    def dppop(s, op, v, ctl): s(f'{op}_dpp v{v}, v{v}, v{v} {ctl} row_mask:0xf bank_mask:0xf')
    def red16(s, op, vs, skip1=False, fill=None):
        for ctl in (['quad_perm:[1,0,3,2]'] if not skip1 else []) + ['quad_perm:[2,3,0,1]', 'row_half_mirror', 'row_mirror']:
            if fill:
                for _ in range(2):
                    if fill: s(fill.pop(0))
            for v in vs: s.dppop(op, v, ctl)
    def swapred(s, op, v, t, w, fill=None):
        s(f'v_mov_b32 v{t}, v{v}')
        if fill:
            for _ in range(2):
                if fill: s(fill.pop(0))
        s(f'v_permlane{w}_swap_b32 v{v}, v{t}\n{op} v{v}, v{v}, v{t}')
    def live(s, text):
        if not s.o['warm']: s(text); return
        l = s.lab('lv'); s(f's_cbranch_execz {l}'); s(text); s(f'{l}:')
    def warm(s, entry, ret):
        if not s.o['warm']: return
        for r in range(1, 8): s(f'v_mov_b32 v{r}, 0')
        s(f's_mov_b64 exec, 0\ns_branch {entry}\n{ret}:\ns_mov_b64 exec, -1')
    def warmret(s, ret):
        if s.o['warm']: s(f's_cbranch_execz {ret}')
    def ck_tag(s, groups, t):
        out = []; first = True
        for g in groups:
            l = []
            for r in g:
                l.append(f'v_xor_b32 v{t}, s{TAG}, v{r}' if first else f'v_bitop3_b32 v{t}, v{r}, s{TAG}, v{t} bitop3:0xbe'); first = False
            out.append('\n'.join(l))
        return out, t
    def ck_xor(s, bases, n, t, t2):
        out = []
        for i, b in enumerate(bases):
            l = [f'v_bitop3_b32 v{t2}, v{b}, v{b+1}, v{b+2} bitop3:0x96']
            if n == 3: l.append(f'v_xor_b32 v{t2}, v{t2}, v{b+3}')
            l.append(f'v_xor_b32 v{t}, s{TAG}, v{t2}' if i == 0 else f'v_bitop3_b32 v{t}, v{t2}, s{TAG}, v{t} bitop3:0xbe')
            out.append('\n'.join(l))
        return out, t
    def poll(s, loads, ck, slp=0, warmable=False, nm='?', slpif=None, spin=None, pre=None):
        if nm in s.o['nox']: return
        checks, t = ck
        a = s.lab('poll'); b = s.lab('ok')
        s(f's_mov_b32 s{SPIN}, {spin or s.o["spin"]}')
        c0 = s.lab('chk')
        if pre: s('\n'.join(loads)); s(pre); s(f's_branch {c0}')
        s(f'{a}:')
        (s.live if warmable else s)('\n'.join(loads))
        if pre: s(f'{c0}:')
        for i, c in enumerate(checks): s(f's_waitcnt vmcnt({len(loads) - 1 - i})'); s(c)
        s(f'v_cmp_ne_u32 vcc, 0, v{t}\ns_cbranch_vccz {b}')
        if slpif: c = s.lab('ns'); s(f'{slpif}\ns_cbranch_scc1 {c}\ns_sleep {s.o["mlslp"]}\n{c}:')
        if slp: s(f's_sleep {slp}')
        s(f's_sub_u32 s{SPIN}, s{SPIN}, 1\ns_cbranch_scc0 {a}\n{b}:')
    def gather(s, loads, cks, sm, slp=0, nm='?'):
        if nm in s.o['nox']: return
        n = len(loads); a = s.lab('gat'); b = s.lab('ok')
        s(f's_mov_b32 s{SPIN}, {s.o["spin"]}\ns_mov_b32 s{sm}, {(1 << n) - 1}\n{a}:')
        for k in range(n):
            l = s.lab('sk'); s(f's_bitcmp1_b32 s{sm}, {k}\ns_cbranch_scc0 {l}\n{loads[k]}\n{l}:')
        s(f's_mov_b32 s{sm}, 0\ns_waitcnt vmcnt(0)')
        for k in reversed(range(n)):
            s(cks[k][0][0]); s(f'v_cmp_ne_u32 vcc, 0, v{cks[k][1]}\ns_cmp_lg_u64 vcc, 0\ns_addc_u32 s{sm}, s{sm}, s{sm}')
        s(f's_cmp_eq_u32 s{sm}, 0\ns_cbranch_scc1 {b}')
        if slp: s(f's_sleep {slp}')
        s(f's_sub_u32 s{SPIN}, s{SPIN}, 1\ns_cbranch_scc0 {a}\n{b}:')
    def gstore(s, stores, nm='?'):
        if nm in s.o['nox']: return
        a = s.lab('pl'); b = s.lab('st')
        s(f's_cmp_eq_u32 s{LOC}, 1\ns_cbranch_scc1 {a}')
        for t in stores: s(t + ' sc1')
        s(f's_branch {b}\n{a}:')
        for t in stores: s(t)
        s(f'{b}:')
    def getloc(s, t, spin=True, at=LFLAG):
        a = s.lab('loc'); b = s.lab('locok')
        if spin: s(f's_mov_b32 s{SPIN}, {s.o["spin"] * 8}\n{a}:')
        s(f'v_mov_b32 v{t}, {at}\nds_read_b32 v{t}, v{t}\ns_waitcnt lgkmcnt(0)\nv_readfirstlane_b32 s{LOC}, v{t}\ns_sub_u32 s{LOC}, s{LOC}, 1')
        if spin: s(f's_cmp_le_u32 s{LOC}, 1\ns_cbranch_scc1 {b}\ns_sleep 1\ns_sub_u32 s{SPIN}, s{SPIN}, 1\ns_cbranch_scc0 {a}\n{b}:')
    def dma(s, n, voff, srd, soff, sstep, lds, F):
        out = []
        for t in range(n):
            st = sstep(t) if callable(sstep) else sstep
            out.append(lds(t) if callable(lds) else f's_mov_b32 m0, {lds + 1024 * t}')
            if F < 60: out.append(f's_waitcnt vmcnt({F - 1})')
            out.append(f'buffer_load_dwordx4 v{voff}, s[{srd}:{srd+3}], s{soff} offen {s.o["wflag"]} lds')
            if t < n - 1: out.append(f's_add_u32 s{soff}, s{soff}, {st}')
        return '\n'.join(out)
    def rows(s, d, t, sh, stride):
        s(f'v_lshrrev_b32 v{d}, {sh}, v0\nv_mul_u32_u24 v{d}, {stride}, v{d}\nv_and_b32 v{t}, {(1 << sh) - 1}, v0\nv_lshl_add_u32 v{d}, v{t}, 4, v{d}')
    def tr_lane(s, d, t, gs, rs):
        s(f'v_lshrrev_b32 v{d}, 4, v0\nv_mul_u32_u24 v{d}, {gs}, v{d}')
        s(f'v_bfe_u32 v{t}, v0, 2, 2\nv_mul_u32_u24 v{t}, {rs}, v{t}\nv_add_u32 v{d}, v{d}, v{t}')
        s(f'v_and_b32 v{t}, 3, v0\nv_lshl_add_u32 v{d}, v{t}, 3, v{d}')
    def a_lane(s, d, t, bs, gs, base):
        s(f'v_and_b32 v{d}, 1, v0\nv_mul_u32_u24 v{d}, {bs}, v{d}\nv_lshrrev_b32 v{t}, 4, v0\nv_mul_u32_u24 v{t}, {gs}, v{t}')
        s(f'v_add_u32 v{d}, v{d}, v{t}')
        if base: s(f'v_add_u32 v{d}, {base}, v{d}')
    def mfma(s, d, a, b, first, k=32):
        n = 4 if k == 32 else 2
        s(f'v_mfma_f32_16x16x{k}_bf16 v[{d}:{d+3}], v[{a}:{a+n-1}], v[{b}:{b+n-1}], ' + ('0' if first else f'v[{d}:{d+3}]'))
    def role(s, bit, label, ifset=True): s(f's_bitcmp1_b32 s{S_ROLE}, {bit}\ns_cbranch_scc{1 if ifset else 0} {label}')
    def end(s): s('s_branch L_exit' if s.o['stamps'] in (1, 2) else 's_endpgm')
    def ghead(s, d):
        if s.o['gmap']: s(f's_lshr_b32 s{d}, s2, 7\ns_lshl3_add_u32 s{d}, s{d}, s{S_X}')
        else: s(f's_lshr_b32 s{d}, s{S_H}, 1')
    def tagwait(s): s(f's_waitcnt lgkmcnt(0)\ns_add_u32 s{TAG}, s{TAG}, 0x9e3779b1')

    def entry(s):
        o = s.o
        s(f's_cmp_ge_u32 s2, 256\ns_cbranch_scc1 L_end')
        s.stamp(0, True)
        s('s_load_dwordx16 s[16:31], s[0:1], 0\ns_load_dwordx8 s[32:39], s[0:1], 64\ns_load_dwordx4 s[40:43], s[0:1], 96')
        if o['diag']: s('s_memrealtime s[78:79]')
        s('v_readfirstlane_b32 s3, v0\nv_and_b32 v0, 63, v0')
        if o['remap']: s('s_lshr_b32 s4, s2, 3\ns_and_b32 s4, s4, 7\ns_xor_b32 s2, s2, s4')
        s(f's_and_b32 s{S_X}, s2, 7\ns_lshr_b32 s4, s2, 6\ns_bfe_u32 s{S_J}, s2, 0x30003\ns_lshl2_add_u32 s{S_H}, s{S_X}, s4\ns_lshr_b32 s3, s3, 6')
        s('s_cmp_ge_u32 s3, 8\ns_cbranch_scc1 L_service')

    def roles(s):
        o = s.o
        for k in range(1, 8): s.stamp(k, True)
        s(f's_lshr_b32 s{S_IDX}, s2, 3\ns_lshr_b32 s11, s2, 6')
        lb = s.lab('nonB'); lr = s.lab('roles')
        s(f's_mov_b32 s{S_DT}, 0\ns_mov_b32 s{SV}, s3')
        s(f's_cmp_lt_u32 s{S_J}, 5\ns_cbranch_scc0 {lb}')
        if o['rown']:
            s(f's_and_b32 s9, s11, 1\ns_mul_i32 s{S_CS}, s9, 5\ns_add_u32 s{S_CS}, s{S_CS}, s{S_J}\ns_and_b32 s9, s11, 2\ns_lshl2_add_u32 s{S_CS}, s{S_CS}, s9\ns_and_b32 s9, s3, 1\ns_add_u32 s{S_CS}, s{S_CS}, s9')
        else: s(f's_mul_i32 s{S_CS}, s11, 5\ns_add_u32 s{S_CS}, s{S_CS}, s{S_J}\ns_lshl_b32 s{S_CS}, s{S_CS}, 1\ns_and_b32 s9, s3, 1\ns_add_u32 s{S_CS}, s{S_CS}, s9')
        s(f's_mov_b32 s{S_ROLE}, 1\ns_branch {lr}')
        s(f'{lb}:')
        s(f's_mul_i32 s8, s11, 3\ns_add_u32 s8, s8, s{S_J}\ns_sub_u32 s8, s8, 5')
        s(f's_mul_i32 s{S_CS}, s{S_X}, 6\ns_add_u32 s{S_CS}, s{S_CS}, s8')
        s(f's_add_u32 s9, s8, 10\ns_and_b32 s9, s9, 14\ns_lshl_b32 s10, s9, 2\ns_add_u32 s10, s10, s{S_X}')
        s(f's_lshl_b32 s{S_DT}, s10, 1\ns_and_b32 s9, s8, 1\ns_add_u32 s{S_DT}, s{S_DT}, s9')
        s(f's_cmp_lt_u32 s10, 10\ns_cselect_b32 s{S_ROLE}, 8, 0')
        s(f's_cmp_lt_u32 s8, 6\ns_cselect_b32 s{S_ROLE}, 2, s{S_ROLE}')
        s(f'{lr}:')
        s('s_waitcnt lgkmcnt(0)')
        s(f's_load_dword s{TAG}, s[{P_WS}:{P_WS+1}], 0')
        s.srd(WS, P_WS, 805306368 if o['stamps'] else W_END)

    def stream(s):
        s.cur = 'w'
        o = s.o; F = o['F']; NPF = o['NPF']
        VK, QA, ACC, TS, MX = 1, 4, 16, 2, 3
        RING = 24
        SC = RING
        T1, T2, LS, PPT = RING + 8, RING + 9, RING + 10, RING + 11
        MK = RING + 12
        VV, BP, PP2, T3 = RING + 16, RING + 17, RING + 18, RING + 19
        ML = RING + 20
        RET = 7
        BM, BA, BZ = RING + 24, RING + 25, RING + 26
        A2 = []
        s(f'v_bfe_u32 v{VK}, v0, 1, 3\nv_mul_u32_u24 v{VK}, 384, v{VK}\nv_lshrrev_b32 v2, 4, v0\nv_lshl_add_u32 v{VK}, v2, 5, v{VK}')
        s(f'v_and_b32 v2, 1, v0\nv_lshl_add_u32 v{VK}, v2, 4, v{VK}')
        PD = 16 * 3145728; STEP = 393216; OV = [int(c) for c in str(o['ord']).zfill(4)]
        OD = [int(c) for c in str(o['ordk'] or o['ord']).zfill(4)] + OV
        s(f's_bfe_u32 s7, s2, 0x40003\ns_lshl3_add_u32 s7, s7, s3\ns_mul_i32 s4, s7, 3072'); s.ghead(10)
        s(f's_mul_i32 s5, s10, 3145728\ns_add_u32 s4, s4, s5\ns_add_u32 s4, s4, {OD[0] * PD}\ns_add_u32 s6, s4, 3145728')
        s(f's_mul_i32 s5, s10, {o["rot"]}\ns_and_b32 s5, s5, 7\ns_mul_i32 s5, s5, {STEP}\ns_add_u32 s5, s5, s4')
        s(f's_mov_b32 s{RA+2}, 201326592\ns_mov_b32 s{RA+3}, 0x20000\ns_waitcnt lgkmcnt(0)\ns_mov_b64 s[{RA}:{RA+1}], s[{P_K}:{P_K+1}]')
        def emu(both=True):
            if o['emu']:
                s(f's_cmp_ge_u32 s4, {43 * 3145728}\ns_cselect_b64 s[{RA}:{RA+1}], s[{P_BX}:{P_BX+1}], s[{P_K}:{P_K+1}]')
                if both: s(f's_cselect_b64 s[{RB}:{RB+1}], s[{P_DBG}:{P_DBG+1}], s[{P_V}:{P_V+1}]')
        emu(False)
        NL = 192
        quad = {}; free = list(range(3 * NPF)); vm = []
        done = [0]
        def wait(n):
            if len(vm) - done[0] > n:
                s(f's_waitcnt vmcnt({n})'); done[0] = len(vm) - n
        def issue(u):
            wait((o['endF'] if u >= NL - o['endN'] else o['F0'] if u < o['N0'] else o['Fm'] if OD[u // 24] == 2 else F) - 1)
            if o['bal'] and 3 * NPF + 9 <= u < NL - o['endN']:
                l = s.lab('th'); s(f's_cbranch_vccz {l}\ns_waitcnt vmcnt({(o["Flom"] if OD[u // 24] == 2 else o["Flo"]) - 1})')
                if o['far']: s(f's_cmp_eq_u64 s[72:73], 0\ns_cbranch_scc1 {l}\ns_waitcnt vmcnt(0)')
                s(f'{l}:')
            q = free.pop(0); quad[u] = q; r = RING + 4 * q
            srd, vo = (RAR, VK) if u < 96 else (RBR, VV)
            s(f'buffer_load_dwordx4 {Q4(r)}, v{vo}, {srd}, s5 offen offset:{128 * (u % 3)} {o["sflag"]}')
            vm.append(u)
            if o['ball'] and u == o['btrig'] - 1: s(f's_mov_b64 exec, 1\nv_mov_b32 v{T2}, 1\nds_add_u32 v{BZ}, v{T2} offset:{LCNT + 12}\ns_mov_b64 exec, -1')
            if u % 3 == 2 and u < NL - 1:
                s(f's_add_u32 s5, s5, {STEP}\ns_cmp_ge_u32 s5, s6\ns_cselect_b32 s5, s4, s5')
                if u % 24 == 23:
                    t = u // 24; dl = OD[t + 1] - OD[t]
                    for r in (4, 5, 6): s(f's_{"add" if dl > 0 else "sub"}_u32 s{r}, s{r}, {abs(dl) * PD}')
                    emu()
                if o['phst'] == 1 and u % 48 == 47: s.stamp({47: 3, 95: 5, 143: 6}[u], True)
                if o['phst'] == 2 and u in (95, 119, 143): s.stamp({95: 3, 119: 5, 143: 6}[u], True)
            if u >= 3 * NPF + 3:
                if u >= 3 * NPF + 6:
                    s('s_waitcnt lgkmcnt(0)')
                    if o['far']: s(f'v_cmp_gt_u32 vcc, {u + 1 - o["far"]}, v{BM}\ns_mov_b64 s[72:73], vcc')
                    s(f'v_cmp_gt_u32 vcc, {u + 1}, v{BM}')
                s(f'v_mov_b32 v{BM}, {u + 1}\nds_write_b32 v{BA}, v{BM} offset:{LPRG}\nds_read_b32 v{BM}, v{BZ} offset:{LMODE}')
        def ready(u): return u in vm and vm.index(u) < done[0]
        def kpost(g):
            a = ACC + 4 * (g & 1); sc = SC + (g >> 2)
            s(f'v_cndmask_b32_e64 v{TS}, v{a}, v{a+1}, s[8:9]')
            s(f'v_add_f32_dpp v{sc}, v{TS}, v{TS} quad_perm:[1,0,3,2] row_mask:{1 << (g & 3)} bank_mask:0xf')
            if g & 3 == 3:
                s.bf16r(sc); s(f'v_mul_f32 v{sc}, {hx(192 ** -0.5)}, v{sc}'); s.bf16r(sc)
            if g & 7 == 7:
                a = sc - 1; row = f'quad_perm:[0,1,2,3] row_mask:{1 << OV.index(OD[g >> 3])} bank_mask:0xf'
                s(f'v_max_f32 v{MX}, v{a}, v{a+1}')
                s.red16('v_max_f32', [MX], skip1=True); s.swapred('v_max_f32', MX, T1, 16); s.swapred('v_max_f32', MX, T1, 32)
                s(f's_mov_b32 s10, {hx(LOG2E)}\nv_mul_f32 v{T1}, s10, v{MX}')
                for k in range(2): s(f'v_fma_f32 v{a+k}, v{a+k}, s10, -v{T1}')
                for k in range(2): s(f'v_exp_f32 v{a+k}, v{a+k}')
                s(f'v_mov_b32_dpp v{ML}, v{MX} {row}\nv_add_f32 v{LS}, v{a}, v{a+1}')
                for k in range(2): s(f'v_cvt_pk_bf16_f32 v{a+k}, v{a+k}, v{a+k}')
                s.red16('v_add_f32', [LS], skip1=True); s.swapred('v_add_f32', LS, T1, 16); s.swapred('v_add_f32', LS, T1, 32)
                s(f'v_mov_b32_dpp v{ML+1}, v{LS} {row}')
        def bperm(g):
            s(f'ds_bpermute_b32 v{PPT if g & 1 == 0 else PP2}, v{BP}, v{SC + 2 * OD.index(OV[g >> 3]) + (g >> 2 & 1)} offset:{64 * (g & 3)}')
        def switch():
            s.stamp(3)
            bperm(0)
            s(f'v_bitop3_b32 v{ML+2}, v{ML}, v{ML+1}, s{TAG} bitop3:0x96\nv_lshlrev_b32 v{ML+3}, 7, v0')
            s(f's_lshr_b32 s10, s{S_H}, 1\ns_lshl_b32 s10, s10, 9\ns_add_u32 s10, s10, s7\ns_lshl_b32 s10, s10, 4\ns_add_u32 s10, s10, {W_ML}')
            s('s_mov_b32 exec_lo, 0x00010001\ns_mov_b32 exec_hi, 0x00010001')
            s.gstore([f'buffer_store_dwordx4 {Q4(ML)}, v{ML+3}, {WSR}, s10 offen'])
            s('s_mov_b64 exec, -1')
            vm.append(None)
            s(f'v_lshrrev_b32 v{T1}, 5, v0\nv_mul_u32_u24 v{T1}, 768, v{T1}\nv_and_b32 v{T2}, 7, v0\nv_lshl_add_u32 v{T1}, v{T2}, 5, v{T1}')
            s(f'v_and_b32 v{T2}, 16, v0\nv_add_u32 v{T1}, v{T1}, v{T2}\ns_mul_i32 s10, s3, 1536\ns_add_u32 s10, s10, {LPO}\nv_add_u32 v{T1}, s10, v{T1}')
        def outp(acc, b):
            s('s_mov_b32 exec_lo, 0x00ff00ff\ns_mov_b32 exec_hi, 0xff00ff00')
            for jj in range(3): s(f'ds_write_b128 v{T1}, {Q4(acc[jj])} offset:{256*jj + 12288*b}')
            s('s_mov_b64 exec, -1')
        def proc(u):
            g, jj = divmod(u, 3)
            if g >= 32 and jj == 0:
                a = ACC + 4 * (g & 1)
                s('s_waitcnt lgkmcnt(0)')
                for k in range(4): s(f'v_and_b32 v{a+k}, v{PPT if g & 1 == 0 else PP2}, v{MK+k}')
                if g < 63: bperm(g - 31)
            wait(len(vm) - 1 - vm.index(u))
            r = RING + 4 * quad[u]
            if g < 32:
                s.mfma(ACC + 4 * (g & 1), QA + 4 * jj, r, jj == 0)
                if jj == 2 and g > 0: kpost(g - 1)
                if u == 5:
                    s(f'v_lshrrev_b32 v{BP}, 3, v0\nv_mul_u32_u24 v{VV}, 384, v{BP}\nv_lshlrev_b32 v{BP}, 3, v{BP}')
                    s(f'v_and_b32 v{T3}, 7, v0\nv_lshl_add_u32 v{VV}, v{T3}, 4, v{VV}')
                    s(f'v_and_b32 v{PP2}, 1, v0\nv_lshlrev_b32 v{PP2}, 4, v{PP2}\nv_mov_b32 v{MK}, 0xffff\nv_lshlrev_b32 v{PP2}, v{PP2}, v{MK}')
                    s(f'v_lshrrev_b32 v{T3}, 1, v{T3}')
                    for k in range(4):
                        s(f'v_cmp_eq_u32 vcc, {k}, v{T3}\nv_cndmask_b32 v{MK+k}, 0, v{PP2}, vcc')
                    s.a_lane(T3, PP2, 16, 32, LQ)
                if u in (23, 47, 71):
                    for k in range(3): s(f'ds_read_b128 {Q4(QA+4*k)}, v{T3} offset:{128*k + 384*OD[(u+1)//24]}')
                    s('s_waitcnt lgkmcnt(0)')
                if u == 6:
                    s(f's_cmp_eq_u32 s3, 3\ns_cselect_b32 s10, 0, 4\nv_mov_b32 v{BA}, s10\nv_mov_b32 v{BZ}, 0')
                if u == 95: kpost(31); switch()
            else:
                if u == 120: A2.extend(RING + 4 * free.pop() for _ in range(3))
                acc = lambda p: A2 if p & 1 else [QA, QA + 4, QA + 8]
                p = (g - 32) >> 3
                s.mfma(acc(p)[jj], ACC + 4 * (g & 1), r, g & 7 == 0)
                if u >= 190:
                    s(f's_mov_b32 exec_lo, 0x00ff00ff\ns_mov_b32 exec_hi, 0xff00ff00\nds_write_b128 v{T1}, {Q4(A2[jj-1])} offset:{256*(jj-1) + 3*12288}')
                    if u == 190: s('s_mov_b64 exec, -1')
                if p and u % 24 == 2:
                    outp(acc(p - 1), p - 1)
                    s(f's_mov_b64 exec, 1\nv_mov_b32 v{T2}, 1\nds_add_u32 v{BZ}, v{T2} offset:{LCNT + 4*(p-1)}\ns_mov_b64 exec, -1')
            if quad[u] >= RET: free.append(quad[u])
        li = 0
        if o['wst']:
            s.roles()
            s.wstage()
            vm.extend([None] * F)
        if o['sep']:
            s.roles(); s.tagwait(); s.ldswait(LGO, TS)
        while li < 3 * NPF:
            issue(li); li += 1
            if li == (min(F, o['F0']) if o['N0'] else F):
                if not o['sep'] and not o['wst']: s.roles()
                s.srd(RB, P_V, 201326592)
                if o['mfirst'] and not o['wst']: s('s_barrier')
            if li == F + 1:
                s('s_mov_b32 s8, 0xaaaaaaaa\ns_mov_b32 s9, 0xaaaaaaaa'); s.a_lane(TS, MX, 16, 32, LQ)
                if not o['sep']: s.tagwait()
        s.stamp(1, True)
        s('s_barrier')
        s.stamp(2, True)
        for jj in range(3): s(f'ds_read_b128 {Q4(QA+4*jj)}, v{TS} offset:{128*jj + 384*OD[0]}')
        s.getloc(MX, spin=False)
        pi = 0
        while pi < NL:
            if li < NL:
                while not free: proc(pi); pi += 1
                issue(li); li += 1
                n = 0
                while n < o['RC'] and pi < NL and ready(pi): proc(pi); pi += 1; n += 1
            else:
                proc(pi); pi += 1
        s(f'ds_write_b128 v{T1}, {Q4(A2[2])} offset:{512 + 3*12288}\ns_mov_b64 exec, -1')
        s('s_waitcnt lgkmcnt(0)')
        s.stamp(4, True)
        s('s_barrier')
        s.role(3, 'L_D'); s.role(1, 'L_C'); s.role(0, 'L_exit', False)
        s(f'L_B:\ns_cmp_lt_u32 s{SV}, 4\ns_cbranch_scc0 L_exit')
        BW, AW, D = 40, 88, 136
        s.tr_lane(2, 3, 1024, 128)
        s(f'v_bfe_u32 v3, v0, 3, 2\nv_xor_b32 v3, s{SV}, v3\nv_lshl_add_u32 v2, v3, 5, v2\nv_add_u32 v2, {LB}, v2')
        TE = (48 - o['bD']) // 4
        trd = lambda T: '\n'.join(f'ds_read_b64_tr_b16 {P(BW+4*T+2*hi)}, v2 offset:{4096*T + 512*hi}' for hi in range(2))
        for T in range(TE): s(trd(T))
        s(f'v_and_b32 v3, 3, v0\nv_mul_u32_u24 v3, {OS}, v3\nv_and_b32 v4, 48, v0\nv_add_u32 v3, v3, v4\nv_add_u32 v3, {LO}, v3')
        for T in range(6): s(f'ds_read_b128 {Q4(AW+4*T)}, v3 offset:{64*T}')
        s(f'v_lshlrev_b32 v4, 4, v0')
        s(f's_lshr_b32 s10, s{S_H}, 1\ns_mul_i32 s10, s10, 40\ns_and_b32 s11, s{S_H}, 1\ns_mul_i32 s11, s11, 5\ns_add_u32 s11, s11, s{S_J}')
        s(f's_lshl2_add_u32 s10, s11, s10\ns_add_u32 s10, s10, s{SV}\ns_lshl_b32 s10, s10, 8\ns_add_u32 s10, s10, {W_Y}\ns_sub_u32 s11, s10, {W_Y - W_YL}')
        if o['rown']: s(f's_lshl_b32 s9, s{SV}, 7\ns_add_u32 s9, s9, {LYO}\nv_lshl_add_u32 v5, v0, 3, s9')
        s('s_waitcnt lgkmcnt(0)')
        for T in range(min(6, TE)): s.mfma(D, AW + 4 * T, BW + 4 * T, T == 0)
        if o['bD'] and o['bfl']:
            l = s.lab('nw')
            if o['warm']: s(f's_cbranch_execz {l}')
            s.waitprog(2, 6, 1, at=LCNT + 16)
            s(f'{l}:')
            for T in range(TE, 12): s(trd(T))
            s('s_waitcnt lgkmcnt(0)')
            for T in range(TE, 6): s.mfma(D, AW + 4 * T, BW + 4 * T, T == 0)
            TE = 12
        s.live('s_barrier')
        s.stamp(5)
        cnt = []
        for T in range(6, 12):
            s(f'ds_read_b128 {Q4(AW+4*T)}, v3 offset:{64*T}')
            if T >= TE: s(trd(T))
            cnt.append(3 if T >= TE else 1)
        for T in range(6, 12):
            s(f's_waitcnt lgkmcnt({min(15, sum(cnt[T-5:]))})'); s.mfma(D, AW + 4 * T, BW + 4 * T, False)
        s.warmret('L_wB')
        s(f's_mov_b64 exec, 0xffff\nv_pk_add_f32 {P(D)}, {P(D)}, {P(D+2)}\nv_bitop3_b32 v{D+2}, v{D}, v{D+1}, s{TAG} bitop3:0x96')
        st = [f'buffer_store_dwordx4 {Q4(D)}, v4, {WSR}, s10 offen sc1', f'buffer_store_dwordx4 {Q4(D)}, v4, {WSR}, s11 offen']
        s('\n'.join(st[::-1] if o['pfy'] else st))
        if o['rown']: s(f'ds_write_b64 v5, {P(D)}\ns_waitcnt lgkmcnt(0)')
        s.stamp(6)
        if o['rg']: s('s_barrier')
        s.end()

    def s0(s):
        s.cur = 'a'
        o = s.o
        lsk = s.lab('noM'); lj = s.lab('Mj'); ln = s.lab('Mn')
        s(f's_lshr_b32 s4, s{S_IDX}, 2\ns_lshl_b32 s4, s4, 3\ns_add_u32 s4, s4, s{S_X}')
        s(f's_cmp_lt_u32 s4, 60\ns_cbranch_scc0 {lsk}')
        s(f's_and_b32 s7, s{S_IDX}, 3')
        s.srd(RA, P_C, 2560); s.srd(RB, P_WM, 640 * 7680)
        s('v_min_u32 v1, 39, v0\nv_cmp_lt_u32 vcc, 19, v1\nv_lshlrev_b32 v1, 4, v1\nv_mov_b32 v3, 960\nv_cndmask_b32 v3, 0, v3, vcc\nv_add_u32 v3, v3, v1')
        s(f's_mul_i32 s5, s7, 320\nbuffer_load_dwordx4 v[8:11], v3, {RAR}, s5 offen')
        s.rows(2, 3, 3, 7680)
        s(f's_mul_i32 s5, s7, {160 * 7680}\ns_lshl_b32 s6, s4, 7\ns_add_u32 s5, s5, s6')
        s(s.dma(20, 2, RB, 5, 8 * 7680, LM, o['mF']))
        if o['mfirst']: s('s_barrier')
        s('s_waitcnt vmcnt(20)')
        s(f's_mov_b32 s6, {hx(-LOG2E)}')
        for k in range(4): s(f'v_lshlrev_b32 v{20+2*k}, 16, v{8+k}\nv_and_b32 v{21+2*k}, 0xffff0000, v{8+k}')
        for k in range(8): s(f'v_mul_f32 v{40+k}, s6, v{20+k}')
        for k in range(8): s(f'v_exp_f32 v{40+k}, v{40+k}')
        for k in range(8): s(f'v_add_f32 v{40+k}, 1.0, v{40+k}')
        for k in range(8): s(f'v_min_f32 v{40+k}, 0x7f000000, v{40+k}')
        for k in range(8): s(f'v_rcp_f32 v{48+k}, v{40+k}')
        for k in range(8): s(f'v_mul_f32 v{56+k}, v{20+k}, v{48+k}')
        for k in range(8): s(f'v_fma_f32 v{20+k}, -v{56+k}, v{40+k}, v{20+k}')
        for k in range(8): s(f'v_fma_f32 v{20+k}, v{20+k}, v{48+k}, v{56+k}')
        for k in range(4): s(f'v_cvt_pk_bf16_f32 v{8+k}, v{20+2*k}, v{21+2*k}')
        s(f'ds_write_b128 v1, v[8:11] offset:{LXS}')
        s.a_lane(4, 5, 320, 16, LXS)
        s.tr_lane(5, 6, 1024, 128); s(f'v_add_u32 v5, {LM}, v5')
        A, B, D = 12, 48, 32
        s.tagwait()
        for T in range(5): s(f'ds_read_b128 {Q4(A+4*T)}, v4 offset:{64*T}')
        l = s.lab('ini')
        s(f's_cmp_eq_u32 s{S_IDX}, 0\ns_cbranch_scc0 {l}\ns_lshl_b32 s5, s{S_X}, 7\ns_add_u32 s5, s5, {W_PG}\ns_add_u32 s6, s{TAG}, 999')
        s(f'v_and_b32 v1, 31, v0\nv_lshlrev_b32 v1, 2, v1\nv_mov_b32 v6, s6\nbuffer_store_dword v6, v1, {WSR}, s5 offen\n{l}:')
        s(f'v_lshlrev_b32 v1, 4, v0\ns_mul_i32 s5, s7, {3840 * 16}\ns_lshl_b32 s6, s4, 10\ns_add_u32 s5, s5, s6\ns_add_u32 s5, s5, {W_MP}')
        s.rows(2, 3, 4, 3840 * 16)
        s(f's_lshl_b32 s4, s4, 2\ns_add_u32 s4, s4, s7\ns_lshl_b32 s6, s4, 8\ns_add_u32 s6, s6, {W_MP}')
        s('s_waitcnt vmcnt(0)')
        s.stamp(1)
        for T in range(5):
            for ct in range(4):
                for hi in range(2): s(f'ds_read_b64_tr_b16 {P(B + 16*T + 4*ct + 2*hi)}, v5 offset:{4096*T + 512*hi + 32*ct}')
            if T:
                s('s_waitcnt lgkmcnt(8)')
                for ct in range(4): s.mfma(D + 4 * ct, A + 4 * (T - 1), B + 16 * (T - 1) + 4 * ct, T == 1)
        s('s_waitcnt lgkmcnt(0)')
        for ct in range(4): s.mfma(D + 4 * ct, A + 16, B + 64 + 4 * ct, False)
        for ct in range(1, 4):
            for b in range(2): s(f'v_mov_b32_dpp v{D+b}, v{D+4*ct+b} quad_perm:[0,1,2,3] row_mask:{1 << ct} bank_mask:0xf')
        s(f'v_bitop3_b32 v{D+2}, v{D}, v{D+1}, s{TAG} bitop3:0x96')
        l2 = s.lab('M2')
        s(f's_cmp_lt_u32 s4, 80\ns_cbranch_scc0 {l2}')
        if 'P' not in o['nox']: s(f'buffer_store_dwordx4 {Q4(D)}, v1, {WSR}, s5 offen sc1')
        s.stamp(2)
        s(f's_branch {ln}\n{l2}:')
        s.getloc(6)
        s.gstore([f'buffer_store_dwordx4 {Q4(D)}, v1, {WSR}, s5 offen'], nm='m')
        s.stamp(2)
        s('s_barrier')
        s.poll([f'buffer_load_dwordx3 v[4:6], v2, {WSR}, s6 offen sc1'], s.ck_xor([4], 2, 8, 9), slp=o['mlslp'], nm='m')
        for w in (32, 16):
            s.swapred('v_add_f32', 4, 8, w); s.swapred('v_add_f32', 5, 9, w)
        s(f'v_cvt_pk_bf16_f32 v4, v4, v5\nv_mov_b32 v5, s{TAG}\nv_lshlrev_b32 v3, 3, v0\ns_lshl_b32 s5, s4, 7\ns_add_u32 s5, s5, {W_MOD}')
        s(f's_mov_b64 exec, 0xffff\nbuffer_store_dwordx2 v[4:5], v3, {WSR}, s5 offen sc1\ns_mov_b64 exec, -1')
        s(f's_branch {lj}\n{lsk}:\n' + ('s_barrier' if o['mfirst'] else '')); s.tagwait(); s(f'{ln}:\ns_barrier'); s.getloc(6, spin=False); s(f'{lj}:')
        s.waitprog(o['st0'], 1)
        s('s_mov_b32 s5, 0\nL_pair:')
        s.stats()
        s.stamp(3)
        l = s.lab('cnt')
        s(f's_lshl_b32 s8, s5, 2\nv_mov_b32 v4, s8\ns_mov_b32 s{SPIN}, {o["spin"]}\n{l}:\ns_sleep {o["pslp"]}\nds_read_b32 v5, v4 offset:{LCNT}\ns_sub_u32 s{SPIN}, s{SPIN}, 1\ns_waitcnt lgkmcnt(0)')
        s(f'v_readfirstlane_b32 s8, v5\ns_cselect_b32 s8, 8, s8\ns_cmp_lt_u32 s8, 8\ns_cbranch_scc1 {l}')
        s('L_T0:')
        s.stamp(4)
        T = 16
        for k in range(24): s(f'ds_read2st64_b32 {P(T+2*k)}, v1 offset0:{2*k} offset1:{2*k+1}')
        for w in range(8):
            if w >= 3: s(f's_waitcnt lgkmcnt({3 * (7 - w)})')
            elif w == 0: s('s_waitcnt lgkmcnt(15)')
            f = f's[{64 + (w & 6)}:{65 + (w & 6)}]'; e = w & 1
            for c in range(3):
                r = T + 6 * w + 2 * c; a = (8, 10, 12)[c]
                s(f'v_pk_mul_f32 {P(a)}, {P(r)}, {f} op_sel:[0,{e}] op_sel_hi:[1,{e}]' if w == 0 else
                  f'v_pk_fma_f32 {P(a)}, {P(r)}, {f}, {P(a)} op_sel:[0,{e},0] op_sel_hi:[1,{e},1]')
        s('v_add_f32 v8, v8, v11\nv_add_f32 v9, v9, v12\nv_add_f32 v10, v10, v13')
        s(f'v_bitop3_b32 v11, v8, v9, v10 bitop3:0x96\nv_xor_b32 v11, s{TAG}, v11')
        s.gstore([f'buffer_store_dwordx4 v[8:11], v2, {WSR}, s4 offen'])
        s.stamp(5)
        l = s.lab('early'); l2 = s.lab('next'); l3 = s.lab('fin')
        s(f's_cmp_eq_u32 s5, 3\ns_cbranch_scc0 {l}')
        s.role(0, 'L_Bg'); s.role(3, 'L_D'); s.role(1, 'L_exit', False)
        s('s_barrier')
        s.end()
        s(f'{l}:')
        s.role(0, l2, False)
        s(f's_mul_i32 s9, s5, 24\ns_add_u32 s9, s9, {120 + o["eg0"]}\ns_min_u32 s9, s9, {o["eg"]}')
        s.waitprog('s9', 12, o['pslp'])
        s.gath(2, o['pslp'])
        s(f'{l2}:\ns_add_u32 s5, s5, 1\ns_cmp_lt_u32 s5, 3\ns_cbranch_scc1 L_pair')
        s.role(0, l3); s.role(3, 'L_D0')
        if o['cL']:
            E = o['cE']
            s.role(1, 'L_exit', False)
            s.trigger(); s.caddr()
            s(f's_add_u32 s5, s5, {(80 - 8 * E) * 8 * 3072}')
            s(s.cdma(8 * E, lambda t: f's_mov_b32 m0, {LBIG + 1024 * (80 - 8 * E + t)}', 63))
            s('s_barrier\ns_barrier\ns_waitcnt vmcnt(0)')
        s.end()
        s(f'{l3}:')
        s(f's_add_u32 s6, s6, 16384\ns_add_u32 s7, s6, 4096\nv_lshlrev_b32 v3, 1, v0\nv_add_u32 v3, {LO + 384 + OS * (int(str(o["ord"])[-1]) >> 1)}, v3\ns_waitcnt lgkmcnt(0)\ns_barrier')

    def stats(s):
        s(f'v_lshlrev_b32 v2, 4, v0\ns_lshr_b32 s6, s{S_H}, 1\ns_lshl2_add_u32 s6, s6, s5\ns_lshl_b32 s4, s6, 11\ns_add_u32 s4, s4, {W_ML}')
        s.poll([f'buffer_load_dwordx3 v[{4+4*k}:{6+4*k}], v2, {WSR}, s4 offen offset:{1024*k} sc1' for k in range(2)], s.ck_xor([4, 8], 2, 12, 13), slp=s.o['mlslp'])
        s('v_max_f32 v12, v4, v8')
        s.red16('v_max_f32', [12]); s.swapred('v_max_f32', 12, 13, 16); s.swapred('v_max_f32', 12, 13, 32)
        for r in (4, 8): s(f'v_sub_f32 v{r}, v{r}, v12\nv_mul_f32 v{r}, {hx(LOG2E)}, v{r}\nv_exp_f32 v{r}, v{r}')
        s('v_mul_f32 v5, v5, v4\nv_fmac_f32 v5, v9, v8')
        s.red16('v_add_f32', [5]); s.swapred('v_add_f32', 5, 13, 16); s.swapred('v_add_f32', 5, 13, 32)
        s(f'v_rcp_f32 v5, v5\ns_bitcmp1_b32 s{S_H}, 0\ns_cselect_b64 vcc, -1, 0\nv_cndmask_b32 v4, v4, v8, vcc\nv_mul_f32 v4, v4, v5')
        s(f's_lshl_b32 s4, s{S_J}, 3')
        for w in range(8):
            s(f'v_readlane_b32 s{64+w}, v4, s4')
            if w < 7: s('s_add_u32 s4, s4, 1')
        s(f's_mul_i32 s4, s5, 12288\ns_add_u32 s4, s4, {LPO}\nv_lshl_add_u32 v1, v0, 2, s4')
        s(f's_lshl_b32 s7, s5, 2\ns_lshr_b32 s7, 0x{str(s.o["ord"]).zfill(4)[::-1]}, s7')
        s(f's_bfe_u32 s4, s7, 0x10001\ns_mul_i32 s4, s4, {OS}\ns_and_b32 s7, s7, 1\ns_mul_i32 s7, s7, 384\ns_add_u32 s4, s4, s7\ns_add_u32 s4, s4, {LO}\nv_lshl_add_u32 v3, v0, 1, s4')
        s(f's_lshl_b32 s6, s6, 14\ns_add_u32 s6, s6, {W_ATT}\ns_and_b32 s4, s{S_IDX}, 15\ns_lshl_b32 s4, s4, 10\ns_add_u32 s4, s4, s6\ns_add_u32 s7, s6, 4096')

    def gath(s, nh, slp):
        G = 24
        if nh == 2: s('s_add_u32 s8, s6, 8192\ns_add_u32 s9, s6, 12288')
        if nh == 2 and s.o['glight']:
            s('v_and_b32 v14, 15, v0\nv_lshlrev_b32 v14, 10, v14')
            s.poll([f'buffer_load_dwordx4 {Q4(G)}, v14, {WSR}, s6 offen offset:1008 sc1'], s.ck_xor([G], 3, 12, 13), slp=slp)
        ck, t = s.ck_xor([G + 4 * k for k in range(8 * nh)], 3, 12, 13)
        for k in range(8 * nh):
            a = 16 + 4 * (k >> 3); r = G + 4 * k
            if k & 7: ck[k] += f'\nv_pk_add_f32 {P(a)}, {P(r-4) if k & 7 == 1 else P(a)}, {P(r)}\nv_add_f32 v{a+2}, v{r-2 if k & 7 == 1 else a+2}, v{r+2}'
        s.poll([f'buffer_load_dwordx4 {Q4(G+4*k)}, v2, {WSR}, s{6 + (k >> 2)} offen offset:{1024*(k & 3)} sc1' for k in range(8 * nh)], (ck, t), slp=slp, warmable=(nh == 1))
        for h in range(nh):
            a = 16 + 4 * h; of = 2 * OS * h
            s(f'v_cvt_pk_bf16_f32 v{a}, v{a}, v{a+1}\nv_cvt_pk_bf16_f32 v{a+2}, v{a+2}, v{a+2}')
            s(f'ds_write_b16 v3, v{a} offset:{of}\nds_write_b16_d16_hi v3, v{a} offset:{of+128}\nds_write_b16 v3, v{a+2} offset:{of+256}')

    def bgather(s):
        s.cur = 'g'
        s('L_Bg:')
        s.gath(1, 0)
        s.warmret('L_wBg')
        s('s_waitcnt lgkmcnt(0)')
        s.stamp(6)
        s('s_barrier')
        s.end()

    def s1(s):
        s.cur = 'b'
        o = s.o
        s.srd(RA, P_X, 2560); s.srd(RB, P_WQ, 640 * 12288)
        s('v_and_b32 v1, 31, v0\nv_lshlrev_b32 v1, 3, v1\nv_lshrrev_b32 v2, 5, v0\nv_mul_u32_u24 v2, 1280, v2\nv_add_u32 v1, v1, v2')
        for u in range(5): s(f'buffer_load_dwordx2 {P(10+2*u)}, v1, {RAR}, 0 offen offset:{256*u}')
        s(f'v_and_b32 v7, 15, v0\nv_lshl_add_u32 v2, v7, 1, v2\ns_mul_i32 s4, s{S_J}, 160')
        for u in range(5): s(f'buffer_load_ushort v{160+u}, v2, {RAR}, s4 offen offset:{32*u}')
        s.rows(3, 4, 3, 12288)
        s.ghead(6)
        s(f's_mul_i32 s5, s{S_J}, {80*12288}\ns_and_b32 s7, s{S_H}, 1\ns_lshl4_add_u32 s6, s7, s6\ns_mul_i32 s6, s6, 384\ns_add_u32 s5, s5, s6')
        if o['mfirst']: s('s_barrier')
        s(s.dma(30, 3, RB, 5, lambda t: 128 if t % 3 < 2 else 8 * 12288 - 256, LWQ, o['qF']))
        if o['qfirst']: s(f'v_mov_b32 v4, {LGO}\nv_mov_b32 v5, 1\nds_write_b32 v4, v5')
        s.tagwait()
        s('s_waitcnt vmcnt(30)')
        X = 20
        for k in range(10): s(f'v_lshlrev_b32 v{X+2*k}, 16, v{10+k}\nv_and_b32 v{X+2*k+1}, 0xffff0000, v{10+k}')
        s(f'v_add_f32 v4, v{X}, v{X+1}')
        for k in range(2, 20): s(f'v_add_f32 v4, v4, v{X+k}')
        s.red16('v_add_f32', [4]); s.swapred('v_add_f32', 4, 5, 16)
        s(f'v_mul_f32 v4, {hx(1/640)}, v4')
        for k in range(20): s(f'v_sub_f32 v{X+k}, v{X+k}, v4')
        s(f'v_mul_f32 v5, v{X}, v{X}')
        for k in range(1, 20): s(f'v_fmac_f32 v5, v{X+k}, v{X+k}')
        s.red16('v_add_f32', [5]); s.swapred('v_add_f32', 5, 6, 16)
        s(f'v_mul_f32 v5, {hx(1/640)}, v5')
        s.bf16r(4); s.bf16r(5)
        s(f'v_add_f32 v5, {hx(1e-5)}, v5'); s.bf16r(5)
        s('v_sqrt_f32 v5, v5'); s.bf16r(5); s('v_rcp_f32 v5, v5')
        for u in range(5):
            r = 160 + u
            s(f'v_lshlrev_b32 v{r}, 16, v{r}\nv_sub_f32 v{r}, v{r}, v4'); s.bf16r(r)
            s(f'v_mul_f32 v{r}, v{r}, v5'); s.bf16r(r)
        s.tr_lane(4, 5, 3072, 128)
        s(f'v_add_u32 v4, {LWQ}, v4')
        s.tr_lane(5, 6, 512, 128)
        s(f'v_lshrrev_b32 v6, 5, v0\nv_mul_u32_u24 v6, 2048, v6\nv_add_u32 v5, v5, v6\nv_add_u32 v5, {LWQ + 8*3072}, v5')
        BW, AC, A = 100, 40, 88
        def rd(ct):
            b = BW + 10 * (ct % 6); off = 1024 * (ct >> 2) + 32 * (ct & 3)
            for T in range(2):
                for hi in range(2): s(f'ds_read_b64_tr_b16 {P(b+4*T+2*hi)}, v4 offset:{off + 12288*T + 512*hi}')
            s(f'ds_read_b64_tr_b16 {P(b+8)}, v5 offset:{off}')
        s.rows(2, 6, 4, 3840 * 16)
        s(f's_mul_i32 s4, s{S_J}, 1280\ns_add_u32 s4, s4, {W_MP}\ns_add_u32 s5, s4, 10240')
        s('s_waitcnt vmcnt(0)')
        s.stamp(1)
        for ct in range(6): rd(ct)
        M = 40
        s.gather([f'buffer_load_dwordx3 v[{M+4*u}:{M+4*u+2}], v2, {WSR}, s{4 + u // 5} offen offset:{256 * (u % 5)} sc1' for u in range(10)],
                 [s.ck_xor([M + 4 * u], 2, 12, 13) for u in range(10)], 8, slp=o['pslp'], nm='P')
        s.stamp(2)
        for u in range(10): s(f'v_permlane32_swap_b32 v{M+4*u}, v{M+4*u+1}')
        for u in range(10): s(f'v_add_f32 v{M+4*u}, v{M+4*u}, v{M+4*u+1}')
        for u in range(10): s(f'v_mov_b32 v{M+4*u+1}, v{M+4*u}')
        for u in range(10): s(f'v_permlane16_swap_b32 v{M+4*u}, v{M+4*u+1}')
        for u in range(10): s(f'v_add_f32 v{M+4*u}, v{M+4*u}, v{M+4*u+1}')
        for u in range(10): s.bf16r(M + 4 * u)
        s(f'v_lshrrev_b32 v2, 5, v0\nv_mul_u32_u24 v2, 192, v2\nv_lshl_add_u32 v2, v7, 1, v2')
        for u in range(5):
            c = M + 20 + 4 * u; r = 160 + u
            s(f'v_add_f32 v{c}, 1.0, v{c}'); s.bf16r(c)
            s(f'v_mul_f32 v{r}, v{r}, v{c}'); s.bf16r(r)
            s(f'v_add_f32 v{r}, v{r}, v{M+4*u}\nv_cvt_pk_bf16_f32 v{r}, v{r}, v{r}\nds_write_b16 v2, v{r} offset:{LHS + 32*u}')
        s.getloc(6)
        s.a_lane(2, 3, 192, 16, LHS); s.a_lane(3, 6, 192, 8, LHS + 128)
        s('s_waitcnt lgkmcnt(0)')
        s(f'ds_read_b128 {Q4(A)}, v2\nds_read_b128 {Q4(A+4)}, v2 offset:64\nds_read_b64 {P(A+8)}, v3')
        for half in range(2):
            s('s_waitcnt lgkmcnt(0)')
            for ct in range(6 * half, 6 * half + 6): s.mfma(AC + 4 * ct, A + 8, BW + 10 * (ct % 6) + 8, True, k=16)
            for T in range(2):
                for ct in range(6 * half, 6 * half + 6):
                    s.mfma(AC + 4 * ct, A + 4 * T, BW + 10 * (ct % 6) + 4 * T, False)
                    if half == 0 and T == 1: rd(ct + 6)
        s(f'v_lshlrev_b32 v2, 4, v0\ns_lshl_b32 s4, s{S_H}, 3\ns_add_u32 s5, s4, s{S_J}\ns_lshl_b32 s5, s5, 11\ns_add_u32 s5, s5, {W_QP}')
        for b in range(2):
            for u in range(4):
                for c in range(3):
                    s(f'v_mov_b32_dpp v{16+4*b+c}, v{AC + 4*(3*u+c) + b} quad_perm:[0,1,2,3] row_mask:{1 << u} bank_mask:0xf')
        for b in range(2):
            t = 16 + 4 * b
            s(f'v_bitop3_b32 v{t+3}, v{t}, v{t+1}, v{t+2} bitop3:0x96\nv_xor_b32 v{t+3}, s{TAG}, v{t+3}')
        s.gstore([f'buffer_store_dwordx4 {Q4(16+4*b)}, v2, {WSR}, s5 offen offset:{1024*b}' for b in range(2)], nm='Q')
        s.stamp(3)
        s(f'v_mov_b32 v3, {LQF}\nv_mov_b32 v4, 1\nds_write_b32 v3, v4')
        s(f'L_Qg:\ns_bfe_u32 s9, s3, 0x10001\ns_and_b32 s4, s{S_H}, 30\ns_add_u32 s4, s4, s9\ns_lshl_b32 s4, s4, 14\ns_add_u32 s4, s4, {W_QP}\ns_mul_i32 s9, s9, 384')
        for k in range(1, 4): s(f's_add_u32 s{4+k}, s4, {4096*k}')
        Q = 40
        if o['qlight']:
            s('v_and_b32 v3, 7, v0\nv_lshlrev_b32 v3, 11, v3')
            s.poll([f'buffer_load_dwordx4 {Q4(Q)}, v3, {WSR}, s4 offen offset:2032 sc1'], s.ck_xor([Q], 3, 12, 13), slp=o['pslp'])
        def ck2(k):
            c, t = s.ck_xor([Q + 8 * k, Q + 8 * k + 4], 3, 12, 13); return ['\n'.join(c)], t
        s.gather(['\n'.join(f'buffer_load_dwordx4 {Q4(Q+8*k+4*b)}, v2, {WSR}, s{4 + (k >> 1)} offen offset:{2048*(k & 1) + 1024*b} sc1' for b in range(2)) for k in range(8)],
                 [ck2(k) for k in range(8)], 8, slp=o['pslp'], nm='Q')
        s('v_lshrrev_b32 v3, 4, v0\nv_mul_u32_u24 v3, 96, v3\nv_and_b32 v4, 15, v0\nv_lshl_add_u32 v3, v4, 1, v3\nv_add_u32 v3, s9, v3')
        for k in range(1, 8):
            for b in range(2):
                r = Q + 4 * b
                s(f'v_pk_add_f32 {P(r)}, {P(r)}, {P(r+8*k)}\nv_add_f32 v{r+2}, v{r+2}, v{r+8*k+2}')
        for b in range(2):
            r = Q + 4 * b; lq = LQ + 768 * b
            s(f'v_cvt_pk_bf16_f32 v{r}, v{r}, v{r+1}\nv_cvt_pk_bf16_f32 v{r+2}, v{r+2}, v{r+2}')
            s(f'ds_write_b16 v3, v{r} offset:{lq}\nds_write_b16_d16_hi v3, v{r} offset:{lq+32}\nds_write_b16 v3, v{r+2} offset:{lq+64}')
        s('s_waitcnt lgkmcnt(0)')
        s.stamp(4)
        s('s_barrier\ns_cmp_eq_u32 s3, 11\ns_cbranch_scc1 L_s3b')
        lc = s.lab('s1C'); ld = s.lab('s1D'); lw = s.lab('s1W')
        if o['warm']:
            s.role(1, lc); s.role(3, ld); s.role(0, lw, False)
            s(f's_mov_b32 s{SV}, 0'); s.warm('L_B', 'L_wB'); s.warm('L_Bg', 'L_wBg'); s(f's_branch {lw}')
            s(f'{lc}:\ns_mov_b32 s{SV}, 0'); s.warm('L_C', 'L_wC'); s(f's_branch {lw}')
            s(f'{ld}:\ns_mov_b32 s{SV}, {o["fw"]}'); s.warm('L_D', 'L_wD')
            s(f'{lw}:\ns_mov_b32 s{SV}, 9')
        s.balance5()
        s(f's_add_u32 s6, s6, 8192\ns_add_u32 s7, s7, 8192\nv_add_u32 v3, {2 * OS}, v3')
        s('s_barrier\ns_branch L_T0')

    def balance5(s):
        o = s.o; p0 = 3 * o['NPF']
        a = s.lab('bal'); e = s.lab('balE'); c = s.lab('nox'); d = s.lab('nost')
        V = 100
        s(f'v_mov_b32 v{V+1}, 0\ns_mov_b32 s11, 4096\ns_lshl_b32 s72, s{S_X}, 7\ns_add_u32 s72, s72, {W_PG}\ns_mov_b32 s75, {o["stat1"]}')
        s(f's_cmp_lt_u32 s{S_IDX}, {o["n1"]}\ns_cselect_b32 s78, {o["cstep"]}, {o["cstep2"]}\ns_cselect_b32 s79, {o["bdel"]}, {o["bdel2"]}')
        s(f's_cselect_b32 s74, 0, {o["n1"] * (o["cstep"] - o["cstep2"])}\ns_add_u32 s74, s74, {p0 + o["c0"]}')
        s(f's_lshl_b32 s5, s{S_IDX}, 3\ns_add_u32 s5, s5, s{S_X}\ns_mul_i32 s5, s5, s78\ns_lshr_b32 s5, s5, 3\ns_add_u32 s74, s74, s5\ns_add_u32 s79, s79, s{TAG}')
        s(f'v_and_b32 v{V}, 31, v0\nv_lshlrev_b32 v{V}, 2, v{V}')
        s(f's_lshl_b32 s73, s{S_X}, 12\ns_add_u32 s73, s73, {W_GL}\ns_mov_b32 s10, {W_GL}\nv_and_b32 v{V+5}, 7, v0\nv_cmp_eq_u32 s[76:77], s{S_X}, v{V+5}\nv_lshlrev_b32 v{V+5}, 12, v{V+5}\nv_mov_b32 v{V+6}, {p0}')
        s(f'v_xor_b32 v{V+4}, 4096, v{V+5}\nv_cndmask_b32_e64 v{V+5}, v{V+5}, v{V+4}, s[76:77]')
        s(f's_and_b32 s8, s{S_ROLE}, 1\ns_mul_i32 s8, s8, {o["bonus"]}\ns_sub_u32 s8, s{TAG}, s8')
        s(f'{a}:\nbuffer_load_dword v{V+3}, v{V+1}, {WSR}, s72 offen sc1\ns_waitcnt vmcnt(0)\nds_read_b32 v{V+2}, v{V+1} offset:{LPRG}')
        s(f'v_subrev_u32 v{V+3}, s8, v{V+3}\nds_write_b32 v{V+1}, v{V+3} offset:{LMODE}\ns_waitcnt lgkmcnt(0)\nv_readfirstlane_b32 s9, v{V+2}')
        s(f's_cmp_ge_u32 s9, s75\ns_cbranch_scc0 {d}\ns_mov_b32 s75, 999')
        s('s_mov_b32 s5, 3'); s.stats()
        s(f's_branch {a}\n{d}:')
        s(f's_cmp_ge_u32 s9, {o["bend"]}\ns_cbranch_scc1 {e}')
        s(f's_cmp_ge_u32 s9, s74\ns_cbranch_scc0 {c}')
        s(f's_mov_b32 s74, 999\nv_add_u32 v{V+3}, s{TAG}, v{V+2}\nbuffer_load_dword v{V+4}, v{V+5}, {WSR}, s10 offen sc1\nbuffer_store_dword v{V+3}, v{V}, {WSR}, s73 offen sc1\ns_waitcnt vmcnt(1)')
        s(f'v_subrev_u32 v{V+4}, s{TAG}, v{V+4}\nv_cmp_lt_u32 vcc, 192, v{V+4}\nv_cndmask_b32 v{V+4}, v{V+4}, v{V+6}, vcc')
        s(f'v_subrev_u32 v{V+2}, s78, v{V+2}\nv_cndmask_b32_e64 v{V+4}, v{V+4}, v{V+2}, s[76:77]')
        s(f's_cmp_lt_u32 s{S_IDX}, {o["n1"]}\ns_cselect_b32 s9, {min(o["emin"], 64)}, {min(o["emin2"], 64)}\nv_add_u32 v{V+7}, s9, v{V+4}')
        for ctl in ('quad_perm:[1,0,3,2]', 'quad_perm:[2,3,0,1]', 'row_half_mirror'): s.dppop('v_add_u32', V + 4, ctl); s.dppop('v_min_u32', V + 7, ctl)
        s(f'v_lshrrev_b32 v{V+4}, 3, v{V+4}\nv_min_u32 v{V+4}, v{V+4}, v{V+7}\nv_add_u32 v{V+4}, s79, v{V+4}\nbuffer_store_dword v{V+4}, v{V}, {WSR}, s72 offen')
        s(f'{c}:\ns_sleep {o["bslp"]}\ns_sub_u32 s11, s11, 1\ns_cbranch_scc0 {a}')
        s('s_mov_b32 s5, 3'); s.stats()
        s(f'{e}:')

    def bstage(s, t0, t1, F):
        o = s.o; l = s.lab('dma')
        s.srd(RA, P_WO, 6144 * 1280)
        s.swz(1280)
        s.ghead(5)
        s(f's_mul_i32 s5, s5, {192*1280}\ns_and_b32 s4, s{S_H}, 1\ns_mul_i32 s4, s4, 5\ns_add_u32 s4, s4, s{S_J}\ns_lshl_b32 s4, s4, 7')
        s(f's_add_u32 s5, s5, s4\ns_add_u32 s5, s5, {8 * 1280 * t0 + (15*192*1280 if t0 >= 24 else 0)}')
        s(f's_mov_b32 s4, {LB + 1024 * t0}\n{l}:')
        for t in range(2):
            s(f's_mov_b32 m0, s4\ns_waitcnt vmcnt({F - 1})\nbuffer_load_dwordx4 v{3 if t else 1}, {RAR}, s5 offen {o["wflag"]} lds')
            s(f's_add_u32 s5, s5, {8 * 1280}\ns_add_u32 s4, s4, 1024')
        if t0 < 24 < t1: s(f's_cmp_eq_u32 s4, {LB + 24576}\ns_cselect_b32 s6, {15*192*1280}, 0\ns_add_u32 s5, s5, s6')
        s(f's_cmp_lt_u32 s4, {LB + 1024 * t1}\ns_cbranch_scc1 {l}')

    def wstage(s):
        o = s.o; F = o['wF']
        ld = s.lab('wD'); lc = s.lab('wC'); le = s.lab('wE'); li = s.lab('wI')
        def loads(n, step, par):
            for t in range(n):
                s(f's_mov_b32 m0, s11')
                if t >= F: s(f's_waitcnt vmcnt({F - 1})')
                s(f'buffer_load_dwordx4 v{4 + (t & par)}, {RBR}, s10 offen {o["wflag"]} lds\ns_add_u32 s10, s10, {step}\ns_add_u32 s11, s11, 1024')
                if t == min(n, F) - 1 and o['mfirst']: s('s_barrier')
        def swz(stride):
            s(f'v_lshrrev_b32 v6, 3, v0\nv_mul_u32_u24 v4, {stride}, v6\nv_and_b32 v6, 2, v6\nv_and_b32 v5, 7, v0\nv_xor_b32 v6, v6, v5\nv_xor_b32 v5, 4, v6')
            s('v_lshl_add_u32 v5, v5, 4, v4\nv_lshl_add_u32 v4, v6, 4, v4')
        s.role(0, ld, False)
        s.srd(RB, P_WO, 6144 * 1280); swz(1280); s.ghead(10)
        s(f's_lshr_b32 s9, s3, 2\ns_mul_i32 s9, s9, 15\ns_add_u32 s10, s10, s9\ns_mul_i32 s10, s10, {192*1280}\ns_mul_i32 s9, s3, {48*1280}\ns_add_u32 s10, s10, s9')
        s(f's_lshr_b32 s9, s{S_CS}, 2\ns_lshl_b32 s9, s9, 7\ns_add_u32 s10, s10, s9\ns_mul_i32 s11, s3, 6144\ns_add_u32 s11, s11, {LB}')
        loads(6, 8 * 1280, 1)
        s(f's_branch {le}\n{ld}:')
        s.role(3, lc, False)
        n = 12 - o['dW']
        s.srd(RB, P_D, 1536 * 1280); s.rows(4, 5, 2, 1280)
        s(f's_mul_i32 s11, s3, {n}\ns_add_u32 s11, s11, {8 * o["dW"]}\ns_mul_i32 s10, s11, {16 * 1280}\ns_lshl_b32 s9, s{S_DT}, 6\ns_add_u32 s10, s10, s9\ns_lshl_b32 s11, s11, 10\ns_add_u32 s11, s11, {LBIG}')
        loads(n, 16 * 1280, 0)
        s(f's_branch {le}\n{lc}:')
        s.role(1, li, False)
        n = o['cE']
        s(f's_bitcmp1_b32 s{S_CS}, 0\ns_cselect_b64 s[{RB}:{RB+1}], s[{P_U}:{P_U+1}], s[{P_G}:{P_G+1}]\ns_mov_b32 s{RB+2}, {640 * 3072}\ns_mov_b32 s{RB+3}, 0x20000')
        swz(3072)
        s(f's_bitcmp1_b32 s3, 0\ns_cselect_b64 vcc, -1, 0\nv_cndmask_b32 v4, v4, v5, vcc')
        s(f's_add_u32 s11, s3, {80 - 8 * n}\ns_mul_i32 s10, s11, {8 * 3072}\ns_lshr_b32 s9, s{S_CS}, 1\ns_lshl_b32 s9, s9, 7\ns_add_u32 s10, s10, s9\ns_lshl_b32 s11, s11, 10\ns_add_u32 s11, s11, {LBIG}')
        for t in range(n):
            s(f's_mov_b32 m0, s11\nbuffer_load_dwordx4 v4, {RBR}, s10 offen {o["wflag"]} lds\ns_add_u32 s10, s10, {64 * 3072}\ns_add_u32 s11, s11, 8192')
        s(f'{li}:')
        if o['mfirst']: s('s_barrier')
        s(f'{le}:')

    def stage(s, half):
        o = s.o
        ld = s.lab('stD'); lc = s.lab('stC'); le = s.lab('stE')
        def part(n): return (0, n) if half is None else ((0, n // 4 * 2) if half == 0 else (n // 4 * 2, n))
        FF = lambda k: o['upF'] if half is None else o[k]
        s.role(0, ld, False)
        E = 0 if half is None else o['bE']; t0, t1 = part(48 - E - o['bD'])
        if t1 > t0: s.bstage(E + t0, E + t1, min(FF('bF'), 60))
        s(f's_branch {le}\n{ld}:')
        s.role(3, lc, False)
        W = o['dW']; t0, t1 = part(8 * (12 - W))
        if not o['dL']:
            s.srd(RA, P_D, 1536 * 1280); s.rows(1, 2, 2, 1280)
            s(f's_lshl_b32 s4, s{S_DT}, 6\ns_add_u32 s4, s4, {(8 * W + t0) * 16 * 1280}')
            s(s.dma(t1 - t0, 1, RA, 4, 16 * 1280, LBIG + 1024 * (8 * W + t0), FF('dF')))
        s(f's_branch {le}\n{lc}:')
        s.role(1, le, False)
        E = o['cE']; t0, t1 = part(8 * E)
        if not o['cL']:
            s.caddr()
            s(f's_add_u32 s5, s5, {(80 - 8 * E + t0) * 8 * 3072}')
            s(s.cdma(t1 - t0, lambda t: f's_mov_b32 m0, {LBIG + 1024 * (80 - 8 * E + t0 + t)}', FF('cF')))
        s(f'{le}:')
        if half is not None: s('s_waitcnt vmcnt(0)')

    def s2(s):
        s.cur = 'r'
        o = s.o
        assert o['mfirst']
        s('s_barrier')
        s('s_getreg_b32 s4, hwreg(HW_REG_XCC_ID)')
        s(f'v_and_b32 v1, 31, v0\nv_lshlrev_b32 v1, 3, v1\ns_lshl_b32 s5, s{S_X}, 8\ns_add_u32 s5, s5, {W_XC}\ns_lshl3_add_u32 s6, s{S_IDX}, s5')
        s.tagwait()
        s(f'v_mov_b32 v2, s4\nv_mov_b32 v3, s{TAG}\ns_mov_b64 exec, 1')
        if o['xab']: s(f's_add_u32 s7, s6, {W_XL - W_XC}\nbuffer_store_dwordx2 v[2:3], v1, {WSR}, s7 offen')
        if 'X' not in o['nox']: s(f'buffer_store_dwordx2 v[2:3], v1, {WSR}, s6 offen sc1')
        s('s_mov_b64 exec, -1')
        s.idpoll(o['pslp'])
        s(f'v_xor_b32 v4, s4, v4\nv_or_b32 v4, v4, v6\nv_cmp_ne_u32 vcc, 0, v4\ns_cmp_eq_u64 vcc, 0\ns_cselect_b32 s4, 2, 1')
        if not o['loc']: s(f's_mov_b32 s4, 1')
        s(f'v_mov_b32 v4, s4\nv_mov_b32 v5, {LFLAG}\nds_write_b32 v5, v4\ns_waitcnt lgkmcnt(0)')
        s.stamp(2)
        if o['bE']:
            l = s.lab('noBe'); s.role(0, l, False); s.bstage(0, o['bE'], o['bEF']); s(f'{l}:')
        s('s_barrier')
        if not o['up']: s.stage(0)
        s.stamp(1)
        s.role(1, 'L_LN0')
        s.role(0, 'L_s23', False)
        s.warm('L_R', 'L_wR')
        s('L_R0:')
        s.waitprog(72, 1)
        s.getloc(1, spin=False)
        s.srd(RA, P_X, 2560)
        s(f'v_and_b32 v1, 15, v0\nv_lshlrev_b32 v2, 1, v1\ns_lshl_b32 s5, s{S_CS}, 5')
        s(f'buffer_load_ushort v4, v2, {RAR}, s5 offen\nbuffer_load_ushort v5, v2, {RAR}, s5 offen offset:1280')
        s(f'v_lshlrev_b32 v2, 3, v1\ns_lshl_b32 s5, s{S_CS}, 7\ns_add_u32 s6, s5, {W_MOD + 1280*8}')
        s.poll([f'buffer_load_dwordx2 v[6:7], v2, {WSR}, s6 offen sc1'], s.ck_tag([[7]], 8), slp=o['mlslp'])
        s('v_lshlrev_b32 v4, 16, v4\nv_lshlrev_b32 v5, 16, v5\nv_and_b32 v7, 0xffff0000, v6\nv_lshlrev_b32 v6, 16, v6')
        s(f's_add_u32 s5, s5, {W_X1}\nv_mov_b32 v9, s{TAG}\ns_lshl_b32 s6, s{S_X}, 13\ns_add_u32 s5, s5, s6')
        s.rows(3, 8, 4, 10240)
        s(f's_lshl_b32 s64, s{S_CS}, 8\ns_add_u32 s64, s64, {W_Y}')
        s(f's_sub_u32 s64, s64, {W_Y - W_YL}\ns_sub_u32 s6, 1, s{LOC}\ns_mul_i32 s6, s6, {W_Y - W_YL}\nv_mov_b32 v12, s6\nv_mov_b32 v13, {W_Y - W_YL}\nv_lshrrev_b32 v14, 5, v0')
        for k in range(4):
            s(f'v_add_u32 v15, {2*k}, v14\nv_cmp_eq_u32 vcc, s{S_X}, v15\nv_cndmask_b32 v15, v13, v12, vcc\nv_add_u32 v15, {40960*k}, v15\nv_add_u32 v{32+k}, v15, v3')
        if o['rown']:
            s(f's_lshr_b32 s4, s{S_H}, 1\nv_lshrrev_b32 v14, 4, v0\ns_bfe_u32 s6, s{S_H}, 0x10001\ns_mul_i32 s6, s6, {-20480 & 0xffffffff}\ns_add_u32 s6, s6, 10240')
            for k in range(4):
                s(f'v_add_u32 v15, {4*k}, v14\nv_cmp_eq_u32 s[{66+2*k}:{67+2*k}], s4, v15\nv_add_u32 v15, s6, v{32+k}\nv_cndmask_b32_e64 v{32+k}, v{32+k}, v15, s[{66+2*k}:{67+2*k}]')
            s(f's_and_b32 s4, s{S_CS}, 3\ns_lshl_b32 s4, s4, 7\ns_add_u32 s4, s4, {LYO}\nv_add_u32 v36, s4, v2')
        touch = '\n'.join(f'buffer_load_dword v{40+k}, v{32+k}, {WSR}, s64 offen sc1' for k in range(4))
        if o['bD']:
            n = o['bD'] // 2
            s.srd(RB, P_WO, 6144 * 1280)
            s('v_lshrrev_b32 v46, 3, v0\nv_mul_u32_u24 v44, 1280, v46\nv_and_b32 v46, 2, v46\nv_and_b32 v45, 7, v0\nv_xor_b32 v46, v46, v45\nv_xor_b32 v45, 4, v46')
            s('s_bitcmp1_b32 s3, 0\ns_cselect_b64 vcc, -1, 0\nv_cndmask_b32 v46, v46, v45, vcc\nv_lshl_add_u32 v44, v46, 4, v44')
            s.ghead(8)
            t0 = 48 - 2 * n; src = lambda t: (t if t < 24 else t + 15 * 24) * 8 * 1280
            s(f's_mul_i32 s8, s8, {192*1280}\ns_lshr_b32 s9, s{S_CS}, 2\ns_lshl_b32 s9, s9, 7\ns_add_u32 s8, s8, s9\ns_add_u32 s8, s8, {src(t0)}')
            s(f's_and_b32 s9, s3, 1\ns_mul_i32 s10, s9, {8 * 1280}\ns_add_u32 s8, s8, s10\ns_lshl_b32 s9, s9, 10\ns_add_u32 s9, s9, {LB + 1024 * t0}')
            dm = '\n'.join(f's_mov_b32 m0, s9\ns_add_u32 s9, s9, 2048\nbuffer_load_dwordx4 v44, {RBR}, s8 offen {o["wflag"]} lds\ns_add_u32 s8, s8, {src(t + 2) - src(t)}' for t in range(t0, 48, 2))
            if o['btrig'] <= 192:
                s.waitprog(o['btrig'] - 12, 12)
                if o['ball']: s.waitprog(o['ball'], 12, 1, at=LCNT + 12)
                else: s.waitprog(o['btrig'], 12, 1)
                s(dm)
        s('s_barrier')
        if o['bD']:
            if o['btrig'] > 192: s(dm)
            s('s_waitcnt vmcnt(0)')
            if o['bfl']: s(f's_mov_b64 exec, 1\nv_mov_b32 v12, 0\nv_mov_b32 v13, 1\nds_add_u32 v12, v13 offset:{LCNT + 16}\ns_mov_b64 exec, -1')
        if o['rg'] == 5: s(touch)
        s('s_barrier')
        if o['rg'] == 4: s(touch)
        if o['rg'] and o['rg'] != 6: s('s_barrier')
        s('L_R:')
        s.stamp(4)
        Y = 16
        ck, t = s.ck_xor([Y + 4 * k for k in range(4)], 2, 12, 13)
        if o['rown']:
            if o['rg'] != 6: s('ds_read_b64 v[38:39], v36')
            ck[0] += '\ns_waitcnt lgkmcnt(0)'
            for k in range(4):
                for e in range(2): ck[k] += f'\nv_cndmask_b32_e64 v{Y+4*k+e}, v{Y+4*k+e}, v{38+e}, s[{66+2*k}:{67+2*k}]'
        for k in range(1, 4): ck[k] += f'\nv_pk_add_f32 v[10:11], {P(Y) if k == 1 else "v[10:11]"}, {P(Y+4*k)}'
        lds_ = [f'buffer_load_dwordx3 v[{Y+4*k}:{Y+4*k+2}], v{32+k}, {WSR}, s64 offen sc1' for k in range(4)]
        if o['rmiss']:
            s.gather(lds_, [s.ck_xor([Y + 4 * k], 2, 12, 13) for k in range(4)], 8)
            s(f'v_pk_add_f32 v[10:11], {P(Y)}, {P(Y+4)}\nv_pk_add_f32 v[10:11], v[10:11], {P(Y+8)}\nv_pk_add_f32 v[10:11], v[10:11], {P(Y+12)}')
        else: s.poll(lds_, (ck, t), warmable=True, pre='s_barrier\nds_read_b64 v[38:39], v36' if o['rg'] == 6 else None)
        s.stamp(5)
        for w in (16, 32):
            s(f'v_mov_b32 v14, v10\nv_mov_b32 v15, v11\nv_permlane{w}_swap_b32 v10, v14\nv_permlane{w}_swap_b32 v11, v15\nv_pk_add_f32 v[10:11], v[10:11], v[14:15]')
        s(f'v_pk_fma_f32 v[10:11], v[10:11], v[6:7], v[4:5]\nv_cvt_pk_bf16_f32 v8, v10, v11')
        s.warmret('L_wR')
        s('s_mov_b64 exec, 0xffff')
        s.gstore([f'buffer_store_dwordx2 v[8:9], v2, {WSR}, s5 offen'])
        s.stamp(6)
        s.end()

    def s3(s):
        s.cur = 'l'
        o = s.o
        if o['mfirst']: s('s_barrier')
        if not o['upe']: s.tagwait()
        if o['up'] and not o['wst']:
            if o['qfirst']: s.ldswait(LGO, 3)
            s.stage(None)
            if o['upe']: s.tagwait()
            if o['sep']: s(f's_waitcnt vmcnt({o["sep"]})\nv_mov_b32 v3, {LGO}\nv_mov_b32 v4, s{TAG}\nds_write_b32 v3, v4')
        s.ldswait(LQF, 3, o['pslp'])
        s('v_lshlrev_b32 v2, 4, v0\ns_branch L_Qg\nL_s3b:')
        if not o['up']: s.stage(1)
        s.stamp(1)
        s.role(0, 'L_R0')
        s.role(1, 'L_s23', False)
        s.warm('L_LN', 'L_wLN')
        s('L_LN0:')
        s.waitprog(72, 1)
        C1, SB, X = 8, 28, 48
        s(f'v_lshlrev_b32 v1, 4, v0\ns_and_b32 s8, s3, 1\ns_mul_i32 s11, s8, 0x02020000\ns_add_u32 s11, s11, 0x01000c0c')
        s(f's_mov_b32 s4, {W_MOD + 3*5120}\ns_mov_b32 s5, {W_MOD + 3*5120 + 4096}\ns_mov_b32 s6, {W_MOD + 4*5120}\ns_mov_b32 s7, {W_MOD + 4*5120 + 4096}')
        def ld5(base, sa): return [f'buffer_load_dwordx4 {Q4(base+4*u)}, v1, {WSR}, s{sa + (u >> 2)} offen offset:{1024*(u & 3)} sc1' for u in range(5)]
        pick = lambda r: f'v_perm_b32 v{r}, v{r}, v{r}, s11\nv_perm_b32 v{r+1}, v{r+2}, v{r+2}, s11'
        s.poll(ld5(C1, 6) + ld5(SB, 4), s.ck_tag([[C1 + 1 + 4 * k, C1 + 3 + 4 * k] for k in range(10)], 4), slp=o['mlslp'])
        for k in range(10): s(pick(C1 + 4 * k))
        for u in range(5):
            for e in range(2): s(f'v_add_f32 v{C1+4*u+e}, 1.0, v{C1+4*u+e}'); s.bf16r(C1 + 4 * u + e)
        s(f's_lshl_b32 s4, s{S_X}, 13\ns_add_u32 s4, s4, {W_X1}\ns_add_u32 s5, s4, 4096')
        s(f's_mul_i32 s8, s8, {HS}\ns_add_u32 s8, s8, {LH2}\nv_lshl_add_u32 v2, v0, 2, s8')
        s(f's_mov_b32 s10, {hx(1/640)}\nv_mov_b32 v68, {hx(1e-5)}')
        s('s_barrier\ns_barrier\ns_barrier')
        s('L_LN:')
        s.stamp(4)
        ck, t = s.ck_tag([[X + 1 + 4 * u, X + 3 + 4 * u] for u in range(5)], 70)
        for u in range(5):
            r = X + 4 * u
            ck[u] += '\n' + pick(r)
            if u == 0: ck[u] += f'\nv_readlane_b32 s8, v{X}, 0'
            ck[u] += f'\nv_pk_add_f32 {P(r)}, {P(r)}, s[8:9] op_sel_hi:[1,0] neg_lo:[0,1] neg_hi:[0,1]'
            if u == 0: ck[u] += f'\nv_pk_mul_f32 v[6:7], {P(r)}, {P(r)}'
            else: ck[u] += f'\nv_pk_add_f32 v[4:5], {P(X) if u == 1 else "v[4:5]"}, {P(r)}\nv_pk_fma_f32 v[6:7], {P(r)}, {P(r)}, v[6:7]'
        s.poll(ld5(X, 4), (ck, t), warmable=True)
        s.stamp(5)
        fill = [f'v_pk_mul_f32 {P(X+4*u)}, {P(X+4*u)}, {P(C1+4*u)}' for u in range(5)]
        s('v_add_f32 v4, v4, v5\nv_add_f32 v6, v6, v7'); s(fill.pop(0))
        s('v_permlane32_swap_b32 v4, v6\nv_add_f32 v4, v4, v6')
        s.red16('v_add_f32', [4], fill=fill); s.swapred('v_add_f32', 4, 5, 16)
        s('v_mul_f32 v4, s10, v4\nv_mov_b32 v6, v4\nv_permlane32_swap_b32 v4, v6')
        s('v_fma_f32 v6, -v4, v4, v6\nv_max_f32 v6, 0, v6\nv_add_f32 v6, v6, v68\nv_rsq_f32 v6, v6')
        for u in range(5): s(f'v_pk_fma_f32 {P(X+4*u)}, {P(C1+4*u)}, v[4:5], {P(X+4*u)} op_sel_hi:[1,0,1] neg_lo:[0,1,0] neg_hi:[0,1,0]')
        for u in range(5):
            r = X + 4 * u
            s(f'v_pk_fma_f32 {P(r)}, {P(r)}, v[6:7], {P(SB+4*u)} op_sel_hi:[1,0,1]\nv_cvt_pk_bf16_f32 v{r}, v{r}, v{r+1}')
            if u & 1: s(f'ds_write2st64_b32 v2, v{r-4}, v{r} offset0:{u-1} offset1:{u}')
        s(f'ds_write_b32 v2, v{X+16} offset:1024')
        s.warmret('L_wLN')
        s('s_waitcnt lgkmcnt(0)')
        s.stamp(3)
        s('s_barrier')
        s.end()
        s('L_s23:')
        s.role(3, 'L_exit', False)
        if o['fw']:
            s.waitprog(72, 1)
            s(f'v_and_b32 v6, 31, v0\nv_lshlrev_b32 v6, 3, v6\ns_lshl_b32 s9, s{S_DT}, 8\ns_add_u32 s9, s9, {W_MOD + 5*5120}')
            s.poll([f'buffer_load_dwordx2 v[10:11], v6, {WSR}, s9 offen sc1'], s.ck_tag([[11]], 12), slp=o['mlslp'])
        s('L_D0:')
        if o['dL']:
            l = s.lab('noL')
            s(f's_bitcmp1_b32 {o["dL"] << 8}, s{SV}\ns_cbranch_scc0 {l}')
            s.trigger(); s.daddr(); s(s.ddma()); s(f'{l}:')
        s('s_barrier\ns_branch L_D')
        s.end()

    def ldswait(s, at, v, slp=1):
        l = s.lab('lw')
        s(f'v_mov_b32 v{v}, {at}\ns_mov_b32 s{SPIN}, {s.o["spin"]}\n{l}:\ns_sleep {slp}\nds_read_b32 v{v+1}, v{v}\ns_sub_u32 s{SPIN}, s{SPIN}, 1\ns_waitcnt lgkmcnt(0)')
        s(f'v_readfirstlane_b32 s10, v{v+1}\ns_cselect_b32 s10, 1, s10\ns_cmp_eq_u32 s10, 1\ns_cbranch_scc0 {l}')
    def waitprog(s, n, v, slp=None, at=LPRG):
        l = s.lab('prog')
        s(f'v_mov_b32 v{v}, 0\ns_mov_b32 s{SPIN}, {s.o["spin"]}\n{l}:\ns_sleep {slp or s.o["mlslp"]}\nds_read_b32 v{v+1}, v{v} offset:{at}\ns_sub_u32 s{SPIN}, s{SPIN}, 1\ns_waitcnt lgkmcnt(0)')
        s(f'v_readfirstlane_b32 s4, v{v+1}\ns_cselect_b32 s4, 999, s4\ns_cmp_lt_u32 s4, {n}\ns_cbranch_scc1 {l}')
    def idpoll(s, slp):
        l = s.lab('gotid')
        if s.o['xab']:
            s(f's_add_u32 s7, s5, {W_XL - W_XC}')
            s.poll([f'buffer_load_dwordx2 v[4:5], v1, {WSR}, s7 offen sc1'], s.ck_tag([[5]], 6), slp=slp, spin=s.o['xab'])
            s(f's_cbranch_vccz {l}')
        s.poll([f'buffer_load_dwordx2 v[4:5], v1, {WSR}, s5 offen sc1'], s.ck_tag([[5]], 6), slp=slp)
        s(f'{l}:')

    def trigger(s):
        s.waitprog(s.o['btrig'] - 12, 12); s.waitprog(s.o['ball'], 12, 1, at=LCNT + 12)
    def daddr(s):
        s(f's_lshl_b32 s4, s{SV}, 13\ns_add_u32 s4, s4, {LBIG}')
        s.srd(RA, P_D, 1536 * 1280); s.rows(1, 2, 2, 1280)
        s(f's_mul_i32 s5, s{SV}, {128 * 1280}\ns_lshl_b32 s6, s{S_DT}, 6\ns_add_u32 s5, s5, s6')
    def ddma(s): return s.dma(8, 1, RA, 5, 16 * 1280, lambda t: f's_add_u32 m0, s4, {1024 * t}', 63)
    def caddr(s):
        s(f's_bitcmp1_b32 s{S_CS}, 0\ns_cselect_b64 s[{RA}:{RA+1}], s[{P_U}:{P_U+1}], s[{P_G}:{P_G+1}]\ns_mov_b32 s{RA+2}, {640 * 3072}\ns_mov_b32 s{RA+3}, 0x20000')
        s.swz(3072)
        s(f's_lshr_b32 s5, s{S_CS}, 1\ns_lshl_b32 s5, s5, 7')
    def swz(s, stride):
        s(f'v_lshrrev_b32 v2, 3, v0\nv_mul_u32_u24 v1, {stride}, v2\nv_and_b32 v2, 2, v2\nv_and_b32 v3, 7, v0\nv_xor_b32 v2, v2, v3\nv_xor_b32 v3, 4, v2')
        s('v_lshl_add_u32 v3, v3, 4, v1\nv_lshl_add_u32 v1, v2, 4, v1')
    def cdma(s, n, lds, F):
        out = []
        for t in range(n):
            out.append(lds(t))
            if F < 60: out.append(f's_waitcnt vmcnt({F - 1})')
            out.append(f'buffer_load_dwordx4 v{3 if t & 1 else 1}, {RAR}, s5 offen {s.o["wflag"]} lds')
            if t < n - 1: out.append(f's_add_u32 s5, s5, {8 * 3072}')
        return '\n'.join(out)

    def crole(s):
        s.cur = 'c'
        o = s.o; E = o['cE']; n = 2 * (10 - E)
        s(f'L_C:\ns_cmp_lt_u32 s{SV}, 4\ns_cbranch_scc0 L_exit')
        BW, A, D = 88, 8, 72
        s.caddr()
        s(f's_mul_i32 s4, s{SV}, {n}\ns_mul_i32 s6, s4, {8 * 3072}\ns_add_u32 s5, s5, s6\ns_lshl_b32 s4, s4, 10\ns_add_u32 s4, s4, {LBIG}')
        s.live('s_barrier\n' + s.cdma(n, lambda t: f's_add_u32 m0, s4, {1024 * t}', 63))
        s.tr_lane(2, 3, 1024, 128)
        s(f'v_bfe_u32 v3, v0, 3, 2\nv_xor_b32 v3, s{SV}, v3\nv_lshl_add_u32 v2, v3, 5, v2\nv_add_u32 v2, {LBIG}, v2\nv_add_u32 v5, 40960, v2')
        s.a_lane(3, 4, HS, 16, LH2)
        s(f's_and_b32 s4, s{S_CS}, 1\ns_mul_i32 s6, s4, 12288\ns_lshr_b32 s5, s{S_CS}, 1\ns_lshl2_add_u32 s5, s5, s{SV}\ns_lshl_b32 s5, s5, 7\ns_add_u32 s6, s6, s5\ns_add_u32 s6, s6, {W_ACT}')
        s(f'v_lshlrev_b32 v1, 3, v0\ns_mov_b32 s7, {hx(-LOG2E)}\nv_mov_b32 v77, s{TAG}\ns_add_u32 s8, s6, {W_AL - W_ACT}')
        s('s_waitcnt vmcnt(0)')
        s.stamp(3)
        s.live('s_barrier')
        for T in range(20):
            for hi in range(2): s(f'ds_read_b64_tr_b16 {P(BW + 4*T + 2*hi)}, v{2 if T < 10 else 5} offset:{4096*(T % 10) + 512*hi}')
        s('s_waitcnt lgkmcnt(0)'); s.live('s_barrier')
        s.stamp(5)
        for T in range(15): s(f'ds_read_b128 {Q4(A+4*T)}, v3 offset:{64*T}')
        for T in range(20):
            s(f's_waitcnt lgkmcnt({min(14, 19 - T)})')
            s.mfma(D, A + 4 * (T % 15), BW + 4 * T, T == 0)
            if T < 5: s(f'ds_read_b128 {Q4(A+4*T)}, v3 offset:{64*(T+15)}')
        l = s.lab('up')
        s(f's_cmp_eq_u32 s4, 1\ns_cbranch_scc1 {l}')
        for op in (f'v_mul_f32 v{{t}}, s7, v{{d}}', 'v_exp_f32 v{t}, v{t}', 'v_add_f32 v{t}, 1.0, v{t}', 'v_rcp_f32 v{t}, v{t}', 'v_mul_f32 v{d}, v{d}, v{t}'):
            for b in range(2): s(op.format(t=D + 2 + b, d=D + b))
        s(f'{l}:\nv_cvt_pk_bf16_f32 v76, v{D}, v{D+1}')
        s.warmret('L_wC')
        st = [f'buffer_store_dwordx2 v[76:77], v1, {WSR}, s6 offen sc1', f'buffer_store_dwordx2 v[76:77], v1, {WSR}, s8 offen']
        s('s_mov_b64 exec, 0xffff\n' + '\n'.join(st[::-1] if o['pfa'] else st))
        s.stamp(6)
        s.end()

    def drole(s):
        s.cur = 'd'
        o = s.o
        s('L_D:')
        BW, A, D = 40, 72, 88
        s.daddr(); s.srd(RB, P_OUT, 2560)
        l = s.lab('have')
        have = f's_bitcmp1_b32 {o["dL"] << 8}, s{SV}' if o['dL'] else f's_cmp_ge_u32 s{SV}, {o["dW"]}'
        s.live(f's_barrier\n{have}\ns_cbranch_scc1 {l}\n' + s.ddma() + f'\n{l}:')
        s.tr_lane(2, 3, 512, 64)
        s('v_add_u32 v2, s4, v2\ns_waitcnt vmcnt(0)')
        s.stamp(3)
        for tt in range(2):
            for T in range(4):
                for hi in range(2): s(f'ds_read_b64_tr_b16 {P(BW + 16*tt + 4*T + 2*hi)}, v2 offset:{2048*T + 256*hi + 32*tt}')
        s(f's_lshl_b32 s4, s{SV}, 9\ns_add_u32 s4, s4, {LACT}\nv_lshl_add_u32 v2, v0, 2, s4')
        s.a_lane(3, 4, 256, 16, 0); s('v_add_u32 v3, s4, v3')
        s(f'v_and_b32 v4, 31, v0\nv_mul_u32_u24 v4, 96, v4\ns_lshl_b32 s4, s{SV}, 2\ns_add_u32 s4, s4, {LDP}\nv_add_u32 v4, s4, v4')
        s(f'v_lshlrev_b32 v1, 4, v0\ns_lshl_b32 s5, s{SV}, 10\ns_add_u32 s5, s5, {W_ACT}')
        s('s_add_u32 s6, s5, 12288')
        if True:
            s(f'v_mov_b32 v5, {LFLAG}\nds_read_b32 v6, v5\ns_lshl_b32 s7, s{SV}, 1\ns_mul_i32 s8, s{S_X}, 3\ns_sub_u32 s7, s7, s8\nv_lshrrev_b32 v5, 5, v0\nv_add_u32 v5, s7, v5\nv_cmp_gt_u32 vcc, 3, v5')
            s(f's_waitcnt lgkmcnt(0)\nv_subrev_u32 v6, 1, v6\nv_readfirstlane_b32 s11, v6\nv_mul_u32_u24 v6, {W_AL - W_ACT}, v6\nv_cndmask_b32 v5, 0, v6, vcc\nv_add_u32 v1, v1, v5')
        s(f'v_and_b32 v5, 31, v0\nv_lshlrev_b32 v6, 3, v5\nv_lshrrev_b32 v7, 5, v0')
        lf = s.lab('nofin')
        s(f's_cmp_eq_u32 s{SV}, {o["fw"]}\ns_cbranch_scc0 {lf}')
        s(f's_lshl_b32 s8, s{S_DT}, 8\ns_add_u32 s9, s8, {W_MOD + 5*5120}\ns_add_u32 s8, s8, {W_X1}')
        s(f's_lshl_b32 s10, s{S_X}, 13\ns_add_u32 s8, s8, s10')
        if o['fw']: s.poll([f'buffer_load_dwordx2 v[8:9], v6, {WSR}, s8 offen sc1'], s.ck_tag([[9]], 12), slp=o['dslp'], warmable=True)
        else: s.poll([f'buffer_load_dwordx2 v[10:11], v6, {WSR}, s9 offen sc1', f'buffer_load_dwordx2 v[8:9], v6, {WSR}, s8 offen sc1'], s.ck_tag([[11], [9]], 12), slp=o['dslp'], warmable=True)
        s('v_lshlrev_b32 v9, 4, v7\nv_lshrrev_b32 v8, v9, v8\nv_lshlrev_b32 v8, 16, v8\nv_lshrrev_b32 v10, v9, v10\nv_lshlrev_b32 v10, 16, v10')
        if o['adel']: s(f's_sleep {o["adel"]}')
        if o['agate']:
            s(f's_cmp_eq_u32 s11, 1\ns_cbranch_scc0 {lf}')
            s(f'v_min_u32 v11, {o["agate"] - 1}, v5\nv_lshlrev_b32 v11, 7, v11\nv_mul_u32_u24 v9, 12288, v7\nv_add_u32 v11, v11, v9\ns_mul_i32 s8, s{S_X}, 1536\ns_add_u32 s8, s8, {W_AL}')
            s.poll([f'buffer_load_dword v9, v11, {WSR}, s8 offen offset:4 sc1'], s.ck_tag([[9]], 12), warmable=True)
        s(f'{lf}:')
        s(f'v_lshl_add_u32 v6, v5, 1, v7\nv_mul_u32_u24 v6, 48, v6\nv_add_u32 v6, {LDP}, v6')
        s(f'v_mul_u32_u24 v7, 1280, v7\nv_lshl_add_u32 v5, v5, 1, v7\ns_lshl_b32 s8, s{S_DT}, 6')
        if o['otouch']: s(f'buffer_load_dword v30, v5, {RBR}, s8 offen')
        s.live('s_barrier')
        ck, t = s.ck_tag([[17, 19], [21, 23]], 12)
        for k in range(2):
            for r in (16 + 4 * k, 18 + 4 * k): ck[k] += f'\nv_and_b32 v{r+1}, 0xffff0000, v{r}\nv_lshlrev_b32 v{r}, 16, v{r}'
        s.poll([f'buffer_load_dwordx4 {Q4(16+4*k)}, v1, {WSR}, s{5+k} offen sc1' for k in range(2)], (ck, t), warmable=True)
        s.stamp(5)
        s('v_pk_mul_f32 v[16:17], v[16:17], v[20:21]\nv_pk_mul_f32 v[18:19], v[18:19], v[22:23]\nv_cvt_pk_bf16_f32 v16, v16, v18\nv_cvt_pk_bf16_f32 v17, v17, v19')
        s('ds_write2st64_b32 v2, v16, v17 offset0:0 offset1:1\ns_waitcnt lgkmcnt(0)')
        for T in range(4): s(f'ds_read_b128 {Q4(A+4*T)}, v3 offset:{64*T}')
        for T in range(4):
            s(f's_waitcnt lgkmcnt({3-T})')
            for tt in range(2): s.mfma(D + 4 * tt, A + 4 * T, BW + 16 * tt + 4 * T, T == 0)
        for b in range(2): s(f'v_mov_b32_dpp v{D+b}, v{D+4+b} quad_perm:[0,1,2,3] row_mask:0xa bank_mask:0xf')
        s(f'ds_write2_b32 v4, v{D}, v{D+1} offset0:0 offset1:12\ns_waitcnt lgkmcnt(0)'); s.stamp(1); s.live('s_barrier'); s.stamp(2)
        s(f's_cmp_eq_u32 s{SV}, {o["fw"]}\ns_cbranch_scc0 L_exit')
        for k in range(3): s(f'ds_read_b128 {Q4(16+4*k)}, v6 offset:{16*k}')
        s('s_waitcnt lgkmcnt(1)\nv_pk_add_f32 v[16:17], v[16:17], v[18:19]\nv_pk_add_f32 v[20:21], v[20:21], v[22:23]\nv_pk_add_f32 v[16:17], v[16:17], v[20:21]')
        s('s_waitcnt lgkmcnt(0)\nv_pk_add_f32 v[24:25], v[24:25], v[26:27]\nv_pk_add_f32 v[16:17], v[16:17], v[24:25]\nv_add_f32 v16, v16, v17')
        s('v_fma_f32 v16, v16, v10, v8\nv_mov_b32_dpp v17, v16 quad_perm:[1,1,3,3] row_mask:0xf bank_mask:0xf\nv_cvt_pk_bf16_f32 v16, v16, v17')
        s.warmret('L_wD')
        s(f's_mov_b32 exec_lo, 0x55555555\ns_mov_b32 exec_hi, 0x55555555\nbuffer_store_dword v16, v5, {RBR}, s8 offen {o["oflag"]}')
        s.stamp(6)
        s(f's_cmp_eq_u32 s{S_DT}, 0\ns_cbranch_scc0 L_fin')
        s(f's_mov_b64 exec, 1\nv_mov_b32 v17, s{TAG}\nv_mov_b32 v18, 0\nbuffer_store_dword v17, v18, {WSR}, 0 offen {o["oflag"]}')
        if o['diag']:
            s(f'L_diag:\ns_memrealtime s[76:77]\ns_waitcnt lgkmcnt(0)\ns_sub_u32 s76, s76, s78\ns_cmp_lt_u32 s76, {o["diag"]}\ns_cbranch_scc1 L_diag')

    def exit(s):
        s('L_fin:')
        if s.o['stamps'] != 4: s('L_exit:')
        if s.o['stamps']:
            s('s_waitcnt vmcnt(0)')
            s.stamp(7, True)
            if s.o['stamps'] == 3: s(f's_memtime s[{ST0+12}:{ST0+13}]')
            s('s_mov_b64 exec, 1\ns_waitcnt lgkmcnt(0)')
            s(f'{"s_mov_b32 s4, s14" if s.o["stamps"] == 4 else "s_mul_i32 s4, s2, 12"}\n{"" if s.o["stamps"] == 4 else "s_add_u32 s4, s4, s3"}\ns_lshl_b32 s4, s4, 6\ns_add_u32 s4, s4, {W_STAMP}\nv_mov_b32 v1, 0')
            for k in range(4):
                for e in range(4): s(f'v_mov_b32 v{4+4*k+e}, s{ST0+4*k+e}')
                s(f'buffer_store_dwordx4 {Q4(4+4*k)}, v1, {WSR}, s4 offen offset:{16*k}')
        if s.o['stamps'] == 4: s('L_exit:')
        s('L_end:\ns_endpgm')

    def build(s):
        s.entry(); s.stream()
        for _ in range(s.o['shift']): s('s_endpgm')
        s('L_service:')
        s('; ---- the flags, counters and hints in LDS start out clear (complete at the wait for the arguments, before the first barrier)')
        s(f'v_and_b32 v1, 15, v0\nv_cmp_eq_u32 vcc, {(LMODE - LFLAG) // 4}, v1\nv_mov_b32 v2, 999\nv_lshlrev_b32 v1, 2, v1\nv_cndmask_b32 v2, 0, v2, vcc\nds_write_b32 v1, v2 offset:{LFLAG}')
        s.roles()
        s('s_cmp_eq_u32 s3, 9\ns_cbranch_scc1 L_s1\ns_cmp_eq_u32 s3, 10\ns_cbranch_scc1 L_s2\ns_cmp_eq_u32 s3, 11\ns_cbranch_scc1 L_s3')
        s.s0(); s.bgather(); s('L_s1:'); s.s1(); s('L_s2:'); s.s2(); s('L_s3:'); s.s3(); s.crole(); s.drole(); s.exit()
        body, n = pad(s.L)
        out = [HEADER.rstrip(), f'; @launch grid=(256,1,1) block=(768,1,1) lds={LEND}', '.amdgcn_target "amdgcn-amd-amdhsa--gfx950"', '.text',
               f'.globl {KN}', '.p2align 8', f'.type {KN},@function', f'{KN}:']
        out += [l if l.endswith(':') or l.startswith(';') else '    ' + l for l in body]
        out += ['.section .rodata,"a"', '.p2align 6', f'.amdhsa_kernel {KN}', '  .amdhsa_next_free_vgpr 168', '  .amdhsa_next_free_sgpr 96',
                '  .amdhsa_accum_offset 168', '  .amdhsa_group_segment_fixed_size 0', '  .amdhsa_kernarg_size 112', '  .amdhsa_user_sgpr_count 2',
                '  .amdhsa_user_sgpr_kernarg_segment_ptr 1', '  .amdhsa_system_sgpr_workgroup_id_x 1', '  .amdhsa_float_denorm_mode_32 3', '.end_amdhsa_kernel']
        return '\n'.join(out) + '\n', n

if __name__ == '__main__':
    names = []
    for spec in sys.argv[1:]:
        kw = {}
        name, _, rest = spec.partition(':')
        for kv in filter(None, rest.split(',')):
            k, v = kv.split('=')
            kw[k] = int(v) if v.isdigit() else v.replace('+', ' ').replace('_', '')
        t, n = G(**kw).build()
        open(name, 'w').write(t)
        names.append(name)
    print(' '.join(names))
```

```python
import sys, struct
from asmlib import pad
KN = 'adaLN_cond__gqa_block_cached__swiglu_ffn__decode_kernel'

def f2u(x): return struct.unpack('<I', struct.pack('<f', x))[0]
def hx(x): return hex(f2u(x))
LOG2E = 1.4426950408889634
W_E, W_PG, W_MOD, W_XL, W_XC, W_ACT = 0, 0x800, 0x1000, 0x2000, 0x9000, 0xA000
W_X1, W_GL, W_AL, W_YL, W_Y, W_ATT, W_ML, W_MP, W_QP, W_END = 0x10000, 0x20000, 0x28000, 0x30000, 0x58000, 0x80000, 0x180000, 0x1A0000, 0x1E0000, 0x260000
W_STAMP = 512 << 20
LQ, LFLAG, LPRG, LMODE, LQF, LGO, LCNT, LXS, LHS, LO, LH2, LPO, LBIG = 0, 1536, 1544, 1552, 1556, 1560, 1568, 1664, 2304, 2816, 6144, 9216, 58368
LMF = 1564
LYO = LXS
LACT, LDP = LPO, LPO + 6144
OS = 768 + 64
HS = 1280 + 64
LM, LWQ, LB, LEND = LBIG, LBIG + 20480, LBIG + 51200, LBIG + 100352
P_X, P_K, P_V, P_WQ, P_WO, P_BX, P_G, P_U, P_D, P_C, P_WM, P_OUT, P_DBG, P_WS = range(16, 44, 2)
TAG, S_H, S_J, S_R, S_X, S_IDX, LOC, S_CS = 44, 45, 46, 47, 48, 49, 50, 51
WS = 52; RA = 56; RB = 60
S_ROLE = 15
S_DT = 14
SPIN = 13
SV = 12
ST0 = 80
WSR = f's[{WS}:{WS+3}]'; RAR = f's[{RA}:{RA+3}]'; RBR = f's[{RB}:{RB+3}]'
P = lambda r: f'v[{r}:{r+1}]'
Q4 = lambda r: f'v[{r}:{r+3}]'


HEADER = """; Kernarg layout for this problem (112 bytes, ptrs only, base s[0:1]):
;
"""

class G:
    def __init__(s, **o):
        s.o = dict(F=3, NPF=12, RC=3, endF=5, endN=6, rot=6, wflag='nt', sflag='nt', spin=1 << 22, pslp=8, mlslp=32,
                   qF=63, mF=63, bF=1, cF=1, dF=1, cE=3, dE=3, bE=0, bEF=2, bonus=1, ord='0123', ordk='2301', wst=0, wF=3, up=1, upF=63, F0=3, N0=0, upe=0, qfirst=1, mfirst=1, b0=1, order='0123', lin=0, fpat='', lpat='', fw=11, dslp=8, agate=0, adel=0, prio=0, bD=24, btrig=192, ball=8, bfl=1, cL=0, dL=0, Fm=3, Flom=2, far=0, emu=0, emin=6, emin2=3, shift=0, rown=1, pfy=0, pfa=0, rg=4, dg=1, rmiss=0, otouch=0, eg0=16, st0=112, qlight=0, glight=0, gmap=1, sep=0, dW=9, eg=182, xab=6, oflag='', warm=1, loc=1,
                   bal=1, stat1=130, cstep=8, bdel=20, n1=11, cstep2=6, bdel2=17, c0=6, bslp=12, Flo=2, bend=183,
                   stamps=0, stk='', phst=0, remap=0, diag=0, nox='')
        s.o.update(o); s.L = []; s.uid = 0; s.cur = '?'
    def __call__(s, t):
        for l in t.split('\n'):
            l = l.strip()
            if l: s.L.append(l)
    def lab(s, n): s.uid += 1; return f'L_{n}_{s.uid}'
    def srd(s, d, ptr, size):
        s(f's_mov_b32 s{d}, s{ptr}\ns_mov_b32 s{d+1}, s{ptr+1}\ns_mov_b32 s{d+2}, {size}\ns_mov_b32 s{d+3}, 0x20000')
    def stamp(s, k, lite=False):
        if s.o['stamps'] == 4 and k not in (0, 7): return
        if s.o['stamps'] == 1 or (s.o['stamps'] and (lite or str(k) + s.cur in s.o['stk'])): s(f's_memrealtime s[{ST0+2*k}:{ST0+2*k+1}]')
    def bf16r(s, d, src=None):
        src = d if src is None else src
        s(f'v_cvt_pk_bf16_f32 v{d}, v{src}, v{src}\nv_and_b32 v{d}, 0xffff0000, v{d}')
    def dppop(s, op, v, ctl): s(f'{op}_dpp v{v}, v{v}, v{v} {ctl} row_mask:0xf bank_mask:0xf')
    def red16(s, op, vs, skip1=False, fill=None):
        for ctl in (['quad_perm:[1,0,3,2]'] if not skip1 else []) + ['quad_perm:[2,3,0,1]', 'row_half_mirror', 'row_mirror']:
            if fill:
                for _ in range(2):
                    if fill: s(fill.pop(0))
            for v in vs: s.dppop(op, v, ctl)
    def swapred(s, op, v, t, w, fill=None):
        s(f'v_mov_b32 v{t}, v{v}')
        if fill:
            for _ in range(2):
                if fill: s(fill.pop(0))
        s(f'v_permlane{w}_swap_b32 v{v}, v{t}\n{op} v{v}, v{v}, v{t}')
    def live(s, text):
        if not s.o['warm']: s(text); return
        l = s.lab('lv'); s(f's_cbranch_execz {l}'); s(text); s(f'{l}:')
    def warm(s, entry, ret):
        if not s.o['warm']: return
        for r in range(1, 8): s(f'v_mov_b32 v{r}, 0')
        s(f's_mov_b64 exec, 0\ns_branch {entry}\n{ret}:\ns_mov_b64 exec, -1')
    def warmret(s, ret):
        if s.o['warm']: s(f's_cbranch_execz {ret}')
    def ck_tag(s, groups, t):
        out = []; first = True
        for g in groups:
            l = []
            for r in g:
                l.append(f'v_xor_b32 v{t}, s{TAG}, v{r}' if first else f'v_bitop3_b32 v{t}, v{r}, s{TAG}, v{t} bitop3:0xbe'); first = False
            out.append('\n'.join(l))
        return out, t
    def ck_xor(s, bases, n, t, t2):
        out = []
        for i, b in enumerate(bases):
            l = [f'v_bitop3_b32 v{t2}, v{b}, v{b+1}, v{b+2} bitop3:0x96']
            if n == 3: l.append(f'v_xor_b32 v{t2}, v{t2}, v{b+3}')
            l.append(f'v_xor_b32 v{t}, s{TAG}, v{t2}' if i == 0 else f'v_bitop3_b32 v{t}, v{t2}, s{TAG}, v{t} bitop3:0xbe')
            out.append('\n'.join(l))
        return out, t
    def poll(s, loads, ck, slp=0, warmable=False, nm='?', slpif=None, spin=None, pre=None):
        if nm in s.o['nox']: return
        checks, t = ck
        a = s.lab('poll'); b = s.lab('ok')
        s(f's_mov_b32 s{SPIN}, {spin or s.o["spin"]}')
        c0 = s.lab('chk')
        if pre: s('\n'.join(loads)); s(pre); s(f's_branch {c0}')
        s(f'{a}:')
        (s.live if warmable else s)('\n'.join(loads))
        if pre: s(f'{c0}:')
        for i, c in enumerate(checks): s(f's_waitcnt vmcnt({len(loads) - 1 - i})'); s(c)
        s(f'v_cmp_ne_u32 vcc, 0, v{t}\ns_cbranch_vccz {b}')
        if slpif: c = s.lab('ns'); s(f'{slpif}\ns_cbranch_scc1 {c}\ns_sleep {s.o["mlslp"]}\n{c}:')
        if slp: s(f's_sleep {slp}')
        s(f's_sub_u32 s{SPIN}, s{SPIN}, 1\ns_cbranch_scc0 {a}\n{b}:')
    def gather(s, loads, cks, sm, slp=0, nm='?'):
        if nm in s.o['nox']: return
        n = len(loads); a = s.lab('gat'); b = s.lab('ok')
        s(f's_mov_b32 s{SPIN}, {s.o["spin"]}\ns_mov_b32 s{sm}, {(1 << n) - 1}\n{a}:')
        for k in range(n):
            l = s.lab('sk'); s(f's_bitcmp1_b32 s{sm}, {k}\ns_cbranch_scc0 {l}\n{loads[k]}\n{l}:')
        s(f's_mov_b32 s{sm}, 0\ns_waitcnt vmcnt(0)')
        for k in reversed(range(n)):
            s(cks[k][0][0]); s(f'v_cmp_ne_u32 vcc, 0, v{cks[k][1]}\ns_cmp_lg_u64 vcc, 0\ns_addc_u32 s{sm}, s{sm}, s{sm}')
        s(f's_cmp_eq_u32 s{sm}, 0\ns_cbranch_scc1 {b}')
        if slp: s(f's_sleep {slp}')
        s(f's_sub_u32 s{SPIN}, s{SPIN}, 1\ns_cbranch_scc0 {a}\n{b}:')
    def gstore(s, stores, nm='?'):
        if nm in s.o['nox']: return
        a = s.lab('pl'); b = s.lab('st')
        s(f's_cmp_eq_u32 s{LOC}, 1\ns_cbranch_scc1 {a}')
        for t in stores: s(t + ' sc1')
        s(f's_branch {b}\n{a}:')
        for t in stores: s(t)
        s(f'{b}:')
    def getloc(s, t, spin=True, at=LFLAG):
        a = s.lab('loc'); b = s.lab('locok')
        if spin: s(f's_mov_b32 s{SPIN}, {s.o["spin"] * 8}\n{a}:')
        s(f'v_mov_b32 v{t}, {at}\nds_read_b32 v{t}, v{t}\ns_waitcnt lgkmcnt(0)\nv_readfirstlane_b32 s{LOC}, v{t}\ns_sub_u32 s{LOC}, s{LOC}, 1')
        if spin: s(f's_cmp_le_u32 s{LOC}, 1\ns_cbranch_scc1 {b}\ns_sleep 1\ns_sub_u32 s{SPIN}, s{SPIN}, 1\ns_cbranch_scc0 {a}\n{b}:')
    def dma(s, n, voff, srd, soff, sstep, lds, F):
        out = []
        for t in range(n):
            st = sstep(t) if callable(sstep) else sstep
            out.append(lds(t) if callable(lds) else f's_mov_b32 m0, {lds + 1024 * t}')
            if F < 60: out.append(f's_waitcnt vmcnt({F - 1})')
            out.append(f'buffer_load_dwordx4 v{voff}, s[{srd}:{srd+3}], s{soff} offen {s.o["wflag"]} lds')
            if t < n - 1: out.append(f's_add_u32 s{soff}, s{soff}, {st}')
        return '\n'.join(out)
    def rows(s, d, t, sh, stride):
        s(f'v_lshrrev_b32 v{d}, {sh}, v0\nv_mul_u32_u24 v{d}, {stride}, v{d}\nv_and_b32 v{t}, {(1 << sh) - 1}, v0\nv_lshl_add_u32 v{d}, v{t}, 4, v{d}')
    def tr_lane(s, d, t, gs, rs):
        s(f'v_lshrrev_b32 v{d}, 4, v0\nv_mul_u32_u24 v{d}, {gs}, v{d}')
        s(f'v_bfe_u32 v{t}, v0, 2, 2\nv_mul_u32_u24 v{t}, {rs}, v{t}\nv_add_u32 v{d}, v{d}, v{t}')
        s(f'v_and_b32 v{t}, 3, v0\nv_lshl_add_u32 v{d}, v{t}, 3, v{d}')
    def a_lane(s, d, t, bs, gs, base):
        s(f'v_and_b32 v{d}, 1, v0\nv_mul_u32_u24 v{d}, {bs}, v{d}\nv_lshrrev_b32 v{t}, 4, v0\nv_mul_u32_u24 v{t}, {gs}, v{t}')
        s(f'v_add_u32 v{d}, v{d}, v{t}')
        if base: s(f'v_add_u32 v{d}, {base}, v{d}')
    def mfma(s, d, a, b, first, k=32):
        n = 4 if k == 32 else 2
        s(f'v_mfma_f32_16x16x{k}_bf16 v[{d}:{d+3}], v[{a}:{a+n-1}], v[{b}:{b+n-1}], ' + ('0' if first else f'v[{d}:{d+3}]'))
    def role(s, bit, label, ifset=True): s(f's_bitcmp1_b32 s{S_ROLE}, {bit}\ns_cbranch_scc{1 if ifset else 0} {label}')
    def end(s): s('s_branch L_exit' if s.o['stamps'] in (1, 2) else 's_endpgm')
    def ghead(s, d):
        if s.o['gmap']: s(f's_lshr_b32 s{d}, s2, 7\ns_lshl3_add_u32 s{d}, s{d}, s{S_X}')
        else: s(f's_lshr_b32 s{d}, s{S_H}, 1')
    def tagwait(s): s(f's_waitcnt lgkmcnt(0)\ns_add_u32 s{TAG}, s{TAG}, 0x9e3779b1')

    def entry(s):
        o = s.o
        s(f's_cmp_ge_u32 s2, 256\ns_cbranch_scc1 L_end')
        s.stamp(0, True)
        s('s_load_dwordx16 s[16:31], s[0:1], 0\ns_load_dwordx8 s[32:39], s[0:1], 64\ns_load_dwordx4 s[40:43], s[0:1], 96')
        if o['diag']: s('s_memrealtime s[78:79]')
        s('v_readfirstlane_b32 s3, v0\nv_and_b32 v0, 63, v0')
        if o['remap']: s('s_lshr_b32 s4, s2, 3\ns_and_b32 s4, s4, 7\ns_xor_b32 s2, s2, s4')
        s(f's_and_b32 s{S_X}, s2, 7\ns_lshr_b32 s4, s2, 6\ns_bfe_u32 s{S_J}, s2, 0x30003\ns_lshl2_add_u32 s{S_H}, s{S_X}, s4\ns_lshr_b32 s3, s3, 6')
        s('s_cmp_ge_u32 s3, 8\ns_cbranch_scc1 L_service')

    def roles(s):
        o = s.o
        for k in range(1, 8): s.stamp(k, True)
        s(f's_lshr_b32 s{S_IDX}, s2, 3\ns_lshr_b32 s11, s2, 6')
        lb = s.lab('nonB'); lr = s.lab('roles')
        s(f's_mov_b32 s{S_DT}, 0\ns_mov_b32 s{SV}, s3')
        s(f's_cmp_lt_u32 s{S_J}, 5\ns_cbranch_scc0 {lb}')
        if o['rown']:
            s(f's_and_b32 s9, s11, 1\ns_mul_i32 s{S_CS}, s9, 5\ns_add_u32 s{S_CS}, s{S_CS}, s{S_J}\ns_and_b32 s9, s11, 2\ns_lshl2_add_u32 s{S_CS}, s{S_CS}, s9\ns_and_b32 s9, s3, 1\ns_add_u32 s{S_CS}, s{S_CS}, s9')
        else: s(f's_mul_i32 s{S_CS}, s11, 5\ns_add_u32 s{S_CS}, s{S_CS}, s{S_J}\ns_lshl_b32 s{S_CS}, s{S_CS}, 1\ns_and_b32 s9, s3, 1\ns_add_u32 s{S_CS}, s{S_CS}, s9')
        s(f's_mov_b32 s{S_ROLE}, 1\ns_branch {lr}')
        s(f'{lb}:')
        s(f's_mul_i32 s8, s11, 3\ns_add_u32 s8, s8, s{S_J}\ns_sub_u32 s8, s8, 5')
        s(f's_mul_i32 s{S_CS}, s{S_X}, 6\ns_add_u32 s{S_CS}, s{S_CS}, s8')
        s(f's_add_u32 s9, s8, 10\ns_and_b32 s9, s9, 14\ns_lshl_b32 s10, s9, 2\ns_add_u32 s10, s10, s{S_X}')
        s(f's_lshl_b32 s{S_DT}, s10, 1\ns_and_b32 s9, s8, 1\ns_add_u32 s{S_DT}, s{S_DT}, s9')
        s(f's_cmp_lt_u32 s10, 10\ns_cselect_b32 s{S_ROLE}, 8, 0')
        s(f's_cmp_lt_u32 s8, 6\ns_cselect_b32 s{S_ROLE}, 2, s{S_ROLE}')
        s(f'{lr}:')
        s('s_waitcnt lgkmcnt(0)')
        s(f's_load_dword s{TAG}, s[{P_WS}:{P_WS+1}], 0')
        s.srd(WS, P_WS, 805306368 if o['stamps'] else W_END)

    def stream(s):
        s.cur = 'w'
        o = s.o; F = o['F']; NPF = o['NPF']
        VK, QA, ACC, TS, MX = 1, 4, 16, 2, 3
        RING = 24
        SC = RING
        T1, T2, LS, PPT = RING + 8, RING + 9, RING + 10, RING + 11
        MK = RING + 12
        VV, BP, PP2, T3 = RING + 16, RING + 17, RING + 18, RING + 19
        ML = RING + 20
        RET = 7
        BM, BA, BZ = RING + 24, RING + 25, RING + 26
        A2 = []
        s(f'v_bfe_u32 v{VK}, v0, 1, 3\nv_mul_u32_u24 v{VK}, 384, v{VK}\nv_lshrrev_b32 v2, 4, v0\nv_lshl_add_u32 v{VK}, v2, 5, v{VK}')
        s(f'v_and_b32 v2, 1, v0\nv_lshl_add_u32 v{VK}, v2, 4, v{VK}')
        if o['lin']: s(f'v_lshlrev_b32 v{VK}, 4, v0')
        PD = 16 * 3145728; STEP = 393216; OV = [int(c) for c in str(o['ord']).zfill(4)]
        OD = [int(c) for c in str(o['ordk'] or o['ord']).zfill(4)] + OV
        s(f's_bfe_u32 s7, s2, 0x40003\ns_lshl3_add_u32 s7, s7, s3\ns_mul_i32 s4, s7, 3072'); s.ghead(10)
        s(f's_mul_i32 s5, s10, 3145728\ns_add_u32 s4, s4, s5\ns_add_u32 s4, s4, {OD[0] * PD}\ns_add_u32 s6, s4, 3145728')
        s(f's_mul_i32 s5, s10, {o["rot"]}\ns_and_b32 s5, s5, 7\ns_mul_i32 s5, s5, {STEP}\ns_add_u32 s5, s5, s4')
        s(f's_mov_b32 s{RA+2}, 201326592\ns_mov_b32 s{RA+3}, 0x20000\ns_waitcnt lgkmcnt(0)\ns_mov_b64 s[{RA}:{RA+1}], s[{P_K}:{P_K+1}]')
        def emu(both=True):
            if o['emu']:
                s(f's_cmp_ge_u32 s4, {43 * 3145728}\ns_cselect_b64 s[{RA}:{RA+1}], s[{P_BX}:{P_BX+1}], s[{P_K}:{P_K+1}]')
                if both: s(f's_cselect_b64 s[{RB}:{RB+1}], s[{P_DBG}:{P_DBG+1}], s[{P_V}:{P_V+1}]')
        emu(False)
        NL = 192
        quad = {}; free = list(range(3 * NPF)); vm = []
        done = [0]
        def wait(n):
            if len(vm) - done[0] > n:
                s(f's_waitcnt vmcnt({n})'); done[0] = len(vm) - n
        def issue(u):
            wait((o['endF'] if u >= NL - o['endN'] else o['F0'] if u < o['N0'] else int(str(o['fpat'])[u % 3]) if o['fpat'] else o['Fm'] if OD[u // 24] == 2 else F) - 1)
            if o['bal'] and 3 * NPF + 9 <= u < NL - o['endN']:
                l = s.lab('th'); s(f's_cbranch_vccz {l}\ns_waitcnt vmcnt({(int(str(o["lpat"])[u % 3]) if o["lpat"] else o["Flo"]) - 1})')
                if o['far']: s(f's_cmp_eq_u64 s[72:73], 0\ns_cbranch_scc1 {l}\ns_waitcnt vmcnt(0)')
                s(f'{l}:')
            q = free.pop(0); quad[u] = q; r = RING + 4 * q
            srd, vo = (RAR, VK) if u < 96 else (RBR, VK if o['lin'] else VV)
            s(f'buffer_load_dwordx4 {Q4(r)}, v{vo}, {srd}, s5 offen offset:{(1024 if o["lin"] else 128) * (u % 3)} {o["sflag"]}')
            vm.append(u)
            if o['ball'] and u == o['btrig'] - 1: s(f's_mov_b64 exec, 1\nv_mov_b32 v{T2}, 1\nds_add_u32 v{BZ}, v{T2} offset:{LCNT + 12}\ns_mov_b64 exec, -1')
            if u % 3 == 2 and u < NL - 1:
                s(f's_add_u32 s5, s5, {STEP}\ns_cmp_ge_u32 s5, s6\ns_cselect_b32 s5, s4, s5')
                if u % 24 == 23:
                    t = u // 24; dl = OD[t + 1] - OD[t]
                    for r in (4, 5, 6): s(f's_{"add" if dl > 0 else "sub"}_u32 s{r}, s{r}, {abs(dl) * PD}')
                    emu()
                if o['phst'] == 1 and u % 48 == 47: s.stamp({47: 3, 95: 5, 143: 6}[u], True)
                if o['phst'] == 2 and u in (95, 119, 143): s.stamp({95: 3, 119: 5, 143: 6}[u], True)
            if u >= 3 * NPF + 3 and (u % 3 == 2 or not o['fpat']):
                if u >= 3 * NPF + 6:
                    s('s_waitcnt lgkmcnt(0)')
                    if o['far']: s(f'v_cmp_gt_u32 vcc, {u + 1 - o["far"]}, v{BM}\ns_mov_b64 s[72:73], vcc')
                    s(f'v_cmp_gt_u32 vcc, {u + 1}, v{BM}')
                s(f'v_mov_b32 v{BM}, {u + 1}\nds_write_b32 v{BA}, v{BM} offset:{LPRG}\nds_read_b32 v{BM}, v{BZ} offset:{LMODE}')
        def ready(u): return u in vm and vm.index(u) < done[0]
        def kpost(g):
            a = ACC + 4 * (g & 1); sc = SC + (g >> 2)
            s(f'v_cndmask_b32_e64 v{TS}, v{a}, v{a+1}, s[8:9]')
            s(f'v_add_f32_dpp v{sc}, v{TS}, v{TS} quad_perm:[1,0,3,2] row_mask:{1 << (g & 3)} bank_mask:0xf')
            if g & 3 == 3:
                s.bf16r(sc); s(f'v_mul_f32 v{sc}, {hx(192 ** -0.5)}, v{sc}'); s.bf16r(sc)
            if g & 7 == 7:
                a = sc - 1; row = f'quad_perm:[0,1,2,3] row_mask:{1 << OV.index(OD[g >> 3])} bank_mask:0xf'
                s(f'v_max_f32 v{MX}, v{a}, v{a+1}')
                s.red16('v_max_f32', [MX], skip1=True); s.swapred('v_max_f32', MX, T1, 16); s.swapred('v_max_f32', MX, T1, 32)
                s(f's_mov_b32 s10, {hx(LOG2E)}\nv_mul_f32 v{T1}, s10, v{MX}')
                for k in range(2): s(f'v_fma_f32 v{a+k}, v{a+k}, s10, -v{T1}')
                for k in range(2): s(f'v_exp_f32 v{a+k}, v{a+k}')
                s(f'v_mov_b32_dpp v{ML}, v{MX} {row}\nv_add_f32 v{LS}, v{a}, v{a+1}')
                for k in range(2): s(f'v_cvt_pk_bf16_f32 v{a+k}, v{a+k}, v{a+k}')
                s.red16('v_add_f32', [LS], skip1=True); s.swapred('v_add_f32', LS, T1, 16); s.swapred('v_add_f32', LS, T1, 32)
                s(f'v_mov_b32_dpp v{ML+1}, v{LS} {row}')
        def bperm(g):
            s(f'ds_bpermute_b32 v{PPT if g & 1 == 0 else PP2}, v{BP}, v{SC + 2 * OD.index(OV[g >> 3]) + (g >> 2 & 1)} offset:{64 * (g & 3)}')
        def switch():
            s.stamp(3)
            bperm(0)
            s(f'v_bitop3_b32 v{ML+2}, v{ML}, v{ML+1}, s{TAG} bitop3:0x96\nv_lshlrev_b32 v{ML+3}, 7, v0')
            s(f's_lshr_b32 s10, s{S_H}, 1\ns_lshl_b32 s10, s10, 9\ns_add_u32 s10, s10, s7\ns_lshl_b32 s10, s10, 4\ns_add_u32 s10, s10, {W_ML}')
            s('s_mov_b32 exec_lo, 0x00010001\ns_mov_b32 exec_hi, 0x00010001')
            s.gstore([f'buffer_store_dwordx4 {Q4(ML)}, v{ML+3}, {WSR}, s10 offen'])
            s('s_mov_b64 exec, -1')
            vm.append(None)
            s(f'v_lshrrev_b32 v{T1}, 5, v0\nv_mul_u32_u24 v{T1}, 768, v{T1}\nv_and_b32 v{T2}, 7, v0\nv_lshl_add_u32 v{T1}, v{T2}, 5, v{T1}')
            s(f'v_and_b32 v{T2}, 16, v0\nv_add_u32 v{T1}, v{T1}, v{T2}\ns_mul_i32 s10, s3, 1536\ns_add_u32 s10, s10, {LPO}\nv_add_u32 v{T1}, s10, v{T1}')
        def outp(acc, b):
            s('s_mov_b32 exec_lo, 0x00ff00ff\ns_mov_b32 exec_hi, 0xff00ff00')
            for jj in range(3): s(f'ds_write_b128 v{T1}, {Q4(acc[jj])} offset:{256*jj + 12288*b}')
            s('s_mov_b64 exec, -1')
        def proc(u):
            g, jj = divmod(u, 3)
            if g >= 32 and jj == 0:
                a = ACC + 4 * (g & 1)
                s('s_waitcnt lgkmcnt(0)')
                for k in range(4): s(f'v_and_b32 v{a+k}, v{PPT if g & 1 == 0 else PP2}, v{MK+k}')
                if g < 63: bperm(g - 31)
            wait(len(vm) - 1 - vm.index(u))
            r = RING + 4 * quad[u]
            if g < 32:
                s.mfma(ACC + 4 * (g & 1), QA + 4 * jj, r, jj == 0)
                if jj == 2 and g > 0: kpost(g - 1)
                if u == 5:
                    s(f'v_lshrrev_b32 v{BP}, 3, v0\nv_mul_u32_u24 v{VV}, 384, v{BP}\nv_lshlrev_b32 v{BP}, 3, v{BP}')
                    s(f'v_and_b32 v{T3}, 7, v0\nv_lshl_add_u32 v{VV}, v{T3}, 4, v{VV}')
                    s(f'v_and_b32 v{PP2}, 1, v0\nv_lshlrev_b32 v{PP2}, 4, v{PP2}\nv_mov_b32 v{MK}, 0xffff\nv_lshlrev_b32 v{PP2}, v{PP2}, v{MK}')
                    s(f'v_lshrrev_b32 v{T3}, 1, v{T3}')
                    for k in range(4):
                        s(f'v_cmp_eq_u32 vcc, {k}, v{T3}\nv_cndmask_b32 v{MK+k}, 0, v{PP2}, vcc')
                    s.a_lane(T3, PP2, 16, 32, LQ)
                if u in (23, 47, 71):
                    for k in range(3): s(f'ds_read_b128 {Q4(QA+4*k)}, v{T3} offset:{128*k + 384*OD[(u+1)//24]}')
                    s('s_waitcnt lgkmcnt(0)')
                if u == 6:
                    s(f's_cmp_eq_u32 s3, 3\ns_cselect_b32 s10, 0, 4\nv_mov_b32 v{BA}, s10\nv_mov_b32 v{BZ}, 0')
                if u == 95: kpost(31); switch()
            else:
                if u == 120: A2.extend(RING + 4 * free.pop() for _ in range(3))
                acc = lambda p: A2 if p & 1 else [QA, QA + 4, QA + 8]
                p = (g - 32) >> 3
                s.mfma(acc(p)[jj], ACC + 4 * (g & 1), r, g & 7 == 0)
                if u >= 190:
                    s(f's_mov_b32 exec_lo, 0x00ff00ff\ns_mov_b32 exec_hi, 0xff00ff00\nds_write_b128 v{T1}, {Q4(A2[jj-1])} offset:{256*(jj-1) + 3*12288}')
                    if u == 190: s('s_mov_b64 exec, -1')
                if p and u % 24 == 2:
                    outp(acc(p - 1), p - 1)
                    s(f's_mov_b64 exec, 1\nv_mov_b32 v{T2}, 1\nds_add_u32 v{BZ}, v{T2} offset:{LCNT + 4*(p-1)}\ns_mov_b64 exec, -1')
            if quad[u] >= RET: free.append(quad[u])
        li = 0
        if o['wst']:
            s.roles()
            s.wstage()
            vm.extend([None] * F)
        if o['sep']:
            s.roles(); s.tagwait(); s.ldswait(LGO, TS)
        while li < 3 * NPF:
            issue(li); li += 1
            if li == (min(F, o['F0']) if o['N0'] else F):
                if not o['sep'] and not o['wst']: s.roles()
                s.srd(RB, P_V, 201326592)
                if o['mfirst'] and not o['wst']: s('s_barrier')
            if li == F + 1:
                s('s_mov_b32 s8, 0xaaaaaaaa\ns_mov_b32 s9, 0xaaaaaaaa'); s.a_lane(TS, MX, 16, 32, LQ)
                if not o['sep']: s.tagwait()
        s.stamp(1, True)
        s('s_barrier')
        s.stamp(2, True)
        for jj in range(3): s(f'ds_read_b128 {Q4(QA+4*jj)}, v{TS} offset:{128*jj + 384*OD[0]}')
        s.getloc(MX, spin=False)
        pi = 0
        while pi < NL:
            if li < NL:
                while not free: proc(pi); pi += 1
                issue(li); li += 1
                if o['fpat'] and li % 3 and li < NL: continue
                n = -2 * o['RC'] if o['fpat'] else 0
                while n < o['RC'] and pi < NL and ready(pi): proc(pi); pi += 1; n += 1
            else:
                proc(pi); pi += 1
        s(f'ds_write_b128 v{T1}, {Q4(A2[2])} offset:{512 + 3*12288}\ns_mov_b64 exec, -1')
        s('s_waitcnt lgkmcnt(0)')
        s.stamp(4, True)
        s('s_barrier')
        s.role(3, 'L_D'); s.role(1, 'L_C'); s.role(0, 'L_exit', False)
        s(f'L_B:\ns_cmp_lt_u32 s{SV}, 4\ns_cbranch_scc0 L_exit')
        BW, AW, D = 40, 88, 136
        s.tr_lane(2, 3, 1024, 128)
        s(f'v_bfe_u32 v3, v0, 3, 2\nv_xor_b32 v3, s{SV}, v3\nv_lshl_add_u32 v2, v3, 5, v2\nv_add_u32 v2, {LB}, v2')
        TE = (48 - o['bD']) // 4
        trd = lambda T: '\n'.join(f'ds_read_b64_tr_b16 {P(BW+4*T+2*hi)}, v2 offset:{4096*T + 512*hi}' for hi in range(2))
        for T in range(TE): s(trd(T))
        s(f'v_and_b32 v3, 3, v0\nv_mul_u32_u24 v3, {OS}, v3\nv_and_b32 v4, 48, v0\nv_add_u32 v3, v3, v4\nv_add_u32 v3, {LO}, v3')
        for T in range(6): s(f'ds_read_b128 {Q4(AW+4*T)}, v3 offset:{64*T}')
        s(f'v_lshlrev_b32 v4, 4, v0')
        s(f's_lshr_b32 s10, s{S_H}, 1\ns_mul_i32 s10, s10, 40\ns_and_b32 s11, s{S_H}, 1\ns_mul_i32 s11, s11, 5\ns_add_u32 s11, s11, s{S_J}')
        s(f's_lshl2_add_u32 s10, s11, s10\ns_add_u32 s10, s10, s{SV}\ns_lshl_b32 s10, s10, 8\ns_add_u32 s10, s10, {W_Y}\ns_sub_u32 s11, s10, {W_Y - W_YL}')
        if o['rown']: s(f's_lshl_b32 s9, s{SV}, 7\ns_add_u32 s9, s9, {LYO}\nv_lshl_add_u32 v5, v0, 3, s9')
        s('s_waitcnt lgkmcnt(0)')
        for T in range(min(6, TE)): s.mfma(D, AW + 4 * T, BW + 4 * T, T == 0)
        if o['bD'] and o['bfl']:
            l = s.lab('nw')
            if o['warm']: s(f's_cbranch_execz {l}')
            s.waitprog(2, 6, 1, at=LCNT + 16)
            s(f'{l}:')
            for T in range(TE, 12): s(trd(T))
            s('s_waitcnt lgkmcnt(0)')
            for T in range(TE, 6): s.mfma(D, AW + 4 * T, BW + 4 * T, T == 0)
            TE = 12
        s.live('s_barrier')
        s.stamp(5)
        cnt = []
        for T in range(6, 12):
            s(f'ds_read_b128 {Q4(AW+4*T)}, v3 offset:{64*T}')
            if T >= TE: s(trd(T))
            cnt.append(3 if T >= TE else 1)
        for T in range(6, 12):
            s(f's_waitcnt lgkmcnt({min(15, sum(cnt[T-5:]))})'); s.mfma(D, AW + 4 * T, BW + 4 * T, False)
        s.warmret('L_wB')
        s(f's_mov_b64 exec, 0xffff\nv_pk_add_f32 {P(D)}, {P(D)}, {P(D+2)}\nv_bitop3_b32 v{D+2}, v{D}, v{D+1}, s{TAG} bitop3:0x96')
        st = [f'buffer_store_dwordx4 {Q4(D)}, v4, {WSR}, s10 offen sc1', f'buffer_store_dwordx4 {Q4(D)}, v4, {WSR}, s11 offen']
        s('\n'.join(st[::-1] if o['pfy'] else st))
        if o['rown']: s(f'ds_write_b64 v5, {P(D)}\ns_waitcnt lgkmcnt(0)')
        s.stamp(6)
        if o['rg']: s('s_barrier')
        s.end()

    def s0(s):
        s.cur = 'a'
        o = s.o
        lsk = s.lab('noM'); lj = s.lab('Mj'); ln = s.lab('Mn')
        s(f's_lshr_b32 s4, s{S_IDX}, 2\ns_lshl_b32 s4, s4, 3\ns_add_u32 s4, s4, s{S_X}')
        s(f's_cmp_lt_u32 s4, 60\ns_cbranch_scc0 {lsk}')
        s(f's_and_b32 s7, s{S_IDX}, 3')
        s.srd(RA, P_C, 2560); s.srd(RB, P_WM, 640 * 7680)
        s('v_min_u32 v1, 39, v0\nv_cmp_lt_u32 vcc, 19, v1\nv_lshlrev_b32 v1, 4, v1\nv_mov_b32 v3, 960\nv_cndmask_b32 v3, 0, v3, vcc\nv_add_u32 v3, v3, v1')
        s(f's_mul_i32 s5, s7, 320\nbuffer_load_dwordx4 v[8:11], v3, {RAR}, s5 offen')
        s.rows(2, 3, 3, 7680)
        s(f's_mul_i32 s5, s7, {160 * 7680}\ns_lshl_b32 s6, s4, 7\ns_add_u32 s5, s5, s6')
        s(s.dma(20, 2, RB, 5, 8 * 7680, LM, o['mF']))
        s(f'v_mov_b32 v4, {LMF}\nv_mov_b32 v5, 1\nds_write_b32 v4, v5' if o['b0'] else 's_barrier')
        s('s_waitcnt vmcnt(20)')
        s(f's_mov_b32 s6, {hx(-LOG2E)}')
        for k in range(4): s(f'v_lshlrev_b32 v{20+2*k}, 16, v{8+k}\nv_and_b32 v{21+2*k}, 0xffff0000, v{8+k}')
        for k in range(8): s(f'v_mul_f32 v{40+k}, s6, v{20+k}')
        for k in range(8): s(f'v_exp_f32 v{40+k}, v{40+k}')
        for k in range(8): s(f'v_add_f32 v{40+k}, 1.0, v{40+k}')
        for k in range(8): s(f'v_min_f32 v{40+k}, 0x7f000000, v{40+k}')
        for k in range(8): s(f'v_rcp_f32 v{48+k}, v{40+k}')
        for k in range(8): s(f'v_mul_f32 v{56+k}, v{20+k}, v{48+k}')
        for k in range(8): s(f'v_fma_f32 v{20+k}, -v{56+k}, v{40+k}, v{20+k}')
        for k in range(8): s(f'v_fma_f32 v{20+k}, v{20+k}, v{48+k}, v{56+k}')
        for k in range(4): s(f'v_cvt_pk_bf16_f32 v{8+k}, v{20+2*k}, v{21+2*k}')
        s(f'ds_write_b128 v1, v[8:11] offset:{LXS}')
        s.a_lane(4, 5, 320, 16, LXS)
        s.tr_lane(5, 6, 1024, 128); s(f'v_add_u32 v5, {LM}, v5')
        A, B, D = 12, 48, 32
        s.tagwait()
        for T in range(5): s(f'ds_read_b128 {Q4(A+4*T)}, v4 offset:{64*T}')
        l = s.lab('ini')
        s(f's_cmp_eq_u32 s{S_IDX}, 0\ns_cbranch_scc0 {l}\ns_lshl_b32 s5, s{S_X}, 7\ns_add_u32 s5, s5, {W_PG}\ns_add_u32 s6, s{TAG}, 999')
        s(f'v_and_b32 v1, 31, v0\nv_lshlrev_b32 v1, 2, v1\nv_mov_b32 v6, s6\nbuffer_store_dword v6, v1, {WSR}, s5 offen\n{l}:')
        s(f'v_lshlrev_b32 v1, 4, v0\ns_mul_i32 s5, s7, {3840 * 16}\ns_lshl_b32 s6, s4, 10\ns_add_u32 s5, s5, s6\ns_add_u32 s5, s5, {W_MP}')
        s.rows(2, 3, 4, 3840 * 16)
        s(f's_lshl_b32 s4, s4, 2\ns_add_u32 s4, s4, s7\ns_lshl_b32 s6, s4, 8\ns_add_u32 s6, s6, {W_MP}')
        s('s_waitcnt vmcnt(0)')
        s.stamp(1)
        for T in range(5):
            for ct in range(4):
                for hi in range(2): s(f'ds_read_b64_tr_b16 {P(B + 16*T + 4*ct + 2*hi)}, v5 offset:{4096*T + 512*hi + 32*ct}')
            if T:
                s('s_waitcnt lgkmcnt(8)')
                for ct in range(4): s.mfma(D + 4 * ct, A + 4 * (T - 1), B + 16 * (T - 1) + 4 * ct, T == 1)
        s('s_waitcnt lgkmcnt(0)')
        for ct in range(4): s.mfma(D + 4 * ct, A + 16, B + 64 + 4 * ct, False)
        for ct in range(1, 4):
            for b in range(2): s(f'v_mov_b32_dpp v{D+b}, v{D+4*ct+b} quad_perm:[0,1,2,3] row_mask:{1 << ct} bank_mask:0xf')
        s(f'v_bitop3_b32 v{D+2}, v{D}, v{D+1}, s{TAG} bitop3:0x96')
        l2 = s.lab('M2')
        s(f's_cmp_lt_u32 s4, 80\ns_cbranch_scc0 {l2}')
        if 'P' not in o['nox']: s(f'buffer_store_dwordx4 {Q4(D)}, v1, {WSR}, s5 offen sc1')
        s.stamp(2)
        s(f's_branch {ln}\n{l2}:')
        s.getloc(6)
        s.gstore([f'buffer_store_dwordx4 {Q4(D)}, v1, {WSR}, s5 offen'], nm='m')
        s.stamp(2)
        s('s_barrier')
        s.poll([f'buffer_load_dwordx3 v[4:6], v2, {WSR}, s6 offen sc1'], s.ck_xor([4], 2, 8, 9), slp=o['mlslp'], nm='m')
        for w in (32, 16):
            s.swapred('v_add_f32', 4, 8, w); s.swapred('v_add_f32', 5, 9, w)
        s(f'v_cvt_pk_bf16_f32 v4, v4, v5\nv_mov_b32 v5, s{TAG}\nv_lshlrev_b32 v3, 3, v0\ns_lshl_b32 s5, s4, 7\ns_add_u32 s5, s5, {W_MOD}')
        s(f's_mov_b64 exec, 0xffff\nbuffer_store_dwordx2 v[4:5], v3, {WSR}, s5 offen sc1\ns_mov_b64 exec, -1')
        s(f's_branch {lj}\n{lsk}:\n' + (f'v_mov_b32 v4, {LMF}\nv_mov_b32 v5, 1\nds_write_b32 v4, v5' if o['b0'] else 's_barrier')); s.tagwait(); s(f'{ln}:\ns_barrier'); s.getloc(6, spin=False); s(f'{lj}:')
        s.waitprog(o['st0'], 1)
        s('s_mov_b32 s5, 0\nL_pair:')
        s.stats()
        s.stamp(3)
        l = s.lab('cnt')
        s(f's_lshl_b32 s8, s5, 2\nv_mov_b32 v4, s8\ns_mov_b32 s{SPIN}, {o["spin"]}\n{l}:\ns_sleep {o["pslp"]}\nds_read_b32 v5, v4 offset:{LCNT}\ns_sub_u32 s{SPIN}, s{SPIN}, 1\ns_waitcnt lgkmcnt(0)')
        s(f'v_readfirstlane_b32 s8, v5\ns_cselect_b32 s8, 8, s8\ns_cmp_lt_u32 s8, 8\ns_cbranch_scc1 {l}')
        s('L_T0:')
        s.stamp(4)
        T = 16
        for k in range(24): s(f'ds_read2st64_b32 {P(T+2*k)}, v1 offset0:{2*k} offset1:{2*k+1}')
        for w in range(8):
            if w >= 3: s(f's_waitcnt lgkmcnt({3 * (7 - w)})')
            elif w == 0: s('s_waitcnt lgkmcnt(15)')
            f = f's[{64 + (w & 6)}:{65 + (w & 6)}]'; e = w & 1
            for c in range(3):
                r = T + 6 * w + 2 * c; a = (8, 10, 12)[c]
                s(f'v_pk_mul_f32 {P(a)}, {P(r)}, {f} op_sel:[0,{e}] op_sel_hi:[1,{e}]' if w == 0 else
                  f'v_pk_fma_f32 {P(a)}, {P(r)}, {f}, {P(a)} op_sel:[0,{e},0] op_sel_hi:[1,{e},1]')
        s('v_add_f32 v8, v8, v11\nv_add_f32 v9, v9, v12\nv_add_f32 v10, v10, v13')
        s(f'v_bitop3_b32 v11, v8, v9, v10 bitop3:0x96\nv_xor_b32 v11, s{TAG}, v11')
        s.gstore([f'buffer_store_dwordx4 v[8:11], v2, {WSR}, s4 offen'])
        s.stamp(5)
        l = s.lab('early'); l2 = s.lab('next'); l3 = s.lab('fin')
        s(f's_cmp_eq_u32 s5, 3\ns_cbranch_scc0 {l}')
        s.role(0, 'L_Bg'); s.role(3, 'L_D'); s.role(1, 'L_exit', False)
        s('s_barrier')
        s.end()
        s(f'{l}:')
        s.role(0, l2, False)
        s(f's_mul_i32 s9, s5, 24\ns_add_u32 s9, s9, {120 + o["eg0"]}\ns_min_u32 s9, s9, {o["eg"]}')
        s.waitprog('s9', 12, o['pslp'])
        if 'E' not in o['nox']: s.gath(2, o['pslp'])
        s(f'{l2}:\ns_add_u32 s5, s5, 1\ns_cmp_lt_u32 s5, 3\ns_cbranch_scc1 L_pair')
        s.role(0, l3); s.role(3, 'L_D0')
        if o['cL']:
            E = o['cE']
            s.role(1, 'L_exit', False)
            s.trigger(); s.caddr()
            s(f's_add_u32 s5, s5, {(80 - 8 * E) * 8 * 3072}')
            s(s.cdma(8 * E, lambda t: f's_mov_b32 m0, {LBIG + 1024 * (80 - 8 * E + t)}', 63))
            s('s_barrier\ns_barrier\ns_waitcnt vmcnt(0)')
        s.end()
        s(f'{l3}:')
        s(f's_add_u32 s6, s6, 16384\ns_add_u32 s7, s6, 4096\nv_lshlrev_b32 v3, 1, v0\nv_add_u32 v3, {LO + 384 + OS * (int(str(o["ord"])[-1]) >> 1)}, v3\ns_waitcnt lgkmcnt(0)\ns_barrier')

    def stats(s):
        s(f'v_lshlrev_b32 v2, 4, v0\ns_lshr_b32 s6, s{S_H}, 1\ns_lshl2_add_u32 s6, s6, s5\ns_lshl_b32 s4, s6, 11\ns_add_u32 s4, s4, {W_ML}')
        s.poll([f'buffer_load_dwordx3 v[{4+4*k}:{6+4*k}], v2, {WSR}, s4 offen offset:{1024*k} sc1' for k in range(2)], s.ck_xor([4, 8], 2, 12, 13), slp=s.o['mlslp'])
        s('v_max_f32 v12, v4, v8')
        s.red16('v_max_f32', [12]); s.swapred('v_max_f32', 12, 13, 16); s.swapred('v_max_f32', 12, 13, 32)
        for r in (4, 8): s(f'v_sub_f32 v{r}, v{r}, v12\nv_mul_f32 v{r}, {hx(LOG2E)}, v{r}\nv_exp_f32 v{r}, v{r}')
        s('v_mul_f32 v5, v5, v4\nv_fmac_f32 v5, v9, v8')
        s.red16('v_add_f32', [5]); s.swapred('v_add_f32', 5, 13, 16); s.swapred('v_add_f32', 5, 13, 32)
        s(f'v_rcp_f32 v5, v5\ns_bitcmp1_b32 s{S_H}, 0\ns_cselect_b64 vcc, -1, 0\nv_cndmask_b32 v4, v4, v8, vcc\nv_mul_f32 v4, v4, v5')
        s(f's_lshl_b32 s4, s{S_J}, 3')
        for w in range(8):
            s(f'v_readlane_b32 s{64+w}, v4, s4')
            if w < 7: s('s_add_u32 s4, s4, 1')
        s(f's_mul_i32 s4, s5, 12288\ns_add_u32 s4, s4, {LPO}\nv_lshl_add_u32 v1, v0, 2, s4')
        s(f's_lshl_b32 s7, s5, 2\ns_lshr_b32 s7, 0x{str(s.o["ord"]).zfill(4)[::-1]}, s7')
        s(f's_bfe_u32 s4, s7, 0x10001\ns_mul_i32 s4, s4, {OS}\ns_and_b32 s7, s7, 1\ns_mul_i32 s7, s7, 384\ns_add_u32 s4, s4, s7\ns_add_u32 s4, s4, {LO}\nv_lshl_add_u32 v3, v0, 1, s4')
        s(f's_lshl_b32 s6, s6, 14\ns_add_u32 s6, s6, {W_ATT}\ns_and_b32 s4, s{S_IDX}, 15\ns_lshl_b32 s4, s4, 10\ns_add_u32 s4, s4, s6\ns_add_u32 s7, s6, 4096')

    def gath(s, nh, slp):
        G = 24
        if nh == 2: s('s_add_u32 s8, s6, 8192\ns_add_u32 s9, s6, 12288')
        if nh == 2 and s.o['glight']:
            s('v_and_b32 v14, 15, v0\nv_lshlrev_b32 v14, 10, v14')
            s.poll([f'buffer_load_dwordx4 {Q4(G)}, v14, {WSR}, s6 offen offset:1008 sc1'], s.ck_xor([G], 3, 12, 13), slp=slp)
        ck, t = s.ck_xor([G + 4 * k for k in range(8 * nh)], 3, 12, 13)
        for k in range(8 * nh):
            a = 16 + 4 * (k >> 3); r = G + 4 * k
            if k & 7: ck[k] += f'\nv_pk_add_f32 {P(a)}, {P(r-4) if k & 7 == 1 else P(a)}, {P(r)}\nv_add_f32 v{a+2}, v{r-2 if k & 7 == 1 else a+2}, v{r+2}'
        s.poll([f'buffer_load_dwordx4 {Q4(G+4*k)}, v2, {WSR}, s{6 + (k >> 2)} offen offset:{1024*(k & 3)} sc1' for k in range(8 * nh)], (ck, t), slp=slp, warmable=(nh == 1))
        for h in range(nh):
            a = 16 + 4 * h; of = 2 * OS * h
            s(f'v_cvt_pk_bf16_f32 v{a}, v{a}, v{a+1}\nv_cvt_pk_bf16_f32 v{a+2}, v{a+2}, v{a+2}')
            s(f'ds_write_b16 v3, v{a} offset:{of}\nds_write_b16_d16_hi v3, v{a} offset:{of+128}\nds_write_b16 v3, v{a+2} offset:{of+256}')

    def bgather(s):
        s.cur = 'g'
        s('L_Bg:')
        s.gath(1, 0)
        s.warmret('L_wBg')
        s('s_waitcnt lgkmcnt(0)')
        s.stamp(6)
        s('s_barrier')
        s.end()

    def s1(s):
        s.cur = 'b'
        o = s.o
        s.srd(RA, P_X, 2560); s.srd(RB, P_WQ, 640 * 12288)
        s('v_and_b32 v1, 31, v0\nv_lshlrev_b32 v1, 3, v1\nv_lshrrev_b32 v2, 5, v0\nv_mul_u32_u24 v2, 1280, v2\nv_add_u32 v1, v1, v2')
        for u in range(5): s(f'buffer_load_dwordx2 {P(10+2*u)}, v1, {RAR}, 0 offen offset:{256*u}')
        s(f'v_and_b32 v7, 15, v0\nv_lshl_add_u32 v2, v7, 1, v2\ns_mul_i32 s4, s{S_J}, 160')
        for u in range(5): s(f'buffer_load_ushort v{160+u}, v2, {RAR}, s4 offen offset:{32*u}')
        s.rows(3, 4, 3, 12288)
        s.ghead(6)
        s(f's_mul_i32 s5, s{S_J}, {80*12288}\ns_and_b32 s7, s{S_H}, 1\ns_lshl4_add_u32 s6, s7, s6\ns_mul_i32 s6, s6, 384\ns_add_u32 s5, s5, s6')
        if o['b0'] == 1: s.ldswait(LMF, 4, 1)
        elif not o['b0']: s('s_barrier')
        s(s.dma(30, 3, RB, 5, lambda t: 128 if t % 3 < 2 else 8 * 12288 - 256, LWQ, o['qF']))
        if o['qfirst']: s(f'v_mov_b32 v4, {LGO}\nv_mov_b32 v5, 1\nds_write_b32 v4, v5')
        s.tagwait()
        s('s_waitcnt vmcnt(30)')
        X = 20
        for k in range(10): s(f'v_lshlrev_b32 v{X+2*k}, 16, v{10+k}\nv_and_b32 v{X+2*k+1}, 0xffff0000, v{10+k}')
        s(f'v_add_f32 v4, v{X}, v{X+1}')
        for k in range(2, 20): s(f'v_add_f32 v4, v4, v{X+k}')
        s.red16('v_add_f32', [4]); s.swapred('v_add_f32', 4, 5, 16)
        s(f'v_mul_f32 v4, {hx(1/640)}, v4')
        for k in range(20): s(f'v_sub_f32 v{X+k}, v{X+k}, v4')
        s(f'v_mul_f32 v5, v{X}, v{X}')
        for k in range(1, 20): s(f'v_fmac_f32 v5, v{X+k}, v{X+k}')
        s.red16('v_add_f32', [5]); s.swapred('v_add_f32', 5, 6, 16)
        s(f'v_mul_f32 v5, {hx(1/640)}, v5')
        s.bf16r(4); s.bf16r(5)
        s(f'v_add_f32 v5, {hx(1e-5)}, v5'); s.bf16r(5)
        s('v_sqrt_f32 v5, v5'); s.bf16r(5); s('v_rcp_f32 v5, v5')
        for u in range(5):
            r = 160 + u
            s(f'v_lshlrev_b32 v{r}, 16, v{r}\nv_sub_f32 v{r}, v{r}, v4'); s.bf16r(r)
            s(f'v_mul_f32 v{r}, v{r}, v5'); s.bf16r(r)
        s.tr_lane(4, 5, 3072, 128)
        s(f'v_add_u32 v4, {LWQ}, v4')
        s.tr_lane(5, 6, 512, 128)
        s(f'v_lshrrev_b32 v6, 5, v0\nv_mul_u32_u24 v6, 2048, v6\nv_add_u32 v5, v5, v6\nv_add_u32 v5, {LWQ + 8*3072}, v5')
        BW, AC, A = 100, 40, 88
        def rd(ct):
            b = BW + 10 * (ct % 6); off = 1024 * (ct >> 2) + 32 * (ct & 3)
            for T in range(2):
                for hi in range(2): s(f'ds_read_b64_tr_b16 {P(b+4*T+2*hi)}, v4 offset:{off + 12288*T + 512*hi}')
            s(f'ds_read_b64_tr_b16 {P(b+8)}, v5 offset:{off}')
        s.rows(2, 6, 4, 3840 * 16)
        s(f's_mul_i32 s4, s{S_J}, 1280\ns_add_u32 s4, s4, {W_MP}\ns_add_u32 s5, s4, 10240')
        s('s_waitcnt vmcnt(0)')
        s.stamp(1)
        for ct in range(6): rd(ct)
        M = 40
        s.gather([f'buffer_load_dwordx3 v[{M+4*u}:{M+4*u+2}], v2, {WSR}, s{4 + u // 5} offen offset:{256 * (u % 5)} sc1' for u in range(10)],
                 [s.ck_xor([M + 4 * u], 2, 12, 13) for u in range(10)], 8, slp=o['pslp'], nm='P')
        s.stamp(2)
        for u in range(10): s(f'v_permlane32_swap_b32 v{M+4*u}, v{M+4*u+1}')
        for u in range(10): s(f'v_add_f32 v{M+4*u}, v{M+4*u}, v{M+4*u+1}')
        for u in range(10): s(f'v_mov_b32 v{M+4*u+1}, v{M+4*u}')
        for u in range(10): s(f'v_permlane16_swap_b32 v{M+4*u}, v{M+4*u+1}')
        for u in range(10): s(f'v_add_f32 v{M+4*u}, v{M+4*u}, v{M+4*u+1}')
        for u in range(10): s.bf16r(M + 4 * u)
        s(f'v_lshrrev_b32 v2, 5, v0\nv_mul_u32_u24 v2, 192, v2\nv_lshl_add_u32 v2, v7, 1, v2')
        for u in range(5):
            c = M + 20 + 4 * u; r = 160 + u
            s(f'v_add_f32 v{c}, 1.0, v{c}'); s.bf16r(c)
            s(f'v_mul_f32 v{r}, v{r}, v{c}'); s.bf16r(r)
            s(f'v_add_f32 v{r}, v{r}, v{M+4*u}\nv_cvt_pk_bf16_f32 v{r}, v{r}, v{r}\nds_write_b16 v2, v{r} offset:{LHS + 32*u}')
        s.getloc(6)
        s.a_lane(2, 3, 192, 16, LHS); s.a_lane(3, 6, 192, 8, LHS + 128)
        s('s_waitcnt lgkmcnt(0)')
        s(f'ds_read_b128 {Q4(A)}, v2\nds_read_b128 {Q4(A+4)}, v2 offset:64\nds_read_b64 {P(A+8)}, v3')
        for half in range(2):
            s('s_waitcnt lgkmcnt(0)')
            for ct in range(6 * half, 6 * half + 6): s.mfma(AC + 4 * ct, A + 8, BW + 10 * (ct % 6) + 8, True, k=16)
            for T in range(2):
                for ct in range(6 * half, 6 * half + 6):
                    s.mfma(AC + 4 * ct, A + 4 * T, BW + 10 * (ct % 6) + 4 * T, False)
                    if half == 0 and T == 1: rd(ct + 6)
        s(f'v_lshlrev_b32 v2, 4, v0\ns_lshl_b32 s4, s{S_H}, 3\ns_add_u32 s5, s4, s{S_J}\ns_lshl_b32 s5, s5, 11\ns_add_u32 s5, s5, {W_QP}')
        for b in range(2):
            for u in range(4):
                for c in range(3):
                    s(f'v_mov_b32_dpp v{16+4*b+c}, v{AC + 4*(3*u+c) + b} quad_perm:[0,1,2,3] row_mask:{1 << u} bank_mask:0xf')
        for b in range(2):
            t = 16 + 4 * b
            s(f'v_bitop3_b32 v{t+3}, v{t}, v{t+1}, v{t+2} bitop3:0x96\nv_xor_b32 v{t+3}, s{TAG}, v{t+3}')
        s.gstore([f'buffer_store_dwordx4 {Q4(16+4*b)}, v2, {WSR}, s5 offen offset:{1024*b}' for b in range(2)], nm='Q')
        s.stamp(3)
        s(f'v_mov_b32 v3, {LQF}\nv_mov_b32 v4, 1\nds_write_b32 v3, v4')
        s(f'L_Qg:\ns_bfe_u32 s9, s3, 0x10001\ns_and_b32 s4, s{S_H}, 30\ns_add_u32 s4, s4, s9\ns_lshl_b32 s4, s4, 14\ns_add_u32 s4, s4, {W_QP}\ns_mul_i32 s9, s9, 384')
        for k in range(1, 4): s(f's_add_u32 s{4+k}, s4, {4096*k}')
        Q = 40
        if o['qlight']:
            s('v_and_b32 v3, 7, v0\nv_lshlrev_b32 v3, 11, v3')
            s.poll([f'buffer_load_dwordx4 {Q4(Q)}, v3, {WSR}, s4 offen offset:2032 sc1'], s.ck_xor([Q], 3, 12, 13), slp=o['pslp'])
        def ck2(k):
            c, t = s.ck_xor([Q + 8 * k, Q + 8 * k + 4], 3, 12, 13); return ['\n'.join(c)], t
        s.gather(['\n'.join(f'buffer_load_dwordx4 {Q4(Q+8*k+4*b)}, v2, {WSR}, s{4 + (k >> 1)} offen offset:{2048*(k & 1) + 1024*b} sc1' for b in range(2)) for k in range(8)],
                 [ck2(k) for k in range(8)], 8, slp=o['pslp'], nm='Q')
        s('v_lshrrev_b32 v3, 4, v0\nv_mul_u32_u24 v3, 96, v3\nv_and_b32 v4, 15, v0\nv_lshl_add_u32 v3, v4, 1, v3\nv_add_u32 v3, s9, v3')
        for k in range(1, 8):
            for b in range(2):
                r = Q + 4 * b
                s(f'v_pk_add_f32 {P(r)}, {P(r)}, {P(r+8*k)}\nv_add_f32 v{r+2}, v{r+2}, v{r+8*k+2}')
        for b in range(2):
            r = Q + 4 * b; lq = LQ + 768 * b
            s(f'v_cvt_pk_bf16_f32 v{r}, v{r}, v{r+1}\nv_cvt_pk_bf16_f32 v{r+2}, v{r+2}, v{r+2}')
            s(f'ds_write_b16 v3, v{r} offset:{lq}\nds_write_b16_d16_hi v3, v{r} offset:{lq+32}\nds_write_b16 v3, v{r+2} offset:{lq+64}')
        s('s_waitcnt lgkmcnt(0)')
        s.stamp(4)
        s('s_barrier\ns_cmp_eq_u32 s3, 11\ns_cbranch_scc1 L_s3b')
        lc = s.lab('s1C'); ld = s.lab('s1D'); lw = s.lab('s1W')
        if o['warm']:
            s.role(1, lc); s.role(3, ld); s.role(0, lw, False)
            s(f's_mov_b32 s{SV}, 0'); s.warm('L_B', 'L_wB'); s.warm('L_Bg', 'L_wBg'); s(f's_branch {lw}')
            s(f'{lc}:\ns_mov_b32 s{SV}, 0'); s.warm('L_C', 'L_wC'); s(f's_branch {lw}')
            s(f'{ld}:\ns_mov_b32 s{SV}, {o["fw"]}'); s.warm('L_D', 'L_wD')
            s(f'{lw}:\ns_mov_b32 s{SV}, 9')
        s.balance5()
        s(f's_add_u32 s6, s6, 8192\ns_add_u32 s7, s7, 8192\nv_add_u32 v3, {2 * OS}, v3')
        s('s_barrier\ns_branch L_T0')

    def balance5(s):
        o = s.o; p0 = 3 * o['NPF']
        a = s.lab('bal'); e = s.lab('balE'); c = s.lab('nox'); d = s.lab('nost')
        V = 100
        s(f'v_mov_b32 v{V+1}, 0\ns_mov_b32 s11, 4096\ns_lshl_b32 s72, s{S_X}, 7\ns_add_u32 s72, s72, {W_PG}\ns_mov_b32 s75, {o["stat1"]}')
        s(f's_cmp_lt_u32 s{S_IDX}, {o["n1"]}\ns_cselect_b32 s78, {o["cstep"]}, {o["cstep2"]}\ns_cselect_b32 s79, {o["bdel"]}, {o["bdel2"]}')
        s(f's_cselect_b32 s74, 0, {o["n1"] * (o["cstep"] - o["cstep2"])}\ns_add_u32 s74, s74, {p0 + o["c0"]}')
        s(f's_lshl_b32 s5, s{S_IDX}, 3\ns_add_u32 s5, s5, s{S_X}\ns_mul_i32 s5, s5, s78\ns_lshr_b32 s5, s5, 3\ns_add_u32 s74, s74, s5\ns_add_u32 s79, s79, s{TAG}')
        s(f'v_and_b32 v{V}, 31, v0\nv_lshlrev_b32 v{V}, 2, v{V}')
        s(f's_lshl_b32 s73, s{S_X}, 12\ns_add_u32 s73, s73, {W_GL}\ns_mov_b32 s10, {W_GL}\nv_and_b32 v{V+5}, 7, v0\nv_cmp_eq_u32 s[76:77], s{S_X}, v{V+5}\nv_lshlrev_b32 v{V+5}, 12, v{V+5}\nv_mov_b32 v{V+6}, {p0}')
        s(f'v_xor_b32 v{V+4}, 4096, v{V+5}\nv_cndmask_b32_e64 v{V+5}, v{V+5}, v{V+4}, s[76:77]')
        s(f's_and_b32 s8, s{S_ROLE}, 1\ns_mul_i32 s8, s8, {o["bonus"]}\ns_sub_u32 s8, s{TAG}, s8')
        s(f'{a}:\nbuffer_load_dword v{V+3}, v{V+1}, {WSR}, s72 offen sc1\ns_waitcnt vmcnt(0)\nds_read_b32 v{V+2}, v{V+1} offset:{LPRG}')
        s(f'v_subrev_u32 v{V+3}, s8, v{V+3}\nds_write_b32 v{V+1}, v{V+3} offset:{LMODE}\ns_waitcnt lgkmcnt(0)\nv_readfirstlane_b32 s9, v{V+2}')
        s(f's_cmp_ge_u32 s9, s75\ns_cbranch_scc0 {d}\ns_mov_b32 s75, 999')
        s('s_mov_b32 s5, 3'); s.stats()
        s(f's_branch {a}\n{d}:')
        s(f's_cmp_ge_u32 s9, {o["bend"]}\ns_cbranch_scc1 {e}')
        s(f's_cmp_ge_u32 s9, s74\ns_cbranch_scc0 {c}')
        s(f's_mov_b32 s74, 999\nv_add_u32 v{V+3}, s{TAG}, v{V+2}\nbuffer_load_dword v{V+4}, v{V+5}, {WSR}, s10 offen sc1\nbuffer_store_dword v{V+3}, v{V}, {WSR}, s73 offen sc1\ns_waitcnt vmcnt(1)')
        s(f'v_subrev_u32 v{V+4}, s{TAG}, v{V+4}\nv_cmp_lt_u32 vcc, 192, v{V+4}\nv_cndmask_b32 v{V+4}, v{V+4}, v{V+6}, vcc')
        s(f'v_subrev_u32 v{V+2}, s78, v{V+2}\nv_cndmask_b32_e64 v{V+4}, v{V+4}, v{V+2}, s[76:77]')
        s(f's_cmp_lt_u32 s{S_IDX}, {o["n1"]}\ns_cselect_b32 s9, {min(o["emin"], 64)}, {min(o["emin2"], 64)}\nv_add_u32 v{V+7}, s9, v{V+4}')
        for ctl in ('quad_perm:[1,0,3,2]', 'quad_perm:[2,3,0,1]', 'row_half_mirror'): s.dppop('v_add_u32', V + 4, ctl); s.dppop('v_min_u32', V + 7, ctl)
        s(f'v_lshrrev_b32 v{V+4}, 3, v{V+4}\nv_min_u32 v{V+4}, v{V+4}, v{V+7}\nv_add_u32 v{V+4}, s79, v{V+4}\nbuffer_store_dword v{V+4}, v{V}, {WSR}, s72 offen')
        s(f'{c}:\ns_sleep {o["bslp"]}\ns_sub_u32 s11, s11, 1\ns_cbranch_scc0 {a}')
        s('s_mov_b32 s5, 3'); s.stats()
        s(f'{e}:')

    def bstage(s, t0, t1, F):
        o = s.o; l = s.lab('dma')
        s.srd(RA, P_WO, 6144 * 1280)
        s.swz(1280)
        s.ghead(5)
        s(f's_mul_i32 s5, s5, {192*1280}\ns_and_b32 s4, s{S_H}, 1\ns_mul_i32 s4, s4, 5\ns_add_u32 s4, s4, s{S_J}\ns_lshl_b32 s4, s4, 7')
        s(f's_add_u32 s5, s5, s4\ns_add_u32 s5, s5, {8 * 1280 * t0 + (15*192*1280 if t0 >= 24 else 0)}')
        s(f's_mov_b32 s4, {LB + 1024 * t0}\n{l}:')
        for t in range(2):
            s(f's_mov_b32 m0, s4\ns_waitcnt vmcnt({F - 1})\nbuffer_load_dwordx4 v{3 if t else 1}, {RAR}, s5 offen {o["wflag"]} lds')
            s(f's_add_u32 s5, s5, {8 * 1280}\ns_add_u32 s4, s4, 1024')
        if t0 < 24 < t1: s(f's_cmp_eq_u32 s4, {LB + 24576}\ns_cselect_b32 s6, {15*192*1280}, 0\ns_add_u32 s5, s5, s6')
        s(f's_cmp_lt_u32 s4, {LB + 1024 * t1}\ns_cbranch_scc1 {l}')

    def wstage(s):
        o = s.o; F = o['wF']
        ld = s.lab('wD'); lc = s.lab('wC'); le = s.lab('wE'); li = s.lab('wI')
        def loads(n, step, par):
            for t in range(n):
                s(f's_mov_b32 m0, s11')
                if t >= F: s(f's_waitcnt vmcnt({F - 1})')
                s(f'buffer_load_dwordx4 v{4 + (t & par)}, {RBR}, s10 offen {o["wflag"]} lds\ns_add_u32 s10, s10, {step}\ns_add_u32 s11, s11, 1024')
                if t == min(n, F) - 1 and o['mfirst']: s('s_barrier')
        def swz(stride):
            s(f'v_lshrrev_b32 v6, 3, v0\nv_mul_u32_u24 v4, {stride}, v6\nv_and_b32 v6, 2, v6\nv_and_b32 v5, 7, v0\nv_xor_b32 v6, v6, v5\nv_xor_b32 v5, 4, v6')
            s('v_lshl_add_u32 v5, v5, 4, v4\nv_lshl_add_u32 v4, v6, 4, v4')
        s.role(0, ld, False)
        s.srd(RB, P_WO, 6144 * 1280); swz(1280); s.ghead(10)
        s(f's_lshr_b32 s9, s3, 2\ns_mul_i32 s9, s9, 15\ns_add_u32 s10, s10, s9\ns_mul_i32 s10, s10, {192*1280}\ns_mul_i32 s9, s3, {48*1280}\ns_add_u32 s10, s10, s9')
        s(f's_lshr_b32 s9, s{S_CS}, 2\ns_lshl_b32 s9, s9, 7\ns_add_u32 s10, s10, s9\ns_mul_i32 s11, s3, 6144\ns_add_u32 s11, s11, {LB}')
        loads(6, 8 * 1280, 1)
        s(f's_branch {le}\n{ld}:')
        s.role(3, lc, False)
        n = 12 - o['dW']
        s.srd(RB, P_D, 1536 * 1280); s.rows(4, 5, 2, 1280)
        s(f's_mul_i32 s11, s3, {n}\ns_add_u32 s11, s11, {8 * o["dW"]}\ns_mul_i32 s10, s11, {16 * 1280}\ns_lshl_b32 s9, s{S_DT}, 6\ns_add_u32 s10, s10, s9\ns_lshl_b32 s11, s11, 10\ns_add_u32 s11, s11, {LBIG}')
        loads(n, 16 * 1280, 0)
        s(f's_branch {le}\n{lc}:')
        s.role(1, li, False)
        n = o['cE']
        s(f's_bitcmp1_b32 s{S_CS}, 0\ns_cselect_b64 s[{RB}:{RB+1}], s[{P_U}:{P_U+1}], s[{P_G}:{P_G+1}]\ns_mov_b32 s{RB+2}, {640 * 3072}\ns_mov_b32 s{RB+3}, 0x20000')
        swz(3072)
        s(f's_bitcmp1_b32 s3, 0\ns_cselect_b64 vcc, -1, 0\nv_cndmask_b32 v4, v4, v5, vcc')
        s(f's_add_u32 s11, s3, {80 - 8 * n}\ns_mul_i32 s10, s11, {8 * 3072}\ns_lshr_b32 s9, s{S_CS}, 1\ns_lshl_b32 s9, s9, 7\ns_add_u32 s10, s10, s9\ns_lshl_b32 s11, s11, 10\ns_add_u32 s11, s11, {LBIG}')
        for t in range(n):
            s(f's_mov_b32 m0, s11\nbuffer_load_dwordx4 v4, {RBR}, s10 offen {o["wflag"]} lds\ns_add_u32 s10, s10, {64 * 3072}\ns_add_u32 s11, s11, 8192')
        s(f'{li}:')
        if o['mfirst']: s('s_barrier')
        s(f'{le}:')

    def stage(s, half):
        o = s.o
        ld = s.lab('stD'); lc = s.lab('stC'); le = s.lab('stE')
        def part(n): return (0, n) if half is None else ((0, n // 4 * 2) if half == 0 else (n // 4 * 2, n))
        FF = lambda k: o['upF'] if half is None else o[k]
        s.role(0, ld, False)
        E = 0 if half is None else o['bE']; t0, t1 = part(48 - E - o['bD'])
        if t1 > t0: s.bstage(E + t0, E + t1, min(FF('bF'), 60))
        s(f's_branch {le}\n{ld}:')
        s.role(3, lc, False)
        W = o['dW']; t0, t1 = part(8 * (12 - W))
        if not o['dL']:
            s.srd(RA, P_D, 1536 * 1280); s.rows(1, 2, 2, 1280)
            s(f's_lshl_b32 s4, s{S_DT}, 6\ns_add_u32 s4, s4, {(8 * W + t0) * 16 * 1280}')
            s(s.dma(t1 - t0, 1, RA, 4, 16 * 1280, LBIG + 1024 * (8 * W + t0), FF('dF')))
        s(f's_branch {le}\n{lc}:')
        s.role(1, le, False)
        E = o['cE']; t0, t1 = part(8 * E)
        if not o['cL']:
            s.caddr()
            s(f's_add_u32 s5, s5, {(80 - 8 * E + t0) * 8 * 3072}')
            s(s.cdma(t1 - t0, lambda t: f's_mov_b32 m0, {LBIG + 1024 * (80 - 8 * E + t0 + t)}', FF('cF')))
        s(f'{le}:')
        if half is not None: s('s_waitcnt vmcnt(0)')

    def s2(s):
        s.cur = 'r'
        o = s.o
        if not o['b0']: s('s_barrier')
        s('s_getreg_b32 s4, hwreg(HW_REG_XCC_ID)')
        s(f'v_and_b32 v1, 31, v0\nv_lshlrev_b32 v1, 3, v1\ns_lshl_b32 s5, s{S_X}, 8\ns_add_u32 s5, s5, {W_XC}\ns_lshl3_add_u32 s6, s{S_IDX}, s5')
        s.tagwait()
        s(f'v_mov_b32 v2, s4\nv_mov_b32 v3, s{TAG}\ns_mov_b64 exec, 1')
        if o['xab']: s(f's_add_u32 s7, s6, {W_XL - W_XC}\nbuffer_store_dwordx2 v[2:3], v1, {WSR}, s7 offen')
        if 'X' not in o['nox']: s(f'buffer_store_dwordx2 v[2:3], v1, {WSR}, s6 offen sc1')
        s('s_mov_b64 exec, -1')
        s.idpoll(o['pslp'])
        s(f'v_xor_b32 v4, s4, v4\nv_or_b32 v4, v4, v6\nv_cmp_ne_u32 vcc, 0, v4\ns_cmp_eq_u64 vcc, 0\ns_cselect_b32 s4, 2, 1')
        if not o['loc']: s(f's_mov_b32 s4, 1')
        s(f'v_mov_b32 v4, s4\nv_mov_b32 v5, {LFLAG}\nds_write_b32 v5, v4\ns_waitcnt lgkmcnt(0)')
        s.stamp(2)
        if o['bE']:
            l = s.lab('noBe'); s.role(0, l, False); s.bstage(0, o['bE'], o['bEF']); s(f'{l}:')
        s('s_barrier')
        if not o['up']: s.stage(0)
        s.stamp(1)
        s.role(1, 'L_LN0')
        s.role(0, 'L_s23', False)
        s.warm('L_R', 'L_wR')
        s('L_R0:')
        s.waitprog(72, 1)
        s.getloc(1, spin=False)
        s.srd(RA, P_X, 2560)
        s(f'v_and_b32 v1, 15, v0\nv_lshlrev_b32 v2, 1, v1\ns_lshl_b32 s5, s{S_CS}, 5')
        s(f'buffer_load_ushort v4, v2, {RAR}, s5 offen\nbuffer_load_ushort v5, v2, {RAR}, s5 offen offset:1280')
        s(f'v_lshlrev_b32 v2, 3, v1\ns_lshl_b32 s5, s{S_CS}, 7\ns_add_u32 s6, s5, {W_MOD + 1280*8}')
        s.poll([f'buffer_load_dwordx2 v[6:7], v2, {WSR}, s6 offen sc1'], s.ck_tag([[7]], 8), slp=o['mlslp'])
        s('v_lshlrev_b32 v4, 16, v4\nv_lshlrev_b32 v5, 16, v5\nv_and_b32 v7, 0xffff0000, v6\nv_lshlrev_b32 v6, 16, v6')
        s(f's_add_u32 s5, s5, {W_X1}\nv_mov_b32 v9, s{TAG}\ns_lshl_b32 s6, s{S_X}, 13\ns_add_u32 s5, s5, s6')
        s.rows(3, 8, 4, 10240)
        s(f's_lshl_b32 s64, s{S_CS}, 8\ns_add_u32 s64, s64, {W_Y}')
        s(f's_sub_u32 s64, s64, {W_Y - W_YL}\ns_sub_u32 s6, 1, s{LOC}\ns_mul_i32 s6, s6, {W_Y - W_YL}\nv_mov_b32 v12, s6\nv_mov_b32 v13, {W_Y - W_YL}\nv_lshrrev_b32 v14, 5, v0')
        for k in range(4):
            s(f'v_add_u32 v15, {2*k}, v14\nv_cmp_eq_u32 vcc, s{S_X}, v15\nv_cndmask_b32 v15, v13, v12, vcc\nv_add_u32 v15, {40960*k}, v15\nv_add_u32 v{32+k}, v15, v3')
        if o['rown']:
            s(f's_lshr_b32 s4, s{S_H}, 1\nv_lshrrev_b32 v14, 4, v0\ns_bfe_u32 s6, s{S_H}, 0x10001\ns_mul_i32 s6, s6, {-20480 & 0xffffffff}\ns_add_u32 s6, s6, 10240')
            for k in range(4):
                s(f'v_add_u32 v15, {4*k}, v14\nv_cmp_eq_u32 s[{66+2*k}:{67+2*k}], s4, v15\nv_add_u32 v15, s6, v{32+k}\nv_cndmask_b32_e64 v{32+k}, v{32+k}, v15, s[{66+2*k}:{67+2*k}]')
            s(f's_and_b32 s4, s{S_CS}, 3\ns_lshl_b32 s4, s4, 7\ns_add_u32 s4, s4, {LYO}\nv_add_u32 v36, s4, v2')
        touch = '\n'.join(f'buffer_load_dword v{40+k}, v{32+k}, {WSR}, s64 offen sc1' for k in range(4))
        if o['bD']:
            n = o['bD'] // 2
            s.srd(RB, P_WO, 6144 * 1280)
            s('v_lshrrev_b32 v46, 3, v0\nv_mul_u32_u24 v44, 1280, v46\nv_and_b32 v46, 2, v46\nv_and_b32 v45, 7, v0\nv_xor_b32 v46, v46, v45\nv_xor_b32 v45, 4, v46')
            s('s_bitcmp1_b32 s3, 0\ns_cselect_b64 vcc, -1, 0\nv_cndmask_b32 v46, v46, v45, vcc\nv_lshl_add_u32 v44, v46, 4, v44')
            s.ghead(8)
            t0 = 48 - 2 * n; src = lambda t: (t if t < 24 else t + 15 * 24) * 8 * 1280
            s(f's_mul_i32 s8, s8, {192*1280}\ns_lshr_b32 s9, s{S_CS}, 2\ns_lshl_b32 s9, s9, 7\ns_add_u32 s8, s8, s9\ns_add_u32 s8, s8, {src(t0)}')
            s(f's_and_b32 s9, s3, 1\ns_mul_i32 s10, s9, {8 * 1280}\ns_add_u32 s8, s8, s10\ns_lshl_b32 s9, s9, 10\ns_add_u32 s9, s9, {LB + 1024 * t0}')
            dm = '\n'.join(f's_mov_b32 m0, s9\ns_add_u32 s9, s9, 2048\nbuffer_load_dwordx4 v44, {RBR}, s8 offen {o["wflag"]} lds\ns_add_u32 s8, s8, {src(t + 2) - src(t)}' for t in range(t0, 48, 2))
            if o['btrig'] <= 192:
                s.waitprog(o['btrig'] - 12, 12)
                if o['ball']: s.waitprog(o['ball'], 12, 1, at=LCNT + 12)
                else: s.waitprog(o['btrig'], 12, 1)
                s(dm)
        s('s_barrier')
        if o['bD']:
            if o['btrig'] > 192: s(dm)
            s('s_waitcnt vmcnt(0)')
            if o['bfl']: s(f's_mov_b64 exec, 1\nv_mov_b32 v12, 0\nv_mov_b32 v13, 1\nds_add_u32 v12, v13 offset:{LCNT + 16}\ns_mov_b64 exec, -1')
        if o['rg'] == 5: s(touch)
        s('s_barrier')
        if o['rg'] == 4: s(touch)
        if o['rg'] and o['rg'] != 6: s('s_barrier')
        s('L_R:')
        s.stamp(4)
        Y = 16
        ck, t = s.ck_xor([Y + 4 * k for k in range(4)], 2, 12, 13)
        if o['rown']:
            if o['rg'] != 6: s('ds_read_b64 v[38:39], v36')
            ck[0] += '\ns_waitcnt lgkmcnt(0)'
            for k in range(4):
                for e in range(2): ck[k] += f'\nv_cndmask_b32_e64 v{Y+4*k+e}, v{Y+4*k+e}, v{38+e}, s[{66+2*k}:{67+2*k}]'
        for k in range(1, 4): ck[k] += f'\nv_pk_add_f32 v[10:11], {P(Y) if k == 1 else "v[10:11]"}, {P(Y+4*k)}'
        lds_ = [f'buffer_load_dwordx3 v[{Y+4*k}:{Y+4*k+2}], v{32+k}, {WSR}, s64 offen sc1' for k in range(4)]
        if o['rmiss']:
            s.gather(lds_, [s.ck_xor([Y + 4 * k], 2, 12, 13) for k in range(4)], 8)
            s(f'v_pk_add_f32 v[10:11], {P(Y)}, {P(Y+4)}\nv_pk_add_f32 v[10:11], v[10:11], {P(Y+8)}\nv_pk_add_f32 v[10:11], v[10:11], {P(Y+12)}')
        else: s.poll(lds_, (ck, t), warmable=True, pre='s_barrier\nds_read_b64 v[38:39], v36' if o['rg'] == 6 else None)
        s.stamp(5)
        for w in (16, 32):
            s(f'v_mov_b32 v14, v10\nv_mov_b32 v15, v11\nv_permlane{w}_swap_b32 v10, v14\nv_permlane{w}_swap_b32 v11, v15\nv_pk_add_f32 v[10:11], v[10:11], v[14:15]')
        s(f'v_pk_fma_f32 v[10:11], v[10:11], v[6:7], v[4:5]\nv_cvt_pk_bf16_f32 v8, v10, v11')
        s.warmret('L_wR')
        s('s_mov_b64 exec, 0xffff')
        s.gstore([f'buffer_store_dwordx2 v[8:9], v2, {WSR}, s5 offen'])
        s.stamp(6)
        s.end()

    def s3(s):
        s.cur = 'l'
        o = s.o
        if not o['b0']: s('s_barrier')
        if not o['upe']: s.tagwait()
        if o['up'] and not o['wst']:
            if o['qfirst']: s.ldswait(LGO, 3)
            s.stage(None)
            if o['upe']: s.tagwait()
            if o['sep']: s(f's_waitcnt vmcnt({o["sep"]})\nv_mov_b32 v3, {LGO}\nv_mov_b32 v4, s{TAG}\nds_write_b32 v3, v4')
        s.ldswait(LQF, 3, o['pslp'])
        s('v_lshlrev_b32 v2, 4, v0\ns_branch L_Qg\nL_s3b:')
        if not o['up']: s.stage(1)
        s.stamp(1)
        s.role(0, 'L_R0')
        s.role(1, 'L_s23', False)
        s.warm('L_LN', 'L_wLN')
        s('L_LN0:')
        s.waitprog(72, 1)
        C1, SB, X = 8, 28, 48
        s(f'v_lshlrev_b32 v1, 4, v0\ns_and_b32 s8, s3, 1\ns_mul_i32 s11, s8, 0x02020000\ns_add_u32 s11, s11, 0x01000c0c')
        s(f's_mov_b32 s4, {W_MOD + 3*5120}\ns_mov_b32 s5, {W_MOD + 3*5120 + 4096}\ns_mov_b32 s6, {W_MOD + 4*5120}\ns_mov_b32 s7, {W_MOD + 4*5120 + 4096}')
        def ld5(base, sa): return [f'buffer_load_dwordx4 {Q4(base+4*u)}, v1, {WSR}, s{sa + (u >> 2)} offen offset:{1024*(u & 3)} sc1' for u in range(5)]
        pick = lambda r: f'v_perm_b32 v{r}, v{r}, v{r}, s11\nv_perm_b32 v{r+1}, v{r+2}, v{r+2}, s11'
        s.poll(ld5(C1, 6) + ld5(SB, 4), s.ck_tag([[C1 + 1 + 4 * k, C1 + 3 + 4 * k] for k in range(10)], 4), slp=o['mlslp'])
        for k in range(10): s(pick(C1 + 4 * k))
        for u in range(5):
            for e in range(2): s(f'v_add_f32 v{C1+4*u+e}, 1.0, v{C1+4*u+e}'); s.bf16r(C1 + 4 * u + e)
        s(f's_lshl_b32 s4, s{S_X}, 13\ns_add_u32 s4, s4, {W_X1}\ns_add_u32 s5, s4, 4096')
        s(f's_mul_i32 s8, s8, {HS}\ns_add_u32 s8, s8, {LH2}\nv_lshl_add_u32 v2, v0, 2, s8')
        s(f's_mov_b32 s10, {hx(1/640)}\nv_mov_b32 v68, {hx(1e-5)}')
        s('s_barrier\ns_barrier\ns_barrier')
        s('L_LN:')
        s.stamp(4)
        ck, t = s.ck_tag([[X + 1 + 4 * u, X + 3 + 4 * u] for u in range(5)], 70)
        for u in range(5):
            r = X + 4 * u
            ck[u] += '\n' + pick(r)
            if u == 0: ck[u] += f'\nv_readlane_b32 s8, v{X}, 0'
            ck[u] += f'\nv_pk_add_f32 {P(r)}, {P(r)}, s[8:9] op_sel_hi:[1,0] neg_lo:[0,1] neg_hi:[0,1]'
            if u == 0: ck[u] += f'\nv_pk_mul_f32 v[6:7], {P(r)}, {P(r)}'
            else: ck[u] += f'\nv_pk_add_f32 v[4:5], {P(X) if u == 1 else "v[4:5]"}, {P(r)}\nv_pk_fma_f32 v[6:7], {P(r)}, {P(r)}, v[6:7]'
        s.poll(ld5(X, 4), (ck, t), warmable=True)
        s.stamp(5)
        fill = [f'v_pk_mul_f32 {P(X+4*u)}, {P(X+4*u)}, {P(C1+4*u)}' for u in range(5)]
        s('v_add_f32 v4, v4, v5\nv_add_f32 v6, v6, v7'); s(fill.pop(0))
        s('v_permlane32_swap_b32 v4, v6\nv_add_f32 v4, v4, v6')
        s.red16('v_add_f32', [4], fill=fill); s.swapred('v_add_f32', 4, 5, 16)
        s('v_mul_f32 v4, s10, v4\nv_mov_b32 v6, v4\nv_permlane32_swap_b32 v4, v6')
        s('v_fma_f32 v6, -v4, v4, v6\nv_max_f32 v6, 0, v6\nv_add_f32 v6, v6, v68\nv_rsq_f32 v6, v6')
        for u in range(5): s(f'v_pk_fma_f32 {P(X+4*u)}, {P(C1+4*u)}, v[4:5], {P(X+4*u)} op_sel_hi:[1,0,1] neg_lo:[0,1,0] neg_hi:[0,1,0]')
        for u in range(5):
            r = X + 4 * u
            s(f'v_pk_fma_f32 {P(r)}, {P(r)}, v[6:7], {P(SB+4*u)} op_sel_hi:[1,0,1]\nv_cvt_pk_bf16_f32 v{r}, v{r}, v{r+1}')
            if u & 1: s(f'ds_write2st64_b32 v2, v{r-4}, v{r} offset0:{u-1} offset1:{u}')
        s(f'ds_write_b32 v2, v{X+16} offset:1024')
        s.warmret('L_wLN')
        s('s_waitcnt lgkmcnt(0)')
        s.stamp(3)
        s('s_barrier')
        s.end()
        s('L_s23:')
        s.role(3, 'L_exit', False)
        if o['fw']:
            s.waitprog(72, 1)
            s(f'v_and_b32 v6, 31, v0\nv_lshlrev_b32 v6, 3, v6\ns_lshl_b32 s9, s{S_DT}, 8\ns_add_u32 s9, s9, {W_MOD + 5*5120}')
            s.poll([f'buffer_load_dwordx2 v[10:11], v6, {WSR}, s9 offen sc1'], s.ck_tag([[11]], 12), slp=o['mlslp'])
        s('L_D0:')
        if o['dL']:
            l = s.lab('noL')
            s(f's_bitcmp1_b32 {o["dL"] << 8}, s{SV}\ns_cbranch_scc0 {l}')
            s.trigger(); s.daddr(); s(s.ddma()); s(f'{l}:')
        s('s_barrier\ns_branch L_D')
        s.end()

    def ldswait(s, at, v, slp=1):
        l = s.lab('lw')
        s(f'v_mov_b32 v{v}, {at}\ns_mov_b32 s{SPIN}, {s.o["spin"]}\n{l}:\ns_sleep {slp}\nds_read_b32 v{v+1}, v{v}\ns_sub_u32 s{SPIN}, s{SPIN}, 1\ns_waitcnt lgkmcnt(0)')
        s(f'v_readfirstlane_b32 s10, v{v+1}\ns_cselect_b32 s10, 1, s10\ns_cmp_eq_u32 s10, 1\ns_cbranch_scc0 {l}')
    def waitprog(s, n, v, slp=None, at=LPRG):
        l = s.lab('prog')
        s(f'v_mov_b32 v{v}, 0\ns_mov_b32 s{SPIN}, {s.o["spin"]}\n{l}:\ns_sleep {slp or s.o["mlslp"]}\nds_read_b32 v{v+1}, v{v} offset:{at}\ns_sub_u32 s{SPIN}, s{SPIN}, 1\ns_waitcnt lgkmcnt(0)')
        s(f'v_readfirstlane_b32 s4, v{v+1}\ns_cselect_b32 s4, 999, s4\ns_cmp_lt_u32 s4, {n}\ns_cbranch_scc1 {l}')
    def idpoll(s, slp):
        l = s.lab('gotid')
        if s.o['xab']:
            s(f's_add_u32 s7, s5, {W_XL - W_XC}')
            s.poll([f'buffer_load_dwordx2 v[4:5], v1, {WSR}, s7 offen sc1'], s.ck_tag([[5]], 6), slp=slp, spin=s.o['xab'])
            s(f's_cbranch_vccz {l}')
        s.poll([f'buffer_load_dwordx2 v[4:5], v1, {WSR}, s5 offen sc1'], s.ck_tag([[5]], 6), slp=slp)
        s(f'{l}:')

    def trigger(s):
        s.waitprog(s.o['btrig'] - 12, 12); s.waitprog(s.o['ball'], 12, 1, at=LCNT + 12)
    def daddr(s):
        s(f's_lshl_b32 s4, s{SV}, 13\ns_add_u32 s4, s4, {LBIG}')
        s.srd(RA, P_D, 1536 * 1280); s.rows(1, 2, 2, 1280)
        s(f's_mul_i32 s5, s{SV}, {128 * 1280}\ns_lshl_b32 s6, s{S_DT}, 6\ns_add_u32 s5, s5, s6')
    def ddma(s): return s.dma(8, 1, RA, 5, 16 * 1280, lambda t: f's_add_u32 m0, s4, {1024 * t}', 63)
    def caddr(s):
        s(f's_bitcmp1_b32 s{S_CS}, 0\ns_cselect_b64 s[{RA}:{RA+1}], s[{P_U}:{P_U+1}], s[{P_G}:{P_G+1}]\ns_mov_b32 s{RA+2}, {640 * 3072}\ns_mov_b32 s{RA+3}, 0x20000')
        s.swz(3072)
        s(f's_lshr_b32 s5, s{S_CS}, 1\ns_lshl_b32 s5, s5, 7')
    def swz(s, stride):
        s(f'v_lshrrev_b32 v2, 3, v0\nv_mul_u32_u24 v1, {stride}, v2\nv_and_b32 v2, 2, v2\nv_and_b32 v3, 7, v0\nv_xor_b32 v2, v2, v3\nv_xor_b32 v3, 4, v2')
        s('v_lshl_add_u32 v3, v3, 4, v1\nv_lshl_add_u32 v1, v2, 4, v1')
    def cdma(s, n, lds, F):
        out = []
        for t in range(n):
            out.append(lds(t))
            if F < 60: out.append(f's_waitcnt vmcnt({F - 1})')
            out.append(f'buffer_load_dwordx4 v{3 if t & 1 else 1}, {RAR}, s5 offen {s.o["wflag"]} lds')
            if t < n - 1: out.append(f's_add_u32 s5, s5, {8 * 3072}')
        return '\n'.join(out)

    def crole(s):
        s.cur = 'c'
        o = s.o; E = o['cE']; n = 2 * (10 - E)
        s(f'L_C:\ns_cmp_lt_u32 s{SV}, 4\ns_cbranch_scc0 L_exit')
        BW, A, D = 88, 8, 72
        s.caddr()
        s(f's_mul_i32 s4, s{SV}, {n}\ns_mul_i32 s6, s4, {8 * 3072}\ns_add_u32 s5, s5, s6\ns_lshl_b32 s4, s4, 10\ns_add_u32 s4, s4, {LBIG}')
        s.live('s_barrier\n' + s.cdma(n, lambda t: f's_add_u32 m0, s4, {1024 * t}', 63))
        s.tr_lane(2, 3, 1024, 128)
        s(f'v_bfe_u32 v3, v0, 3, 2\nv_xor_b32 v3, s{SV}, v3\nv_lshl_add_u32 v2, v3, 5, v2\nv_add_u32 v2, {LBIG}, v2\nv_add_u32 v5, 40960, v2')
        s.a_lane(3, 4, HS, 16, LH2)
        s(f's_and_b32 s4, s{S_CS}, 1\ns_mul_i32 s6, s4, 12288\ns_lshr_b32 s5, s{S_CS}, 1\ns_lshl2_add_u32 s5, s5, s{SV}\ns_lshl_b32 s5, s5, 7\ns_add_u32 s6, s6, s5\ns_add_u32 s6, s6, {W_ACT}')
        s(f'v_lshlrev_b32 v1, 3, v0\ns_mov_b32 s7, {hx(-LOG2E)}\nv_mov_b32 v77, s{TAG}\ns_add_u32 s8, s6, {W_AL - W_ACT}')
        s('s_waitcnt vmcnt(0)')
        s.stamp(3)
        s.live('s_barrier')
        for T in range(20):
            for hi in range(2): s(f'ds_read_b64_tr_b16 {P(BW + 4*T + 2*hi)}, v{2 if T < 10 else 5} offset:{4096*(T % 10) + 512*hi}')
        s('s_waitcnt lgkmcnt(0)'); s.live('s_barrier')
        s.stamp(5)
        for T in range(15): s(f'ds_read_b128 {Q4(A+4*T)}, v3 offset:{64*T}')
        for T in range(20):
            s(f's_waitcnt lgkmcnt({min(14, 19 - T)})')
            s.mfma(D, A + 4 * (T % 15), BW + 4 * T, T == 0)
            if T < 5: s(f'ds_read_b128 {Q4(A+4*T)}, v3 offset:{64*(T+15)}')
        l = s.lab('up')
        s(f's_cmp_eq_u32 s4, 1\ns_cbranch_scc1 {l}')
        for op in (f'v_mul_f32 v{{t}}, s7, v{{d}}', 'v_exp_f32 v{t}, v{t}', 'v_add_f32 v{t}, 1.0, v{t}', 'v_rcp_f32 v{t}, v{t}', 'v_mul_f32 v{d}, v{d}, v{t}'):
            for b in range(2): s(op.format(t=D + 2 + b, d=D + b))
        s(f'{l}:\nv_cvt_pk_bf16_f32 v76, v{D}, v{D+1}')
        s.warmret('L_wC')
        st = [f'buffer_store_dwordx2 v[76:77], v1, {WSR}, s6 offen sc1', f'buffer_store_dwordx2 v[76:77], v1, {WSR}, s8 offen']
        s('s_mov_b64 exec, 0xffff\n' + '\n'.join(st[::-1] if o['pfa'] else st))
        s.stamp(6)
        s.end()

    def drole(s):
        s.cur = 'd'
        o = s.o
        s('L_D:')
        BW, A, D = 40, 72, 88
        s.daddr(); s.srd(RB, P_OUT, 2560)
        l = s.lab('have')
        have = f's_bitcmp1_b32 {o["dL"] << 8}, s{SV}' if o['dL'] else f's_cmp_ge_u32 s{SV}, {o["dW"]}'
        s.live(f's_barrier\n{have}\ns_cbranch_scc1 {l}\n' + s.ddma() + f'\n{l}:')
        s.tr_lane(2, 3, 512, 64)
        s('v_add_u32 v2, s4, v2\ns_waitcnt vmcnt(0)')
        s.stamp(3)
        for tt in range(2):
            for T in range(4):
                for hi in range(2): s(f'ds_read_b64_tr_b16 {P(BW + 16*tt + 4*T + 2*hi)}, v2 offset:{2048*T + 256*hi + 32*tt}')
        s(f's_lshl_b32 s4, s{SV}, 9\ns_add_u32 s4, s4, {LACT}\nv_lshl_add_u32 v2, v0, 2, s4')
        s.a_lane(3, 4, 256, 16, 0); s('v_add_u32 v3, s4, v3')
        s(f'v_and_b32 v4, 31, v0\nv_mul_u32_u24 v4, 96, v4\ns_lshl_b32 s4, s{SV}, 2\ns_add_u32 s4, s4, {LDP}\nv_add_u32 v4, s4, v4')
        s(f'v_lshlrev_b32 v1, 4, v0\ns_lshl_b32 s5, s{SV}, 10\ns_add_u32 s5, s5, {W_ACT}')
        s('s_add_u32 s6, s5, 12288')
        if True:
            s(f'v_mov_b32 v5, {LFLAG}\nds_read_b32 v6, v5\ns_lshl_b32 s7, s{SV}, 1\ns_mul_i32 s8, s{S_X}, 3\ns_sub_u32 s7, s7, s8\nv_lshrrev_b32 v5, 5, v0\nv_add_u32 v5, s7, v5\nv_cmp_gt_u32 vcc, 3, v5')
            s(f's_waitcnt lgkmcnt(0)\nv_subrev_u32 v6, 1, v6\nv_readfirstlane_b32 s11, v6\nv_mul_u32_u24 v6, {W_AL - W_ACT}, v6\nv_cndmask_b32 v5, 0, v6, vcc\nv_add_u32 v1, v1, v5')
        s(f'v_and_b32 v5, 31, v0\nv_lshlrev_b32 v6, 3, v5\nv_lshrrev_b32 v7, 5, v0')
        lf = s.lab('nofin')
        s(f's_cmp_eq_u32 s{SV}, {o["fw"]}\ns_cbranch_scc0 {lf}')
        s(f's_lshl_b32 s8, s{S_DT}, 8\ns_add_u32 s9, s8, {W_MOD + 5*5120}\ns_add_u32 s8, s8, {W_X1}')
        s(f's_lshl_b32 s10, s{S_X}, 13\ns_add_u32 s8, s8, s10')
        if o['fw']: s.poll([f'buffer_load_dwordx2 v[8:9], v6, {WSR}, s8 offen sc1'], s.ck_tag([[9]], 12), slp=o['dslp'], warmable=True)
        else: s.poll([f'buffer_load_dwordx2 v[10:11], v6, {WSR}, s9 offen sc1', f'buffer_load_dwordx2 v[8:9], v6, {WSR}, s8 offen sc1'], s.ck_tag([[11], [9]], 12), slp=o['dslp'], warmable=True)
        s('v_lshlrev_b32 v9, 4, v7\nv_lshrrev_b32 v8, v9, v8\nv_lshlrev_b32 v8, 16, v8\nv_lshrrev_b32 v10, v9, v10\nv_lshlrev_b32 v10, 16, v10')
        if o['adel']: s(f's_sleep {o["adel"]}')
        if o['agate']:
            s(f's_cmp_eq_u32 s11, 1\ns_cbranch_scc0 {lf}')
            s(f'v_min_u32 v11, {o["agate"] - 1}, v5\nv_lshlrev_b32 v11, 7, v11\nv_mul_u32_u24 v9, 12288, v7\nv_add_u32 v11, v11, v9\ns_mul_i32 s8, s{S_X}, 1536\ns_add_u32 s8, s8, {W_AL}')
            s.poll([f'buffer_load_dword v9, v11, {WSR}, s8 offen offset:4 sc1'], s.ck_tag([[9]], 12), warmable=True)
        s(f'{lf}:')
        s(f'v_lshl_add_u32 v6, v5, 1, v7\nv_mul_u32_u24 v6, 48, v6\nv_add_u32 v6, {LDP}, v6')
        s(f'v_mul_u32_u24 v7, 1280, v7\nv_lshl_add_u32 v5, v5, 1, v7\ns_lshl_b32 s8, s{S_DT}, 6')
        if o['otouch']: s(f'buffer_load_dword v30, v5, {RBR}, s8 offen')
        s.live('s_barrier')
        ck, t = s.ck_tag([[17, 19], [21, 23]], 12)
        for k in range(2):
            for r in (16 + 4 * k, 18 + 4 * k): ck[k] += f'\nv_and_b32 v{r+1}, 0xffff0000, v{r}\nv_lshlrev_b32 v{r}, 16, v{r}'
        s.poll([f'buffer_load_dwordx4 {Q4(16+4*k)}, v1, {WSR}, s{5+k} offen sc1' for k in range(2)], (ck, t), warmable=True)
        s.stamp(5)
        s('v_pk_mul_f32 v[16:17], v[16:17], v[20:21]\nv_pk_mul_f32 v[18:19], v[18:19], v[22:23]\nv_cvt_pk_bf16_f32 v16, v16, v18\nv_cvt_pk_bf16_f32 v17, v17, v19')
        s('ds_write2st64_b32 v2, v16, v17 offset0:0 offset1:1\ns_waitcnt lgkmcnt(0)')
        for T in range(4): s(f'ds_read_b128 {Q4(A+4*T)}, v3 offset:{64*T}')
        for T in range(4):
            s(f's_waitcnt lgkmcnt({3-T})')
            for tt in range(2): s.mfma(D + 4 * tt, A + 4 * T, BW + 16 * tt + 4 * T, T == 0)
        for b in range(2): s(f'v_mov_b32_dpp v{D+b}, v{D+4+b} quad_perm:[0,1,2,3] row_mask:0xa bank_mask:0xf')
        s(f'ds_write2_b32 v4, v{D}, v{D+1} offset0:0 offset1:12\ns_waitcnt lgkmcnt(0)'); s.stamp(1); s.live('s_barrier'); s.stamp(2)
        s(f's_cmp_eq_u32 s{SV}, {o["fw"]}\ns_cbranch_scc0 L_exit')
        for k in range(3): s(f'ds_read_b128 {Q4(16+4*k)}, v6 offset:{16*k}')
        s('s_waitcnt lgkmcnt(1)\nv_pk_add_f32 v[16:17], v[16:17], v[18:19]\nv_pk_add_f32 v[20:21], v[20:21], v[22:23]\nv_pk_add_f32 v[16:17], v[16:17], v[20:21]')
        s('s_waitcnt lgkmcnt(0)\nv_pk_add_f32 v[24:25], v[24:25], v[26:27]\nv_pk_add_f32 v[16:17], v[16:17], v[24:25]\nv_add_f32 v16, v16, v17')
        s('v_fma_f32 v16, v16, v10, v8\nv_mov_b32_dpp v17, v16 quad_perm:[1,1,3,3] row_mask:0xf bank_mask:0xf\nv_cvt_pk_bf16_f32 v16, v16, v17')
        s.warmret('L_wD')
        s(f's_mov_b32 exec_lo, 0x55555555\ns_mov_b32 exec_hi, 0x55555555\nbuffer_store_dword v16, v5, {RBR}, s8 offen {o["oflag"]}')
        s.stamp(6)
        s(f's_cmp_eq_u32 s{S_DT}, 0\ns_cbranch_scc0 L_fin')
        s(f's_mov_b64 exec, 1\nv_mov_b32 v17, s{TAG}\nv_mov_b32 v18, 0\nbuffer_store_dword v17, v18, {WSR}, 0 offen {o["oflag"]}')
        if o['diag']:
            s(f'L_diag:\ns_memrealtime s[76:77]\ns_waitcnt lgkmcnt(0)\ns_sub_u32 s76, s76, s78\ns_cmp_lt_u32 s76, {o["diag"]}\ns_cbranch_scc1 L_diag')

    def exit(s):
        s('L_fin:')
        if s.o['stamps'] != 4: s('L_exit:')
        if s.o['stamps']:
            s('s_waitcnt vmcnt(0)')
            s.stamp(7, True)
            if s.o['stamps'] == 3: s(f's_memtime s[{ST0+12}:{ST0+13}]')
            s('s_mov_b64 exec, 1\ns_waitcnt lgkmcnt(0)')
            s(f'{"s_mov_b32 s4, s14" if s.o["stamps"] == 4 else "s_mul_i32 s4, s2, 12"}\n{"" if s.o["stamps"] == 4 else "s_add_u32 s4, s4, s3"}\ns_lshl_b32 s4, s4, 6\ns_add_u32 s4, s4, {W_STAMP}\nv_mov_b32 v1, 0')
            for k in range(4):
                for e in range(4): s(f'v_mov_b32 v{4+4*k+e}, s{ST0+4*k+e}')
                s(f'buffer_store_dwordx4 {Q4(4+4*k)}, v1, {WSR}, s4 offen offset:{16*k}')
        if s.o['stamps'] == 4: s('L_exit:')
        s('L_end:\ns_endpgm')

    def build(s):
        s.entry(); s.stream()
        for _ in range(s.o['shift']): s('s_endpgm')
        s('L_service:')
        s('; ---- the flags, counters and hints in LDS start out clear (complete at the wait for the arguments, before the first barrier)')
        s(f'v_and_b32 v1, 15, v0\nv_cmp_eq_u32 vcc, {(LMODE - LFLAG) // 4}, v1\nv_mov_b32 v2, 999\nv_lshlrev_b32 v1, 2, v1\nv_cndmask_b32 v2, 0, v2, vcc\nds_write_b32 v1, v2 offset:{LFLAG}')
        s.roles()
        if s.o['b0']: s('s_barrier')
        s('s_cmp_eq_u32 s3, 9\ns_cbranch_scc1 L_s1\ns_cmp_eq_u32 s3, 10\ns_cbranch_scc1 L_s2\ns_cmp_eq_u32 s3, 11\ns_cbranch_scc1 L_s3')
        s.s0(); s.bgather(); s('L_s1:'); s.s1(); s('L_s2:'); s.s2(); s('L_s3:'); s.s3(); s.crole(); s.drole(); s.exit()
        body, n = pad(s.L)
        out = [HEADER.rstrip(), f'; @launch grid=(256,1,1) block=(768,1,1) lds={LEND}', '.amdgcn_target "amdgcn-amd-amdhsa--gfx950"', '.text',
               f'.globl {KN}', '.p2align 8', f'.type {KN},@function', f'{KN}:']
        out += [l if l.endswith(':') or l.startswith(';') else '    ' + l for l in body]
        out += ['.section .rodata,"a"', '.p2align 6', f'.amdhsa_kernel {KN}', '  .amdhsa_next_free_vgpr 168', '  .amdhsa_next_free_sgpr 96',
                '  .amdhsa_accum_offset 168', '  .amdhsa_group_segment_fixed_size 0', '  .amdhsa_kernarg_size 112', '  .amdhsa_user_sgpr_count 2',
                '  .amdhsa_user_sgpr_kernarg_segment_ptr 1', '  .amdhsa_system_sgpr_workgroup_id_x 1', '  .amdhsa_float_denorm_mode_32 3', '.end_amdhsa_kernel']
        return '\n'.join(out) + '\n', n

if __name__ == '__main__':
    names = []
    for spec in sys.argv[1:]:
        kw = {}
        name, _, rest = spec.partition(':')
        for kv in filter(None, rest.split(',')):
            k, v = kv.split('=')
            kw[k] = int(v) if v.isdigit() else v.replace('+', ' ').replace('_', '')
        t, n = G(**kw).build()
        open(name, 'w').write(t)
        names.append(name)
    print(' '.join(names))
```

```python
import sys, struct
from asmlib import pad
KN = 'adaLN_cond__gqa_block_cached__swiglu_ffn__decode_kernel'

def f2u(x): return struct.unpack('<I', struct.pack('<f', x))[0]
def hx(x): return hex(f2u(x))
LOG2E = 1.4426950408889634
W_E, W_PG, W_MOD, W_XL, W_XC, W_ACT = 0, 0x800, 0x1000, 0x2000, 0x9000, 0xA000
W_X1, W_GL, W_AL, W_YL, W_Y, W_ATT, W_ML, W_MP, W_QP, W_END = 0x10000, 0x20000, 0x28000, 0x30000, 0x58000, 0x80000, 0x180000, 0x1A0000, 0x1E0000, 0x260000
W_STAMP = 512 << 20
LQ, LFLAG, LPRG, LMODE, LQF, LGO, LCNT, LXS, LHS, LO, LH2, LPO, LBIG = 0, 1536, 1544, 1552, 1556, 1560, 1568, 1664, 2304, 2816, 6144, 9216, 58368
LMF = 1564
LYO = LXS
LACT, LDP = LPO, LPO + 6144
OS = 768 + 64
HS = 1280 + 64
LM, LWQ, LB, LEND = LBIG, LBIG + 20480, LBIG + 51200, LBIG + 100352
P_X, P_K, P_V, P_WQ, P_WO, P_BX, P_G, P_U, P_D, P_C, P_WM, P_OUT, P_DBG, P_WS = range(16, 44, 2)
TAG, S_H, S_J, S_R, S_X, S_IDX, LOC, S_CS = 44, 45, 46, 47, 48, 49, 50, 51
WS = 52; RA = 56; RB = 60
S_ROLE = 15
S_DT = 14
SPIN = 13
SV = 12
ST0 = 80
WSR = f's[{WS}:{WS+3}]'; RAR = f's[{RA}:{RA+3}]'; RBR = f's[{RB}:{RB+3}]'
P = lambda r: f'v[{r}:{r+1}]'
Q4 = lambda r: f'v[{r}:{r+3}]'


HEADER = """; Kernarg layout for this problem (112 bytes, ptrs only, base s[0:1]):
;
"""

class G:
    def __init__(s, **o):
        s.o = dict(F=3, NPF=12, RC=3, endF=5, endN=6, rot=6, wflag='nt', sflag='nt', spin=1 << 22, pslp=8, mlslp=32,
                   qF=63, mF=63, bF=1, cF=1, dF=1, cE=3, dE=3, bE=0, bEF=2, bonus=1, ord='0123', ordk='2301', wst=0, wF=3, up=1, upF=63, F0=3, N0=0, upe=0, qfirst=1, mfirst=1, shp=0, XA='32', XB='32', YA='32', YB='32', XP='333', YP='333', alt=0, b0=1, order='0123', lin=0, fpat='', lpat='', fw=11, dslp=8, agate=0, adel=0, prio=0, bD=24, btrig=192, ball=8, bfl=1, cL=0, dL=0, Fm=3, Flom=2, far=0, emu=0, emin=6, emin2=3, shift=0, rown=1, pfy=0, pfa=0, rg=4, dg=1, rmiss=0, otouch=0, eg0=16, st0=112, qlight=0, glight=0, gmap=1, sep=0, dW=9, eg=182, xab=6, oflag='', warm=1, loc=1,
                   bal=1, stat1=130, cstep=8, bdel=20, n1=11, cstep2=6, bdel2=17, c0=6, bslp=12, Flo=2, bend=183,
                   stamps=0, stk='', phst=0, remap=0, diag=0, nox='')
        s.o.update(o); s.L = []; s.uid = 0; s.cur = '?'
    def __call__(s, t):
        for l in t.split('\n'):
            l = l.strip()
            if l: s.L.append(l)
    def lab(s, n): s.uid += 1; return f'L_{n}_{s.uid}'
    def srd(s, d, ptr, size):
        s(f's_mov_b32 s{d}, s{ptr}\ns_mov_b32 s{d+1}, s{ptr+1}\ns_mov_b32 s{d+2}, {size}\ns_mov_b32 s{d+3}, 0x20000')
    def stamp(s, k, lite=False):
        if s.o['stamps'] == 4 and k not in (0, 7): return
        if s.o['stamps'] == 1 or (s.o['stamps'] and (lite or str(k) + s.cur in s.o['stk'])): s(f's_memrealtime s[{ST0+2*k}:{ST0+2*k+1}]')
    def bf16r(s, d, src=None):
        src = d if src is None else src
        s(f'v_cvt_pk_bf16_f32 v{d}, v{src}, v{src}\nv_and_b32 v{d}, 0xffff0000, v{d}')
    def dppop(s, op, v, ctl): s(f'{op}_dpp v{v}, v{v}, v{v} {ctl} row_mask:0xf bank_mask:0xf')
    def red16(s, op, vs, skip1=False, fill=None):
        for ctl in (['quad_perm:[1,0,3,2]'] if not skip1 else []) + ['quad_perm:[2,3,0,1]', 'row_half_mirror', 'row_mirror']:
            if fill:
                for _ in range(2):
                    if fill: s(fill.pop(0))
            for v in vs: s.dppop(op, v, ctl)
    def swapred(s, op, v, t, w, fill=None):
        s(f'v_mov_b32 v{t}, v{v}')
        if fill:
            for _ in range(2):
                if fill: s(fill.pop(0))
        s(f'v_permlane{w}_swap_b32 v{v}, v{t}\n{op} v{v}, v{v}, v{t}')
    def live(s, text):
        if not s.o['warm']: s(text); return
        l = s.lab('lv'); s(f's_cbranch_execz {l}'); s(text); s(f'{l}:')
    def warm(s, entry, ret):
        if not s.o['warm']: return
        for r in range(1, 8): s(f'v_mov_b32 v{r}, 0')
        s(f's_mov_b64 exec, 0\ns_branch {entry}\n{ret}:\ns_mov_b64 exec, -1')
    def warmret(s, ret):
        if s.o['warm']: s(f's_cbranch_execz {ret}')
    def ck_tag(s, groups, t):
        out = []; first = True
        for g in groups:
            l = []
            for r in g:
                l.append(f'v_xor_b32 v{t}, s{TAG}, v{r}' if first else f'v_bitop3_b32 v{t}, v{r}, s{TAG}, v{t} bitop3:0xbe'); first = False
            out.append('\n'.join(l))
        return out, t
    def ck_xor(s, bases, n, t, t2):
        out = []
        for i, b in enumerate(bases):
            l = [f'v_bitop3_b32 v{t2}, v{b}, v{b+1}, v{b+2} bitop3:0x96']
            if n == 3: l.append(f'v_xor_b32 v{t2}, v{t2}, v{b+3}')
            l.append(f'v_xor_b32 v{t}, s{TAG}, v{t2}' if i == 0 else f'v_bitop3_b32 v{t}, v{t2}, s{TAG}, v{t} bitop3:0xbe')
            out.append('\n'.join(l))
        return out, t
    def poll(s, loads, ck, slp=0, warmable=False, nm='?', slpif=None, spin=None, pre=None):
        if nm in s.o['nox']: return
        checks, t = ck
        a = s.lab('poll'); b = s.lab('ok')
        s(f's_mov_b32 s{SPIN}, {spin or s.o["spin"]}')
        c0 = s.lab('chk')
        if pre: s('\n'.join(loads)); s(pre); s(f's_branch {c0}')
        s(f'{a}:')
        (s.live if warmable else s)('\n'.join(loads))
        if pre: s(f'{c0}:')
        for i, c in enumerate(checks): s(f's_waitcnt vmcnt({len(loads) - 1 - i})'); s(c)
        s(f'v_cmp_ne_u32 vcc, 0, v{t}\ns_cbranch_vccz {b}')
        if slpif: c = s.lab('ns'); s(f'{slpif}\ns_cbranch_scc1 {c}\ns_sleep {s.o["mlslp"]}\n{c}:')
        if slp: s(f's_sleep {slp}')
        s(f's_sub_u32 s{SPIN}, s{SPIN}, 1\ns_cbranch_scc0 {a}\n{b}:')
    def gather(s, loads, cks, sm, slp=0, nm='?'):
        if nm in s.o['nox']: return
        n = len(loads); a = s.lab('gat'); b = s.lab('ok')
        s(f's_mov_b32 s{SPIN}, {s.o["spin"]}\ns_mov_b32 s{sm}, {(1 << n) - 1}\n{a}:')
        for k in range(n):
            l = s.lab('sk'); s(f's_bitcmp1_b32 s{sm}, {k}\ns_cbranch_scc0 {l}\n{loads[k]}\n{l}:')
        s(f's_mov_b32 s{sm}, 0\ns_waitcnt vmcnt(0)')
        for k in reversed(range(n)):
            s(cks[k][0][0]); s(f'v_cmp_ne_u32 vcc, 0, v{cks[k][1]}\ns_cmp_lg_u64 vcc, 0\ns_addc_u32 s{sm}, s{sm}, s{sm}')
        s(f's_cmp_eq_u32 s{sm}, 0\ns_cbranch_scc1 {b}')
        if slp: s(f's_sleep {slp}')
        s(f's_sub_u32 s{SPIN}, s{SPIN}, 1\ns_cbranch_scc0 {a}\n{b}:')
    def gstore(s, stores, nm='?'):
        if nm in s.o['nox']: return
        a = s.lab('pl'); b = s.lab('st')
        s(f's_cmp_eq_u32 s{LOC}, 1\ns_cbranch_scc1 {a}')
        for t in stores: s(t + ' sc1')
        s(f's_branch {b}\n{a}:')
        for t in stores: s(t)
        s(f'{b}:')
    def getloc(s, t, spin=True, at=LFLAG):
        a = s.lab('loc'); b = s.lab('locok')
        if spin: s(f's_mov_b32 s{SPIN}, {s.o["spin"] * 8}\n{a}:')
        s(f'v_mov_b32 v{t}, {at}\nds_read_b32 v{t}, v{t}\ns_waitcnt lgkmcnt(0)\nv_readfirstlane_b32 s{LOC}, v{t}\ns_sub_u32 s{LOC}, s{LOC}, 1')
        if spin: s(f's_cmp_le_u32 s{LOC}, 1\ns_cbranch_scc1 {b}\ns_sleep 1\ns_sub_u32 s{SPIN}, s{SPIN}, 1\ns_cbranch_scc0 {a}\n{b}:')
    def dma(s, n, voff, srd, soff, sstep, lds, F):
        out = []
        for t in range(n):
            st = sstep(t) if callable(sstep) else sstep
            out.append(lds(t) if callable(lds) else f's_mov_b32 m0, {lds + 1024 * t}')
            if F < 60: out.append(f's_waitcnt vmcnt({F - 1})')
            out.append(f'buffer_load_dwordx4 v{voff}, s[{srd}:{srd+3}], s{soff} offen {s.o["wflag"]} lds')
            if t < n - 1: out.append(f's_add_u32 s{soff}, s{soff}, {st}')
        return '\n'.join(out)
    def rows(s, d, t, sh, stride):
        s(f'v_lshrrev_b32 v{d}, {sh}, v0\nv_mul_u32_u24 v{d}, {stride}, v{d}\nv_and_b32 v{t}, {(1 << sh) - 1}, v0\nv_lshl_add_u32 v{d}, v{t}, 4, v{d}')
    def tr_lane(s, d, t, gs, rs):
        s(f'v_lshrrev_b32 v{d}, 4, v0\nv_mul_u32_u24 v{d}, {gs}, v{d}')
        s(f'v_bfe_u32 v{t}, v0, 2, 2\nv_mul_u32_u24 v{t}, {rs}, v{t}\nv_add_u32 v{d}, v{d}, v{t}')
        s(f'v_and_b32 v{t}, 3, v0\nv_lshl_add_u32 v{d}, v{t}, 3, v{d}')
    def a_lane(s, d, t, bs, gs, base):
        s(f'v_and_b32 v{d}, 1, v0\nv_mul_u32_u24 v{d}, {bs}, v{d}\nv_lshrrev_b32 v{t}, 4, v0\nv_mul_u32_u24 v{t}, {gs}, v{t}')
        s(f'v_add_u32 v{d}, v{d}, v{t}')
        if base: s(f'v_add_u32 v{d}, {base}, v{d}')
    def mfma(s, d, a, b, first, k=32):
        n = 4 if k == 32 else 2
        s(f'v_mfma_f32_16x16x{k}_bf16 v[{d}:{d+3}], v[{a}:{a+n-1}], v[{b}:{b+n-1}], ' + ('0' if first else f'v[{d}:{d+3}]'))
    def role(s, bit, label, ifset=True): s(f's_bitcmp1_b32 s{S_ROLE}, {bit}\ns_cbranch_scc{1 if ifset else 0} {label}')
    def end(s): s('s_branch L_exit' if s.o['stamps'] in (1, 2) else 's_endpgm')
    def ghead(s, d):
        if s.o['gmap']: s(f's_lshr_b32 s{d}, s2, 7\ns_lshl3_add_u32 s{d}, s{d}, s{S_X}')
        else: s(f's_lshr_b32 s{d}, s{S_H}, 1')
    def tagwait(s): s(f's_waitcnt lgkmcnt(0)\ns_add_u32 s{TAG}, s{TAG}, 0x9e3779b1')

    def entry(s):
        o = s.o
        s(f's_cmp_ge_u32 s2, 256\ns_cbranch_scc1 L_end')
        s.stamp(0, True)
        s('s_load_dwordx16 s[16:31], s[0:1], 0\ns_load_dwordx8 s[32:39], s[0:1], 64\ns_load_dwordx4 s[40:43], s[0:1], 96')
        if o['diag']: s('s_memrealtime s[78:79]')
        s('v_readfirstlane_b32 s3, v0\nv_and_b32 v0, 63, v0')
        if o['remap']: s('s_lshr_b32 s4, s2, 3\ns_and_b32 s4, s4, 7\ns_xor_b32 s2, s2, s4')
        s(f's_and_b32 s{S_X}, s2, 7\ns_lshr_b32 s4, s2, 6\ns_bfe_u32 s{S_J}, s2, 0x30003\ns_lshl2_add_u32 s{S_H}, s{S_X}, s4\ns_lshr_b32 s3, s3, 6')
        s('s_cmp_ge_u32 s3, 8\ns_cbranch_scc1 L_service')

    def roles(s):
        o = s.o
        for k in range(1, 8): s.stamp(k, True)
        s(f's_lshr_b32 s{S_IDX}, s2, 3\ns_lshr_b32 s11, s2, 6')
        lb = s.lab('nonB'); lr = s.lab('roles')
        s(f's_mov_b32 s{S_DT}, 0\ns_mov_b32 s{SV}, s3')
        s(f's_cmp_lt_u32 s{S_J}, 5\ns_cbranch_scc0 {lb}')
        if o['rown']:
            s(f's_and_b32 s9, s11, 1\ns_mul_i32 s{S_CS}, s9, 5\ns_add_u32 s{S_CS}, s{S_CS}, s{S_J}\ns_and_b32 s9, s11, 2\ns_lshl2_add_u32 s{S_CS}, s{S_CS}, s9\ns_and_b32 s9, s3, 1\ns_add_u32 s{S_CS}, s{S_CS}, s9')
        else: s(f's_mul_i32 s{S_CS}, s11, 5\ns_add_u32 s{S_CS}, s{S_CS}, s{S_J}\ns_lshl_b32 s{S_CS}, s{S_CS}, 1\ns_and_b32 s9, s3, 1\ns_add_u32 s{S_CS}, s{S_CS}, s9')
        s(f's_mov_b32 s{S_ROLE}, 1\ns_branch {lr}')
        s(f'{lb}:')
        s(f's_mul_i32 s8, s11, 3\ns_add_u32 s8, s8, s{S_J}\ns_sub_u32 s8, s8, 5')
        s(f's_mul_i32 s{S_CS}, s{S_X}, 6\ns_add_u32 s{S_CS}, s{S_CS}, s8')
        s(f's_add_u32 s9, s8, 10\ns_and_b32 s9, s9, 14\ns_lshl_b32 s10, s9, 2\ns_add_u32 s10, s10, s{S_X}')
        s(f's_lshl_b32 s{S_DT}, s10, 1\ns_and_b32 s9, s8, 1\ns_add_u32 s{S_DT}, s{S_DT}, s9')
        s(f's_cmp_lt_u32 s10, 10\ns_cselect_b32 s{S_ROLE}, 8, 0')
        s(f's_cmp_lt_u32 s8, 6\ns_cselect_b32 s{S_ROLE}, 2, s{S_ROLE}')
        s(f'{lr}:')
        s('s_waitcnt lgkmcnt(0)')
        s(f's_load_dword s{TAG}, s[{P_WS}:{P_WS+1}], 0')
        s.srd(WS, P_WS, 805306368 if o['stamps'] else W_END)

    def stream(s):
        s.cur = 'w'
        o = s.o; F = o['F']; NPF = o['NPF']
        VK, QA, ACC, TS, MX = 1, 4, 16, 2, 3
        RING = 24
        SC = RING
        T1, T2, LS, PPT = RING + 8, RING + 9, RING + 10, RING + 11
        MK = RING + 12
        VV, BP, PP2, T3 = RING + 16, RING + 17, RING + 18, RING + 19
        ML = RING + 20
        RET = 7
        BM, BA, BZ = RING + 24, RING + 25, RING + 26
        A2 = []
        s(f'v_bfe_u32 v{VK}, v0, 1, 3\nv_mul_u32_u24 v{VK}, 384, v{VK}\nv_lshrrev_b32 v2, 4, v0\nv_lshl_add_u32 v{VK}, v2, 5, v{VK}')
        s(f'v_and_b32 v2, 1, v0\nv_lshl_add_u32 v{VK}, v2, 4, v{VK}')
        if o['lin']: s(f'v_lshlrev_b32 v{VK}, 4, v0')
        PD = 16 * 3145728; STEP = 393216; OV = [int(c) for c in str(o['ord']).zfill(4)]
        OD = [int(c) for c in str(o['ordk'] or o['ord']).zfill(4)] + OV
        s(f's_bfe_u32 s7, s2, 0x40003\ns_lshl3_add_u32 s7, s7, s3\ns_mul_i32 s4, s7, 3072'); s.ghead(10)
        s(f's_mul_i32 s5, s10, 3145728\ns_add_u32 s4, s4, s5\ns_add_u32 s4, s4, {OD[0] * PD}\ns_add_u32 s6, s4, 3145728')
        s(f's_mul_i32 s5, s10, {o["rot"]}\ns_and_b32 s5, s5, 7\ns_mul_i32 s5, s5, {STEP}\ns_add_u32 s5, s5, s4')
        s(f's_mov_b32 s{RA+2}, 201326592\ns_mov_b32 s{RA+3}, 0x20000\ns_waitcnt lgkmcnt(0)\ns_mov_b64 s[{RA}:{RA+1}], s[{P_K}:{P_K+1}]')
        def emu(both=True):
            if o['emu']:
                s(f's_cmp_ge_u32 s4, {43 * 3145728}\ns_cselect_b64 s[{RA}:{RA+1}], s[{P_BX}:{P_BX+1}], s[{P_K}:{P_K+1}]')
                if both: s(f's_cselect_b64 s[{RB}:{RB+1}], s[{P_DBG}:{P_DBG+1}], s[{P_V}:{P_V+1}]')
        if o['shp']: s('s_cmp_ge_u32 s10, 11\ns_cselect_b32 s72, 1, 0')
        emu(False)
        NL = 192
        quad = {}; free = list(range(3 * NPF)); vm = []
        done = [0]
        def wait(n):
            if len(vm) - done[0] > n:
                s(f's_waitcnt vmcnt({n})'); done[0] = len(vm) - n
        def issue(u):
            if o['shp'] and F <= u < NL - o['endN']:
                ctl = u >= 3 * NPF + 9
                x = str(o['XB'] if OD[u // 24] == 3 else o['XA']) if ctl else str(o['XP'])[u % len(str(o['XP']))] * 2
                y = str(o['YB'] if OD[u // 24] >= 2 else o['YA']) if ctl else str(o['YP'])[u % len(str(o['YP']))] * 2
                hi = max(int(x[0]), int(y[0])); wait(hi - 1)
                l = s.lab('th')
                def lim(z):
                    if int(z[0]) < hi: s(f's_waitcnt vmcnt({int(z[0]) - 1})')
                    if z[1] < z[0]: s(f's_cbranch_vccz {l}\ns_waitcnt vmcnt({int(z[1]) - 1})')
                if x == y: lim(x)
                else:
                    ly = s.lab('ty'); s(f's_cmp_eq_u32 s72, 1\ns_cbranch_scc1 {ly}'); lim(x); s(f's_branch {l}\n{ly}:'); lim(y)
                s(f'{l}:')
            else:
                wait((o['endF'] if u >= NL - o['endN'] else o['F0'] if u < o['N0'] else int(str(o['fpat'])[u % 3]) if o['fpat'] else o['Fm'] if OD[u // 24] == 2 else F) - 1)
                if o['bal'] and 3 * NPF + 9 <= u < NL - o['endN']:
                    l = s.lab('th'); s(f's_cbranch_vccz {l}\ns_waitcnt vmcnt({(int(str(o["lpat"])[u % 3]) if o["lpat"] else o["Flo"]) - 1})')
                    if o['far']: s(f's_cmp_eq_u64 s[72:73], 0\ns_cbranch_scc1 {l}\ns_waitcnt vmcnt(0)')
                    s(f'{l}:')
            q = free.pop(0); quad[u] = q; r = RING + 4 * q
            srd, vo = (RAR, VK) if u < 96 else (RBR, VK if o['lin'] else VV)
            s(f'buffer_load_dwordx4 {Q4(r)}, v{vo}, {srd}, s5 offen offset:{(1024 if o["lin"] else 128) * (u % 3)} {o["sflag"]}')
            vm.append(u)
            if o['ball'] and u == o['btrig'] - 1: s(f's_mov_b64 exec, 1\nv_mov_b32 v{T2}, 1\nds_add_u32 v{BZ}, v{T2} offset:{LCNT + 12}\ns_mov_b64 exec, -1')
            if u % 3 == 2 and u < NL - 1:
                s(f's_add_u32 s5, s5, {STEP}\ns_cmp_ge_u32 s5, s6\ns_cselect_b32 s5, s4, s5')
                if u % 24 == 23:
                    t = u // 24; dl = OD[t + 1] - OD[t]
                    for r in (4, 5, 6): s(f's_{"add" if dl > 0 else "sub"}_u32 s{r}, s{r}, {abs(dl) * PD}')
                    emu()
                if o['phst'] == 1 and u % 48 == 47: s.stamp({47: 3, 95: 5, 143: 6}[u], True)
                if o['phst'] == 2 and u in (95, 119, 143): s.stamp({95: 3, 119: 5, 143: 6}[u], True)
            if u >= 3 * NPF + 3 and (u % 3 == 2 or not o['fpat']):
                if u >= 3 * NPF + 6:
                    s('s_waitcnt lgkmcnt(0)')
                    if o['far']: s(f'v_cmp_gt_u32 vcc, {u + 1 - o["far"]}, v{BM}\ns_mov_b64 s[72:73], vcc')
                    s(f'v_cmp_gt_u32 vcc, {u + 1}, v{BM}')
                s(f'v_mov_b32 v{BM}, {u + 1}\nds_write_b32 v{BA}, v{BM} offset:{LPRG}\nds_read_b32 v{BM}, v{BZ} offset:{LMODE}')
        def ready(u): return u in vm and vm.index(u) < done[0]
        def kpost(g):
            a = ACC + 4 * (g & 1); sc = SC + (g >> 2)
            s(f'v_cndmask_b32_e64 v{TS}, v{a}, v{a+1}, s[8:9]')
            s(f'v_add_f32_dpp v{sc}, v{TS}, v{TS} quad_perm:[1,0,3,2] row_mask:{1 << (g & 3)} bank_mask:0xf')
            if g & 3 == 3:
                s.bf16r(sc); s(f'v_mul_f32 v{sc}, {hx(192 ** -0.5)}, v{sc}'); s.bf16r(sc)
            if g & 7 == 7:
                a = sc - 1; row = f'quad_perm:[0,1,2,3] row_mask:{1 << OV.index(OD[g >> 3])} bank_mask:0xf'
                s(f'v_max_f32 v{MX}, v{a}, v{a+1}')
                s.red16('v_max_f32', [MX], skip1=True); s.swapred('v_max_f32', MX, T1, 16); s.swapred('v_max_f32', MX, T1, 32)
                s(f's_mov_b32 s10, {hx(LOG2E)}\nv_mul_f32 v{T1}, s10, v{MX}')
                for k in range(2): s(f'v_fma_f32 v{a+k}, v{a+k}, s10, -v{T1}')
                for k in range(2): s(f'v_exp_f32 v{a+k}, v{a+k}')
                s(f'v_mov_b32_dpp v{ML}, v{MX} {row}\nv_add_f32 v{LS}, v{a}, v{a+1}')
                for k in range(2): s(f'v_cvt_pk_bf16_f32 v{a+k}, v{a+k}, v{a+k}')
                s.red16('v_add_f32', [LS], skip1=True); s.swapred('v_add_f32', LS, T1, 16); s.swapred('v_add_f32', LS, T1, 32)
                s(f'v_mov_b32_dpp v{ML+1}, v{LS} {row}')
        def bperm(g):
            s(f'ds_bpermute_b32 v{PPT if g & 1 == 0 else PP2}, v{BP}, v{SC + 2 * OD.index(OV[g >> 3]) + (g >> 2 & 1)} offset:{64 * (g & 3)}')
        def switch():
            s.stamp(3)
            bperm(0)
            s(f'v_bitop3_b32 v{ML+2}, v{ML}, v{ML+1}, s{TAG} bitop3:0x96\nv_lshlrev_b32 v{ML+3}, 7, v0')
            s(f's_lshr_b32 s10, s{S_H}, 1\ns_lshl_b32 s10, s10, 9\ns_add_u32 s10, s10, s7\ns_lshl_b32 s10, s10, 4\ns_add_u32 s10, s10, {W_ML}')
            s('s_mov_b32 exec_lo, 0x00010001\ns_mov_b32 exec_hi, 0x00010001')
            s.gstore([f'buffer_store_dwordx4 {Q4(ML)}, v{ML+3}, {WSR}, s10 offen'])
            s('s_mov_b64 exec, -1')
            vm.append(None)
            s(f'v_lshrrev_b32 v{T1}, 5, v0\nv_mul_u32_u24 v{T1}, 768, v{T1}\nv_and_b32 v{T2}, 7, v0\nv_lshl_add_u32 v{T1}, v{T2}, 5, v{T1}')
            s(f'v_and_b32 v{T2}, 16, v0\nv_add_u32 v{T1}, v{T1}, v{T2}\ns_mul_i32 s10, s3, 1536\ns_add_u32 s10, s10, {LPO}\nv_add_u32 v{T1}, s10, v{T1}')
        def outp(acc, b):
            s('s_mov_b32 exec_lo, 0x00ff00ff\ns_mov_b32 exec_hi, 0xff00ff00')
            for jj in range(3): s(f'ds_write_b128 v{T1}, {Q4(acc[jj])} offset:{256*jj + 12288*b}')
            s('s_mov_b64 exec, -1')
        def proc(u):
            g, jj = divmod(u, 3)
            if g >= 32 and jj == 0:
                a = ACC + 4 * (g & 1)
                s('s_waitcnt lgkmcnt(0)')
                for k in range(4): s(f'v_and_b32 v{a+k}, v{PPT if g & 1 == 0 else PP2}, v{MK+k}')
                if g < 63: bperm(g - 31)
            wait(len(vm) - 1 - vm.index(u))
            r = RING + 4 * quad[u]
            if g < 32:
                s.mfma(ACC + 4 * (g & 1), QA + 4 * jj, r, jj == 0)
                if jj == 2 and g > 0: kpost(g - 1)
                if u == 5:
                    s(f'v_lshrrev_b32 v{BP}, 3, v0\nv_mul_u32_u24 v{VV}, 384, v{BP}\nv_lshlrev_b32 v{BP}, 3, v{BP}')
                    s(f'v_and_b32 v{T3}, 7, v0\nv_lshl_add_u32 v{VV}, v{T3}, 4, v{VV}')
                    s(f'v_and_b32 v{PP2}, 1, v0\nv_lshlrev_b32 v{PP2}, 4, v{PP2}\nv_mov_b32 v{MK}, 0xffff\nv_lshlrev_b32 v{PP2}, v{PP2}, v{MK}')
                    s(f'v_lshrrev_b32 v{T3}, 1, v{T3}')
                    for k in range(4):
                        s(f'v_cmp_eq_u32 vcc, {k}, v{T3}\nv_cndmask_b32 v{MK+k}, 0, v{PP2}, vcc')
                    s.a_lane(T3, PP2, 16, 32, LQ)
                if u in (23, 47, 71):
                    for k in range(3): s(f'ds_read_b128 {Q4(QA+4*k)}, v{T3} offset:{128*k + 384*OD[(u+1)//24]}')
                    s('s_waitcnt lgkmcnt(0)')
                if u == 6:
                    s(f's_cmp_eq_u32 s3, 3\ns_cselect_b32 s10, 0, 4\nv_mov_b32 v{BA}, s10\nv_mov_b32 v{BZ}, 0')
                if u == 95: kpost(31); switch()
            else:
                if u == 120: A2.extend(RING + 4 * free.pop() for _ in range(3))
                acc = lambda p: A2 if p & 1 else [QA, QA + 4, QA + 8]
                p = (g - 32) >> 3
                s.mfma(acc(p)[jj], ACC + 4 * (g & 1), r, g & 7 == 0)
                if u >= 190:
                    s(f's_mov_b32 exec_lo, 0x00ff00ff\ns_mov_b32 exec_hi, 0xff00ff00\nds_write_b128 v{T1}, {Q4(A2[jj-1])} offset:{256*(jj-1) + 3*12288}')
                    if u == 190: s('s_mov_b64 exec, -1')
                if p and u % 24 == 2:
                    outp(acc(p - 1), p - 1)
                    s(f's_mov_b64 exec, 1\nv_mov_b32 v{T2}, 1\nds_add_u32 v{BZ}, v{T2} offset:{LCNT + 4*(p-1)}\ns_mov_b64 exec, -1')
            if quad[u] >= RET: free.append(quad[u])
        li = 0
        if o['wst']:
            s.roles()
            s.wstage()
            vm.extend([None] * F)
        if o['sep']:
            s.roles(); s.tagwait(); s.ldswait(LGO, TS)
        while li < 3 * NPF:
            issue(li); li += 1
            if li == (min(F, o['F0']) if o['N0'] else F):
                if not o['sep'] and not o['wst']: s.roles()
                s.srd(RB, P_V, 201326592)
                if o['mfirst'] and not o['wst']: s('s_barrier')
            if li == F + 1:
                s('s_mov_b32 s8, 0xaaaaaaaa\ns_mov_b32 s9, 0xaaaaaaaa'); s.a_lane(TS, MX, 16, 32, LQ)
                if not o['sep']: s.tagwait()
        s.stamp(1, True)
        s('s_barrier')
        s.stamp(2, True)
        for jj in range(3): s(f'ds_read_b128 {Q4(QA+4*jj)}, v{TS} offset:{128*jj + 384*OD[0]}')
        s.getloc(MX, spin=False)
        pi = 0
        while pi < NL:
            if li < NL:
                while not free: proc(pi); pi += 1
                issue(li); li += 1
                if o['fpat'] and li % 3 and li < NL: continue
                n = -2 * o['RC'] if o['fpat'] else 0
                while n < o['RC'] and pi < NL and ready(pi): proc(pi); pi += 1; n += 1
            else:
                proc(pi); pi += 1
        s(f'ds_write_b128 v{T1}, {Q4(A2[2])} offset:{512 + 3*12288}\ns_mov_b64 exec, -1')
        s('s_waitcnt lgkmcnt(0)')
        s.stamp(4, True)
        s('s_barrier')
        s.role(3, 'L_D'); s.role(1, 'L_C'); s.role(0, 'L_exit', False)
        s(f'L_B:\ns_cmp_lt_u32 s{SV}, 4\ns_cbranch_scc0 L_exit')
        BW, AW, D = 40, 88, 136
        s.tr_lane(2, 3, 1024, 128)
        s(f'v_bfe_u32 v3, v0, 3, 2\nv_xor_b32 v3, s{SV}, v3\nv_lshl_add_u32 v2, v3, 5, v2\nv_add_u32 v2, {LB}, v2')
        TE = (48 - o['bD']) // 4
        trd = lambda T: '\n'.join(f'ds_read_b64_tr_b16 {P(BW+4*T+2*hi)}, v2 offset:{4096*T + 512*hi}' for hi in range(2))
        for T in range(TE): s(trd(T))
        s(f'v_and_b32 v3, 3, v0\nv_mul_u32_u24 v3, {OS}, v3\nv_and_b32 v4, 48, v0\nv_add_u32 v3, v3, v4\nv_add_u32 v3, {LO}, v3')
        for T in range(6): s(f'ds_read_b128 {Q4(AW+4*T)}, v3 offset:{64*T}')
        s(f'v_lshlrev_b32 v4, 4, v0')
        s(f's_lshr_b32 s10, s{S_H}, 1\ns_mul_i32 s10, s10, 40\ns_and_b32 s11, s{S_H}, 1\ns_mul_i32 s11, s11, 5\ns_add_u32 s11, s11, s{S_J}')
        s(f's_lshl2_add_u32 s10, s11, s10\ns_add_u32 s10, s10, s{SV}\ns_lshl_b32 s10, s10, 8\ns_add_u32 s10, s10, {W_Y}\ns_sub_u32 s11, s10, {W_Y - W_YL}')
        if o['rown']: s(f's_lshl_b32 s9, s{SV}, 7\ns_add_u32 s9, s9, {LYO}\nv_lshl_add_u32 v5, v0, 3, s9')
        s('s_waitcnt lgkmcnt(0)')
        for T in range(min(6, TE)): s.mfma(D, AW + 4 * T, BW + 4 * T, T == 0)
        if o['bD'] and o['bfl']:
            l = s.lab('nw')
            if o['warm']: s(f's_cbranch_execz {l}')
            s.waitprog(2, 6, 1, at=LCNT + 16)
            s(f'{l}:')
            for T in range(TE, 12): s(trd(T))
            s('s_waitcnt lgkmcnt(0)')
            for T in range(TE, 6): s.mfma(D, AW + 4 * T, BW + 4 * T, T == 0)
            TE = 12
        s.live('s_barrier')
        s.stamp(5)
        cnt = []
        for T in range(6, 12):
            s(f'ds_read_b128 {Q4(AW+4*T)}, v3 offset:{64*T}')
            if T >= TE: s(trd(T))
            cnt.append(3 if T >= TE else 1)
        for T in range(6, 12):
            s(f's_waitcnt lgkmcnt({min(15, sum(cnt[T-5:]))})'); s.mfma(D, AW + 4 * T, BW + 4 * T, False)
        s.warmret('L_wB')
        s(f's_mov_b64 exec, 0xffff\nv_pk_add_f32 {P(D)}, {P(D)}, {P(D+2)}\nv_bitop3_b32 v{D+2}, v{D}, v{D+1}, s{TAG} bitop3:0x96')
        st = [f'buffer_store_dwordx4 {Q4(D)}, v4, {WSR}, s10 offen sc1', f'buffer_store_dwordx4 {Q4(D)}, v4, {WSR}, s11 offen']
        s('\n'.join(st[::-1] if o['pfy'] else st))
        if o['rown']: s(f'ds_write_b64 v5, {P(D)}\ns_waitcnt lgkmcnt(0)')
        s.stamp(6)
        if o['rg']: s('s_barrier')
        s.end()

    def s0(s):
        s.cur = 'a'
        o = s.o
        lsk = s.lab('noM'); lj = s.lab('Mj'); ln = s.lab('Mn')
        s(f's_lshr_b32 s4, s{S_IDX}, 2\ns_lshl_b32 s4, s4, 3\ns_add_u32 s4, s4, s{S_X}')
        s(f's_cmp_lt_u32 s4, 60\ns_cbranch_scc0 {lsk}')
        s(f's_and_b32 s7, s{S_IDX}, 3')
        s.srd(RA, P_C, 2560); s.srd(RB, P_WM, 640 * 7680)
        s('v_min_u32 v1, 39, v0\nv_cmp_lt_u32 vcc, 19, v1\nv_lshlrev_b32 v1, 4, v1\nv_mov_b32 v3, 960\nv_cndmask_b32 v3, 0, v3, vcc\nv_add_u32 v3, v3, v1')
        s(f's_mul_i32 s5, s7, 320\nbuffer_load_dwordx4 v[8:11], v3, {RAR}, s5 offen')
        s.rows(2, 3, 3, 7680)
        s(f's_mul_i32 s5, s7, {160 * 7680}\ns_lshl_b32 s6, s4, 7\ns_add_u32 s5, s5, s6')
        s(s.dma(20, 2, RB, 5, 8 * 7680, LM, o['mF']))
        s(f'v_mov_b32 v4, {LMF}\nv_mov_b32 v5, 1\nds_write_b32 v4, v5' if o['b0'] else 's_barrier')
        s('s_waitcnt vmcnt(20)')
        s(f's_mov_b32 s6, {hx(-LOG2E)}')
        for k in range(4): s(f'v_lshlrev_b32 v{20+2*k}, 16, v{8+k}\nv_and_b32 v{21+2*k}, 0xffff0000, v{8+k}')
        for k in range(8): s(f'v_mul_f32 v{40+k}, s6, v{20+k}')
        for k in range(8): s(f'v_exp_f32 v{40+k}, v{40+k}')
        for k in range(8): s(f'v_add_f32 v{40+k}, 1.0, v{40+k}')
        for k in range(8): s(f'v_min_f32 v{40+k}, 0x7f000000, v{40+k}')
        for k in range(8): s(f'v_rcp_f32 v{48+k}, v{40+k}')
        for k in range(8): s(f'v_mul_f32 v{56+k}, v{20+k}, v{48+k}')
        for k in range(8): s(f'v_fma_f32 v{20+k}, -v{56+k}, v{40+k}, v{20+k}')
        for k in range(8): s(f'v_fma_f32 v{20+k}, v{20+k}, v{48+k}, v{56+k}')
        for k in range(4): s(f'v_cvt_pk_bf16_f32 v{8+k}, v{20+2*k}, v{21+2*k}')
        s(f'ds_write_b128 v1, v[8:11] offset:{LXS}')
        s.a_lane(4, 5, 320, 16, LXS)
        s.tr_lane(5, 6, 1024, 128); s(f'v_add_u32 v5, {LM}, v5')
        A, B, D = 12, 48, 32
        s.tagwait()
        for T in range(5): s(f'ds_read_b128 {Q4(A+4*T)}, v4 offset:{64*T}')
        l = s.lab('ini')
        s(f's_cmp_eq_u32 s{S_IDX}, 0\ns_cbranch_scc0 {l}\ns_lshl_b32 s5, s{S_X}, 7\ns_add_u32 s5, s5, {W_PG}\ns_add_u32 s6, s{TAG}, 999')
        s(f'v_and_b32 v1, 31, v0\nv_lshlrev_b32 v1, 2, v1\nv_mov_b32 v6, s6\nbuffer_store_dword v6, v1, {WSR}, s5 offen\n{l}:')
        s(f'v_lshlrev_b32 v1, 4, v0\ns_mul_i32 s5, s7, {3840 * 16}\ns_lshl_b32 s6, s4, 10\ns_add_u32 s5, s5, s6\ns_add_u32 s5, s5, {W_MP}')
        s.rows(2, 3, 4, 3840 * 16)
        s(f's_lshl_b32 s4, s4, 2\ns_add_u32 s4, s4, s7\ns_lshl_b32 s6, s4, 8\ns_add_u32 s6, s6, {W_MP}')
        s('s_waitcnt vmcnt(0)')
        s.stamp(1)
        for T in range(5):
            for ct in range(4):
                for hi in range(2): s(f'ds_read_b64_tr_b16 {P(B + 16*T + 4*ct + 2*hi)}, v5 offset:{4096*T + 512*hi + 32*ct}')
            if T:
                s('s_waitcnt lgkmcnt(8)')
                for ct in range(4): s.mfma(D + 4 * ct, A + 4 * (T - 1), B + 16 * (T - 1) + 4 * ct, T == 1)
        s('s_waitcnt lgkmcnt(0)')
        for ct in range(4): s.mfma(D + 4 * ct, A + 16, B + 64 + 4 * ct, False)
        for ct in range(1, 4):
            for b in range(2): s(f'v_mov_b32_dpp v{D+b}, v{D+4*ct+b} quad_perm:[0,1,2,3] row_mask:{1 << ct} bank_mask:0xf')
        s(f'v_bitop3_b32 v{D+2}, v{D}, v{D+1}, s{TAG} bitop3:0x96')
        l2 = s.lab('M2')
        s(f's_cmp_lt_u32 s4, 80\ns_cbranch_scc0 {l2}')
        if 'P' not in o['nox']: s(f'buffer_store_dwordx4 {Q4(D)}, v1, {WSR}, s5 offen sc1')
        s.stamp(2)
        s(f's_branch {ln}\n{l2}:')
        s.getloc(6)
        s.gstore([f'buffer_store_dwordx4 {Q4(D)}, v1, {WSR}, s5 offen'], nm='m')
        s.stamp(2)
        s('s_barrier')
        s.poll([f'buffer_load_dwordx3 v[4:6], v2, {WSR}, s6 offen sc1'], s.ck_xor([4], 2, 8, 9), slp=o['mlslp'], nm='m')
        for w in (32, 16):
            s.swapred('v_add_f32', 4, 8, w); s.swapred('v_add_f32', 5, 9, w)
        s(f'v_cvt_pk_bf16_f32 v4, v4, v5\nv_mov_b32 v5, s{TAG}\nv_lshlrev_b32 v3, 3, v0\ns_lshl_b32 s5, s4, 7\ns_add_u32 s5, s5, {W_MOD}')
        s(f's_mov_b64 exec, 0xffff\nbuffer_store_dwordx2 v[4:5], v3, {WSR}, s5 offen sc1\ns_mov_b64 exec, -1')
        s(f's_branch {lj}\n{lsk}:\n' + (f'v_mov_b32 v4, {LMF}\nv_mov_b32 v5, 1\nds_write_b32 v4, v5' if o['b0'] else 's_barrier')); s.tagwait(); s(f'{ln}:\ns_barrier'); s.getloc(6, spin=False); s(f'{lj}:')
        s.waitprog(o['st0'], 1)
        s('s_mov_b32 s5, 0\nL_pair:')
        s.stats()
        s.stamp(3)
        l = s.lab('cnt')
        s(f's_lshl_b32 s8, s5, 2\nv_mov_b32 v4, s8\ns_mov_b32 s{SPIN}, {o["spin"]}\n{l}:\ns_sleep {o["pslp"]}\nds_read_b32 v5, v4 offset:{LCNT}\ns_sub_u32 s{SPIN}, s{SPIN}, 1\ns_waitcnt lgkmcnt(0)')
        s(f'v_readfirstlane_b32 s8, v5\ns_cselect_b32 s8, 8, s8\ns_cmp_lt_u32 s8, 8\ns_cbranch_scc1 {l}')
        s('L_T0:')
        s.stamp(4)
        T = 16
        for k in range(24): s(f'ds_read2st64_b32 {P(T+2*k)}, v1 offset0:{2*k} offset1:{2*k+1}')
        for w in range(8):
            if w >= 3: s(f's_waitcnt lgkmcnt({3 * (7 - w)})')
            elif w == 0: s('s_waitcnt lgkmcnt(15)')
            f = f's[{64 + (w & 6)}:{65 + (w & 6)}]'; e = w & 1
            for c in range(3):
                r = T + 6 * w + 2 * c; a = (8, 10, 12)[c]
                s(f'v_pk_mul_f32 {P(a)}, {P(r)}, {f} op_sel:[0,{e}] op_sel_hi:[1,{e}]' if w == 0 else
                  f'v_pk_fma_f32 {P(a)}, {P(r)}, {f}, {P(a)} op_sel:[0,{e},0] op_sel_hi:[1,{e},1]')
        s('v_add_f32 v8, v8, v11\nv_add_f32 v9, v9, v12\nv_add_f32 v10, v10, v13')
        s(f'v_bitop3_b32 v11, v8, v9, v10 bitop3:0x96\nv_xor_b32 v11, s{TAG}, v11')
        s.gstore([f'buffer_store_dwordx4 v[8:11], v2, {WSR}, s4 offen'])
        s.stamp(5)
        l = s.lab('early'); l2 = s.lab('next'); l3 = s.lab('fin')
        s(f's_cmp_eq_u32 s5, 3\ns_cbranch_scc0 {l}')
        s.role(0, 'L_Bg'); s.role(3, 'L_D'); s.role(1, 'L_exit', False)
        s('s_barrier')
        s.end()
        s(f'{l}:')
        s.role(0, l2, False)
        s(f's_mul_i32 s9, s5, 24\ns_add_u32 s9, s9, {120 + o["eg0"]}\ns_min_u32 s9, s9, {o["eg"]}')
        s.waitprog('s9', 12, o['pslp'])
        if 'E' not in o['nox']: s.gath(2, o['pslp'])
        s(f'{l2}:\ns_add_u32 s5, s5, 1\ns_cmp_lt_u32 s5, 3\ns_cbranch_scc1 L_pair')
        s.role(0, l3); s.role(3, 'L_D0')
        if o['cL']:
            E = o['cE']
            s.role(1, 'L_exit', False)
            s.trigger(); s.caddr()
            s(f's_add_u32 s5, s5, {(80 - 8 * E) * 8 * 3072}')
            s(s.cdma(8 * E, lambda t: f's_mov_b32 m0, {LBIG + 1024 * (80 - 8 * E + t)}', 63))
            s('s_barrier\ns_barrier\ns_waitcnt vmcnt(0)')
        s.end()
        s(f'{l3}:')
        s(f's_add_u32 s6, s6, 16384\ns_add_u32 s7, s6, 4096\nv_lshlrev_b32 v3, 1, v0\nv_add_u32 v3, {LO + 384 + OS * (int(str(o["ord"])[-1]) >> 1)}, v3\ns_waitcnt lgkmcnt(0)\ns_barrier')

    def stats(s):
        s(f'v_lshlrev_b32 v2, 4, v0\ns_lshr_b32 s6, s{S_H}, 1\ns_lshl2_add_u32 s6, s6, s5\ns_lshl_b32 s4, s6, 11\ns_add_u32 s4, s4, {W_ML}')
        s.poll([f'buffer_load_dwordx3 v[{4+4*k}:{6+4*k}], v2, {WSR}, s4 offen offset:{1024*k} sc1' for k in range(2)], s.ck_xor([4, 8], 2, 12, 13), slp=s.o['mlslp'])
        s('v_max_f32 v12, v4, v8')
        s.red16('v_max_f32', [12]); s.swapred('v_max_f32', 12, 13, 16); s.swapred('v_max_f32', 12, 13, 32)
        for r in (4, 8): s(f'v_sub_f32 v{r}, v{r}, v12\nv_mul_f32 v{r}, {hx(LOG2E)}, v{r}\nv_exp_f32 v{r}, v{r}')
        s('v_mul_f32 v5, v5, v4\nv_fmac_f32 v5, v9, v8')
        s.red16('v_add_f32', [5]); s.swapred('v_add_f32', 5, 13, 16); s.swapred('v_add_f32', 5, 13, 32)
        s(f'v_rcp_f32 v5, v5\ns_bitcmp1_b32 s{S_H}, 0\ns_cselect_b64 vcc, -1, 0\nv_cndmask_b32 v4, v4, v8, vcc\nv_mul_f32 v4, v4, v5')
        s(f's_lshl_b32 s4, s{S_J}, 3')
        for w in range(8):
            s(f'v_readlane_b32 s{64+w}, v4, s4')
            if w < 7: s('s_add_u32 s4, s4, 1')
        s(f's_mul_i32 s4, s5, 12288\ns_add_u32 s4, s4, {LPO}\nv_lshl_add_u32 v1, v0, 2, s4')
        s(f's_lshl_b32 s7, s5, 2\ns_lshr_b32 s7, 0x{str(s.o["ord"]).zfill(4)[::-1]}, s7')
        s(f's_bfe_u32 s4, s7, 0x10001\ns_mul_i32 s4, s4, {OS}\ns_and_b32 s7, s7, 1\ns_mul_i32 s7, s7, 384\ns_add_u32 s4, s4, s7\ns_add_u32 s4, s4, {LO}\nv_lshl_add_u32 v3, v0, 1, s4')
        s(f's_lshl_b32 s6, s6, 14\ns_add_u32 s6, s6, {W_ATT}\ns_and_b32 s4, s{S_IDX}, 15\ns_lshl_b32 s4, s4, 10\ns_add_u32 s4, s4, s6\ns_add_u32 s7, s6, 4096')

    def gath(s, nh, slp):
        G = 24
        if nh == 2: s('s_add_u32 s8, s6, 8192\ns_add_u32 s9, s6, 12288')
        if nh == 2 and s.o['glight']:
            s('v_and_b32 v14, 15, v0\nv_lshlrev_b32 v14, 10, v14')
            s.poll([f'buffer_load_dwordx4 {Q4(G)}, v14, {WSR}, s6 offen offset:1008 sc1'], s.ck_xor([G], 3, 12, 13), slp=slp)
        ck, t = s.ck_xor([G + 4 * k for k in range(8 * nh)], 3, 12, 13)
        for k in range(8 * nh):
            a = 16 + 4 * (k >> 3); r = G + 4 * k
            if k & 7: ck[k] += f'\nv_pk_add_f32 {P(a)}, {P(r-4) if k & 7 == 1 else P(a)}, {P(r)}\nv_add_f32 v{a+2}, v{r-2 if k & 7 == 1 else a+2}, v{r+2}'
        s.poll([f'buffer_load_dwordx4 {Q4(G+4*k)}, v2, {WSR}, s{6 + (k >> 2)} offen offset:{1024*(k & 3)} sc1' for k in range(8 * nh)], (ck, t), slp=slp, warmable=(nh == 1))
        for h in range(nh):
            a = 16 + 4 * h; of = 2 * OS * h
            s(f'v_cvt_pk_bf16_f32 v{a}, v{a}, v{a+1}\nv_cvt_pk_bf16_f32 v{a+2}, v{a+2}, v{a+2}')
            s(f'ds_write_b16 v3, v{a} offset:{of}\nds_write_b16_d16_hi v3, v{a} offset:{of+128}\nds_write_b16 v3, v{a+2} offset:{of+256}')

    def bgather(s):
        s.cur = 'g'
        s('L_Bg:')
        s.gath(1, 0)
        s.warmret('L_wBg')
        s('s_waitcnt lgkmcnt(0)')
        s.stamp(6)
        s('s_barrier')
        s.end()

    def s1(s):
        s.cur = 'b'
        o = s.o
        s.srd(RA, P_X, 2560); s.srd(RB, P_WQ, 640 * 12288)
        s('v_and_b32 v1, 31, v0\nv_lshlrev_b32 v1, 3, v1\nv_lshrrev_b32 v2, 5, v0\nv_mul_u32_u24 v2, 1280, v2\nv_add_u32 v1, v1, v2')
        for u in range(5): s(f'buffer_load_dwordx2 {P(10+2*u)}, v1, {RAR}, 0 offen offset:{256*u}')
        s(f'v_and_b32 v7, 15, v0\nv_lshl_add_u32 v2, v7, 1, v2\ns_mul_i32 s4, s{S_J}, 160')
        for u in range(5): s(f'buffer_load_ushort v{160+u}, v2, {RAR}, s4 offen offset:{32*u}')
        s.rows(3, 4, 3, 12288)
        s.ghead(6)
        s(f's_mul_i32 s5, s{S_J}, {80*12288}\ns_and_b32 s7, s{S_H}, 1\ns_lshl4_add_u32 s6, s7, s6\ns_mul_i32 s6, s6, 384\ns_add_u32 s5, s5, s6')
        if o['b0'] == 1: s.ldswait(LMF, 4, 1)
        elif not o['b0']: s('s_barrier')
        s(s.dma(30, 3, RB, 5, lambda t: 128 if t % 3 < 2 else 8 * 12288 - 256, LWQ, o['qF']))
        if o['qfirst']: s(f'v_mov_b32 v4, {LGO}\nv_mov_b32 v5, 1\nds_write_b32 v4, v5')
        s.tagwait()
        s('s_waitcnt vmcnt(30)')
        X = 20
        for k in range(10): s(f'v_lshlrev_b32 v{X+2*k}, 16, v{10+k}\nv_and_b32 v{X+2*k+1}, 0xffff0000, v{10+k}')
        s(f'v_add_f32 v4, v{X}, v{X+1}')
        for k in range(2, 20): s(f'v_add_f32 v4, v4, v{X+k}')
        s.red16('v_add_f32', [4]); s.swapred('v_add_f32', 4, 5, 16)
        s(f'v_mul_f32 v4, {hx(1/640)}, v4')
        for k in range(20): s(f'v_sub_f32 v{X+k}, v{X+k}, v4')
        s(f'v_mul_f32 v5, v{X}, v{X}')
        for k in range(1, 20): s(f'v_fmac_f32 v5, v{X+k}, v{X+k}')
        s.red16('v_add_f32', [5]); s.swapred('v_add_f32', 5, 6, 16)
        s(f'v_mul_f32 v5, {hx(1/640)}, v5')
        s.bf16r(4); s.bf16r(5)
        s(f'v_add_f32 v5, {hx(1e-5)}, v5'); s.bf16r(5)
        s('v_sqrt_f32 v5, v5'); s.bf16r(5); s('v_rcp_f32 v5, v5')
        for u in range(5):
            r = 160 + u
            s(f'v_lshlrev_b32 v{r}, 16, v{r}\nv_sub_f32 v{r}, v{r}, v4'); s.bf16r(r)
            s(f'v_mul_f32 v{r}, v{r}, v5'); s.bf16r(r)
        s.tr_lane(4, 5, 3072, 128)
        s(f'v_add_u32 v4, {LWQ}, v4')
        s.tr_lane(5, 6, 512, 128)
        s(f'v_lshrrev_b32 v6, 5, v0\nv_mul_u32_u24 v6, 2048, v6\nv_add_u32 v5, v5, v6\nv_add_u32 v5, {LWQ + 8*3072}, v5')
        BW, AC, A = 100, 40, 88
        def rd(ct):
            b = BW + 10 * (ct % 6); off = 1024 * (ct >> 2) + 32 * (ct & 3)
            for T in range(2):
                for hi in range(2): s(f'ds_read_b64_tr_b16 {P(b+4*T+2*hi)}, v4 offset:{off + 12288*T + 512*hi}')
            s(f'ds_read_b64_tr_b16 {P(b+8)}, v5 offset:{off}')
        s.rows(2, 6, 4, 3840 * 16)
        s(f's_mul_i32 s4, s{S_J}, 1280\ns_add_u32 s4, s4, {W_MP}\ns_add_u32 s5, s4, 10240')
        s('s_waitcnt vmcnt(0)')
        s.stamp(1)
        for ct in range(6): rd(ct)
        M = 40
        s.gather([f'buffer_load_dwordx3 v[{M+4*u}:{M+4*u+2}], v2, {WSR}, s{4 + u // 5} offen offset:{256 * (u % 5)} sc1' for u in range(10)],
                 [s.ck_xor([M + 4 * u], 2, 12, 13) for u in range(10)], 8, slp=o['pslp'], nm='P')
        s.stamp(2)
        for u in range(10): s(f'v_permlane32_swap_b32 v{M+4*u}, v{M+4*u+1}')
        for u in range(10): s(f'v_add_f32 v{M+4*u}, v{M+4*u}, v{M+4*u+1}')
        for u in range(10): s(f'v_mov_b32 v{M+4*u+1}, v{M+4*u}')
        for u in range(10): s(f'v_permlane16_swap_b32 v{M+4*u}, v{M+4*u+1}')
        for u in range(10): s(f'v_add_f32 v{M+4*u}, v{M+4*u}, v{M+4*u+1}')
        for u in range(10): s.bf16r(M + 4 * u)
        s(f'v_lshrrev_b32 v2, 5, v0\nv_mul_u32_u24 v2, 192, v2\nv_lshl_add_u32 v2, v7, 1, v2')
        for u in range(5):
            c = M + 20 + 4 * u; r = 160 + u
            s(f'v_add_f32 v{c}, 1.0, v{c}'); s.bf16r(c)
            s(f'v_mul_f32 v{r}, v{r}, v{c}'); s.bf16r(r)
            s(f'v_add_f32 v{r}, v{r}, v{M+4*u}\nv_cvt_pk_bf16_f32 v{r}, v{r}, v{r}\nds_write_b16 v2, v{r} offset:{LHS + 32*u}')
        s.getloc(6)
        s.a_lane(2, 3, 192, 16, LHS); s.a_lane(3, 6, 192, 8, LHS + 128)
        s('s_waitcnt lgkmcnt(0)')
        s(f'ds_read_b128 {Q4(A)}, v2\nds_read_b128 {Q4(A+4)}, v2 offset:64\nds_read_b64 {P(A+8)}, v3')
        for half in range(2):
            s('s_waitcnt lgkmcnt(0)')
            for ct in range(6 * half, 6 * half + 6): s.mfma(AC + 4 * ct, A + 8, BW + 10 * (ct % 6) + 8, True, k=16)
            for T in range(2):
                for ct in range(6 * half, 6 * half + 6):
                    s.mfma(AC + 4 * ct, A + 4 * T, BW + 10 * (ct % 6) + 4 * T, False)
                    if half == 0 and T == 1: rd(ct + 6)
        s(f'v_lshlrev_b32 v2, 4, v0\ns_lshl_b32 s4, s{S_H}, 3\ns_add_u32 s5, s4, s{S_J}\ns_lshl_b32 s5, s5, 11\ns_add_u32 s5, s5, {W_QP}')
        for b in range(2):
            for u in range(4):
                for c in range(3):
                    s(f'v_mov_b32_dpp v{16+4*b+c}, v{AC + 4*(3*u+c) + b} quad_perm:[0,1,2,3] row_mask:{1 << u} bank_mask:0xf')
        for b in range(2):
            t = 16 + 4 * b
            s(f'v_bitop3_b32 v{t+3}, v{t}, v{t+1}, v{t+2} bitop3:0x96\nv_xor_b32 v{t+3}, s{TAG}, v{t+3}')
        s.gstore([f'buffer_store_dwordx4 {Q4(16+4*b)}, v2, {WSR}, s5 offen offset:{1024*b}' for b in range(2)], nm='Q')
        s.stamp(3)
        s(f'v_mov_b32 v3, {LQF}\nv_mov_b32 v4, 1\nds_write_b32 v3, v4')
        s(f'L_Qg:\ns_bfe_u32 s9, s3, 0x10001\ns_and_b32 s4, s{S_H}, 30\ns_add_u32 s4, s4, s9\ns_lshl_b32 s4, s4, 14\ns_add_u32 s4, s4, {W_QP}\ns_mul_i32 s9, s9, 384')
        for k in range(1, 4): s(f's_add_u32 s{4+k}, s4, {4096*k}')
        Q = 40
        if o['qlight']:
            s('v_and_b32 v3, 7, v0\nv_lshlrev_b32 v3, 11, v3')
            s.poll([f'buffer_load_dwordx4 {Q4(Q)}, v3, {WSR}, s4 offen offset:2032 sc1'], s.ck_xor([Q], 3, 12, 13), slp=o['pslp'])
        def ck2(k):
            c, t = s.ck_xor([Q + 8 * k, Q + 8 * k + 4], 3, 12, 13); return ['\n'.join(c)], t
        s.gather(['\n'.join(f'buffer_load_dwordx4 {Q4(Q+8*k+4*b)}, v2, {WSR}, s{4 + (k >> 1)} offen offset:{2048*(k & 1) + 1024*b} sc1' for b in range(2)) for k in range(8)],
                 [ck2(k) for k in range(8)], 8, slp=o['pslp'], nm='Q')
        s('v_lshrrev_b32 v3, 4, v0\nv_mul_u32_u24 v3, 96, v3\nv_and_b32 v4, 15, v0\nv_lshl_add_u32 v3, v4, 1, v3\nv_add_u32 v3, s9, v3')
        for k in range(1, 8):
            for b in range(2):
                r = Q + 4 * b
                s(f'v_pk_add_f32 {P(r)}, {P(r)}, {P(r+8*k)}\nv_add_f32 v{r+2}, v{r+2}, v{r+8*k+2}')
        for b in range(2):
            r = Q + 4 * b; lq = LQ + 768 * b
            s(f'v_cvt_pk_bf16_f32 v{r}, v{r}, v{r+1}\nv_cvt_pk_bf16_f32 v{r+2}, v{r+2}, v{r+2}')
            s(f'ds_write_b16 v3, v{r} offset:{lq}\nds_write_b16_d16_hi v3, v{r} offset:{lq+32}\nds_write_b16 v3, v{r+2} offset:{lq+64}')
        s('s_waitcnt lgkmcnt(0)')
        s.stamp(4)
        s('s_barrier\ns_cmp_eq_u32 s3, 11\ns_cbranch_scc1 L_s3b')
        lc = s.lab('s1C'); ld = s.lab('s1D'); lw = s.lab('s1W')
        if o['warm']:
            s.role(1, lc); s.role(3, ld); s.role(0, lw, False)
            s(f's_mov_b32 s{SV}, 0'); s.warm('L_B', 'L_wB'); s.warm('L_Bg', 'L_wBg'); s(f's_branch {lw}')
            s(f'{lc}:\ns_mov_b32 s{SV}, 0'); s.warm('L_C', 'L_wC'); s(f's_branch {lw}')
            s(f'{ld}:\ns_mov_b32 s{SV}, {o["fw"]}'); s.warm('L_D', 'L_wD')
            s(f'{lw}:\ns_mov_b32 s{SV}, 9')
        s.balance5()
        s(f's_add_u32 s6, s6, 8192\ns_add_u32 s7, s7, 8192\nv_add_u32 v3, {2 * OS}, v3')
        s('s_barrier\ns_branch L_T0')

    def balance5(s):
        o = s.o; p0 = 3 * o['NPF']
        a = s.lab('bal'); e = s.lab('balE'); c = s.lab('nox'); d = s.lab('nost')
        V = 100
        s(f'v_mov_b32 v{V+1}, 0\ns_mov_b32 s11, 4096\ns_lshl_b32 s72, s{S_X}, 7\ns_add_u32 s72, s72, {W_PG}\ns_mov_b32 s75, {o["stat1"]}')
        TI = S_IDX
        if o['alt']: TI = 4; s(f's_and_b32 s4, s{S_IDX}, 15\ns_lshr_b32 s5, s{S_IDX}, 4\ns_lshl1_add_u32 s4, s4, s5')
        if o['shp']:
            al = o['shp'] / 100
            s.ghead(5); s('s_cmp_ge_u32 s5, 11\ns_cselect_b64 vcc, -1, 0')
            cs = []
            for u1, t1 in ((72, 72 - 8 * al), (48, 48 + 16 * al)):
                a_, b_ = t1 / u1, (96 - t1) / (96 - u1)
                cs.append([z for k in ((a_, b_), (1 / a_, 1 / b_)) for z in (k[0], 192 * (1 - k[0]), k[1], 96 * (1 - k[1]))])
            for k in range(8): s(f'v_mov_b32 v{V+8+k}, {hx(cs[0][k])}\nv_mov_b32 v{V+16}, {hx(cs[1][k])}\nv_cndmask_b32 v{V+8+k}, v{V+8+k}, v{V+16}, vcc')
        def remap(r, c):
            if o['shp']:
                s(f'v_cvt_f32_u32 v{r}, v{r}\nv_mul_f32 v{V+16}, v{r}, v{c}\nv_add_f32 v{V+17}, v{V+16}, v{c+1}\nv_fma_f32 v{r}, v{r}, v{c+2}, v{c+3}')
                s(f'v_med3_f32 v{r}, v{r}, v{V+16}, v{V+17}\nv_add_f32 v{r}, 0.5, v{r}\nv_cvt_u32_f32 v{r}, v{r}')
        s(f's_cmp_lt_u32 s{TI}, {o["n1"]}\ns_cselect_b32 s78, {o["cstep"]}, {o["cstep2"]}\ns_cselect_b32 s79, {o["bdel"]}, {o["bdel2"]}')
        s(f's_cselect_b32 s74, 0, {o["n1"] * (o["cstep"] - o["cstep2"])}\ns_add_u32 s74, s74, {p0 + o["c0"]}')
        s(f's_lshl_b32 s5, s{TI}, 3\ns_add_u32 s5, s5, s{S_X}\ns_mul_i32 s5, s5, s78\ns_lshr_b32 s5, s5, 3\ns_add_u32 s74, s74, s5\ns_add_u32 s79, s79, s{TAG}')
        s(f'v_and_b32 v{V}, 31, v0\nv_lshlrev_b32 v{V}, 2, v{V}')
        s(f's_lshl_b32 s73, s{S_X}, 12\ns_add_u32 s73, s73, {W_GL}\ns_mov_b32 s10, {W_GL}\nv_and_b32 v{V+5}, 7, v0\nv_cmp_eq_u32 s[76:77], s{S_X}, v{V+5}\nv_lshlrev_b32 v{V+5}, 12, v{V+5}\nv_mov_b32 v{V+6}, {p0}')
        s(f'v_xor_b32 v{V+4}, 4096, v{V+5}\nv_cndmask_b32_e64 v{V+5}, v{V+5}, v{V+4}, s[76:77]')
        s(f's_and_b32 s8, s{S_ROLE}, 1\ns_mul_i32 s8, s8, {o["bonus"]}\ns_sub_u32 s8, s{TAG}, s8')
        s(f'{a}:\nbuffer_load_dword v{V+3}, v{V+1}, {WSR}, s72 offen sc1\ns_waitcnt vmcnt(0)\nds_read_b32 v{V+2}, v{V+1} offset:{LPRG}')
        s(f'v_subrev_u32 v{V+3}, s8, v{V+3}'); remap(V + 3, V + 12)
        s(f'ds_write_b32 v{V+1}, v{V+3} offset:{LMODE}\ns_waitcnt lgkmcnt(0)\nv_readfirstlane_b32 s9, v{V+2}')
        s(f's_cmp_ge_u32 s9, s75\ns_cbranch_scc0 {d}\ns_mov_b32 s75, 999')
        s('s_mov_b32 s5, 3'); s.stats()
        s(f's_branch {a}\n{d}:')
        s(f's_cmp_ge_u32 s9, {o["bend"]}\ns_cbranch_scc1 {e}')
        if o['shp']: remap(V + 2, V + 8); s(f'v_readfirstlane_b32 s9, v{V+2}')
        s(f's_cmp_ge_u32 s9, s74\ns_cbranch_scc0 {c}')
        s(f's_mov_b32 s74, 999\nv_add_u32 v{V+3}, s{TAG}, v{V+2}\nbuffer_load_dword v{V+4}, v{V+5}, {WSR}, s10 offen sc1\nbuffer_store_dword v{V+3}, v{V}, {WSR}, s73 offen sc1\ns_waitcnt vmcnt(1)')
        s(f'v_subrev_u32 v{V+4}, s{TAG}, v{V+4}\nv_cmp_lt_u32 vcc, 192, v{V+4}\nv_cndmask_b32 v{V+4}, v{V+4}, v{V+6}, vcc')
        s(f'v_subrev_u32 v{V+2}, s78, v{V+2}\nv_cndmask_b32_e64 v{V+4}, v{V+4}, v{V+2}, s[76:77]')
        s(f's_cmp_eq_u32 s78, {o["cstep"]}\ns_cselect_b32 s9, {min(o["emin"], 64)}, {min(o["emin2"], 64)}\nv_add_u32 v{V+7}, s9, v{V+4}')
        for ctl in ('quad_perm:[1,0,3,2]', 'quad_perm:[2,3,0,1]', 'row_half_mirror'): s.dppop('v_add_u32', V + 4, ctl); s.dppop('v_min_u32', V + 7, ctl)
        s(f'v_lshrrev_b32 v{V+4}, 3, v{V+4}\nv_min_u32 v{V+4}, v{V+4}, v{V+7}\nv_add_u32 v{V+4}, s79, v{V+4}\nbuffer_store_dword v{V+4}, v{V}, {WSR}, s72 offen')
        s(f'{c}:\ns_sleep {o["bslp"]}\ns_sub_u32 s11, s11, 1\ns_cbranch_scc0 {a}')
        s('s_mov_b32 s5, 3'); s.stats()
        s(f'{e}:')

    def bstage(s, t0, t1, F):
        o = s.o; l = s.lab('dma')
        s.srd(RA, P_WO, 6144 * 1280)
        s.swz(1280)
        s.ghead(5)
        s(f's_mul_i32 s5, s5, {192*1280}\ns_and_b32 s4, s{S_H}, 1\ns_mul_i32 s4, s4, 5\ns_add_u32 s4, s4, s{S_J}\ns_lshl_b32 s4, s4, 7')
        s(f's_add_u32 s5, s5, s4\ns_add_u32 s5, s5, {8 * 1280 * t0 + (15*192*1280 if t0 >= 24 else 0)}')
        s(f's_mov_b32 s4, {LB + 1024 * t0}\n{l}:')
        for t in range(2):
            s(f's_mov_b32 m0, s4\ns_waitcnt vmcnt({F - 1})\nbuffer_load_dwordx4 v{3 if t else 1}, {RAR}, s5 offen {o["wflag"]} lds')
            s(f's_add_u32 s5, s5, {8 * 1280}\ns_add_u32 s4, s4, 1024')
        if t0 < 24 < t1: s(f's_cmp_eq_u32 s4, {LB + 24576}\ns_cselect_b32 s6, {15*192*1280}, 0\ns_add_u32 s5, s5, s6')
        s(f's_cmp_lt_u32 s4, {LB + 1024 * t1}\ns_cbranch_scc1 {l}')

    def wstage(s):
        o = s.o; F = o['wF']
        ld = s.lab('wD'); lc = s.lab('wC'); le = s.lab('wE'); li = s.lab('wI')
        def loads(n, step, par):
            for t in range(n):
                s(f's_mov_b32 m0, s11')
                if t >= F: s(f's_waitcnt vmcnt({F - 1})')
                s(f'buffer_load_dwordx4 v{4 + (t & par)}, {RBR}, s10 offen {o["wflag"]} lds\ns_add_u32 s10, s10, {step}\ns_add_u32 s11, s11, 1024')
                if t == min(n, F) - 1 and o['mfirst']: s('s_barrier')
        def swz(stride):
            s(f'v_lshrrev_b32 v6, 3, v0\nv_mul_u32_u24 v4, {stride}, v6\nv_and_b32 v6, 2, v6\nv_and_b32 v5, 7, v0\nv_xor_b32 v6, v6, v5\nv_xor_b32 v5, 4, v6')
            s('v_lshl_add_u32 v5, v5, 4, v4\nv_lshl_add_u32 v4, v6, 4, v4')
        s.role(0, ld, False)
        s.srd(RB, P_WO, 6144 * 1280); swz(1280); s.ghead(10)
        s(f's_lshr_b32 s9, s3, 2\ns_mul_i32 s9, s9, 15\ns_add_u32 s10, s10, s9\ns_mul_i32 s10, s10, {192*1280}\ns_mul_i32 s9, s3, {48*1280}\ns_add_u32 s10, s10, s9')
        s(f's_lshr_b32 s9, s{S_CS}, 2\ns_lshl_b32 s9, s9, 7\ns_add_u32 s10, s10, s9\ns_mul_i32 s11, s3, 6144\ns_add_u32 s11, s11, {LB}')
        loads(6, 8 * 1280, 1)
        s(f's_branch {le}\n{ld}:')
        s.role(3, lc, False)
        n = 12 - o['dW']
        s.srd(RB, P_D, 1536 * 1280); s.rows(4, 5, 2, 1280)
        s(f's_mul_i32 s11, s3, {n}\ns_add_u32 s11, s11, {8 * o["dW"]}\ns_mul_i32 s10, s11, {16 * 1280}\ns_lshl_b32 s9, s{S_DT}, 6\ns_add_u32 s10, s10, s9\ns_lshl_b32 s11, s11, 10\ns_add_u32 s11, s11, {LBIG}')
        loads(n, 16 * 1280, 0)
        s(f's_branch {le}\n{lc}:')
        s.role(1, li, False)
        n = o['cE']
        s(f's_bitcmp1_b32 s{S_CS}, 0\ns_cselect_b64 s[{RB}:{RB+1}], s[{P_U}:{P_U+1}], s[{P_G}:{P_G+1}]\ns_mov_b32 s{RB+2}, {640 * 3072}\ns_mov_b32 s{RB+3}, 0x20000')
        swz(3072)
        s(f's_bitcmp1_b32 s3, 0\ns_cselect_b64 vcc, -1, 0\nv_cndmask_b32 v4, v4, v5, vcc')
        s(f's_add_u32 s11, s3, {80 - 8 * n}\ns_mul_i32 s10, s11, {8 * 3072}\ns_lshr_b32 s9, s{S_CS}, 1\ns_lshl_b32 s9, s9, 7\ns_add_u32 s10, s10, s9\ns_lshl_b32 s11, s11, 10\ns_add_u32 s11, s11, {LBIG}')
        for t in range(n):
            s(f's_mov_b32 m0, s11\nbuffer_load_dwordx4 v4, {RBR}, s10 offen {o["wflag"]} lds\ns_add_u32 s10, s10, {64 * 3072}\ns_add_u32 s11, s11, 8192')
        s(f'{li}:')
        if o['mfirst']: s('s_barrier')
        s(f'{le}:')

    def stage(s, half):
        o = s.o
        ld = s.lab('stD'); lc = s.lab('stC'); le = s.lab('stE')
        def part(n): return (0, n) if half is None else ((0, n // 4 * 2) if half == 0 else (n // 4 * 2, n))
        FF = lambda k: o['upF'] if half is None else o[k]
        s.role(0, ld, False)
        E = 0 if half is None else o['bE']; t0, t1 = part(48 - E - o['bD'])
        if t1 > t0: s.bstage(E + t0, E + t1, min(FF('bF'), 60))
        s(f's_branch {le}\n{ld}:')
        s.role(3, lc, False)
        W = o['dW']; t0, t1 = part(8 * (12 - W))
        if not o['dL']:
            s.srd(RA, P_D, 1536 * 1280); s.rows(1, 2, 2, 1280)
            s(f's_lshl_b32 s4, s{S_DT}, 6\ns_add_u32 s4, s4, {(8 * W + t0) * 16 * 1280}')
            s(s.dma(t1 - t0, 1, RA, 4, 16 * 1280, LBIG + 1024 * (8 * W + t0), FF('dF')))
        s(f's_branch {le}\n{lc}:')
        s.role(1, le, False)
        E = o['cE']; t0, t1 = part(8 * E)
        if not o['cL']:
            s.caddr()
            s(f's_add_u32 s5, s5, {(80 - 8 * E + t0) * 8 * 3072}')
            s(s.cdma(t1 - t0, lambda t: f's_mov_b32 m0, {LBIG + 1024 * (80 - 8 * E + t0 + t)}', FF('cF')))
        s(f'{le}:')
        if half is not None: s('s_waitcnt vmcnt(0)')

    def s2(s):
        s.cur = 'r'
        o = s.o
        if not o['b0']: s('s_barrier')
        s('s_getreg_b32 s4, hwreg(HW_REG_XCC_ID)')
        s(f'v_and_b32 v1, 31, v0\nv_lshlrev_b32 v1, 3, v1\ns_lshl_b32 s5, s{S_X}, 8\ns_add_u32 s5, s5, {W_XC}\ns_lshl3_add_u32 s6, s{S_IDX}, s5')
        s.tagwait()
        s(f'v_mov_b32 v2, s4\nv_mov_b32 v3, s{TAG}\ns_mov_b64 exec, 1')
        if o['xab']: s(f's_add_u32 s7, s6, {W_XL - W_XC}\nbuffer_store_dwordx2 v[2:3], v1, {WSR}, s7 offen')
        if 'X' not in o['nox']: s(f'buffer_store_dwordx2 v[2:3], v1, {WSR}, s6 offen sc1')
        s('s_mov_b64 exec, -1')
        s.idpoll(o['pslp'])
        s(f'v_xor_b32 v4, s4, v4\nv_or_b32 v4, v4, v6\nv_cmp_ne_u32 vcc, 0, v4\ns_cmp_eq_u64 vcc, 0\ns_cselect_b32 s4, 2, 1')
        if not o['loc']: s(f's_mov_b32 s4, 1')
        s(f'v_mov_b32 v4, s4\nv_mov_b32 v5, {LFLAG}\nds_write_b32 v5, v4\ns_waitcnt lgkmcnt(0)')
        s.stamp(2)
        if o['bE']:
            l = s.lab('noBe'); s.role(0, l, False); s.bstage(0, o['bE'], o['bEF']); s(f'{l}:')
        s('s_barrier')
        if not o['up']: s.stage(0)
        s.stamp(1)
        s.role(1, 'L_LN0')
        s.role(0, 'L_s23', False)
        s.warm('L_R', 'L_wR')
        s('L_R0:')
        s.waitprog(72, 1)
        s.getloc(1, spin=False)
        s.srd(RA, P_X, 2560)
        s(f'v_and_b32 v1, 15, v0\nv_lshlrev_b32 v2, 1, v1\ns_lshl_b32 s5, s{S_CS}, 5')
        s(f'buffer_load_ushort v4, v2, {RAR}, s5 offen\nbuffer_load_ushort v5, v2, {RAR}, s5 offen offset:1280')
        s(f'v_lshlrev_b32 v2, 3, v1\ns_lshl_b32 s5, s{S_CS}, 7\ns_add_u32 s6, s5, {W_MOD + 1280*8}')
        s.poll([f'buffer_load_dwordx2 v[6:7], v2, {WSR}, s6 offen sc1'], s.ck_tag([[7]], 8), slp=o['mlslp'])
        s('v_lshlrev_b32 v4, 16, v4\nv_lshlrev_b32 v5, 16, v5\nv_and_b32 v7, 0xffff0000, v6\nv_lshlrev_b32 v6, 16, v6')
        s(f's_add_u32 s5, s5, {W_X1}\nv_mov_b32 v9, s{TAG}\ns_lshl_b32 s6, s{S_X}, 13\ns_add_u32 s5, s5, s6')
        s.rows(3, 8, 4, 10240)
        s(f's_lshl_b32 s64, s{S_CS}, 8\ns_add_u32 s64, s64, {W_Y}')
        s(f's_sub_u32 s64, s64, {W_Y - W_YL}\ns_sub_u32 s6, 1, s{LOC}\ns_mul_i32 s6, s6, {W_Y - W_YL}\nv_mov_b32 v12, s6\nv_mov_b32 v13, {W_Y - W_YL}\nv_lshrrev_b32 v14, 5, v0')
        for k in range(4):
            s(f'v_add_u32 v15, {2*k}, v14\nv_cmp_eq_u32 vcc, s{S_X}, v15\nv_cndmask_b32 v15, v13, v12, vcc\nv_add_u32 v15, {40960*k}, v15\nv_add_u32 v{32+k}, v15, v3')
        if o['rown']:
            s(f's_lshr_b32 s4, s{S_H}, 1\nv_lshrrev_b32 v14, 4, v0\ns_bfe_u32 s6, s{S_H}, 0x10001\ns_mul_i32 s6, s6, {-20480 & 0xffffffff}\ns_add_u32 s6, s6, 10240')
            for k in range(4):
                s(f'v_add_u32 v15, {4*k}, v14\nv_cmp_eq_u32 s[{66+2*k}:{67+2*k}], s4, v15\nv_add_u32 v15, s6, v{32+k}\nv_cndmask_b32_e64 v{32+k}, v{32+k}, v15, s[{66+2*k}:{67+2*k}]')
            s(f's_and_b32 s4, s{S_CS}, 3\ns_lshl_b32 s4, s4, 7\ns_add_u32 s4, s4, {LYO}\nv_add_u32 v36, s4, v2')
        touch = '\n'.join(f'buffer_load_dword v{40+k}, v{32+k}, {WSR}, s64 offen sc1' for k in range(4))
        if o['bD']:
            n = o['bD'] // 2
            s.srd(RB, P_WO, 6144 * 1280)
            s('v_lshrrev_b32 v46, 3, v0\nv_mul_u32_u24 v44, 1280, v46\nv_and_b32 v46, 2, v46\nv_and_b32 v45, 7, v0\nv_xor_b32 v46, v46, v45\nv_xor_b32 v45, 4, v46')
            s('s_bitcmp1_b32 s3, 0\ns_cselect_b64 vcc, -1, 0\nv_cndmask_b32 v46, v46, v45, vcc\nv_lshl_add_u32 v44, v46, 4, v44')
            s.ghead(8)
            t0 = 48 - 2 * n; src = lambda t: (t if t < 24 else t + 15 * 24) * 8 * 1280
            s(f's_mul_i32 s8, s8, {192*1280}\ns_lshr_b32 s9, s{S_CS}, 2\ns_lshl_b32 s9, s9, 7\ns_add_u32 s8, s8, s9\ns_add_u32 s8, s8, {src(t0)}')
            s(f's_and_b32 s9, s3, 1\ns_mul_i32 s10, s9, {8 * 1280}\ns_add_u32 s8, s8, s10\ns_lshl_b32 s9, s9, 10\ns_add_u32 s9, s9, {LB + 1024 * t0}')
            dm = '\n'.join(f's_mov_b32 m0, s9\ns_add_u32 s9, s9, 2048\nbuffer_load_dwordx4 v44, {RBR}, s8 offen {o["wflag"]} lds\ns_add_u32 s8, s8, {src(t + 2) - src(t)}' for t in range(t0, 48, 2))
            if o['btrig'] <= 192:
                s.waitprog(o['btrig'] - 12, 12)
                if o['ball']: s.waitprog(o['ball'], 12, 1, at=LCNT + 12)
                else: s.waitprog(o['btrig'], 12, 1)
                s(dm)
        s('s_barrier')
        if o['bD']:
            if o['btrig'] > 192: s(dm)
            s('s_waitcnt vmcnt(0)')
            if o['bfl']: s(f's_mov_b64 exec, 1\nv_mov_b32 v12, 0\nv_mov_b32 v13, 1\nds_add_u32 v12, v13 offset:{LCNT + 16}\ns_mov_b64 exec, -1')
        if o['rg'] == 5: s(touch)
        s('s_barrier')
        if o['rg'] == 4: s(touch)
        if o['rg'] and o['rg'] != 6: s('s_barrier')
        s('L_R:')
        s.stamp(4)
        Y = 16
        ck, t = s.ck_xor([Y + 4 * k for k in range(4)], 2, 12, 13)
        if o['rown']:
            if o['rg'] != 6: s('ds_read_b64 v[38:39], v36')
            ck[0] += '\ns_waitcnt lgkmcnt(0)'
            for k in range(4):
                for e in range(2): ck[k] += f'\nv_cndmask_b32_e64 v{Y+4*k+e}, v{Y+4*k+e}, v{38+e}, s[{66+2*k}:{67+2*k}]'
        for k in range(1, 4): ck[k] += f'\nv_pk_add_f32 v[10:11], {P(Y) if k == 1 else "v[10:11]"}, {P(Y+4*k)}'
        lds_ = [f'buffer_load_dwordx3 v[{Y+4*k}:{Y+4*k+2}], v{32+k}, {WSR}, s64 offen sc1' for k in range(4)]
        if o['rmiss']:
            s.gather(lds_, [s.ck_xor([Y + 4 * k], 2, 12, 13) for k in range(4)], 8)
            s(f'v_pk_add_f32 v[10:11], {P(Y)}, {P(Y+4)}\nv_pk_add_f32 v[10:11], v[10:11], {P(Y+8)}\nv_pk_add_f32 v[10:11], v[10:11], {P(Y+12)}')
        else: s.poll(lds_, (ck, t), warmable=True, pre='s_barrier\nds_read_b64 v[38:39], v36' if o['rg'] == 6 else None)
        s.stamp(5)
        for w in (16, 32):
            s(f'v_mov_b32 v14, v10\nv_mov_b32 v15, v11\nv_permlane{w}_swap_b32 v10, v14\nv_permlane{w}_swap_b32 v11, v15\nv_pk_add_f32 v[10:11], v[10:11], v[14:15]')
        s(f'v_pk_fma_f32 v[10:11], v[10:11], v[6:7], v[4:5]\nv_cvt_pk_bf16_f32 v8, v10, v11')
        s.warmret('L_wR')
        s('s_mov_b64 exec, 0xffff')
        s.gstore([f'buffer_store_dwordx2 v[8:9], v2, {WSR}, s5 offen'])
        s.stamp(6)
        s.end()

    def s3(s):
        s.cur = 'l'
        o = s.o
        if not o['b0']: s('s_barrier')
        if not o['upe']: s.tagwait()
        if o['up'] and not o['wst']:
            if o['qfirst']: s.ldswait(LGO, 3)
            s.stage(None)
            if o['upe']: s.tagwait()
            if o['sep']: s(f's_waitcnt vmcnt({o["sep"]})\nv_mov_b32 v3, {LGO}\nv_mov_b32 v4, s{TAG}\nds_write_b32 v3, v4')
        s.ldswait(LQF, 3, o['pslp'])
        s('v_lshlrev_b32 v2, 4, v0\ns_branch L_Qg\nL_s3b:')
        if not o['up']: s.stage(1)
        s.stamp(1)
        s.role(0, 'L_R0')
        s.role(1, 'L_s23', False)
        s.warm('L_LN', 'L_wLN')
        s('L_LN0:')
        s.waitprog(72, 1)
        C1, SB, X = 8, 28, 48
        s(f'v_lshlrev_b32 v1, 4, v0\ns_and_b32 s8, s3, 1\ns_mul_i32 s11, s8, 0x02020000\ns_add_u32 s11, s11, 0x01000c0c')
        s(f's_mov_b32 s4, {W_MOD + 3*5120}\ns_mov_b32 s5, {W_MOD + 3*5120 + 4096}\ns_mov_b32 s6, {W_MOD + 4*5120}\ns_mov_b32 s7, {W_MOD + 4*5120 + 4096}')
        def ld5(base, sa): return [f'buffer_load_dwordx4 {Q4(base+4*u)}, v1, {WSR}, s{sa + (u >> 2)} offen offset:{1024*(u & 3)} sc1' for u in range(5)]
        pick = lambda r: f'v_perm_b32 v{r}, v{r}, v{r}, s11\nv_perm_b32 v{r+1}, v{r+2}, v{r+2}, s11'
        s.poll(ld5(C1, 6) + ld5(SB, 4), s.ck_tag([[C1 + 1 + 4 * k, C1 + 3 + 4 * k] for k in range(10)], 4), slp=o['mlslp'])
        for k in range(10): s(pick(C1 + 4 * k))
        for u in range(5):
            for e in range(2): s(f'v_add_f32 v{C1+4*u+e}, 1.0, v{C1+4*u+e}'); s.bf16r(C1 + 4 * u + e)
        s(f's_lshl_b32 s4, s{S_X}, 13\ns_add_u32 s4, s4, {W_X1}\ns_add_u32 s5, s4, 4096')
        s(f's_mul_i32 s8, s8, {HS}\ns_add_u32 s8, s8, {LH2}\nv_lshl_add_u32 v2, v0, 2, s8')
        s(f's_mov_b32 s10, {hx(1/640)}\nv_mov_b32 v68, {hx(1e-5)}')
        s('s_barrier\ns_barrier\ns_barrier')
        s('L_LN:')
        s.stamp(4)
        ck, t = s.ck_tag([[X + 1 + 4 * u, X + 3 + 4 * u] for u in range(5)], 70)
        for u in range(5):
            r = X + 4 * u
            ck[u] += '\n' + pick(r)
            if u == 0: ck[u] += f'\nv_readlane_b32 s8, v{X}, 0'
            ck[u] += f'\nv_pk_add_f32 {P(r)}, {P(r)}, s[8:9] op_sel_hi:[1,0] neg_lo:[0,1] neg_hi:[0,1]'
            if u == 0: ck[u] += f'\nv_pk_mul_f32 v[6:7], {P(r)}, {P(r)}'
            else: ck[u] += f'\nv_pk_add_f32 v[4:5], {P(X) if u == 1 else "v[4:5]"}, {P(r)}\nv_pk_fma_f32 v[6:7], {P(r)}, {P(r)}, v[6:7]'
        s.poll(ld5(X, 4), (ck, t), warmable=True)
        s.stamp(5)
        fill = [f'v_pk_mul_f32 {P(X+4*u)}, {P(X+4*u)}, {P(C1+4*u)}' for u in range(5)]
        s('v_add_f32 v4, v4, v5\nv_add_f32 v6, v6, v7'); s(fill.pop(0))
        s('v_permlane32_swap_b32 v4, v6\nv_add_f32 v4, v4, v6')
        s.red16('v_add_f32', [4], fill=fill); s.swapred('v_add_f32', 4, 5, 16)
        s('v_mul_f32 v4, s10, v4\nv_mov_b32 v6, v4\nv_permlane32_swap_b32 v4, v6')
        s('v_fma_f32 v6, -v4, v4, v6\nv_max_f32 v6, 0, v6\nv_add_f32 v6, v6, v68\nv_rsq_f32 v6, v6')
        for u in range(5): s(f'v_pk_fma_f32 {P(X+4*u)}, {P(C1+4*u)}, v[4:5], {P(X+4*u)} op_sel_hi:[1,0,1] neg_lo:[0,1,0] neg_hi:[0,1,0]')
        for u in range(5):
            r = X + 4 * u
            s(f'v_pk_fma_f32 {P(r)}, {P(r)}, v[6:7], {P(SB+4*u)} op_sel_hi:[1,0,1]\nv_cvt_pk_bf16_f32 v{r}, v{r}, v{r+1}')
            if u & 1: s(f'ds_write2st64_b32 v2, v{r-4}, v{r} offset0:{u-1} offset1:{u}')
        s(f'ds_write_b32 v2, v{X+16} offset:1024')
        s.warmret('L_wLN')
        s('s_waitcnt lgkmcnt(0)')
        s.stamp(3)
        s('s_barrier')
        s.end()
        s('L_s23:')
        s.role(3, 'L_exit', False)
        if o['fw']:
            s.waitprog(72, 1)
            s(f'v_and_b32 v6, 31, v0\nv_lshlrev_b32 v6, 3, v6\ns_lshl_b32 s9, s{S_DT}, 8\ns_add_u32 s9, s9, {W_MOD + 5*5120}')
            s.poll([f'buffer_load_dwordx2 v[10:11], v6, {WSR}, s9 offen sc1'], s.ck_tag([[11]], 12), slp=o['mlslp'])
        s('L_D0:')
        if o['dL']:
            l = s.lab('noL')
            s(f's_bitcmp1_b32 {o["dL"] << 8}, s{SV}\ns_cbranch_scc0 {l}')
            s.trigger(); s.daddr(); s(s.ddma()); s(f'{l}:')
        s('s_barrier\ns_branch L_D')
        s.end()

    def ldswait(s, at, v, slp=1):
        l = s.lab('lw')
        s(f'v_mov_b32 v{v}, {at}\ns_mov_b32 s{SPIN}, {s.o["spin"]}\n{l}:\ns_sleep {slp}\nds_read_b32 v{v+1}, v{v}\ns_sub_u32 s{SPIN}, s{SPIN}, 1\ns_waitcnt lgkmcnt(0)')
        s(f'v_readfirstlane_b32 s10, v{v+1}\ns_cselect_b32 s10, 1, s10\ns_cmp_eq_u32 s10, 1\ns_cbranch_scc0 {l}')
    def waitprog(s, n, v, slp=None, at=LPRG):
        l = s.lab('prog')
        s(f'v_mov_b32 v{v}, 0\ns_mov_b32 s{SPIN}, {s.o["spin"]}\n{l}:\ns_sleep {slp or s.o["mlslp"]}\nds_read_b32 v{v+1}, v{v} offset:{at}\ns_sub_u32 s{SPIN}, s{SPIN}, 1\ns_waitcnt lgkmcnt(0)')
        s(f'v_readfirstlane_b32 s4, v{v+1}\ns_cselect_b32 s4, 999, s4\ns_cmp_lt_u32 s4, {n}\ns_cbranch_scc1 {l}')
    def idpoll(s, slp):
        l = s.lab('gotid')
        if s.o['xab']:
            s(f's_add_u32 s7, s5, {W_XL - W_XC}')
            s.poll([f'buffer_load_dwordx2 v[4:5], v1, {WSR}, s7 offen sc1'], s.ck_tag([[5]], 6), slp=slp, spin=s.o['xab'])
            s(f's_cbranch_vccz {l}')
        s.poll([f'buffer_load_dwordx2 v[4:5], v1, {WSR}, s5 offen sc1'], s.ck_tag([[5]], 6), slp=slp)
        s(f'{l}:')

    def trigger(s):
        s.waitprog(s.o['btrig'] - 12, 12); s.waitprog(s.o['ball'], 12, 1, at=LCNT + 12)
    def daddr(s):
        s(f's_lshl_b32 s4, s{SV}, 13\ns_add_u32 s4, s4, {LBIG}')
        s.srd(RA, P_D, 1536 * 1280); s.rows(1, 2, 2, 1280)
        s(f's_mul_i32 s5, s{SV}, {128 * 1280}\ns_lshl_b32 s6, s{S_DT}, 6\ns_add_u32 s5, s5, s6')
    def ddma(s): return s.dma(8, 1, RA, 5, 16 * 1280, lambda t: f's_add_u32 m0, s4, {1024 * t}', 63)
    def caddr(s):
        s(f's_bitcmp1_b32 s{S_CS}, 0\ns_cselect_b64 s[{RA}:{RA+1}], s[{P_U}:{P_U+1}], s[{P_G}:{P_G+1}]\ns_mov_b32 s{RA+2}, {640 * 3072}\ns_mov_b32 s{RA+3}, 0x20000')
        s.swz(3072)
        s(f's_lshr_b32 s5, s{S_CS}, 1\ns_lshl_b32 s5, s5, 7')
    def swz(s, stride):
        s(f'v_lshrrev_b32 v2, 3, v0\nv_mul_u32_u24 v1, {stride}, v2\nv_and_b32 v2, 2, v2\nv_and_b32 v3, 7, v0\nv_xor_b32 v2, v2, v3\nv_xor_b32 v3, 4, v2')
        s('v_lshl_add_u32 v3, v3, 4, v1\nv_lshl_add_u32 v1, v2, 4, v1')
    def cdma(s, n, lds, F):
        out = []
        for t in range(n):
            out.append(lds(t))
            if F < 60: out.append(f's_waitcnt vmcnt({F - 1})')
            out.append(f'buffer_load_dwordx4 v{3 if t & 1 else 1}, {RAR}, s5 offen {s.o["wflag"]} lds')
            if t < n - 1: out.append(f's_add_u32 s5, s5, {8 * 3072}')
        return '\n'.join(out)

    def crole(s):
        s.cur = 'c'
        o = s.o; E = o['cE']; n = 2 * (10 - E)
        s(f'L_C:\ns_cmp_lt_u32 s{SV}, 4\ns_cbranch_scc0 L_exit')
        BW, A, D = 88, 8, 72
        s.caddr()
        s(f's_mul_i32 s4, s{SV}, {n}\ns_mul_i32 s6, s4, {8 * 3072}\ns_add_u32 s5, s5, s6\ns_lshl_b32 s4, s4, 10\ns_add_u32 s4, s4, {LBIG}')
        s.live('s_barrier\n' + s.cdma(n, lambda t: f's_add_u32 m0, s4, {1024 * t}', 63))
        s.tr_lane(2, 3, 1024, 128)
        s(f'v_bfe_u32 v3, v0, 3, 2\nv_xor_b32 v3, s{SV}, v3\nv_lshl_add_u32 v2, v3, 5, v2\nv_add_u32 v2, {LBIG}, v2\nv_add_u32 v5, 40960, v2')
        s.a_lane(3, 4, HS, 16, LH2)
        s(f's_and_b32 s4, s{S_CS}, 1\ns_mul_i32 s6, s4, 12288\ns_lshr_b32 s5, s{S_CS}, 1\ns_lshl2_add_u32 s5, s5, s{SV}\ns_lshl_b32 s5, s5, 7\ns_add_u32 s6, s6, s5\ns_add_u32 s6, s6, {W_ACT}')
        s(f'v_lshlrev_b32 v1, 3, v0\ns_mov_b32 s7, {hx(-LOG2E)}\nv_mov_b32 v77, s{TAG}\ns_add_u32 s8, s6, {W_AL - W_ACT}')
        s('s_waitcnt vmcnt(0)')
        s.stamp(3)
        s.live('s_barrier')
        for T in range(20):
            for hi in range(2): s(f'ds_read_b64_tr_b16 {P(BW + 4*T + 2*hi)}, v{2 if T < 10 else 5} offset:{4096*(T % 10) + 512*hi}')
        s('s_waitcnt lgkmcnt(0)'); s.live('s_barrier')
        s.stamp(5)
        for T in range(15): s(f'ds_read_b128 {Q4(A+4*T)}, v3 offset:{64*T}')
        for T in range(20):
            s(f's_waitcnt lgkmcnt({min(14, 19 - T)})')
            s.mfma(D, A + 4 * (T % 15), BW + 4 * T, T == 0)
            if T < 5: s(f'ds_read_b128 {Q4(A+4*T)}, v3 offset:{64*(T+15)}')
        l = s.lab('up')
        s(f's_cmp_eq_u32 s4, 1\ns_cbranch_scc1 {l}')
        for op in (f'v_mul_f32 v{{t}}, s7, v{{d}}', 'v_exp_f32 v{t}, v{t}', 'v_add_f32 v{t}, 1.0, v{t}', 'v_rcp_f32 v{t}, v{t}', 'v_mul_f32 v{d}, v{d}, v{t}'):
            for b in range(2): s(op.format(t=D + 2 + b, d=D + b))
        s(f'{l}:\nv_cvt_pk_bf16_f32 v76, v{D}, v{D+1}')
        s.warmret('L_wC')
        st = [f'buffer_store_dwordx2 v[76:77], v1, {WSR}, s6 offen sc1', f'buffer_store_dwordx2 v[76:77], v1, {WSR}, s8 offen']
        s('s_mov_b64 exec, 0xffff\n' + '\n'.join(st[::-1] if o['pfa'] else st))
        s.stamp(6)
        s.end()

    def drole(s):
        s.cur = 'd'
        o = s.o
        s('L_D:')
        BW, A, D = 40, 72, 88
        s.daddr(); s.srd(RB, P_OUT, 2560)
        l = s.lab('have')
        have = f's_bitcmp1_b32 {o["dL"] << 8}, s{SV}' if o['dL'] else f's_cmp_ge_u32 s{SV}, {o["dW"]}'
        s.live(f's_barrier\n{have}\ns_cbranch_scc1 {l}\n' + s.ddma() + f'\n{l}:')
        s.tr_lane(2, 3, 512, 64)
        s('v_add_u32 v2, s4, v2\ns_waitcnt vmcnt(0)')
        s.stamp(3)
        for tt in range(2):
            for T in range(4):
                for hi in range(2): s(f'ds_read_b64_tr_b16 {P(BW + 16*tt + 4*T + 2*hi)}, v2 offset:{2048*T + 256*hi + 32*tt}')
        s(f's_lshl_b32 s4, s{SV}, 9\ns_add_u32 s4, s4, {LACT}\nv_lshl_add_u32 v2, v0, 2, s4')
        s.a_lane(3, 4, 256, 16, 0); s('v_add_u32 v3, s4, v3')
        s(f'v_and_b32 v4, 31, v0\nv_mul_u32_u24 v4, 96, v4\ns_lshl_b32 s4, s{SV}, 2\ns_add_u32 s4, s4, {LDP}\nv_add_u32 v4, s4, v4')
        s(f'v_lshlrev_b32 v1, 4, v0\ns_lshl_b32 s5, s{SV}, 10\ns_add_u32 s5, s5, {W_ACT}')
        s('s_add_u32 s6, s5, 12288')
        if True:
            s(f'v_mov_b32 v5, {LFLAG}\nds_read_b32 v6, v5\ns_lshl_b32 s7, s{SV}, 1\ns_mul_i32 s8, s{S_X}, 3\ns_sub_u32 s7, s7, s8\nv_lshrrev_b32 v5, 5, v0\nv_add_u32 v5, s7, v5\nv_cmp_gt_u32 vcc, 3, v5')
            s(f's_waitcnt lgkmcnt(0)\nv_subrev_u32 v6, 1, v6\nv_readfirstlane_b32 s11, v6\nv_mul_u32_u24 v6, {W_AL - W_ACT}, v6\nv_cndmask_b32 v5, 0, v6, vcc\nv_add_u32 v1, v1, v5')
        s(f'v_and_b32 v5, 31, v0\nv_lshlrev_b32 v6, 3, v5\nv_lshrrev_b32 v7, 5, v0')
        lf = s.lab('nofin')
        s(f's_cmp_eq_u32 s{SV}, {o["fw"]}\ns_cbranch_scc0 {lf}')
        s(f's_lshl_b32 s8, s{S_DT}, 8\ns_add_u32 s9, s8, {W_MOD + 5*5120}\ns_add_u32 s8, s8, {W_X1}')
        s(f's_lshl_b32 s10, s{S_X}, 13\ns_add_u32 s8, s8, s10')
        if o['fw']: s.poll([f'buffer_load_dwordx2 v[8:9], v6, {WSR}, s8 offen sc1'], s.ck_tag([[9]], 12), slp=o['dslp'], warmable=True)
        else: s.poll([f'buffer_load_dwordx2 v[10:11], v6, {WSR}, s9 offen sc1', f'buffer_load_dwordx2 v[8:9], v6, {WSR}, s8 offen sc1'], s.ck_tag([[11], [9]], 12), slp=o['dslp'], warmable=True)
        s('v_lshlrev_b32 v9, 4, v7\nv_lshrrev_b32 v8, v9, v8\nv_lshlrev_b32 v8, 16, v8\nv_lshrrev_b32 v10, v9, v10\nv_lshlrev_b32 v10, 16, v10')
        if o['adel']: s(f's_sleep {o["adel"]}')
        if o['agate']:
            s(f's_cmp_eq_u32 s11, 1\ns_cbranch_scc0 {lf}')
            s(f'v_min_u32 v11, {o["agate"] - 1}, v5\nv_lshlrev_b32 v11, 7, v11\nv_mul_u32_u24 v9, 12288, v7\nv_add_u32 v11, v11, v9\ns_mul_i32 s8, s{S_X}, 1536\ns_add_u32 s8, s8, {W_AL}')
            s.poll([f'buffer_load_dword v9, v11, {WSR}, s8 offen offset:4 sc1'], s.ck_tag([[9]], 12), warmable=True)
        s(f'{lf}:')
        s(f'v_lshl_add_u32 v6, v5, 1, v7\nv_mul_u32_u24 v6, 48, v6\nv_add_u32 v6, {LDP}, v6')
        s(f'v_mul_u32_u24 v7, 1280, v7\nv_lshl_add_u32 v5, v5, 1, v7\ns_lshl_b32 s8, s{S_DT}, 6')
        if o['otouch']: s(f'buffer_load_dword v30, v5, {RBR}, s8 offen')
        s.live('s_barrier')
        ck, t = s.ck_tag([[17, 19], [21, 23]], 12)
        for k in range(2):
            for r in (16 + 4 * k, 18 + 4 * k): ck[k] += f'\nv_and_b32 v{r+1}, 0xffff0000, v{r}\nv_lshlrev_b32 v{r}, 16, v{r}'
        s.poll([f'buffer_load_dwordx4 {Q4(16+4*k)}, v1, {WSR}, s{5+k} offen sc1' for k in range(2)], (ck, t), warmable=True)
        s.stamp(5)
        s('v_pk_mul_f32 v[16:17], v[16:17], v[20:21]\nv_pk_mul_f32 v[18:19], v[18:19], v[22:23]\nv_cvt_pk_bf16_f32 v16, v16, v18\nv_cvt_pk_bf16_f32 v17, v17, v19')
        s('ds_write2st64_b32 v2, v16, v17 offset0:0 offset1:1\ns_waitcnt lgkmcnt(0)')
        for T in range(4): s(f'ds_read_b128 {Q4(A+4*T)}, v3 offset:{64*T}')
        for T in range(4):
            s(f's_waitcnt lgkmcnt({3-T})')
            for tt in range(2): s.mfma(D + 4 * tt, A + 4 * T, BW + 16 * tt + 4 * T, T == 0)
        for b in range(2): s(f'v_mov_b32_dpp v{D+b}, v{D+4+b} quad_perm:[0,1,2,3] row_mask:0xa bank_mask:0xf')
        s(f'ds_write2_b32 v4, v{D}, v{D+1} offset0:0 offset1:12\ns_waitcnt lgkmcnt(0)'); s.stamp(1); s.live('s_barrier'); s.stamp(2)
        s(f's_cmp_eq_u32 s{SV}, {o["fw"]}\ns_cbranch_scc0 L_exit')
        for k in range(3): s(f'ds_read_b128 {Q4(16+4*k)}, v6 offset:{16*k}')
        s('s_waitcnt lgkmcnt(1)\nv_pk_add_f32 v[16:17], v[16:17], v[18:19]\nv_pk_add_f32 v[20:21], v[20:21], v[22:23]\nv_pk_add_f32 v[16:17], v[16:17], v[20:21]')
        s('s_waitcnt lgkmcnt(0)\nv_pk_add_f32 v[24:25], v[24:25], v[26:27]\nv_pk_add_f32 v[16:17], v[16:17], v[24:25]\nv_add_f32 v16, v16, v17')
        s('v_fma_f32 v16, v16, v10, v8\nv_mov_b32_dpp v17, v16 quad_perm:[1,1,3,3] row_mask:0xf bank_mask:0xf\nv_cvt_pk_bf16_f32 v16, v16, v17')
        s.warmret('L_wD')
        s(f's_mov_b32 exec_lo, 0x55555555\ns_mov_b32 exec_hi, 0x55555555\nbuffer_store_dword v16, v5, {RBR}, s8 offen {o["oflag"]}')
        s.stamp(6)
        s(f's_cmp_eq_u32 s{S_DT}, 0\ns_cbranch_scc0 L_fin')
        s(f's_mov_b64 exec, 1\nv_mov_b32 v17, s{TAG}\nv_mov_b32 v18, 0\nbuffer_store_dword v17, v18, {WSR}, 0 offen {o["oflag"]}')
        if o['diag']:
            s(f'L_diag:\ns_memrealtime s[76:77]\ns_waitcnt lgkmcnt(0)\ns_sub_u32 s76, s76, s78\ns_cmp_lt_u32 s76, {o["diag"]}\ns_cbranch_scc1 L_diag')

    def exit(s):
        s('L_fin:')
        if s.o['stamps'] != 4: s('L_exit:')
        if s.o['stamps']:
            s('s_waitcnt vmcnt(0)')
            s.stamp(7, True)
            if s.o['stamps'] == 3: s(f's_memtime s[{ST0+12}:{ST0+13}]')
            s('s_mov_b64 exec, 1\ns_waitcnt lgkmcnt(0)')
            s(f'{"s_mov_b32 s4, s14" if s.o["stamps"] == 4 else "s_mul_i32 s4, s2, 12"}\n{"" if s.o["stamps"] == 4 else "s_add_u32 s4, s4, s3"}\ns_lshl_b32 s4, s4, 6\ns_add_u32 s4, s4, {W_STAMP}\nv_mov_b32 v1, 0')
            for k in range(4):
                for e in range(4): s(f'v_mov_b32 v{4+4*k+e}, s{ST0+4*k+e}')
                s(f'buffer_store_dwordx4 {Q4(4+4*k)}, v1, {WSR}, s4 offen offset:{16*k}')
        if s.o['stamps'] == 4: s('L_exit:')
        s('L_end:\ns_endpgm')

    def build(s):
        s.entry(); s.stream()
        for _ in range(s.o['shift']): s('s_endpgm')
        s('L_service:')
        s('; ---- the flags, counters and hints in LDS start out clear (complete at the wait for the arguments, before the first barrier)')
        s(f'v_and_b32 v1, 15, v0\nv_cmp_eq_u32 vcc, {(LMODE - LFLAG) // 4}, v1\nv_mov_b32 v2, 999\nv_lshlrev_b32 v1, 2, v1\nv_cndmask_b32 v2, 0, v2, vcc\nds_write_b32 v1, v2 offset:{LFLAG}')
        s.roles()
        if s.o['b0']: s('s_barrier')
        s('s_cmp_eq_u32 s3, 9\ns_cbranch_scc1 L_s1\ns_cmp_eq_u32 s3, 10\ns_cbranch_scc1 L_s2\ns_cmp_eq_u32 s3, 11\ns_cbranch_scc1 L_s3')
        s.s0(); s.bgather(); s('L_s1:'); s.s1(); s('L_s2:'); s.s2(); s('L_s3:'); s.s3(); s.crole(); s.drole(); s.exit()
        body, n = pad(s.L)
        out = [HEADER.rstrip(), f'; @launch grid=(256,1,1) block=(768,1,1) lds={LEND}', '.amdgcn_target "amdgcn-amd-amdhsa--gfx950"', '.text',
               f'.globl {KN}', '.p2align 8', f'.type {KN},@function', f'{KN}:']
        out += [l if l.endswith(':') or l.startswith(';') else '    ' + l for l in body]
        out += ['.section .rodata,"a"', '.p2align 6', f'.amdhsa_kernel {KN}', '  .amdhsa_next_free_vgpr 168', '  .amdhsa_next_free_sgpr 96',
                '  .amdhsa_accum_offset 168', '  .amdhsa_group_segment_fixed_size 0', '  .amdhsa_kernarg_size 112', '  .amdhsa_user_sgpr_count 2',
                '  .amdhsa_user_sgpr_kernarg_segment_ptr 1', '  .amdhsa_system_sgpr_workgroup_id_x 1', '  .amdhsa_float_denorm_mode_32 3', '.end_amdhsa_kernel']
        return '\n'.join(out) + '\n', n

if __name__ == '__main__':
    names = []
    for spec in sys.argv[1:]:
        kw = {}
        name, _, rest = spec.partition(':')
        for kv in filter(None, rest.split(',')):
            k, v = kv.split('=')
            kw[k] = int(v) if v.isdigit() else v.replace('+', ' ').replace('_', '')
        t, n = G(**kw).build()
        open(name, 'w').write(t)
        names.append(name)
    print(' '.join(names))
```

```python
import sys, struct
from asmlib import pad
KN = 'adaLN_cond__gqa_block_cached__swiglu_ffn__decode_kernel'

def f2u(x): return struct.unpack('<I', struct.pack('<f', x))[0]
def hx(x): return hex(f2u(x))
LOG2E = 1.4426950408889634
W_E, W_PG, W_MOD, W_XL, W_XC, W_ACT = 0, 0x800, 0x1000, 0x2000, 0x9000, 0xA000
W_X1, W_GL, W_AL, W_YL, W_Y, W_ATT, W_ML, W_MP, W_QP, W_END = 0x10000, 0x20000, 0x28000, 0x30000, 0x58000, 0x80000, 0x180000, 0x1A0000, 0x1E0000, 0x260000
W_STAMP = 512 << 20
LQ, LFLAG, LPRG, LMODE, LQF, LGO, LCNT, LXS, LHS, LO, LH2, LPO, LBIG = 0, 1536, 1544, 1552, 1556, 1560, 1568, 1664, 2304, 2816, 6144, 9216, 58368
LMF = 1564
LYO = LXS
LACT, LDP = LPO, LPO + 6144
OS = 768 + 64
HS = 1280 + 64
LM, LWQ, LB, LEND = LBIG, LBIG + 20480, LBIG + 51200, LBIG + 100352
P_X, P_K, P_V, P_WQ, P_WO, P_BX, P_G, P_U, P_D, P_C, P_WM, P_OUT, P_DBG, P_WS = range(16, 44, 2)
TAG, S_H, S_J, S_R, S_X, S_IDX, LOC, S_CS = 44, 45, 46, 47, 48, 49, 50, 51
WS = 52; RA = 56; RB = 60
S_ROLE = 15
S_DT = 14
SPIN = 13
SV = 12
ST0 = 80
WSR = f's[{WS}:{WS+3}]'; RAR = f's[{RA}:{RA+3}]'; RBR = f's[{RB}:{RB+3}]'
P = lambda r: f'v[{r}:{r+1}]'
Q4 = lambda r: f'v[{r}:{r+3}]'


HEADER = """; Kernarg layout for this problem (112 bytes, ptrs only, base s[0:1]):
;
"""

class G:
    def __init__(s, **o):
        s.o = dict(F=3, NPF=12, RC=3, endF=5, endN=6, rot=6, wflag='nt', sflag='nt', spin=1 << 22, pslp=8, mlslp=32,
                   qF=63, mF=63, bF=1, cF=1, dF=1, cE=3, dE=3, bE=0, bEF=2, bonus=1, ord='0123', ordk='2301', wst=0, wF=3, up=1, upF=63, F0=3, N0=0, upe=0, qfirst=1, mfirst=1, dbgp=0, b0=1, order='0123', lin=0, fpat='', lpat='', fw=11, dslp=8, agate=0, adel=0, prio=0, bD=24, btrig=192, ball=8, bfl=1, cL=0, dL=0, Fm=3, Flom=2, far=0, emu=0, emin=6, emin2=3, shift=0, rown=1, pfy=0, pfa=0, rg=4, dg=1, rmiss=0, otouch=0, eg0=16, st0=112, qlight=0, glight=0, gmap=1, sep=0, dW=9, eg=182, xab=6, oflag='', warm=1, loc=1,
                   bal=1, stat1=130, cstep=8, bdel=20, n1=11, cstep2=6, bdel2=17, c0=6, bslp=12, Flo=2, bend=183,
                   stamps=0, stk='', phst=0, remap=0, diag=0, nox='')
        s.o.update(o); s.L = []; s.uid = 0; s.cur = '?'
    def __call__(s, t):
        for l in t.split('\n'):
            l = l.strip()
            if l: s.L.append(l)
    def lab(s, n): s.uid += 1; return f'L_{n}_{s.uid}'
    def srd(s, d, ptr, size):
        s(f's_mov_b32 s{d}, s{ptr}\ns_mov_b32 s{d+1}, s{ptr+1}\ns_mov_b32 s{d+2}, {size}\ns_mov_b32 s{d+3}, 0x20000')
    def stamp(s, k, lite=False):
        if s.o['stamps'] == 4 and k not in (0, 7): return
        if s.o['stamps'] == 1 or (s.o['stamps'] and (lite or str(k) + s.cur in s.o['stk'])): s(f's_memrealtime s[{ST0+2*k}:{ST0+2*k+1}]')
    def bf16r(s, d, src=None):
        src = d if src is None else src
        s(f'v_cvt_pk_bf16_f32 v{d}, v{src}, v{src}\nv_and_b32 v{d}, 0xffff0000, v{d}')
    def dppop(s, op, v, ctl): s(f'{op}_dpp v{v}, v{v}, v{v} {ctl} row_mask:0xf bank_mask:0xf')
    def red16(s, op, vs, skip1=False, fill=None):
        for ctl in (['quad_perm:[1,0,3,2]'] if not skip1 else []) + ['quad_perm:[2,3,0,1]', 'row_half_mirror', 'row_mirror']:
            if fill:
                for _ in range(2):
                    if fill: s(fill.pop(0))
            for v in vs: s.dppop(op, v, ctl)
    def swapred(s, op, v, t, w, fill=None):
        s(f'v_mov_b32 v{t}, v{v}')
        if fill:
            for _ in range(2):
                if fill: s(fill.pop(0))
        s(f'v_permlane{w}_swap_b32 v{v}, v{t}\n{op} v{v}, v{v}, v{t}')
    def live(s, text):
        if not s.o['warm']: s(text); return
        l = s.lab('lv'); s(f's_cbranch_execz {l}'); s(text); s(f'{l}:')
    def warm(s, entry, ret):
        if not s.o['warm']: return
        for r in range(1, 8): s(f'v_mov_b32 v{r}, 0')
        s(f's_mov_b64 exec, 0\ns_branch {entry}\n{ret}:\ns_mov_b64 exec, -1')
    def warmret(s, ret):
        if s.o['warm']: s(f's_cbranch_execz {ret}')
    def ck_tag(s, groups, t):
        out = []; first = True
        for g in groups:
            l = []
            for r in g:
                l.append(f'v_xor_b32 v{t}, s{TAG}, v{r}' if first else f'v_bitop3_b32 v{t}, v{r}, s{TAG}, v{t} bitop3:0xbe'); first = False
            out.append('\n'.join(l))
        return out, t
    def ck_xor(s, bases, n, t, t2):
        out = []
        for i, b in enumerate(bases):
            l = [f'v_bitop3_b32 v{t2}, v{b}, v{b+1}, v{b+2} bitop3:0x96']
            if n == 3: l.append(f'v_xor_b32 v{t2}, v{t2}, v{b+3}')
            l.append(f'v_xor_b32 v{t}, s{TAG}, v{t2}' if i == 0 else f'v_bitop3_b32 v{t}, v{t2}, s{TAG}, v{t} bitop3:0xbe')
            out.append('\n'.join(l))
        return out, t
    def poll(s, loads, ck, slp=0, warmable=False, nm='?', slpif=None, spin=None, pre=None):
        if nm in s.o['nox']: return
        checks, t = ck
        a = s.lab('poll'); b = s.lab('ok')
        s(f's_mov_b32 s{SPIN}, {spin or s.o["spin"]}')
        c0 = s.lab('chk')
        if pre: s('\n'.join(loads)); s(pre); s(f's_branch {c0}')
        s(f'{a}:')
        (s.live if warmable else s)('\n'.join(loads))
        if pre: s(f'{c0}:')
        for i, c in enumerate(checks): s(f's_waitcnt vmcnt({len(loads) - 1 - i})'); s(c)
        s(f'v_cmp_ne_u32 vcc, 0, v{t}\ns_cbranch_vccz {b}')
        if slpif: c = s.lab('ns'); s(f'{slpif}\ns_cbranch_scc1 {c}\ns_sleep {s.o["mlslp"]}\n{c}:')
        if slp: s(f's_sleep {slp}')
        s(f's_sub_u32 s{SPIN}, s{SPIN}, 1\ns_cbranch_scc0 {a}\n{b}:')
    def gather(s, loads, cks, sm, slp=0, nm='?'):
        if nm in s.o['nox']: return
        n = len(loads); a = s.lab('gat'); b = s.lab('ok')
        s(f's_mov_b32 s{SPIN}, {s.o["spin"]}\ns_mov_b32 s{sm}, {(1 << n) - 1}\n{a}:')
        for k in range(n):
            l = s.lab('sk'); s(f's_bitcmp1_b32 s{sm}, {k}\ns_cbranch_scc0 {l}\n{loads[k]}\n{l}:')
        s(f's_mov_b32 s{sm}, 0\ns_waitcnt vmcnt(0)')
        for k in reversed(range(n)):
            s(cks[k][0][0]); s(f'v_cmp_ne_u32 vcc, 0, v{cks[k][1]}\ns_cmp_lg_u64 vcc, 0\ns_addc_u32 s{sm}, s{sm}, s{sm}')
        s(f's_cmp_eq_u32 s{sm}, 0\ns_cbranch_scc1 {b}')
        if slp: s(f's_sleep {slp}')
        s(f's_sub_u32 s{SPIN}, s{SPIN}, 1\ns_cbranch_scc0 {a}\n{b}:')
    def gstore(s, stores, nm='?'):
        if nm in s.o['nox']: return
        a = s.lab('pl'); b = s.lab('st')
        s(f's_cmp_eq_u32 s{LOC}, 1\ns_cbranch_scc1 {a}')
        for t in stores: s(t + ' sc1')
        s(f's_branch {b}\n{a}:')
        for t in stores: s(t)
        s(f'{b}:')
    def getloc(s, t, spin=True, at=LFLAG):
        a = s.lab('loc'); b = s.lab('locok')
        if spin: s(f's_mov_b32 s{SPIN}, {s.o["spin"] * 8}\n{a}:')
        s(f'v_mov_b32 v{t}, {at}\nds_read_b32 v{t}, v{t}\ns_waitcnt lgkmcnt(0)\nv_readfirstlane_b32 s{LOC}, v{t}\ns_sub_u32 s{LOC}, s{LOC}, 1')
        if spin: s(f's_cmp_le_u32 s{LOC}, 1\ns_cbranch_scc1 {b}\ns_sleep 1\ns_sub_u32 s{SPIN}, s{SPIN}, 1\ns_cbranch_scc0 {a}\n{b}:')
    def dma(s, n, voff, srd, soff, sstep, lds, F):
        out = []
        for t in range(n):
            st = sstep(t) if callable(sstep) else sstep
            out.append(lds(t) if callable(lds) else f's_mov_b32 m0, {lds + 1024 * t}')
            if F < 60: out.append(f's_waitcnt vmcnt({F - 1})')
            out.append(f'buffer_load_dwordx4 v{voff}, s[{srd}:{srd+3}], s{soff} offen {s.o["wflag"]} lds')
            if t < n - 1: out.append(f's_add_u32 s{soff}, s{soff}, {st}')
        return '\n'.join(out)
    def rows(s, d, t, sh, stride):
        s(f'v_lshrrev_b32 v{d}, {sh}, v0\nv_mul_u32_u24 v{d}, {stride}, v{d}\nv_and_b32 v{t}, {(1 << sh) - 1}, v0\nv_lshl_add_u32 v{d}, v{t}, 4, v{d}')
    def tr_lane(s, d, t, gs, rs):
        s(f'v_lshrrev_b32 v{d}, 4, v0\nv_mul_u32_u24 v{d}, {gs}, v{d}')
        s(f'v_bfe_u32 v{t}, v0, 2, 2\nv_mul_u32_u24 v{t}, {rs}, v{t}\nv_add_u32 v{d}, v{d}, v{t}')
        s(f'v_and_b32 v{t}, 3, v0\nv_lshl_add_u32 v{d}, v{t}, 3, v{d}')
    def a_lane(s, d, t, bs, gs, base):
        s(f'v_and_b32 v{d}, 1, v0\nv_mul_u32_u24 v{d}, {bs}, v{d}\nv_lshrrev_b32 v{t}, 4, v0\nv_mul_u32_u24 v{t}, {gs}, v{t}')
        s(f'v_add_u32 v{d}, v{d}, v{t}')
        if base: s(f'v_add_u32 v{d}, {base}, v{d}')
    def mfma(s, d, a, b, first, k=32):
        n = 4 if k == 32 else 2
        s(f'v_mfma_f32_16x16x{k}_bf16 v[{d}:{d+3}], v[{a}:{a+n-1}], v[{b}:{b+n-1}], ' + ('0' if first else f'v[{d}:{d+3}]'))
    def role(s, bit, label, ifset=True): s(f's_bitcmp1_b32 s{S_ROLE}, {bit}\ns_cbranch_scc{1 if ifset else 0} {label}')
    def end(s): s('s_branch L_exit' if s.o['stamps'] in (1, 2) else 's_endpgm')
    def ghead(s, d):
        if s.o['gmap']: s(f's_lshr_b32 s{d}, s2, 7\ns_lshl3_add_u32 s{d}, s{d}, s{S_X}')
        else: s(f's_lshr_b32 s{d}, s{S_H}, 1')
    def tagwait(s): s(f's_waitcnt lgkmcnt(0)\ns_add_u32 s{TAG}, s{TAG}, 0x9e3779b1')

    def entry(s):
        o = s.o
        s(f's_cmp_ge_u32 s2, 256\ns_cbranch_scc1 L_end')
        s.stamp(0, True)
        s('s_load_dwordx16 s[16:31], s[0:1], 0\ns_load_dwordx8 s[32:39], s[0:1], 64\ns_load_dwordx4 s[40:43], s[0:1], 96')
        if o['diag'] or o['dbgp']: s('s_memrealtime s[78:79]')
        s('v_readfirstlane_b32 s3, v0\nv_and_b32 v0, 63, v0')
        if o['remap']: s('s_lshr_b32 s4, s2, 3\ns_and_b32 s4, s4, 7\ns_xor_b32 s2, s2, s4')
        s(f's_and_b32 s{S_X}, s2, 7\ns_lshr_b32 s4, s2, 6\ns_bfe_u32 s{S_J}, s2, 0x30003\ns_lshl2_add_u32 s{S_H}, s{S_X}, s4\ns_lshr_b32 s3, s3, 6')
        s('s_cmp_ge_u32 s3, 8\ns_cbranch_scc1 L_service')

    def roles(s):
        o = s.o
        for k in range(1, 8): s.stamp(k, True)
        s(f's_lshr_b32 s{S_IDX}, s2, 3\ns_lshr_b32 s11, s2, 6')
        lb = s.lab('nonB'); lr = s.lab('roles')
        s(f's_mov_b32 s{S_DT}, 0\ns_mov_b32 s{SV}, s3')
        s(f's_cmp_lt_u32 s{S_J}, 5\ns_cbranch_scc0 {lb}')
        if o['rown']:
            s(f's_and_b32 s9, s11, 1\ns_mul_i32 s{S_CS}, s9, 5\ns_add_u32 s{S_CS}, s{S_CS}, s{S_J}\ns_and_b32 s9, s11, 2\ns_lshl2_add_u32 s{S_CS}, s{S_CS}, s9\ns_and_b32 s9, s3, 1\ns_add_u32 s{S_CS}, s{S_CS}, s9')
        else: s(f's_mul_i32 s{S_CS}, s11, 5\ns_add_u32 s{S_CS}, s{S_CS}, s{S_J}\ns_lshl_b32 s{S_CS}, s{S_CS}, 1\ns_and_b32 s9, s3, 1\ns_add_u32 s{S_CS}, s{S_CS}, s9')
        s(f's_mov_b32 s{S_ROLE}, 1\ns_branch {lr}')
        s(f'{lb}:')
        s(f's_mul_i32 s8, s11, 3\ns_add_u32 s8, s8, s{S_J}\ns_sub_u32 s8, s8, 5')
        s(f's_mul_i32 s{S_CS}, s{S_X}, 6\ns_add_u32 s{S_CS}, s{S_CS}, s8')
        s(f's_add_u32 s9, s8, 10\ns_and_b32 s9, s9, 14\ns_lshl_b32 s10, s9, 2\ns_add_u32 s10, s10, s{S_X}')
        s(f's_lshl_b32 s{S_DT}, s10, 1\ns_and_b32 s9, s8, 1\ns_add_u32 s{S_DT}, s{S_DT}, s9')
        s(f's_cmp_lt_u32 s10, 10\ns_cselect_b32 s{S_ROLE}, 8, 0')
        s(f's_cmp_lt_u32 s8, 6\ns_cselect_b32 s{S_ROLE}, 2, s{S_ROLE}')
        s(f'{lr}:')
        s('s_waitcnt lgkmcnt(0)')
        s(f's_load_dword s{TAG}, s[{P_WS}:{P_WS+1}], 0')
        s.srd(WS, P_WS, 805306368 if o['stamps'] else W_END)

    def stream(s):
        s.cur = 'w'
        o = s.o; F = o['F']; NPF = o['NPF']
        VK, QA, ACC, TS, MX = 1, 4, 16, 2, 3
        RING = 24
        SC = RING
        T1, T2, LS, PPT = RING + 8, RING + 9, RING + 10, RING + 11
        MK = RING + 12
        VV, BP, PP2, T3 = RING + 16, RING + 17, RING + 18, RING + 19
        ML = RING + 20
        RET = 7
        BM, BA, BZ = RING + 24, RING + 25, RING + 26
        A2 = []
        s(f'v_bfe_u32 v{VK}, v0, 1, 3\nv_mul_u32_u24 v{VK}, 384, v{VK}\nv_lshrrev_b32 v2, 4, v0\nv_lshl_add_u32 v{VK}, v2, 5, v{VK}')
        s(f'v_and_b32 v2, 1, v0\nv_lshl_add_u32 v{VK}, v2, 4, v{VK}')
        if o['lin']: s(f'v_lshlrev_b32 v{VK}, 4, v0')
        PD = 16 * 3145728; STEP = 393216; OV = [int(c) for c in str(o['ord']).zfill(4)]
        OD = [int(c) for c in str(o['ordk'] or o['ord']).zfill(4)] + OV
        s(f's_bfe_u32 s7, s2, 0x40003\ns_lshl3_add_u32 s7, s7, s3\ns_mul_i32 s4, s7, 3072'); s.ghead(10)
        s(f's_mul_i32 s5, s10, 3145728\ns_add_u32 s4, s4, s5\ns_add_u32 s4, s4, {OD[0] * PD}\ns_add_u32 s6, s4, 3145728')
        s(f's_mul_i32 s5, s10, {o["rot"]}\ns_and_b32 s5, s5, 7\ns_mul_i32 s5, s5, {STEP}\ns_add_u32 s5, s5, s4')
        s(f's_mov_b32 s{RA+2}, 201326592\ns_mov_b32 s{RA+3}, 0x20000\ns_waitcnt lgkmcnt(0)\ns_mov_b64 s[{RA}:{RA+1}], s[{P_K}:{P_K+1}]')
        def emu(both=True):
            if o['emu']:
                s(f's_cmp_ge_u32 s4, {43 * 3145728}\ns_cselect_b64 s[{RA}:{RA+1}], s[{P_BX}:{P_BX+1}], s[{P_K}:{P_K+1}]')
                if both: s(f's_cselect_b64 s[{RB}:{RB+1}], s[{P_DBG}:{P_DBG+1}], s[{P_V}:{P_V+1}]')
        emu(False)
        NL = 192
        quad = {}; free = list(range(3 * NPF)); vm = []
        done = [0]
        def wait(n):
            if len(vm) - done[0] > n:
                s(f's_waitcnt vmcnt({n})'); done[0] = len(vm) - n
        def issue(u):
            wait((o['endF'] if u >= NL - o['endN'] else o['F0'] if u < o['N0'] else int(str(o['fpat'])[u % 3]) if o['fpat'] else o['Fm'] if OD[u // 24] == 2 else F) - 1)
            if o['bal'] and 3 * NPF + 9 <= u < NL - o['endN']:
                l = s.lab('th'); s(f's_cbranch_vccz {l}\ns_waitcnt vmcnt({(int(str(o["lpat"])[u % 3]) if o["lpat"] else o["Flo"]) - 1})')
                if o['far']: s(f's_cmp_eq_u64 s[72:73], 0\ns_cbranch_scc1 {l}\ns_waitcnt vmcnt(0)')
                s(f'{l}:')
            q = free.pop(0); quad[u] = q; r = RING + 4 * q
            srd, vo = (RAR, VK) if u < 96 else (RBR, VK if o['lin'] else VV)
            s(f'buffer_load_dwordx4 {Q4(r)}, v{vo}, {srd}, s5 offen offset:{(1024 if o["lin"] else 128) * (u % 3)} {o["sflag"]}')
            vm.append(u)
            if o['ball'] and u == o['btrig'] - 1: s(f's_mov_b64 exec, 1\nv_mov_b32 v{T2}, 1\nds_add_u32 v{BZ}, v{T2} offset:{LCNT + 12}\ns_mov_b64 exec, -1')
            if u % 3 == 2 and u < NL - 1:
                s(f's_add_u32 s5, s5, {STEP}\ns_cmp_ge_u32 s5, s6\ns_cselect_b32 s5, s4, s5')
                if u % 24 == 23:
                    t = u // 24; dl = OD[t + 1] - OD[t]
                    for r in (4, 5, 6): s(f's_{"add" if dl > 0 else "sub"}_u32 s{r}, s{r}, {abs(dl) * PD}')
                    emu()
                if o['dbgp'] and u % 24 == 23: s(f's_memrealtime s[{80 + 2 * (u // 24)}:{81 + 2 * (u // 24)}]')
                if o['phst'] == 1 and u % 48 == 47: s.stamp({47: 3, 95: 5, 143: 6}[u], True)
                if o['phst'] == 2 and u in (95, 119, 143): s.stamp({95: 3, 119: 5, 143: 6}[u], True)
            if u >= 3 * NPF + 3 and (u % 3 == 2 or not o['fpat']):
                if u >= 3 * NPF + 6:
                    s('s_waitcnt lgkmcnt(0)')
                    if o['far']: s(f'v_cmp_gt_u32 vcc, {u + 1 - o["far"]}, v{BM}\ns_mov_b64 s[72:73], vcc')
                    s(f'v_cmp_gt_u32 vcc, {u + 1}, v{BM}')
                s(f'v_mov_b32 v{BM}, {u + 1}\nds_write_b32 v{BA}, v{BM} offset:{LPRG}\nds_read_b32 v{BM}, v{BZ} offset:{LMODE}')
        def ready(u): return u in vm and vm.index(u) < done[0]
        def kpost(g):
            a = ACC + 4 * (g & 1); sc = SC + (g >> 2)
            s(f'v_cndmask_b32_e64 v{TS}, v{a}, v{a+1}, s[8:9]')
            s(f'v_add_f32_dpp v{sc}, v{TS}, v{TS} quad_perm:[1,0,3,2] row_mask:{1 << (g & 3)} bank_mask:0xf')
            if g & 3 == 3:
                s.bf16r(sc); s(f'v_mul_f32 v{sc}, {hx(192 ** -0.5)}, v{sc}'); s.bf16r(sc)
            if g & 7 == 7:
                a = sc - 1; row = f'quad_perm:[0,1,2,3] row_mask:{1 << OV.index(OD[g >> 3])} bank_mask:0xf'
                s(f'v_max_f32 v{MX}, v{a}, v{a+1}')
                s.red16('v_max_f32', [MX], skip1=True); s.swapred('v_max_f32', MX, T1, 16); s.swapred('v_max_f32', MX, T1, 32)
                s(f's_mov_b32 s10, {hx(LOG2E)}\nv_mul_f32 v{T1}, s10, v{MX}')
                for k in range(2): s(f'v_fma_f32 v{a+k}, v{a+k}, s10, -v{T1}')
                for k in range(2): s(f'v_exp_f32 v{a+k}, v{a+k}')
                s(f'v_mov_b32_dpp v{ML}, v{MX} {row}\nv_add_f32 v{LS}, v{a}, v{a+1}')
                for k in range(2): s(f'v_cvt_pk_bf16_f32 v{a+k}, v{a+k}, v{a+k}')
                s.red16('v_add_f32', [LS], skip1=True); s.swapred('v_add_f32', LS, T1, 16); s.swapred('v_add_f32', LS, T1, 32)
                s(f'v_mov_b32_dpp v{ML+1}, v{LS} {row}')
        def bperm(g):
            s(f'ds_bpermute_b32 v{PPT if g & 1 == 0 else PP2}, v{BP}, v{SC + 2 * OD.index(OV[g >> 3]) + (g >> 2 & 1)} offset:{64 * (g & 3)}')
        def switch():
            s.stamp(3)
            bperm(0)
            s(f'v_bitop3_b32 v{ML+2}, v{ML}, v{ML+1}, s{TAG} bitop3:0x96\nv_lshlrev_b32 v{ML+3}, 7, v0')
            s(f's_lshr_b32 s10, s{S_H}, 1\ns_lshl_b32 s10, s10, 9\ns_add_u32 s10, s10, s7\ns_lshl_b32 s10, s10, 4\ns_add_u32 s10, s10, {W_ML}')
            s('s_mov_b32 exec_lo, 0x00010001\ns_mov_b32 exec_hi, 0x00010001')
            s.gstore([f'buffer_store_dwordx4 {Q4(ML)}, v{ML+3}, {WSR}, s10 offen'])
            s('s_mov_b64 exec, -1')
            vm.append(None)
            s(f'v_lshrrev_b32 v{T1}, 5, v0\nv_mul_u32_u24 v{T1}, 768, v{T1}\nv_and_b32 v{T2}, 7, v0\nv_lshl_add_u32 v{T1}, v{T2}, 5, v{T1}')
            s(f'v_and_b32 v{T2}, 16, v0\nv_add_u32 v{T1}, v{T1}, v{T2}\ns_mul_i32 s10, s3, 1536\ns_add_u32 s10, s10, {LPO}\nv_add_u32 v{T1}, s10, v{T1}')
        def outp(acc, b):
            s('s_mov_b32 exec_lo, 0x00ff00ff\ns_mov_b32 exec_hi, 0xff00ff00')
            for jj in range(3): s(f'ds_write_b128 v{T1}, {Q4(acc[jj])} offset:{256*jj + 12288*b}')
            s('s_mov_b64 exec, -1')
        def proc(u):
            g, jj = divmod(u, 3)
            if g >= 32 and jj == 0:
                a = ACC + 4 * (g & 1)
                s('s_waitcnt lgkmcnt(0)')
                for k in range(4): s(f'v_and_b32 v{a+k}, v{PPT if g & 1 == 0 else PP2}, v{MK+k}')
                if g < 63: bperm(g - 31)
            wait(len(vm) - 1 - vm.index(u))
            r = RING + 4 * quad[u]
            if g < 32:
                s.mfma(ACC + 4 * (g & 1), QA + 4 * jj, r, jj == 0)
                if jj == 2 and g > 0: kpost(g - 1)
                if u == 5:
                    s(f'v_lshrrev_b32 v{BP}, 3, v0\nv_mul_u32_u24 v{VV}, 384, v{BP}\nv_lshlrev_b32 v{BP}, 3, v{BP}')
                    s(f'v_and_b32 v{T3}, 7, v0\nv_lshl_add_u32 v{VV}, v{T3}, 4, v{VV}')
                    s(f'v_and_b32 v{PP2}, 1, v0\nv_lshlrev_b32 v{PP2}, 4, v{PP2}\nv_mov_b32 v{MK}, 0xffff\nv_lshlrev_b32 v{PP2}, v{PP2}, v{MK}')
                    s(f'v_lshrrev_b32 v{T3}, 1, v{T3}')
                    for k in range(4):
                        s(f'v_cmp_eq_u32 vcc, {k}, v{T3}\nv_cndmask_b32 v{MK+k}, 0, v{PP2}, vcc')
                    s.a_lane(T3, PP2, 16, 32, LQ)
                if u in (23, 47, 71):
                    for k in range(3): s(f'ds_read_b128 {Q4(QA+4*k)}, v{T3} offset:{128*k + 384*OD[(u+1)//24]}')
                    s('s_waitcnt lgkmcnt(0)')
                if u == 6:
                    s(f's_cmp_eq_u32 s3, 3\ns_cselect_b32 s10, 0, 4\nv_mov_b32 v{BA}, s10\nv_mov_b32 v{BZ}, 0')
                if u == 95: kpost(31); switch()
            else:
                if u == 120: A2.extend(RING + 4 * free.pop() for _ in range(3))
                acc = lambda p: A2 if p & 1 else [QA, QA + 4, QA + 8]
                p = (g - 32) >> 3
                s.mfma(acc(p)[jj], ACC + 4 * (g & 1), r, g & 7 == 0)
                if u >= 190:
                    s(f's_mov_b32 exec_lo, 0x00ff00ff\ns_mov_b32 exec_hi, 0xff00ff00\nds_write_b128 v{T1}, {Q4(A2[jj-1])} offset:{256*(jj-1) + 3*12288}')
                    if u == 190: s('s_mov_b64 exec, -1')
                if p and u % 24 == 2:
                    outp(acc(p - 1), p - 1)
                    s(f's_mov_b64 exec, 1\nv_mov_b32 v{T2}, 1\nds_add_u32 v{BZ}, v{T2} offset:{LCNT + 4*(p-1)}\ns_mov_b64 exec, -1')
            if quad[u] >= RET: free.append(quad[u])
        li = 0
        if o['wst']:
            s.roles()
            s.wstage()
            vm.extend([None] * F)
        if o['sep']:
            s.roles(); s.tagwait(); s.ldswait(LGO, TS)
        while li < 3 * NPF:
            issue(li); li += 1
            if li == (min(F, o['F0']) if o['N0'] else F):
                if not o['sep'] and not o['wst']: s.roles()
                s.srd(RB, P_V, 201326592)
                if o['mfirst'] and not o['wst']: s('s_barrier')
            if li == F + 1:
                s('s_mov_b32 s8, 0xaaaaaaaa\ns_mov_b32 s9, 0xaaaaaaaa'); s.a_lane(TS, MX, 16, 32, LQ)
                if not o['sep']: s.tagwait()
        s.stamp(1, True)
        s('s_barrier')
        s.stamp(2, True)
        for jj in range(3): s(f'ds_read_b128 {Q4(QA+4*jj)}, v{TS} offset:{128*jj + 384*OD[0]}')
        s.getloc(MX, spin=False)
        pi = 0
        while pi < NL:
            if li < NL:
                while not free: proc(pi); pi += 1
                issue(li); li += 1
                if o['fpat'] and li % 3 and li < NL: continue
                n = -2 * o['RC'] if o['fpat'] else 0
                while n < o['RC'] and pi < NL and ready(pi): proc(pi); pi += 1; n += 1
            else:
                proc(pi); pi += 1
        s(f'ds_write_b128 v{T1}, {Q4(A2[2])} offset:{512 + 3*12288}\ns_mov_b64 exec, -1')
        s('s_waitcnt lgkmcnt(0)')
        s.stamp(4, True)
        if o['dbgp']:
            l = s.lab('nd')
            s(f's_cmp_eq_u32 s3, 3\ns_cbranch_scc0 {l}\ns_and_b32 s10, s2, 0x38\ns_cmp_eq_u32 s10, 0x38\ns_cbranch_scc0 {l}\ns_memrealtime s[94:95]\ns_waitcnt lgkmcnt(0)')
            s.srd(RA, P_DBG, 256)
            s('s_mov_b64 exec, 1\nv_mov_b32 v60, 0')
            for k in range(8):
                s(f's_sub_u32 s10, s{80 + 2*k}, s{78 + 2*k}\nv_mov_b32 v{61+k}, s10\nbuffer_atomic_add v{61+k}, v60, {RAR}, 0 offen offset:{4*k}')
            s(f's_mov_b64 exec, -1\n{l}:')
        s('s_barrier')
        s.role(3, 'L_D'); s.role(1, 'L_C'); s.role(0, 'L_exit', False)
        s(f'L_B:\ns_cmp_lt_u32 s{SV}, 4\ns_cbranch_scc0 L_exit')
        BW, AW, D = 40, 88, 136
        s.tr_lane(2, 3, 1024, 128)
        s(f'v_bfe_u32 v3, v0, 3, 2\nv_xor_b32 v3, s{SV}, v3\nv_lshl_add_u32 v2, v3, 5, v2\nv_add_u32 v2, {LB}, v2')
        TE = (48 - o['bD']) // 4
        trd = lambda T: '\n'.join(f'ds_read_b64_tr_b16 {P(BW+4*T+2*hi)}, v2 offset:{4096*T + 512*hi}' for hi in range(2))
        for T in range(TE): s(trd(T))
        s(f'v_and_b32 v3, 3, v0\nv_mul_u32_u24 v3, {OS}, v3\nv_and_b32 v4, 48, v0\nv_add_u32 v3, v3, v4\nv_add_u32 v3, {LO}, v3')
        for T in range(6): s(f'ds_read_b128 {Q4(AW+4*T)}, v3 offset:{64*T}')
        s(f'v_lshlrev_b32 v4, 4, v0')
        s(f's_lshr_b32 s10, s{S_H}, 1\ns_mul_i32 s10, s10, 40\ns_and_b32 s11, s{S_H}, 1\ns_mul_i32 s11, s11, 5\ns_add_u32 s11, s11, s{S_J}')
        s(f's_lshl2_add_u32 s10, s11, s10\ns_add_u32 s10, s10, s{SV}\ns_lshl_b32 s10, s10, 8\ns_add_u32 s10, s10, {W_Y}\ns_sub_u32 s11, s10, {W_Y - W_YL}')
        if o['rown']: s(f's_lshl_b32 s9, s{SV}, 7\ns_add_u32 s9, s9, {LYO}\nv_lshl_add_u32 v5, v0, 3, s9')
        s('s_waitcnt lgkmcnt(0)')
        for T in range(min(6, TE)): s.mfma(D, AW + 4 * T, BW + 4 * T, T == 0)
        if o['bD'] and o['bfl']:
            l = s.lab('nw')
            if o['warm']: s(f's_cbranch_execz {l}')
            s.waitprog(2, 6, 1, at=LCNT + 16)
            s(f'{l}:')
            for T in range(TE, 12): s(trd(T))
            s('s_waitcnt lgkmcnt(0)')
            for T in range(TE, 6): s.mfma(D, AW + 4 * T, BW + 4 * T, T == 0)
            TE = 12
        s.live('s_barrier')
        s.stamp(5)
        cnt = []
        for T in range(6, 12):
            s(f'ds_read_b128 {Q4(AW+4*T)}, v3 offset:{64*T}')
            if T >= TE: s(trd(T))
            cnt.append(3 if T >= TE else 1)
        for T in range(6, 12):
            s(f's_waitcnt lgkmcnt({min(15, sum(cnt[T-5:]))})'); s.mfma(D, AW + 4 * T, BW + 4 * T, False)
        s.warmret('L_wB')
        s(f's_mov_b64 exec, 0xffff\nv_pk_add_f32 {P(D)}, {P(D)}, {P(D+2)}\nv_bitop3_b32 v{D+2}, v{D}, v{D+1}, s{TAG} bitop3:0x96')
        st = [f'buffer_store_dwordx4 {Q4(D)}, v4, {WSR}, s10 offen sc1', f'buffer_store_dwordx4 {Q4(D)}, v4, {WSR}, s11 offen']
        s('\n'.join(st[::-1] if o['pfy'] else st))
        if o['rown']: s(f'ds_write_b64 v5, {P(D)}\ns_waitcnt lgkmcnt(0)')
        s.stamp(6)
        if o['rg']: s('s_barrier')
        s.end()

    def s0(s):
        s.cur = 'a'
        o = s.o
        lsk = s.lab('noM'); lj = s.lab('Mj'); ln = s.lab('Mn')
        s(f's_lshr_b32 s4, s{S_IDX}, 2\ns_lshl_b32 s4, s4, 3\ns_add_u32 s4, s4, s{S_X}')
        s(f's_cmp_lt_u32 s4, 60\ns_cbranch_scc0 {lsk}')
        s(f's_and_b32 s7, s{S_IDX}, 3')
        s.srd(RA, P_C, 2560); s.srd(RB, P_WM, 640 * 7680)
        s('v_min_u32 v1, 39, v0\nv_cmp_lt_u32 vcc, 19, v1\nv_lshlrev_b32 v1, 4, v1\nv_mov_b32 v3, 960\nv_cndmask_b32 v3, 0, v3, vcc\nv_add_u32 v3, v3, v1')
        s(f's_mul_i32 s5, s7, 320\nbuffer_load_dwordx4 v[8:11], v3, {RAR}, s5 offen')
        s.rows(2, 3, 3, 7680)
        s(f's_mul_i32 s5, s7, {160 * 7680}\ns_lshl_b32 s6, s4, 7\ns_add_u32 s5, s5, s6')
        s(s.dma(20, 2, RB, 5, 8 * 7680, LM, o['mF']))
        s(f'v_mov_b32 v4, {LMF}\nv_mov_b32 v5, 1\nds_write_b32 v4, v5' if o['b0'] else 's_barrier')
        s('s_waitcnt vmcnt(20)')
        s(f's_mov_b32 s6, {hx(-LOG2E)}')
        for k in range(4): s(f'v_lshlrev_b32 v{20+2*k}, 16, v{8+k}\nv_and_b32 v{21+2*k}, 0xffff0000, v{8+k}')
        for k in range(8): s(f'v_mul_f32 v{40+k}, s6, v{20+k}')
        for k in range(8): s(f'v_exp_f32 v{40+k}, v{40+k}')
        for k in range(8): s(f'v_add_f32 v{40+k}, 1.0, v{40+k}')
        for k in range(8): s(f'v_min_f32 v{40+k}, 0x7f000000, v{40+k}')
        for k in range(8): s(f'v_rcp_f32 v{48+k}, v{40+k}')
        for k in range(8): s(f'v_mul_f32 v{56+k}, v{20+k}, v{48+k}')
        for k in range(8): s(f'v_fma_f32 v{20+k}, -v{56+k}, v{40+k}, v{20+k}')
        for k in range(8): s(f'v_fma_f32 v{20+k}, v{20+k}, v{48+k}, v{56+k}')
        for k in range(4): s(f'v_cvt_pk_bf16_f32 v{8+k}, v{20+2*k}, v{21+2*k}')
        s(f'ds_write_b128 v1, v[8:11] offset:{LXS}')
        s.a_lane(4, 5, 320, 16, LXS)
        s.tr_lane(5, 6, 1024, 128); s(f'v_add_u32 v5, {LM}, v5')
        A, B, D = 12, 48, 32
        s.tagwait()
        for T in range(5): s(f'ds_read_b128 {Q4(A+4*T)}, v4 offset:{64*T}')
        l = s.lab('ini')
        s(f's_cmp_eq_u32 s{S_IDX}, 0\ns_cbranch_scc0 {l}\ns_lshl_b32 s5, s{S_X}, 7\ns_add_u32 s5, s5, {W_PG}\ns_add_u32 s6, s{TAG}, 999')
        s(f'v_and_b32 v1, 31, v0\nv_lshlrev_b32 v1, 2, v1\nv_mov_b32 v6, s6\nbuffer_store_dword v6, v1, {WSR}, s5 offen\n{l}:')
        s(f'v_lshlrev_b32 v1, 4, v0\ns_mul_i32 s5, s7, {3840 * 16}\ns_lshl_b32 s6, s4, 10\ns_add_u32 s5, s5, s6\ns_add_u32 s5, s5, {W_MP}')
        s.rows(2, 3, 4, 3840 * 16)
        s(f's_lshl_b32 s4, s4, 2\ns_add_u32 s4, s4, s7\ns_lshl_b32 s6, s4, 8\ns_add_u32 s6, s6, {W_MP}')
        s('s_waitcnt vmcnt(0)')
        s.stamp(1)
        for T in range(5):
            for ct in range(4):
                for hi in range(2): s(f'ds_read_b64_tr_b16 {P(B + 16*T + 4*ct + 2*hi)}, v5 offset:{4096*T + 512*hi + 32*ct}')
            if T:
                s('s_waitcnt lgkmcnt(8)')
                for ct in range(4): s.mfma(D + 4 * ct, A + 4 * (T - 1), B + 16 * (T - 1) + 4 * ct, T == 1)
        s('s_waitcnt lgkmcnt(0)')
        for ct in range(4): s.mfma(D + 4 * ct, A + 16, B + 64 + 4 * ct, False)
        for ct in range(1, 4):
            for b in range(2): s(f'v_mov_b32_dpp v{D+b}, v{D+4*ct+b} quad_perm:[0,1,2,3] row_mask:{1 << ct} bank_mask:0xf')
        s(f'v_bitop3_b32 v{D+2}, v{D}, v{D+1}, s{TAG} bitop3:0x96')
        l2 = s.lab('M2')
        s(f's_cmp_lt_u32 s4, 80\ns_cbranch_scc0 {l2}')
        if 'P' not in o['nox']: s(f'buffer_store_dwordx4 {Q4(D)}, v1, {WSR}, s5 offen sc1')
        s.stamp(2)
        s(f's_branch {ln}\n{l2}:')
        s.getloc(6)
        s.gstore([f'buffer_store_dwordx4 {Q4(D)}, v1, {WSR}, s5 offen'], nm='m')
        s.stamp(2)
        s('s_barrier')
        s.poll([f'buffer_load_dwordx3 v[4:6], v2, {WSR}, s6 offen sc1'], s.ck_xor([4], 2, 8, 9), slp=o['mlslp'], nm='m')
        for w in (32, 16):
            s.swapred('v_add_f32', 4, 8, w); s.swapred('v_add_f32', 5, 9, w)
        s(f'v_cvt_pk_bf16_f32 v4, v4, v5\nv_mov_b32 v5, s{TAG}\nv_lshlrev_b32 v3, 3, v0\ns_lshl_b32 s5, s4, 7\ns_add_u32 s5, s5, {W_MOD}')
        s(f's_mov_b64 exec, 0xffff\nbuffer_store_dwordx2 v[4:5], v3, {WSR}, s5 offen sc1\ns_mov_b64 exec, -1')
        s(f's_branch {lj}\n{lsk}:\n' + (f'v_mov_b32 v4, {LMF}\nv_mov_b32 v5, 1\nds_write_b32 v4, v5' if o['b0'] else 's_barrier')); s.tagwait(); s(f'{ln}:\ns_barrier'); s.getloc(6, spin=False); s(f'{lj}:')
        s.waitprog(o['st0'], 1)
        s('s_mov_b32 s5, 0\nL_pair:')
        s.stats()
        s.stamp(3)
        l = s.lab('cnt')
        s(f's_lshl_b32 s8, s5, 2\nv_mov_b32 v4, s8\ns_mov_b32 s{SPIN}, {o["spin"]}\n{l}:\ns_sleep {o["pslp"]}\nds_read_b32 v5, v4 offset:{LCNT}\ns_sub_u32 s{SPIN}, s{SPIN}, 1\ns_waitcnt lgkmcnt(0)')
        s(f'v_readfirstlane_b32 s8, v5\ns_cselect_b32 s8, 8, s8\ns_cmp_lt_u32 s8, 8\ns_cbranch_scc1 {l}')
        s('L_T0:')
        s.stamp(4)
        T = 16
        for k in range(24): s(f'ds_read2st64_b32 {P(T+2*k)}, v1 offset0:{2*k} offset1:{2*k+1}')
        for w in range(8):
            if w >= 3: s(f's_waitcnt lgkmcnt({3 * (7 - w)})')
            elif w == 0: s('s_waitcnt lgkmcnt(15)')
            f = f's[{64 + (w & 6)}:{65 + (w & 6)}]'; e = w & 1
            for c in range(3):
                r = T + 6 * w + 2 * c; a = (8, 10, 12)[c]
                s(f'v_pk_mul_f32 {P(a)}, {P(r)}, {f} op_sel:[0,{e}] op_sel_hi:[1,{e}]' if w == 0 else
                  f'v_pk_fma_f32 {P(a)}, {P(r)}, {f}, {P(a)} op_sel:[0,{e},0] op_sel_hi:[1,{e},1]')
        s('v_add_f32 v8, v8, v11\nv_add_f32 v9, v9, v12\nv_add_f32 v10, v10, v13')
        s(f'v_bitop3_b32 v11, v8, v9, v10 bitop3:0x96\nv_xor_b32 v11, s{TAG}, v11')
        s.gstore([f'buffer_store_dwordx4 v[8:11], v2, {WSR}, s4 offen'])
        s.stamp(5)
        l = s.lab('early'); l2 = s.lab('next'); l3 = s.lab('fin')
        s(f's_cmp_eq_u32 s5, 3\ns_cbranch_scc0 {l}')
        s.role(0, 'L_Bg'); s.role(3, 'L_D'); s.role(1, 'L_exit', False)
        s('s_barrier')
        s.end()
        s(f'{l}:')
        s.role(0, l2, False)
        s(f's_mul_i32 s9, s5, 24\ns_add_u32 s9, s9, {120 + o["eg0"]}\ns_min_u32 s9, s9, {o["eg"]}')
        s.waitprog('s9', 12, o['pslp'])
        if 'E' not in o['nox']: s.gath(2, o['pslp'])
        s(f'{l2}:\ns_add_u32 s5, s5, 1\ns_cmp_lt_u32 s5, 3\ns_cbranch_scc1 L_pair')
        s.role(0, l3); s.role(3, 'L_D0')
        if o['cL']:
            E = o['cE']
            s.role(1, 'L_exit', False)
            s.trigger(); s.caddr()
            s(f's_add_u32 s5, s5, {(80 - 8 * E) * 8 * 3072}')
            s(s.cdma(8 * E, lambda t: f's_mov_b32 m0, {LBIG + 1024 * (80 - 8 * E + t)}', 63))
            s('s_barrier\ns_barrier\ns_waitcnt vmcnt(0)')
        s.end()
        s(f'{l3}:')
        s(f's_add_u32 s6, s6, 16384\ns_add_u32 s7, s6, 4096\nv_lshlrev_b32 v3, 1, v0\nv_add_u32 v3, {LO + 384 + OS * (int(str(o["ord"])[-1]) >> 1)}, v3\ns_waitcnt lgkmcnt(0)\ns_barrier')

    def stats(s):
        s(f'v_lshlrev_b32 v2, 4, v0\ns_lshr_b32 s6, s{S_H}, 1\ns_lshl2_add_u32 s6, s6, s5\ns_lshl_b32 s4, s6, 11\ns_add_u32 s4, s4, {W_ML}')
        s.poll([f'buffer_load_dwordx3 v[{4+4*k}:{6+4*k}], v2, {WSR}, s4 offen offset:{1024*k} sc1' for k in range(2)], s.ck_xor([4, 8], 2, 12, 13), slp=s.o['mlslp'])
        s('v_max_f32 v12, v4, v8')
        s.red16('v_max_f32', [12]); s.swapred('v_max_f32', 12, 13, 16); s.swapred('v_max_f32', 12, 13, 32)
        for r in (4, 8): s(f'v_sub_f32 v{r}, v{r}, v12\nv_mul_f32 v{r}, {hx(LOG2E)}, v{r}\nv_exp_f32 v{r}, v{r}')
        s('v_mul_f32 v5, v5, v4\nv_fmac_f32 v5, v9, v8')
        s.red16('v_add_f32', [5]); s.swapred('v_add_f32', 5, 13, 16); s.swapred('v_add_f32', 5, 13, 32)
        s(f'v_rcp_f32 v5, v5\ns_bitcmp1_b32 s{S_H}, 0\ns_cselect_b64 vcc, -1, 0\nv_cndmask_b32 v4, v4, v8, vcc\nv_mul_f32 v4, v4, v5')
        s(f's_lshl_b32 s4, s{S_J}, 3')
        for w in range(8):
            s(f'v_readlane_b32 s{64+w}, v4, s4')
            if w < 7: s('s_add_u32 s4, s4, 1')
        s(f's_mul_i32 s4, s5, 12288\ns_add_u32 s4, s4, {LPO}\nv_lshl_add_u32 v1, v0, 2, s4')
        s(f's_lshl_b32 s7, s5, 2\ns_lshr_b32 s7, 0x{str(s.o["ord"]).zfill(4)[::-1]}, s7')
        s(f's_bfe_u32 s4, s7, 0x10001\ns_mul_i32 s4, s4, {OS}\ns_and_b32 s7, s7, 1\ns_mul_i32 s7, s7, 384\ns_add_u32 s4, s4, s7\ns_add_u32 s4, s4, {LO}\nv_lshl_add_u32 v3, v0, 1, s4')
        s(f's_lshl_b32 s6, s6, 14\ns_add_u32 s6, s6, {W_ATT}\ns_and_b32 s4, s{S_IDX}, 15\ns_lshl_b32 s4, s4, 10\ns_add_u32 s4, s4, s6\ns_add_u32 s7, s6, 4096')

    def gath(s, nh, slp):
        G = 24
        if nh == 2: s('s_add_u32 s8, s6, 8192\ns_add_u32 s9, s6, 12288')
        if nh == 2 and s.o['glight']:
            s('v_and_b32 v14, 15, v0\nv_lshlrev_b32 v14, 10, v14')
            s.poll([f'buffer_load_dwordx4 {Q4(G)}, v14, {WSR}, s6 offen offset:1008 sc1'], s.ck_xor([G], 3, 12, 13), slp=slp)
        ck, t = s.ck_xor([G + 4 * k for k in range(8 * nh)], 3, 12, 13)
        for k in range(8 * nh):
            a = 16 + 4 * (k >> 3); r = G + 4 * k
            if k & 7: ck[k] += f'\nv_pk_add_f32 {P(a)}, {P(r-4) if k & 7 == 1 else P(a)}, {P(r)}\nv_add_f32 v{a+2}, v{r-2 if k & 7 == 1 else a+2}, v{r+2}'
        s.poll([f'buffer_load_dwordx4 {Q4(G+4*k)}, v2, {WSR}, s{6 + (k >> 2)} offen offset:{1024*(k & 3)} sc1' for k in range(8 * nh)], (ck, t), slp=slp, warmable=(nh == 1))
        for h in range(nh):
            a = 16 + 4 * h; of = 2 * OS * h
            s(f'v_cvt_pk_bf16_f32 v{a}, v{a}, v{a+1}\nv_cvt_pk_bf16_f32 v{a+2}, v{a+2}, v{a+2}')
            s(f'ds_write_b16 v3, v{a} offset:{of}\nds_write_b16_d16_hi v3, v{a} offset:{of+128}\nds_write_b16 v3, v{a+2} offset:{of+256}')

    def bgather(s):
        s.cur = 'g'
        s('L_Bg:')
        s.gath(1, 0)
        s.warmret('L_wBg')
        s('s_waitcnt lgkmcnt(0)')
        s.stamp(6)
        s('s_barrier')
        s.end()

    def s1(s):
        s.cur = 'b'
        o = s.o
        s.srd(RA, P_X, 2560); s.srd(RB, P_WQ, 640 * 12288)
        s('v_and_b32 v1, 31, v0\nv_lshlrev_b32 v1, 3, v1\nv_lshrrev_b32 v2, 5, v0\nv_mul_u32_u24 v2, 1280, v2\nv_add_u32 v1, v1, v2')
        for u in range(5): s(f'buffer_load_dwordx2 {P(10+2*u)}, v1, {RAR}, 0 offen offset:{256*u}')
        s(f'v_and_b32 v7, 15, v0\nv_lshl_add_u32 v2, v7, 1, v2\ns_mul_i32 s4, s{S_J}, 160')
        for u in range(5): s(f'buffer_load_ushort v{160+u}, v2, {RAR}, s4 offen offset:{32*u}')
        s.rows(3, 4, 3, 12288)
        s.ghead(6)
        s(f's_mul_i32 s5, s{S_J}, {80*12288}\ns_and_b32 s7, s{S_H}, 1\ns_lshl4_add_u32 s6, s7, s6\ns_mul_i32 s6, s6, 384\ns_add_u32 s5, s5, s6')
        if o['b0'] == 1: s.ldswait(LMF, 4, 1)
        elif not o['b0']: s('s_barrier')
        s(s.dma(30, 3, RB, 5, lambda t: 128 if t % 3 < 2 else 8 * 12288 - 256, LWQ, o['qF']))
        if o['qfirst']: s(f'v_mov_b32 v4, {LGO}\nv_mov_b32 v5, 1\nds_write_b32 v4, v5')
        s.tagwait()
        s('s_waitcnt vmcnt(30)')
        X = 20
        for k in range(10): s(f'v_lshlrev_b32 v{X+2*k}, 16, v{10+k}\nv_and_b32 v{X+2*k+1}, 0xffff0000, v{10+k}')
        s(f'v_add_f32 v4, v{X}, v{X+1}')
        for k in range(2, 20): s(f'v_add_f32 v4, v4, v{X+k}')
        s.red16('v_add_f32', [4]); s.swapred('v_add_f32', 4, 5, 16)
        s(f'v_mul_f32 v4, {hx(1/640)}, v4')
        for k in range(20): s(f'v_sub_f32 v{X+k}, v{X+k}, v4')
        s(f'v_mul_f32 v5, v{X}, v{X}')
        for k in range(1, 20): s(f'v_fmac_f32 v5, v{X+k}, v{X+k}')
        s.red16('v_add_f32', [5]); s.swapred('v_add_f32', 5, 6, 16)
        s(f'v_mul_f32 v5, {hx(1/640)}, v5')
        s.bf16r(4); s.bf16r(5)
        s(f'v_add_f32 v5, {hx(1e-5)}, v5'); s.bf16r(5)
        s('v_sqrt_f32 v5, v5'); s.bf16r(5); s('v_rcp_f32 v5, v5')
        for u in range(5):
            r = 160 + u
            s(f'v_lshlrev_b32 v{r}, 16, v{r}\nv_sub_f32 v{r}, v{r}, v4'); s.bf16r(r)
            s(f'v_mul_f32 v{r}, v{r}, v5'); s.bf16r(r)
        s.tr_lane(4, 5, 3072, 128)
        s(f'v_add_u32 v4, {LWQ}, v4')
        s.tr_lane(5, 6, 512, 128)
        s(f'v_lshrrev_b32 v6, 5, v0\nv_mul_u32_u24 v6, 2048, v6\nv_add_u32 v5, v5, v6\nv_add_u32 v5, {LWQ + 8*3072}, v5')
        BW, AC, A = 100, 40, 88
        def rd(ct):
            b = BW + 10 * (ct % 6); off = 1024 * (ct >> 2) + 32 * (ct & 3)
            for T in range(2):
                for hi in range(2): s(f'ds_read_b64_tr_b16 {P(b+4*T+2*hi)}, v4 offset:{off + 12288*T + 512*hi}')
            s(f'ds_read_b64_tr_b16 {P(b+8)}, v5 offset:{off}')
        s.rows(2, 6, 4, 3840 * 16)
        s(f's_mul_i32 s4, s{S_J}, 1280\ns_add_u32 s4, s4, {W_MP}\ns_add_u32 s5, s4, 10240')
        s('s_waitcnt vmcnt(0)')
        s.stamp(1)
        for ct in range(6): rd(ct)
        M = 40
        s.gather([f'buffer_load_dwordx3 v[{M+4*u}:{M+4*u+2}], v2, {WSR}, s{4 + u // 5} offen offset:{256 * (u % 5)} sc1' for u in range(10)],
                 [s.ck_xor([M + 4 * u], 2, 12, 13) for u in range(10)], 8, slp=o['pslp'], nm='P')
        s.stamp(2)
        for u in range(10): s(f'v_permlane32_swap_b32 v{M+4*u}, v{M+4*u+1}')
        for u in range(10): s(f'v_add_f32 v{M+4*u}, v{M+4*u}, v{M+4*u+1}')
        for u in range(10): s(f'v_mov_b32 v{M+4*u+1}, v{M+4*u}')
        for u in range(10): s(f'v_permlane16_swap_b32 v{M+4*u}, v{M+4*u+1}')
        for u in range(10): s(f'v_add_f32 v{M+4*u}, v{M+4*u}, v{M+4*u+1}')
        for u in range(10): s.bf16r(M + 4 * u)
        s(f'v_lshrrev_b32 v2, 5, v0\nv_mul_u32_u24 v2, 192, v2\nv_lshl_add_u32 v2, v7, 1, v2')
        for u in range(5):
            c = M + 20 + 4 * u; r = 160 + u
            s(f'v_add_f32 v{c}, 1.0, v{c}'); s.bf16r(c)
            s(f'v_mul_f32 v{r}, v{r}, v{c}'); s.bf16r(r)
            s(f'v_add_f32 v{r}, v{r}, v{M+4*u}\nv_cvt_pk_bf16_f32 v{r}, v{r}, v{r}\nds_write_b16 v2, v{r} offset:{LHS + 32*u}')
        s.getloc(6)
        s.a_lane(2, 3, 192, 16, LHS); s.a_lane(3, 6, 192, 8, LHS + 128)
        s('s_waitcnt lgkmcnt(0)')
        s(f'ds_read_b128 {Q4(A)}, v2\nds_read_b128 {Q4(A+4)}, v2 offset:64\nds_read_b64 {P(A+8)}, v3')
        for half in range(2):
            s('s_waitcnt lgkmcnt(0)')
            for ct in range(6 * half, 6 * half + 6): s.mfma(AC + 4 * ct, A + 8, BW + 10 * (ct % 6) + 8, True, k=16)
            for T in range(2):
                for ct in range(6 * half, 6 * half + 6):
                    s.mfma(AC + 4 * ct, A + 4 * T, BW + 10 * (ct % 6) + 4 * T, False)
                    if half == 0 and T == 1: rd(ct + 6)
        s(f'v_lshlrev_b32 v2, 4, v0\ns_lshl_b32 s4, s{S_H}, 3\ns_add_u32 s5, s4, s{S_J}\ns_lshl_b32 s5, s5, 11\ns_add_u32 s5, s5, {W_QP}')
        for b in range(2):
            for u in range(4):
                for c in range(3):
                    s(f'v_mov_b32_dpp v{16+4*b+c}, v{AC + 4*(3*u+c) + b} quad_perm:[0,1,2,3] row_mask:{1 << u} bank_mask:0xf')
        for b in range(2):
            t = 16 + 4 * b
            s(f'v_bitop3_b32 v{t+3}, v{t}, v{t+1}, v{t+2} bitop3:0x96\nv_xor_b32 v{t+3}, s{TAG}, v{t+3}')
        s.gstore([f'buffer_store_dwordx4 {Q4(16+4*b)}, v2, {WSR}, s5 offen offset:{1024*b}' for b in range(2)], nm='Q')
        s.stamp(3)
        s(f'v_mov_b32 v3, {LQF}\nv_mov_b32 v4, 1\nds_write_b32 v3, v4')
        s(f'L_Qg:\ns_bfe_u32 s9, s3, 0x10001\ns_and_b32 s4, s{S_H}, 30\ns_add_u32 s4, s4, s9\ns_lshl_b32 s4, s4, 14\ns_add_u32 s4, s4, {W_QP}\ns_mul_i32 s9, s9, 384')
        for k in range(1, 4): s(f's_add_u32 s{4+k}, s4, {4096*k}')
        Q = 40
        if o['qlight']:
            s('v_and_b32 v3, 7, v0\nv_lshlrev_b32 v3, 11, v3')
            s.poll([f'buffer_load_dwordx4 {Q4(Q)}, v3, {WSR}, s4 offen offset:2032 sc1'], s.ck_xor([Q], 3, 12, 13), slp=o['pslp'])
        def ck2(k):
            c, t = s.ck_xor([Q + 8 * k, Q + 8 * k + 4], 3, 12, 13); return ['\n'.join(c)], t
        s.gather(['\n'.join(f'buffer_load_dwordx4 {Q4(Q+8*k+4*b)}, v2, {WSR}, s{4 + (k >> 1)} offen offset:{2048*(k & 1) + 1024*b} sc1' for b in range(2)) for k in range(8)],
                 [ck2(k) for k in range(8)], 8, slp=o['pslp'], nm='Q')
        s('v_lshrrev_b32 v3, 4, v0\nv_mul_u32_u24 v3, 96, v3\nv_and_b32 v4, 15, v0\nv_lshl_add_u32 v3, v4, 1, v3\nv_add_u32 v3, s9, v3')
        for k in range(1, 8):
            for b in range(2):
                r = Q + 4 * b
                s(f'v_pk_add_f32 {P(r)}, {P(r)}, {P(r+8*k)}\nv_add_f32 v{r+2}, v{r+2}, v{r+8*k+2}')
        for b in range(2):
            r = Q + 4 * b; lq = LQ + 768 * b
            s(f'v_cvt_pk_bf16_f32 v{r}, v{r}, v{r+1}\nv_cvt_pk_bf16_f32 v{r+2}, v{r+2}, v{r+2}')
            s(f'ds_write_b16 v3, v{r} offset:{lq}\nds_write_b16_d16_hi v3, v{r} offset:{lq+32}\nds_write_b16 v3, v{r+2} offset:{lq+64}')
        s('s_waitcnt lgkmcnt(0)')
        s.stamp(4)
        s('s_barrier\ns_cmp_eq_u32 s3, 11\ns_cbranch_scc1 L_s3b')
        lc = s.lab('s1C'); ld = s.lab('s1D'); lw = s.lab('s1W')
        if o['warm']:
            s.role(1, lc); s.role(3, ld); s.role(0, lw, False)
            s(f's_mov_b32 s{SV}, 0'); s.warm('L_B', 'L_wB'); s.warm('L_Bg', 'L_wBg'); s(f's_branch {lw}')
            s(f'{lc}:\ns_mov_b32 s{SV}, 0'); s.warm('L_C', 'L_wC'); s(f's_branch {lw}')
            s(f'{ld}:\ns_mov_b32 s{SV}, {o["fw"]}'); s.warm('L_D', 'L_wD')
            s(f'{lw}:\ns_mov_b32 s{SV}, 9')
        s.balance5()
        s(f's_add_u32 s6, s6, 8192\ns_add_u32 s7, s7, 8192\nv_add_u32 v3, {2 * OS}, v3')
        s('s_barrier\ns_branch L_T0')

    def balance5(s):
        o = s.o; p0 = 3 * o['NPF']
        a = s.lab('bal'); e = s.lab('balE'); c = s.lab('nox'); d = s.lab('nost')
        V = 100
        s(f'v_mov_b32 v{V+1}, 0\ns_mov_b32 s11, 4096\ns_lshl_b32 s72, s{S_X}, 7\ns_add_u32 s72, s72, {W_PG}\ns_mov_b32 s75, {o["stat1"]}')
        s(f's_cmp_lt_u32 s{S_IDX}, {o["n1"]}\ns_cselect_b32 s78, {o["cstep"]}, {o["cstep2"]}\ns_cselect_b32 s79, {o["bdel"]}, {o["bdel2"]}')
        s(f's_cselect_b32 s74, 0, {o["n1"] * (o["cstep"] - o["cstep2"])}\ns_add_u32 s74, s74, {p0 + o["c0"]}')
        s(f's_lshl_b32 s5, s{S_IDX}, 3\ns_add_u32 s5, s5, s{S_X}\ns_mul_i32 s5, s5, s78\ns_lshr_b32 s5, s5, 3\ns_add_u32 s74, s74, s5\ns_add_u32 s79, s79, s{TAG}')
        s(f'v_and_b32 v{V}, 31, v0\nv_lshlrev_b32 v{V}, 2, v{V}')
        s(f's_lshl_b32 s73, s{S_X}, 12\ns_add_u32 s73, s73, {W_GL}\ns_mov_b32 s10, {W_GL}\nv_and_b32 v{V+5}, 7, v0\nv_cmp_eq_u32 s[76:77], s{S_X}, v{V+5}\nv_lshlrev_b32 v{V+5}, 12, v{V+5}\nv_mov_b32 v{V+6}, {p0}')
        s(f'v_xor_b32 v{V+4}, 4096, v{V+5}\nv_cndmask_b32_e64 v{V+5}, v{V+5}, v{V+4}, s[76:77]')
        s(f's_and_b32 s8, s{S_ROLE}, 1\ns_mul_i32 s8, s8, {o["bonus"]}\ns_sub_u32 s8, s{TAG}, s8')
        s(f'{a}:\nbuffer_load_dword v{V+3}, v{V+1}, {WSR}, s72 offen sc1\ns_waitcnt vmcnt(0)\nds_read_b32 v{V+2}, v{V+1} offset:{LPRG}')
        s(f'v_subrev_u32 v{V+3}, s8, v{V+3}\nds_write_b32 v{V+1}, v{V+3} offset:{LMODE}\ns_waitcnt lgkmcnt(0)\nv_readfirstlane_b32 s9, v{V+2}')
        s(f's_cmp_ge_u32 s9, s75\ns_cbranch_scc0 {d}\ns_mov_b32 s75, 999')
        s('s_mov_b32 s5, 3'); s.stats()
        s(f's_branch {a}\n{d}:')
        s(f's_cmp_ge_u32 s9, {o["bend"]}\ns_cbranch_scc1 {e}')
        s(f's_cmp_ge_u32 s9, s74\ns_cbranch_scc0 {c}')
        s(f's_mov_b32 s74, 999\nv_add_u32 v{V+3}, s{TAG}, v{V+2}\nbuffer_load_dword v{V+4}, v{V+5}, {WSR}, s10 offen sc1\nbuffer_store_dword v{V+3}, v{V}, {WSR}, s73 offen sc1\ns_waitcnt vmcnt(1)')
        s(f'v_subrev_u32 v{V+4}, s{TAG}, v{V+4}\nv_cmp_lt_u32 vcc, 192, v{V+4}\nv_cndmask_b32 v{V+4}, v{V+4}, v{V+6}, vcc')
        s(f'v_subrev_u32 v{V+2}, s78, v{V+2}\nv_cndmask_b32_e64 v{V+4}, v{V+4}, v{V+2}, s[76:77]')
        s(f's_cmp_lt_u32 s{S_IDX}, {o["n1"]}\ns_cselect_b32 s9, {min(o["emin"], 64)}, {min(o["emin2"], 64)}\nv_add_u32 v{V+7}, s9, v{V+4}')
        for ctl in ('quad_perm:[1,0,3,2]', 'quad_perm:[2,3,0,1]', 'row_half_mirror'): s.dppop('v_add_u32', V + 4, ctl); s.dppop('v_min_u32', V + 7, ctl)
        s(f'v_lshrrev_b32 v{V+4}, 3, v{V+4}\nv_min_u32 v{V+4}, v{V+4}, v{V+7}\nv_add_u32 v{V+4}, s79, v{V+4}\nbuffer_store_dword v{V+4}, v{V}, {WSR}, s72 offen')
        s(f'{c}:\ns_sleep {o["bslp"]}\ns_sub_u32 s11, s11, 1\ns_cbranch_scc0 {a}')
        s('s_mov_b32 s5, 3'); s.stats()
        s(f'{e}:')

    def bstage(s, t0, t1, F):
        o = s.o; l = s.lab('dma')
        s.srd(RA, P_WO, 6144 * 1280)
        s.swz(1280)
        s.ghead(5)
        s(f's_mul_i32 s5, s5, {192*1280}\ns_and_b32 s4, s{S_H}, 1\ns_mul_i32 s4, s4, 5\ns_add_u32 s4, s4, s{S_J}\ns_lshl_b32 s4, s4, 7')
        s(f's_add_u32 s5, s5, s4\ns_add_u32 s5, s5, {8 * 1280 * t0 + (15*192*1280 if t0 >= 24 else 0)}')
        s(f's_mov_b32 s4, {LB + 1024 * t0}\n{l}:')
        for t in range(2):
            s(f's_mov_b32 m0, s4\ns_waitcnt vmcnt({F - 1})\nbuffer_load_dwordx4 v{3 if t else 1}, {RAR}, s5 offen {o["wflag"]} lds')
            s(f's_add_u32 s5, s5, {8 * 1280}\ns_add_u32 s4, s4, 1024')
        if t0 < 24 < t1: s(f's_cmp_eq_u32 s4, {LB + 24576}\ns_cselect_b32 s6, {15*192*1280}, 0\ns_add_u32 s5, s5, s6')
        s(f's_cmp_lt_u32 s4, {LB + 1024 * t1}\ns_cbranch_scc1 {l}')

    def wstage(s):
        o = s.o; F = o['wF']
        ld = s.lab('wD'); lc = s.lab('wC'); le = s.lab('wE'); li = s.lab('wI')
        def loads(n, step, par):
            for t in range(n):
                s(f's_mov_b32 m0, s11')
                if t >= F: s(f's_waitcnt vmcnt({F - 1})')
                s(f'buffer_load_dwordx4 v{4 + (t & par)}, {RBR}, s10 offen {o["wflag"]} lds\ns_add_u32 s10, s10, {step}\ns_add_u32 s11, s11, 1024')
                if t == min(n, F) - 1 and o['mfirst']: s('s_barrier')
        def swz(stride):
            s(f'v_lshrrev_b32 v6, 3, v0\nv_mul_u32_u24 v4, {stride}, v6\nv_and_b32 v6, 2, v6\nv_and_b32 v5, 7, v0\nv_xor_b32 v6, v6, v5\nv_xor_b32 v5, 4, v6')
            s('v_lshl_add_u32 v5, v5, 4, v4\nv_lshl_add_u32 v4, v6, 4, v4')
        s.role(0, ld, False)
        s.srd(RB, P_WO, 6144 * 1280); swz(1280); s.ghead(10)
        s(f's_lshr_b32 s9, s3, 2\ns_mul_i32 s9, s9, 15\ns_add_u32 s10, s10, s9\ns_mul_i32 s10, s10, {192*1280}\ns_mul_i32 s9, s3, {48*1280}\ns_add_u32 s10, s10, s9')
        s(f's_lshr_b32 s9, s{S_CS}, 2\ns_lshl_b32 s9, s9, 7\ns_add_u32 s10, s10, s9\ns_mul_i32 s11, s3, 6144\ns_add_u32 s11, s11, {LB}')
        loads(6, 8 * 1280, 1)
        s(f's_branch {le}\n{ld}:')
        s.role(3, lc, False)
        n = 12 - o['dW']
        s.srd(RB, P_D, 1536 * 1280); s.rows(4, 5, 2, 1280)
        s(f's_mul_i32 s11, s3, {n}\ns_add_u32 s11, s11, {8 * o["dW"]}\ns_mul_i32 s10, s11, {16 * 1280}\ns_lshl_b32 s9, s{S_DT}, 6\ns_add_u32 s10, s10, s9\ns_lshl_b32 s11, s11, 10\ns_add_u32 s11, s11, {LBIG}')
        loads(n, 16 * 1280, 0)
        s(f's_branch {le}\n{lc}:')
        s.role(1, li, False)
        n = o['cE']
        s(f's_bitcmp1_b32 s{S_CS}, 0\ns_cselect_b64 s[{RB}:{RB+1}], s[{P_U}:{P_U+1}], s[{P_G}:{P_G+1}]\ns_mov_b32 s{RB+2}, {640 * 3072}\ns_mov_b32 s{RB+3}, 0x20000')
        swz(3072)
        s(f's_bitcmp1_b32 s3, 0\ns_cselect_b64 vcc, -1, 0\nv_cndmask_b32 v4, v4, v5, vcc')
        s(f's_add_u32 s11, s3, {80 - 8 * n}\ns_mul_i32 s10, s11, {8 * 3072}\ns_lshr_b32 s9, s{S_CS}, 1\ns_lshl_b32 s9, s9, 7\ns_add_u32 s10, s10, s9\ns_lshl_b32 s11, s11, 10\ns_add_u32 s11, s11, {LBIG}')
        for t in range(n):
            s(f's_mov_b32 m0, s11\nbuffer_load_dwordx4 v4, {RBR}, s10 offen {o["wflag"]} lds\ns_add_u32 s10, s10, {64 * 3072}\ns_add_u32 s11, s11, 8192')
        s(f'{li}:')
        if o['mfirst']: s('s_barrier')
        s(f'{le}:')

    def stage(s, half):
        o = s.o
        ld = s.lab('stD'); lc = s.lab('stC'); le = s.lab('stE')
        def part(n): return (0, n) if half is None else ((0, n // 4 * 2) if half == 0 else (n // 4 * 2, n))
        FF = lambda k: o['upF'] if half is None else o[k]
        s.role(0, ld, False)
        E = 0 if half is None else o['bE']; t0, t1 = part(48 - E - o['bD'])
        if t1 > t0: s.bstage(E + t0, E + t1, min(FF('bF'), 60))
        s(f's_branch {le}\n{ld}:')
        s.role(3, lc, False)
        W = o['dW']; t0, t1 = part(8 * (12 - W))
        if not o['dL']:
            s.srd(RA, P_D, 1536 * 1280); s.rows(1, 2, 2, 1280)
            s(f's_lshl_b32 s4, s{S_DT}, 6\ns_add_u32 s4, s4, {(8 * W + t0) * 16 * 1280}')
            s(s.dma(t1 - t0, 1, RA, 4, 16 * 1280, LBIG + 1024 * (8 * W + t0), FF('dF')))
        s(f's_branch {le}\n{lc}:')
        s.role(1, le, False)
        E = o['cE']; t0, t1 = part(8 * E)
        if not o['cL']:
            s.caddr()
            s(f's_add_u32 s5, s5, {(80 - 8 * E + t0) * 8 * 3072}')
            s(s.cdma(t1 - t0, lambda t: f's_mov_b32 m0, {LBIG + 1024 * (80 - 8 * E + t0 + t)}', FF('cF')))
        s(f'{le}:')
        if half is not None: s('s_waitcnt vmcnt(0)')

    def s2(s):
        s.cur = 'r'
        o = s.o
        if not o['b0']: s('s_barrier')
        s('s_getreg_b32 s4, hwreg(HW_REG_XCC_ID)')
        s(f'v_and_b32 v1, 31, v0\nv_lshlrev_b32 v1, 3, v1\ns_lshl_b32 s5, s{S_X}, 8\ns_add_u32 s5, s5, {W_XC}\ns_lshl3_add_u32 s6, s{S_IDX}, s5')
        s.tagwait()
        s(f'v_mov_b32 v2, s4\nv_mov_b32 v3, s{TAG}\ns_mov_b64 exec, 1')
        if o['xab']: s(f's_add_u32 s7, s6, {W_XL - W_XC}\nbuffer_store_dwordx2 v[2:3], v1, {WSR}, s7 offen')
        if 'X' not in o['nox']: s(f'buffer_store_dwordx2 v[2:3], v1, {WSR}, s6 offen sc1')
        s('s_mov_b64 exec, -1')
        s.idpoll(o['pslp'])
        s(f'v_xor_b32 v4, s4, v4\nv_or_b32 v4, v4, v6\nv_cmp_ne_u32 vcc, 0, v4\ns_cmp_eq_u64 vcc, 0\ns_cselect_b32 s4, 2, 1')
        if not o['loc']: s(f's_mov_b32 s4, 1')
        s(f'v_mov_b32 v4, s4\nv_mov_b32 v5, {LFLAG}\nds_write_b32 v5, v4\ns_waitcnt lgkmcnt(0)')
        s.stamp(2)
        if o['bE']:
            l = s.lab('noBe'); s.role(0, l, False); s.bstage(0, o['bE'], o['bEF']); s(f'{l}:')
        s('s_barrier')
        if not o['up']: s.stage(0)
        s.stamp(1)
        s.role(1, 'L_LN0')
        s.role(0, 'L_s23', False)
        s.warm('L_R', 'L_wR')
        s('L_R0:')
        s.waitprog(72, 1)
        s.getloc(1, spin=False)
        s.srd(RA, P_X, 2560)
        s(f'v_and_b32 v1, 15, v0\nv_lshlrev_b32 v2, 1, v1\ns_lshl_b32 s5, s{S_CS}, 5')
        s(f'buffer_load_ushort v4, v2, {RAR}, s5 offen\nbuffer_load_ushort v5, v2, {RAR}, s5 offen offset:1280')
        s(f'v_lshlrev_b32 v2, 3, v1\ns_lshl_b32 s5, s{S_CS}, 7\ns_add_u32 s6, s5, {W_MOD + 1280*8}')
        s.poll([f'buffer_load_dwordx2 v[6:7], v2, {WSR}, s6 offen sc1'], s.ck_tag([[7]], 8), slp=o['mlslp'])
        s('v_lshlrev_b32 v4, 16, v4\nv_lshlrev_b32 v5, 16, v5\nv_and_b32 v7, 0xffff0000, v6\nv_lshlrev_b32 v6, 16, v6')
        s(f's_add_u32 s5, s5, {W_X1}\nv_mov_b32 v9, s{TAG}\ns_lshl_b32 s6, s{S_X}, 13\ns_add_u32 s5, s5, s6')
        s.rows(3, 8, 4, 10240)
        s(f's_lshl_b32 s64, s{S_CS}, 8\ns_add_u32 s64, s64, {W_Y}')
        s(f's_sub_u32 s64, s64, {W_Y - W_YL}\ns_sub_u32 s6, 1, s{LOC}\ns_mul_i32 s6, s6, {W_Y - W_YL}\nv_mov_b32 v12, s6\nv_mov_b32 v13, {W_Y - W_YL}\nv_lshrrev_b32 v14, 5, v0')
        for k in range(4):
            s(f'v_add_u32 v15, {2*k}, v14\nv_cmp_eq_u32 vcc, s{S_X}, v15\nv_cndmask_b32 v15, v13, v12, vcc\nv_add_u32 v15, {40960*k}, v15\nv_add_u32 v{32+k}, v15, v3')
        if o['rown']:
            s(f's_lshr_b32 s4, s{S_H}, 1\nv_lshrrev_b32 v14, 4, v0\ns_bfe_u32 s6, s{S_H}, 0x10001\ns_mul_i32 s6, s6, {-20480 & 0xffffffff}\ns_add_u32 s6, s6, 10240')
            for k in range(4):
                s(f'v_add_u32 v15, {4*k}, v14\nv_cmp_eq_u32 s[{66+2*k}:{67+2*k}], s4, v15\nv_add_u32 v15, s6, v{32+k}\nv_cndmask_b32_e64 v{32+k}, v{32+k}, v15, s[{66+2*k}:{67+2*k}]')
            s(f's_and_b32 s4, s{S_CS}, 3\ns_lshl_b32 s4, s4, 7\ns_add_u32 s4, s4, {LYO}\nv_add_u32 v36, s4, v2')
        touch = '\n'.join(f'buffer_load_dword v{40+k}, v{32+k}, {WSR}, s64 offen sc1' for k in range(4))
        if o['bD']:
            n = o['bD'] // 2
            s.srd(RB, P_WO, 6144 * 1280)
            s('v_lshrrev_b32 v46, 3, v0\nv_mul_u32_u24 v44, 1280, v46\nv_and_b32 v46, 2, v46\nv_and_b32 v45, 7, v0\nv_xor_b32 v46, v46, v45\nv_xor_b32 v45, 4, v46')
            s('s_bitcmp1_b32 s3, 0\ns_cselect_b64 vcc, -1, 0\nv_cndmask_b32 v46, v46, v45, vcc\nv_lshl_add_u32 v44, v46, 4, v44')
            s.ghead(8)
            t0 = 48 - 2 * n; src = lambda t: (t if t < 24 else t + 15 * 24) * 8 * 1280
            s(f's_mul_i32 s8, s8, {192*1280}\ns_lshr_b32 s9, s{S_CS}, 2\ns_lshl_b32 s9, s9, 7\ns_add_u32 s8, s8, s9\ns_add_u32 s8, s8, {src(t0)}')
            s(f's_and_b32 s9, s3, 1\ns_mul_i32 s10, s9, {8 * 1280}\ns_add_u32 s8, s8, s10\ns_lshl_b32 s9, s9, 10\ns_add_u32 s9, s9, {LB + 1024 * t0}')
            dm = '\n'.join(f's_mov_b32 m0, s9\ns_add_u32 s9, s9, 2048\nbuffer_load_dwordx4 v44, {RBR}, s8 offen {o["wflag"]} lds\ns_add_u32 s8, s8, {src(t + 2) - src(t)}' for t in range(t0, 48, 2))
            if o['btrig'] <= 192:
                s.waitprog(o['btrig'] - 12, 12)
                if o['ball']: s.waitprog(o['ball'], 12, 1, at=LCNT + 12)
                else: s.waitprog(o['btrig'], 12, 1)
                s(dm)
        s('s_barrier')
        if o['bD']:
            if o['btrig'] > 192: s(dm)
            s('s_waitcnt vmcnt(0)')
            if o['bfl']: s(f's_mov_b64 exec, 1\nv_mov_b32 v12, 0\nv_mov_b32 v13, 1\nds_add_u32 v12, v13 offset:{LCNT + 16}\ns_mov_b64 exec, -1')
        if o['rg'] == 5: s(touch)
        s('s_barrier')
        if o['rg'] == 4: s(touch)
        if o['rg'] and o['rg'] != 6: s('s_barrier')
        s('L_R:')
        s.stamp(4)
        Y = 16
        ck, t = s.ck_xor([Y + 4 * k for k in range(4)], 2, 12, 13)
        if o['rown']:
            if o['rg'] != 6: s('ds_read_b64 v[38:39], v36')
            ck[0] += '\ns_waitcnt lgkmcnt(0)'
            for k in range(4):
                for e in range(2): ck[k] += f'\nv_cndmask_b32_e64 v{Y+4*k+e}, v{Y+4*k+e}, v{38+e}, s[{66+2*k}:{67+2*k}]'
        for k in range(1, 4): ck[k] += f'\nv_pk_add_f32 v[10:11], {P(Y) if k == 1 else "v[10:11]"}, {P(Y+4*k)}'
        lds_ = [f'buffer_load_dwordx3 v[{Y+4*k}:{Y+4*k+2}], v{32+k}, {WSR}, s64 offen sc1' for k in range(4)]
        if o['rmiss']:
            s.gather(lds_, [s.ck_xor([Y + 4 * k], 2, 12, 13) for k in range(4)], 8)
            s(f'v_pk_add_f32 v[10:11], {P(Y)}, {P(Y+4)}\nv_pk_add_f32 v[10:11], v[10:11], {P(Y+8)}\nv_pk_add_f32 v[10:11], v[10:11], {P(Y+12)}')
        else: s.poll(lds_, (ck, t), warmable=True, pre='s_barrier\nds_read_b64 v[38:39], v36' if o['rg'] == 6 else None)
        s.stamp(5)
        for w in (16, 32):
            s(f'v_mov_b32 v14, v10\nv_mov_b32 v15, v11\nv_permlane{w}_swap_b32 v10, v14\nv_permlane{w}_swap_b32 v11, v15\nv_pk_add_f32 v[10:11], v[10:11], v[14:15]')
        s(f'v_pk_fma_f32 v[10:11], v[10:11], v[6:7], v[4:5]\nv_cvt_pk_bf16_f32 v8, v10, v11')
        s.warmret('L_wR')
        s('s_mov_b64 exec, 0xffff')
        s.gstore([f'buffer_store_dwordx2 v[8:9], v2, {WSR}, s5 offen'])
        s.stamp(6)
        s.end()

    def s3(s):
        s.cur = 'l'
        o = s.o
        if not o['b0']: s('s_barrier')
        if not o['upe']: s.tagwait()
        if o['up'] and not o['wst']:
            if o['qfirst']: s.ldswait(LGO, 3)
            s.stage(None)
            if o['upe']: s.tagwait()
            if o['sep']: s(f's_waitcnt vmcnt({o["sep"]})\nv_mov_b32 v3, {LGO}\nv_mov_b32 v4, s{TAG}\nds_write_b32 v3, v4')
        s.ldswait(LQF, 3, o['pslp'])
        s('v_lshlrev_b32 v2, 4, v0\ns_branch L_Qg\nL_s3b:')
        if not o['up']: s.stage(1)
        s.stamp(1)
        s.role(0, 'L_R0')
        s.role(1, 'L_s23', False)
        s.warm('L_LN', 'L_wLN')
        s('L_LN0:')
        s.waitprog(72, 1)
        C1, SB, X = 8, 28, 48
        s(f'v_lshlrev_b32 v1, 4, v0\ns_and_b32 s8, s3, 1\ns_mul_i32 s11, s8, 0x02020000\ns_add_u32 s11, s11, 0x01000c0c')
        s(f's_mov_b32 s4, {W_MOD + 3*5120}\ns_mov_b32 s5, {W_MOD + 3*5120 + 4096}\ns_mov_b32 s6, {W_MOD + 4*5120}\ns_mov_b32 s7, {W_MOD + 4*5120 + 4096}')
        def ld5(base, sa): return [f'buffer_load_dwordx4 {Q4(base+4*u)}, v1, {WSR}, s{sa + (u >> 2)} offen offset:{1024*(u & 3)} sc1' for u in range(5)]
        pick = lambda r: f'v_perm_b32 v{r}, v{r}, v{r}, s11\nv_perm_b32 v{r+1}, v{r+2}, v{r+2}, s11'
        s.poll(ld5(C1, 6) + ld5(SB, 4), s.ck_tag([[C1 + 1 + 4 * k, C1 + 3 + 4 * k] for k in range(10)], 4), slp=o['mlslp'])
        for k in range(10): s(pick(C1 + 4 * k))
        for u in range(5):
            for e in range(2): s(f'v_add_f32 v{C1+4*u+e}, 1.0, v{C1+4*u+e}'); s.bf16r(C1 + 4 * u + e)
        s(f's_lshl_b32 s4, s{S_X}, 13\ns_add_u32 s4, s4, {W_X1}\ns_add_u32 s5, s4, 4096')
        s(f's_mul_i32 s8, s8, {HS}\ns_add_u32 s8, s8, {LH2}\nv_lshl_add_u32 v2, v0, 2, s8')
        s(f's_mov_b32 s10, {hx(1/640)}\nv_mov_b32 v68, {hx(1e-5)}')
        s('s_barrier\ns_barrier\ns_barrier')
        s('L_LN:')
        s.stamp(4)
        ck, t = s.ck_tag([[X + 1 + 4 * u, X + 3 + 4 * u] for u in range(5)], 70)
        for u in range(5):
            r = X + 4 * u
            ck[u] += '\n' + pick(r)
            if u == 0: ck[u] += f'\nv_readlane_b32 s8, v{X}, 0'
            ck[u] += f'\nv_pk_add_f32 {P(r)}, {P(r)}, s[8:9] op_sel_hi:[1,0] neg_lo:[0,1] neg_hi:[0,1]'
            if u == 0: ck[u] += f'\nv_pk_mul_f32 v[6:7], {P(r)}, {P(r)}'
            else: ck[u] += f'\nv_pk_add_f32 v[4:5], {P(X) if u == 1 else "v[4:5]"}, {P(r)}\nv_pk_fma_f32 v[6:7], {P(r)}, {P(r)}, v[6:7]'
        s.poll(ld5(X, 4), (ck, t), warmable=True)
        s.stamp(5)
        fill = [f'v_pk_mul_f32 {P(X+4*u)}, {P(X+4*u)}, {P(C1+4*u)}' for u in range(5)]
        s('v_add_f32 v4, v4, v5\nv_add_f32 v6, v6, v7'); s(fill.pop(0))
        s('v_permlane32_swap_b32 v4, v6\nv_add_f32 v4, v4, v6')
        s.red16('v_add_f32', [4], fill=fill); s.swapred('v_add_f32', 4, 5, 16)
        s('v_mul_f32 v4, s10, v4\nv_mov_b32 v6, v4\nv_permlane32_swap_b32 v4, v6')
        s('v_fma_f32 v6, -v4, v4, v6\nv_max_f32 v6, 0, v6\nv_add_f32 v6, v6, v68\nv_rsq_f32 v6, v6')
        for u in range(5): s(f'v_pk_fma_f32 {P(X+4*u)}, {P(C1+4*u)}, v[4:5], {P(X+4*u)} op_sel_hi:[1,0,1] neg_lo:[0,1,0] neg_hi:[0,1,0]')
        for u in range(5):
            r = X + 4 * u
            s(f'v_pk_fma_f32 {P(r)}, {P(r)}, v[6:7], {P(SB+4*u)} op_sel_hi:[1,0,1]\nv_cvt_pk_bf16_f32 v{r}, v{r}, v{r+1}')
            if u & 1: s(f'ds_write2st64_b32 v2, v{r-4}, v{r} offset0:{u-1} offset1:{u}')
        s(f'ds_write_b32 v2, v{X+16} offset:1024')
        s.warmret('L_wLN')
        s('s_waitcnt lgkmcnt(0)')
        s.stamp(3)
        s('s_barrier')
        s.end()
        s('L_s23:')
        s.role(3, 'L_exit', False)
        if o['fw']:
            s.waitprog(72, 1)
            s(f'v_and_b32 v6, 31, v0\nv_lshlrev_b32 v6, 3, v6\ns_lshl_b32 s9, s{S_DT}, 8\ns_add_u32 s9, s9, {W_MOD + 5*5120}')
            s.poll([f'buffer_load_dwordx2 v[10:11], v6, {WSR}, s9 offen sc1'], s.ck_tag([[11]], 12), slp=o['mlslp'])
        s('L_D0:')
        if o['dL']:
            l = s.lab('noL')
            s(f's_bitcmp1_b32 {o["dL"] << 8}, s{SV}\ns_cbranch_scc0 {l}')
            s.trigger(); s.daddr(); s(s.ddma()); s(f'{l}:')
        s('s_barrier\ns_branch L_D')
        s.end()

    def ldswait(s, at, v, slp=1):
        l = s.lab('lw')
        s(f'v_mov_b32 v{v}, {at}\ns_mov_b32 s{SPIN}, {s.o["spin"]}\n{l}:\ns_sleep {slp}\nds_read_b32 v{v+1}, v{v}\ns_sub_u32 s{SPIN}, s{SPIN}, 1\ns_waitcnt lgkmcnt(0)')
        s(f'v_readfirstlane_b32 s10, v{v+1}\ns_cselect_b32 s10, 1, s10\ns_cmp_eq_u32 s10, 1\ns_cbranch_scc0 {l}')
    def waitprog(s, n, v, slp=None, at=LPRG):
        l = s.lab('prog')
        s(f'v_mov_b32 v{v}, 0\ns_mov_b32 s{SPIN}, {s.o["spin"]}\n{l}:\ns_sleep {slp or s.o["mlslp"]}\nds_read_b32 v{v+1}, v{v} offset:{at}\ns_sub_u32 s{SPIN}, s{SPIN}, 1\ns_waitcnt lgkmcnt(0)')
        s(f'v_readfirstlane_b32 s4, v{v+1}\ns_cselect_b32 s4, 999, s4\ns_cmp_lt_u32 s4, {n}\ns_cbranch_scc1 {l}')
    def idpoll(s, slp):
        l = s.lab('gotid')
        if s.o['xab']:
            s(f's_add_u32 s7, s5, {W_XL - W_XC}')
            s.poll([f'buffer_load_dwordx2 v[4:5], v1, {WSR}, s7 offen sc1'], s.ck_tag([[5]], 6), slp=slp, spin=s.o['xab'])
            s(f's_cbranch_vccz {l}')
        s.poll([f'buffer_load_dwordx2 v[4:5], v1, {WSR}, s5 offen sc1'], s.ck_tag([[5]], 6), slp=slp)
        s(f'{l}:')

    def trigger(s):
        s.waitprog(s.o['btrig'] - 12, 12); s.waitprog(s.o['ball'], 12, 1, at=LCNT + 12)
    def daddr(s):
        s(f's_lshl_b32 s4, s{SV}, 13\ns_add_u32 s4, s4, {LBIG}')
        s.srd(RA, P_D, 1536 * 1280); s.rows(1, 2, 2, 1280)
        s(f's_mul_i32 s5, s{SV}, {128 * 1280}\ns_lshl_b32 s6, s{S_DT}, 6\ns_add_u32 s5, s5, s6')
    def ddma(s): return s.dma(8, 1, RA, 5, 16 * 1280, lambda t: f's_add_u32 m0, s4, {1024 * t}', 63)
    def caddr(s):
        s(f's_bitcmp1_b32 s{S_CS}, 0\ns_cselect_b64 s[{RA}:{RA+1}], s[{P_U}:{P_U+1}], s[{P_G}:{P_G+1}]\ns_mov_b32 s{RA+2}, {640 * 3072}\ns_mov_b32 s{RA+3}, 0x20000')
        s.swz(3072)
        s(f's_lshr_b32 s5, s{S_CS}, 1\ns_lshl_b32 s5, s5, 7')
    def swz(s, stride):
        s(f'v_lshrrev_b32 v2, 3, v0\nv_mul_u32_u24 v1, {stride}, v2\nv_and_b32 v2, 2, v2\nv_and_b32 v3, 7, v0\nv_xor_b32 v2, v2, v3\nv_xor_b32 v3, 4, v2')
        s('v_lshl_add_u32 v3, v3, 4, v1\nv_lshl_add_u32 v1, v2, 4, v1')
    def cdma(s, n, lds, F):
        out = []
        for t in range(n):
            out.append(lds(t))
            if F < 60: out.append(f's_waitcnt vmcnt({F - 1})')
            out.append(f'buffer_load_dwordx4 v{3 if t & 1 else 1}, {RAR}, s5 offen {s.o["wflag"]} lds')
            if t < n - 1: out.append(f's_add_u32 s5, s5, {8 * 3072}')
        return '\n'.join(out)

    def crole(s):
        s.cur = 'c'
        o = s.o; E = o['cE']; n = 2 * (10 - E)
        s(f'L_C:\ns_cmp_lt_u32 s{SV}, 4\ns_cbranch_scc0 L_exit')
        BW, A, D = 88, 8, 72
        s.caddr()
        s(f's_mul_i32 s4, s{SV}, {n}\ns_mul_i32 s6, s4, {8 * 3072}\ns_add_u32 s5, s5, s6\ns_lshl_b32 s4, s4, 10\ns_add_u32 s4, s4, {LBIG}')
        s.live('s_barrier\n' + s.cdma(n, lambda t: f's_add_u32 m0, s4, {1024 * t}', 63))
        s.tr_lane(2, 3, 1024, 128)
        s(f'v_bfe_u32 v3, v0, 3, 2\nv_xor_b32 v3, s{SV}, v3\nv_lshl_add_u32 v2, v3, 5, v2\nv_add_u32 v2, {LBIG}, v2\nv_add_u32 v5, 40960, v2')
        s.a_lane(3, 4, HS, 16, LH2)
        s(f's_and_b32 s4, s{S_CS}, 1\ns_mul_i32 s6, s4, 12288\ns_lshr_b32 s5, s{S_CS}, 1\ns_lshl2_add_u32 s5, s5, s{SV}\ns_lshl_b32 s5, s5, 7\ns_add_u32 s6, s6, s5\ns_add_u32 s6, s6, {W_ACT}')
        s(f'v_lshlrev_b32 v1, 3, v0\ns_mov_b32 s7, {hx(-LOG2E)}\nv_mov_b32 v77, s{TAG}\ns_add_u32 s8, s6, {W_AL - W_ACT}')
        s('s_waitcnt vmcnt(0)')
        s.stamp(3)
        s.live('s_barrier')
        for T in range(20):
            for hi in range(2): s(f'ds_read_b64_tr_b16 {P(BW + 4*T + 2*hi)}, v{2 if T < 10 else 5} offset:{4096*(T % 10) + 512*hi}')
        s('s_waitcnt lgkmcnt(0)'); s.live('s_barrier')
        s.stamp(5)
        for T in range(15): s(f'ds_read_b128 {Q4(A+4*T)}, v3 offset:{64*T}')
        for T in range(20):
            s(f's_waitcnt lgkmcnt({min(14, 19 - T)})')
            s.mfma(D, A + 4 * (T % 15), BW + 4 * T, T == 0)
            if T < 5: s(f'ds_read_b128 {Q4(A+4*T)}, v3 offset:{64*(T+15)}')
        l = s.lab('up')
        s(f's_cmp_eq_u32 s4, 1\ns_cbranch_scc1 {l}')
        for op in (f'v_mul_f32 v{{t}}, s7, v{{d}}', 'v_exp_f32 v{t}, v{t}', 'v_add_f32 v{t}, 1.0, v{t}', 'v_rcp_f32 v{t}, v{t}', 'v_mul_f32 v{d}, v{d}, v{t}'):
            for b in range(2): s(op.format(t=D + 2 + b, d=D + b))
        s(f'{l}:\nv_cvt_pk_bf16_f32 v76, v{D}, v{D+1}')
        s.warmret('L_wC')
        st = [f'buffer_store_dwordx2 v[76:77], v1, {WSR}, s6 offen sc1', f'buffer_store_dwordx2 v[76:77], v1, {WSR}, s8 offen']
        s('s_mov_b64 exec, 0xffff\n' + '\n'.join(st[::-1] if o['pfa'] else st))
        s.stamp(6)
        s.end()

    def drole(s):
        s.cur = 'd'
        o = s.o
        s('L_D:')
        BW, A, D = 40, 72, 88
        s.daddr(); s.srd(RB, P_OUT, 2560)
        l = s.lab('have')
        have = f's_bitcmp1_b32 {o["dL"] << 8}, s{SV}' if o['dL'] else f's_cmp_ge_u32 s{SV}, {o["dW"]}'
        s.live(f's_barrier\n{have}\ns_cbranch_scc1 {l}\n' + s.ddma() + f'\n{l}:')
        s.tr_lane(2, 3, 512, 64)
        s('v_add_u32 v2, s4, v2\ns_waitcnt vmcnt(0)')
        s.stamp(3)
        for tt in range(2):
            for T in range(4):
                for hi in range(2): s(f'ds_read_b64_tr_b16 {P(BW + 16*tt + 4*T + 2*hi)}, v2 offset:{2048*T + 256*hi + 32*tt}')
        s(f's_lshl_b32 s4, s{SV}, 9\ns_add_u32 s4, s4, {LACT}\nv_lshl_add_u32 v2, v0, 2, s4')
        s.a_lane(3, 4, 256, 16, 0); s('v_add_u32 v3, s4, v3')
        s(f'v_and_b32 v4, 31, v0\nv_mul_u32_u24 v4, 96, v4\ns_lshl_b32 s4, s{SV}, 2\ns_add_u32 s4, s4, {LDP}\nv_add_u32 v4, s4, v4')
        s(f'v_lshlrev_b32 v1, 4, v0\ns_lshl_b32 s5, s{SV}, 10\ns_add_u32 s5, s5, {W_ACT}')
        s('s_add_u32 s6, s5, 12288')
        if True:
            s(f'v_mov_b32 v5, {LFLAG}\nds_read_b32 v6, v5\ns_lshl_b32 s7, s{SV}, 1\ns_mul_i32 s8, s{S_X}, 3\ns_sub_u32 s7, s7, s8\nv_lshrrev_b32 v5, 5, v0\nv_add_u32 v5, s7, v5\nv_cmp_gt_u32 vcc, 3, v5')
            s(f's_waitcnt lgkmcnt(0)\nv_subrev_u32 v6, 1, v6\nv_readfirstlane_b32 s11, v6\nv_mul_u32_u24 v6, {W_AL - W_ACT}, v6\nv_cndmask_b32 v5, 0, v6, vcc\nv_add_u32 v1, v1, v5')
        s(f'v_and_b32 v5, 31, v0\nv_lshlrev_b32 v6, 3, v5\nv_lshrrev_b32 v7, 5, v0')
        lf = s.lab('nofin')
        s(f's_cmp_eq_u32 s{SV}, {o["fw"]}\ns_cbranch_scc0 {lf}')
        s(f's_lshl_b32 s8, s{S_DT}, 8\ns_add_u32 s9, s8, {W_MOD + 5*5120}\ns_add_u32 s8, s8, {W_X1}')
        s(f's_lshl_b32 s10, s{S_X}, 13\ns_add_u32 s8, s8, s10')
        if o['fw']: s.poll([f'buffer_load_dwordx2 v[8:9], v6, {WSR}, s8 offen sc1'], s.ck_tag([[9]], 12), slp=o['dslp'], warmable=True)
        else: s.poll([f'buffer_load_dwordx2 v[10:11], v6, {WSR}, s9 offen sc1', f'buffer_load_dwordx2 v[8:9], v6, {WSR}, s8 offen sc1'], s.ck_tag([[11], [9]], 12), slp=o['dslp'], warmable=True)
        s('v_lshlrev_b32 v9, 4, v7\nv_lshrrev_b32 v8, v9, v8\nv_lshlrev_b32 v8, 16, v8\nv_lshrrev_b32 v10, v9, v10\nv_lshlrev_b32 v10, 16, v10')
        if o['adel']: s(f's_sleep {o["adel"]}')
        if o['agate']:
            s(f's_cmp_eq_u32 s11, 1\ns_cbranch_scc0 {lf}')
            s(f'v_min_u32 v11, {o["agate"] - 1}, v5\nv_lshlrev_b32 v11, 7, v11\nv_mul_u32_u24 v9, 12288, v7\nv_add_u32 v11, v11, v9\ns_mul_i32 s8, s{S_X}, 1536\ns_add_u32 s8, s8, {W_AL}')
            s.poll([f'buffer_load_dword v9, v11, {WSR}, s8 offen offset:4 sc1'], s.ck_tag([[9]], 12), warmable=True)
        s(f'{lf}:')
        s(f'v_lshl_add_u32 v6, v5, 1, v7\nv_mul_u32_u24 v6, 48, v6\nv_add_u32 v6, {LDP}, v6')
        s(f'v_mul_u32_u24 v7, 1280, v7\nv_lshl_add_u32 v5, v5, 1, v7\ns_lshl_b32 s8, s{S_DT}, 6')
        if o['otouch']: s(f'buffer_load_dword v30, v5, {RBR}, s8 offen')
        s.live('s_barrier')
        ck, t = s.ck_tag([[17, 19], [21, 23]], 12)
        for k in range(2):
            for r in (16 + 4 * k, 18 + 4 * k): ck[k] += f'\nv_and_b32 v{r+1}, 0xffff0000, v{r}\nv_lshlrev_b32 v{r}, 16, v{r}'
        s.poll([f'buffer_load_dwordx4 {Q4(16+4*k)}, v1, {WSR}, s{5+k} offen sc1' for k in range(2)], (ck, t), warmable=True)
        s.stamp(5)
        s('v_pk_mul_f32 v[16:17], v[16:17], v[20:21]\nv_pk_mul_f32 v[18:19], v[18:19], v[22:23]\nv_cvt_pk_bf16_f32 v16, v16, v18\nv_cvt_pk_bf16_f32 v17, v17, v19')
        s('ds_write2st64_b32 v2, v16, v17 offset0:0 offset1:1\ns_waitcnt lgkmcnt(0)')
        for T in range(4): s(f'ds_read_b128 {Q4(A+4*T)}, v3 offset:{64*T}')
        for T in range(4):
            s(f's_waitcnt lgkmcnt({3-T})')
            for tt in range(2): s.mfma(D + 4 * tt, A + 4 * T, BW + 16 * tt + 4 * T, T == 0)
        for b in range(2): s(f'v_mov_b32_dpp v{D+b}, v{D+4+b} quad_perm:[0,1,2,3] row_mask:0xa bank_mask:0xf')
        s(f'ds_write2_b32 v4, v{D}, v{D+1} offset0:0 offset1:12\ns_waitcnt lgkmcnt(0)'); s.stamp(1); s.live('s_barrier'); s.stamp(2)
        s(f's_cmp_eq_u32 s{SV}, {o["fw"]}\ns_cbranch_scc0 L_exit')
        for k in range(3): s(f'ds_read_b128 {Q4(16+4*k)}, v6 offset:{16*k}')
        s('s_waitcnt lgkmcnt(1)\nv_pk_add_f32 v[16:17], v[16:17], v[18:19]\nv_pk_add_f32 v[20:21], v[20:21], v[22:23]\nv_pk_add_f32 v[16:17], v[16:17], v[20:21]')
        s('s_waitcnt lgkmcnt(0)\nv_pk_add_f32 v[24:25], v[24:25], v[26:27]\nv_pk_add_f32 v[16:17], v[16:17], v[24:25]\nv_add_f32 v16, v16, v17')
        s('v_fma_f32 v16, v16, v10, v8\nv_mov_b32_dpp v17, v16 quad_perm:[1,1,3,3] row_mask:0xf bank_mask:0xf\nv_cvt_pk_bf16_f32 v16, v16, v17')
        s.warmret('L_wD')
        s(f's_mov_b32 exec_lo, 0x55555555\ns_mov_b32 exec_hi, 0x55555555\nbuffer_store_dword v16, v5, {RBR}, s8 offen {o["oflag"]}')
        s.stamp(6)
        s(f's_cmp_eq_u32 s{S_DT}, 0\ns_cbranch_scc0 L_fin')
        s(f's_mov_b64 exec, 1\nv_mov_b32 v17, s{TAG}\nv_mov_b32 v18, 0\nbuffer_store_dword v17, v18, {WSR}, 0 offen {o["oflag"]}')
        if o['diag']:
            s(f'L_diag:\ns_memrealtime s[76:77]\ns_waitcnt lgkmcnt(0)\ns_sub_u32 s76, s76, s78\ns_cmp_lt_u32 s76, {o["diag"]}\ns_cbranch_scc1 L_diag')

    def exit(s):
        s('L_fin:')
        if s.o['stamps'] != 4: s('L_exit:')
        if s.o['stamps']:
            s('s_waitcnt vmcnt(0)')
            s.stamp(7, True)
            if s.o['stamps'] == 3: s(f's_memtime s[{ST0+12}:{ST0+13}]')
            s('s_mov_b64 exec, 1\ns_waitcnt lgkmcnt(0)')
            s(f'{"s_mov_b32 s4, s14" if s.o["stamps"] == 4 else "s_mul_i32 s4, s2, 12"}\n{"" if s.o["stamps"] == 4 else "s_add_u32 s4, s4, s3"}\ns_lshl_b32 s4, s4, 6\ns_add_u32 s4, s4, {W_STAMP}\nv_mov_b32 v1, 0')
            for k in range(4):
                for e in range(4): s(f'v_mov_b32 v{4+4*k+e}, s{ST0+4*k+e}')
                s(f'buffer_store_dwordx4 {Q4(4+4*k)}, v1, {WSR}, s4 offen offset:{16*k}')
        if s.o['stamps'] == 4: s('L_exit:')
        s('L_end:\ns_endpgm')

    def build(s):
        s.entry(); s.stream()
        for _ in range(s.o['shift']): s('s_endpgm')
        s('L_service:')
        s('; ---- the flags, counters and hints in LDS start out clear (complete at the wait for the arguments, before the first barrier)')
        s(f'v_and_b32 v1, 15, v0\nv_cmp_eq_u32 vcc, {(LMODE - LFLAG) // 4}, v1\nv_mov_b32 v2, 999\nv_lshlrev_b32 v1, 2, v1\nv_cndmask_b32 v2, 0, v2, vcc\nds_write_b32 v1, v2 offset:{LFLAG}')
        s.roles()
        if s.o['b0']: s('s_barrier')
        s('s_cmp_eq_u32 s3, 9\ns_cbranch_scc1 L_s1\ns_cmp_eq_u32 s3, 10\ns_cbranch_scc1 L_s2\ns_cmp_eq_u32 s3, 11\ns_cbranch_scc1 L_s3')
        s.s0(); s.bgather(); s('L_s1:'); s.s1(); s('L_s2:'); s.s2(); s('L_s3:'); s.s3(); s.crole(); s.drole(); s.exit()
        body, n = pad(s.L)
        out = [HEADER.rstrip(), f'; @launch grid=(256,1,1) block=(768,1,1) lds={LEND}', '.amdgcn_target "amdgcn-amd-amdhsa--gfx950"', '.text',
               f'.globl {KN}', '.p2align 8', f'.type {KN},@function', f'{KN}:']
        out += [l if l.endswith(':') or l.startswith(';') else '    ' + l for l in body]
        out += ['.section .rodata,"a"', '.p2align 6', f'.amdhsa_kernel {KN}', '  .amdhsa_next_free_vgpr 168', '  .amdhsa_next_free_sgpr 96',
                '  .amdhsa_accum_offset 168', '  .amdhsa_group_segment_fixed_size 0', '  .amdhsa_kernarg_size 112', '  .amdhsa_user_sgpr_count 2',
                '  .amdhsa_user_sgpr_kernarg_segment_ptr 1', '  .amdhsa_system_sgpr_workgroup_id_x 1', '  .amdhsa_float_denorm_mode_32 3', '.end_amdhsa_kernel']
        return '\n'.join(out) + '\n', n

if __name__ == '__main__':
    names = []
    for spec in sys.argv[1:]:
        kw = {}
        name, _, rest = spec.partition(':')
        for kv in filter(None, rest.split(',')):
            k, v = kv.split('=')
            kw[k] = int(v) if v.isdigit() else v.replace('+', ' ').replace('_', '')
        t, n = G(**kw).build()
        open(name, 'w').write(t)
        names.append(name)
    print(' '.join(names))
```
